```python
import torch

def _softmax(x, axis=-1):
    return torch.softmax(x, dim=axis)
def _gelu(x):
    return torch.nn.functional.gelu(x, approximate="tanh")
def _silu(x):
    return torch.nn.functional.silu(x)
def _sigmoid(x):
    return torch.sigmoid(x)
def _layernorm(x, axis=-1, eps=1e-5):
    m = x.mean(dim=axis, keepdim=True)
    v = x.var(dim=axis, keepdim=True, unbiased=False)
    return (x - m) / torch.sqrt(v + eps)
def _scatter_add(tgt, idx, src, axis=0):
    return tgt.clone().index_add_(axis, idx, src)
def _segment_sum(src, seg, n):
    out = torch.zeros((n,) + src.shape[1:], dtype=src.dtype)
    return out.index_add_(0, seg, src)
def _pad(x, pw):
    flat = tuple(v for pair in reversed(pw) for v in pair)
    return torch.nn.functional.pad(x, flat)

kernel_name = 'parallel_sum__linear_kernel_hedgehog__dense_activation_mish__prompt'

def setup_inputs():

    _w = (lambda a: (lambda t: t.to(torch.bfloat16) if t.is_floating_point() else t)(torch.as_tensor(a)))
    def _A_setup():
        B, S, D, H = 1, 2048, 512, 32
        Dh = D // H
        return {
            "x": _w((lambda *s: torch.randn(*s, dtype=torch.bfloat16) * 0.05)(B, S, D)),
            "wqkv": _w((lambda *s: torch.randn(*s, dtype=torch.bfloat16) * 0.2)(D, 3 * D)),
            "w_phi": _w((lambda *s: torch.randn(*s, dtype=torch.bfloat16) * 0.2)(H, Dh, Dh) * (Dh ** -0.5)),
            "wo": _w((lambda *s: torch.randn(*s, dtype=torch.bfloat16) * 0.05)(D, D)),
        }
    _A_in = _A_setup()

    def _B_setup():
        B, S, D, F = 1, 2048, 512, 1376
        return {
            "x": _w((lambda *s: torch.randn(*s, dtype=torch.bfloat16) * 0.05)(B, S, D)),
            "w1": _w((lambda *s: torch.randn(*s, dtype=torch.bfloat16) * 0.8)(D, F) * (D ** -0.5)),
            "b1": _w((lambda *s: torch.randn(*s, dtype=torch.bfloat16) * 0.2)(F)),
            "w2": _w((lambda *s: torch.randn(*s, dtype=torch.bfloat16) * 0.1)(F, D) * (F ** -0.5)),
        }
    _B_in = _B_setup()

    return {
        "A_x": _A_in["x"],
        "A_wqkv": _A_in["wqkv"],
        "A_w_phi": _A_in["w_phi"],
        "A_wo": _A_in["wo"],
        "B_x": _B_in["x"],
        "B_w1": _B_in["w1"],
        "B_b1": _B_in["b1"],
        "B_w2": _B_in["w2"],
    }

def reference(A_x, A_wqkv, A_w_phi, A_wo, B_x, B_w1, B_b1, B_w2):
    def _A_ref(x, wqkv, w_phi, wo):
        B, S, D = x.shape
        H = 32; Dh = D // H
        qkv = (lambda x, *d: x.permute(*d))((x @ wqkv).reshape(B, S, 3, H, Dh), 2, 0, 3, 1, 4)
        q, k, v = qkv[0], qkv[1], qkv[2]
        pq = torch.einsum("bhsd,hdf->bhsf", q, w_phi)
        pk = torch.einsum("bhsd,hdf->bhsf", k, w_phi)
        phi_q = torch.concatenate([_softmax(pq, axis=-1), _softmax(-pq, axis=-1)], axis=-1)
        phi_k = torch.concatenate([_softmax(pk, axis=-1), _softmax(-pk, axis=-1)], axis=-1)
        kv = torch.einsum("bhsf,bhsd->bhfd", phi_k, v)
        z  = torch.einsum("bhsf->bhf", phi_k)
        num = torch.einsum("bhqf,bhfd->bhqd", phi_q, kv)
        den = torch.einsum("bhqf,bhf->bhq", phi_q, z)[..., None] + 1e-6
        o = num / den
        return (lambda x, *d: x.permute(*d))(o, 0, 2, 1, 3).reshape(B, S, D) @ wo

    def _B_ref(x, w1, b1, w2):
        h = torch.einsum("bsd,df->bsf", x, w1) + b1
        sp = torch.log1p(torch.exp(-torch.abs(h))) + torch.where(h > 0, h, torch.zeros_like(h))
        act = h * torch.tanh(sp)
        return torch.einsum("bsf,fd->bsd", act, w2)

    x = A_x
    xn = _layernorm(x, axis=-1)
    return x + _A_ref(xn, A_wqkv, A_w_phi, A_wo) + _B_ref(xn, B_w1, B_b1, B_w2)
```

```python
import re

TRANS = ("v_exp_f32", "v_log_f32", "v_rcp_f32", "v_rsq_f32", "v_sqrt_f32", "v_sin_f32", "v_cos_f32")


def regs_of(tok):
    tok = tok.strip()
    tok = tok.lstrip("-")
    m = re.fullmatch(r"abs\((.*)\)", tok) or re.fullmatch(r"\|(.*)\|", tok)
    if m:
        tok = m.group(1)
    m = re.fullmatch(r"([vsa])(\d+)", tok)
    if m:
        return {(m.group(1), int(m.group(2)))}
    m = re.fullmatch(r"([vsa])\[(\d+):(\d+)\]", tok)
    if m:
        return {(m.group(1), i) for i in range(int(m.group(2)), int(m.group(3)) + 1)}
    if tok in ("vcc", "vcc_lo", "vcc_hi"):
        return {("s", "vcc")}
    if tok in ("exec", "exec_lo", "exec_hi"):
        return {("s", "exec")}
    if tok == "m0":
        return {("s", "m0")}
    return set()


class Ins:
    def __init__(self, text):
        self.text = text
        t = text.split(";")[0].strip()
        self.label = None
        self.op = ""
        self.wr = set(); self.rd = set()
        self.kind = "other"
        self.states = 1
        self.passes = 0
        self.A = self.B = self.C = self.D = set()
        self.target = None
        self.dpp = False
        if t.endswith(":"):
            self.label = t[:-1]; self.kind = "label"; self.states = 0
            return
        if not t or t.startswith("."):
            self.kind = "none"; self.states = 0
            return
        parts = t.split(None, 1)
        op = parts[0]; self.op = op
        rest = parts[1] if len(parts) > 1 else ""
        rest = re.sub(r"\s(op_sel_hi|neg_lo|neg_hi|op_sel):\[[^\]]*\]", "" if op.startswith("v_pk_") else " op_sel", rest)
        rest = re.sub(r"quad_perm:\[[^\]]*\]", "quad_perm", rest)
        ops = [o.strip() for o in rest.split(",")]
        mods = ""
        if ops:
            l = ops[-1].split(None, 1)
            if l:
                ops[-1] = l[0]
                mods = l[1] if len(l) > 1 else ""
        self.mods = mods
        R = [regs_of(o) for o in ops]
        if op == "s_nop":
            self.states = int(ops[0], 0) + 1; self.kind = "nop"
        elif op.startswith("s_cbranch") or op == "s_branch":
            self.kind = "branch"; self.target = ops[0]
        elif op.startswith("v_mfma"):
            self.kind = "mfma"
            self.D, self.A, self.B, self.C = R[0], R[1], R[2], R[3]
            self.wr = set(R[0]); self.rd = R[1] | R[2] | R[3]
            self.sgemm = op.endswith("_f32") and "bf16" not in op and "f16" not in op
            if "32x32x16" in op: self.passes = 8
            elif "16x16x32" in op: self.passes = 4
            elif "32x32x2_f32" in op: self.passes = 16
            elif "16x16x4_f32" in op: self.passes = 8
            else: raise Exception("mfma passes " + op)
        elif op.startswith("v_"):
            self.kind = "valu"
            if "permlane" in op and "swap" in op:
                self.wr = R[0] | R[1]; self.rd = R[0] | R[1]
            elif op.startswith("v_cmp"):
                self.wr = set(R[0]); self.rd = set().union(*R[1:])
                if op.startswith("v_cmpx"): self.wr |= {("s", "exec")}
            elif op.startswith(("v_add_co", "v_sub_co", "v_addc_co", "v_subb_co")):
                self.wr = R[0] | R[1]; self.rd = set().union(*R[2:])
            elif op == "v_nop":
                pass
            else:
                self.wr = set(R[0]); self.rd = set().union(*R[1:]) if len(R) > 1 else set()
                if op.startswith(("v_fmac", "v_dot2c", "v_mac", "v_pk_fmac")): self.rd |= R[0]
                if op.startswith("v_writelane"): self.rd |= R[0]
            if "row_" in mods or "quad_perm" in mods or "wave_" in mods or op.endswith("_dpp"):
                self.dpp = True
                self.rd |= R[0]
        elif op.startswith("ds_"):
            self.kind = "ds"
            if op.startswith(("ds_read", "ds_bpermute", "ds_permute", "ds_swizzle")) or "_rtn" in op:
                self.wr = set(R[0]); self.rd = set().union(*R[1:])
            else:
                self.rd = set().union(*R)
        elif op.startswith("buffer_") or op.startswith("global_"):
            self.kind = "vmem"
            toks = mods.split()
            self.lds = "lds" in toks
            if op.startswith("buffer_load") and self.lds:
                self.rd = set().union(*R) | {("s", "m0")}
            elif "load" in op:
                self.wr = set(R[0]); self.rd = set().union(*R[1:])
            else:
                self.rd = set().union(*R)
                self.data = R[0] if op.startswith("buffer_") else R[1]
                if "atomic" in op and "sc0" in toks: self.wr = set(R[0])
        elif op.startswith("s_"):
            self.kind = "salu"
            if op.startswith(("s_cmp", "s_waitcnt", "s_barrier", "s_setprio", "s_sleep", "s_endpgm", "s_bitcmp")):
                self.rd = set().union(*R) if R else set()
            else:
                self.wr = set(R[0]); self.rd = set().union(*R[1:]) if len(R) > 1 else set()
                if "saveexec" in op: self.wr |= {("s", "exec")}
        else:
            raise Exception("unknown op " + text)


def need(p, c):
    n = 0
    vw = {r for r in p.wr if r[0] in "va"}
    sw = {r for r in p.wr if r[0] == "s"}
    if p.kind == "valu":
        isdot = p.op.startswith("v_dot")
        if c.kind == "mfma" and vw & c.rd: n = max(n, 3 if isdot else 2)
        if c.kind == "valu":
            if p.op in TRANS or p.op.rsplit("_", 1)[0] in TRANS:
                if vw & c.rd: n = max(n, 1)
            if sw & c.rd: n = max(n, 4 if c.op.startswith(("v_readlane", "v_writelane")) else 2)
            if ("s", "vcc") in sw and c.op.startswith(("v_cndmask", "v_addc", "v_subb")): n = max(n, 2)
            if vw & c.rd and c.op.startswith(("v_readfirstlane", "v_readlane")): n = max(n, 1)
            if vw & c.rd and ("permlane" in c.op or c.dpp): n = max(n, 2)
            if ("op_sel" in p.mods or "sdwa" in p.op or "dst_sel" in p.mods) and vw & (c.rd | c.wr): n = max(n, 1)
            if isdot and (vw & (c.rd | c.wr)) and c.op != p.op: n = max(n, 3)
            if ("s", "exec") in sw: n = max(n, 5)
        if isdot and c.kind in ("ds", "vmem") and vw & c.rd: n = max(n, 3)
        if c.kind == "vmem" and sw & c.rd: n = max(n, 5)
        if c.kind == "mfma" and ("s", "exec") in sw: n = max(n, 4)
    elif p.kind == "mfma":
        P = p.passes
        if c.kind == "mfma":
            if p.D & (c.A | c.B): n = max(n, P + 2 if p.sgemm else P + 4)
            if p.D & c.C:
                if p.D == c.C and p.op == c.op: pass
                elif p.sgemm and not c.sgemm: pass
                elif p.sgemm: n = max(n, P)
                else: n = max(n, P + 2)
            elif p.D & c.D:
                n = max(n, P + 2)
        elif c.kind in ("valu", "ds", "vmem"):
            if p.D & (c.rd | c.wr): n = max(n, P + 2 if p.sgemm else P + 4)
            if c.kind == "valu" and not p.sgemm and p.C & c.wr: n = max(n, P - 1)
    elif p.kind == "salu":
        if ("s", "m0") in sw and c.kind == "vmem" and getattr(c, "lds", False): n = max(n, 1)
        if ("s", "m0") in sw and c.kind == "ds" and "addtid" in c.op: n = max(n, 1)
    elif p.kind == "vmem":
        if hasattr(p, "data") and len(p.data) >= 3 and p.data & c.wr: n = max(n, 2)
    return n


class Asm:
    def __init__(self):
        self.L = []
        self.vm = []
        self.lg = []
        self.nlab = 0

    def __call__(self, text):
        for line in text.strip("\n").split("\n"):
            if line.strip():
                self.L.append(Ins(line.strip()))

    def label(self, name):
        self.L.append(Ins(name + ":"))

    def newlabel(self, p="L"):
        self.nlab += 1
        return f"{p}_{self.nlab}"

    def vmem(self, text, tag):
        self(text); self.vm.append(tag)

    def ds(self, text, tag):
        self(text); self.lg.append(tag)

    def _n(self, q, tag):
        idx = [i for i, t in enumerate(q) if t == tag]
        if not idx: return None
        return len(q) - 1 - idx[-1]

    def wait(self, vm=None, lg=None):
        s = []
        if vm is not None:
            n = 0 if vm == "all" else self._n(self.vm, vm)
            if n is not None:
                assert n <= 63, n
                s.append(f"vmcnt({n})"); self.vm = self.vm[len(self.vm) - n:] if n else []
        if lg is not None:
            n = 0 if lg == "all" else self._n(self.lg, lg)
            if n is not None:
                n2 = min(n, 15)
                s.append(f"lgkmcnt({n2})"); self.lg = self.lg[len(self.lg) - n2:] if n2 else []
        if s: self("s_waitcnt " + " ".join(s))

    def save(self): return (list(self.vm), list(self.lg))
    def restore(self, st): self.vm, self.lg = list(st[0]), list(st[1])

    def _check(self, hist, c):
        d = 0; miss = 0
        for p in reversed(hist):
            if p.kind not in ("label", "none", "nop"):
                n = need(p, c)
                if n > d: miss = max(miss, n - d)
            d += p.states
            if d >= 20: break
        return miss

    def pad(self):
        out = []
        for c in self.L:
            if c.kind not in ("label", "none", "nop"):
                h = out[-48:]
                for i in range(len(h) - 1, -1, -1):
                    if h[i].op in ("s_branch", "s_endpgm"):
                        h = h[i + 1:]; break
                m = self._check(h, c)
                while m > 0:
                    k = min(m, 16); out.append(Ins(f"s_nop {k-1}")); m -= k
            out.append(c)
        changed = True
        while changed:
            changed = False
            lab = {x.label: i for i, x in enumerate(out) if x.label}
            for i, b in enumerate(out):
                if b.kind == "branch" and b.target in lab:
                    hist = out[max(0, i - 48):i + 1]
                    j = lab[b.target]; d = 0; miss = 0
                    while j < len(out) and d < 20:
                        c = out[j]
                        if c.kind not in ("label", "none", "nop"):
                            miss = max(miss, self._check(hist, c))
                        hist = hist + [c]; d += c.states; j += 1
                        if c.op in ("s_branch", "s_endpgm"): break
                    if miss:
                        out.insert(i, Ins(f"s_nop {min(miss,16)-1}")); changed = True
                        break
        self.L = out

    def text(self):
        s = []
        for x in self.L:
            s.append(x.text if x.kind == "label" else "    " + x.text)
        return "\n".join(s) + "\n"
```

```python
KN = "parallel_sum__linear_kernel_hedgehog__dense_activation_mish__prompt"
def header(grid, block, lds):
    return f"""; @launch grid=({grid},1,1) block=({block},1,1) lds={lds}
.amdgcn_target "amdgcn-amd-amdhsa--gfx950"
.text
.globl {KN}_kernel
.p2align 8
.type {KN}_kernel,@function
{KN}_kernel:
"""
def footer(vgpr=256, accum=None, sgpr=102):
    if accum is None: accum = min(256, (vgpr + 3) // 4 * 4)
    return f"""
s_endpgm
.section .rodata,"a"
.p2align 6
.amdhsa_kernel {KN}_kernel
  .amdhsa_next_free_vgpr {vgpr}
  .amdhsa_next_free_sgpr {sgpr}
  .amdhsa_accum_offset {accum}
  .amdhsa_group_segment_fixed_size 0
  .amdhsa_kernarg_size 88
  .amdhsa_user_sgpr_count 2
  .amdhsa_user_sgpr_kernarg_segment_ptr 1
  .amdhsa_system_sgpr_workgroup_id_x 1
.end_amdhsa_kernel
"""
def srd(d, b, size):
    return f"""    s_mov_b32 s{d}, s{b}
    s_and_b32 s{d+1}, s{b+1}, 0xffff
    s_mov_b32 s{d+2}, {size}
    s_mov_b32 s{d+3}, 0x00020000
"""
```

```python
import sys
from asmdsl import Asm
from gen_common import header, footer

OPT = dict(a.split("=") for a in sys.argv[2:])
STAMP = int(OPT.get("stamp", -1))
out_path = sys.argv[1]

SLOT = 33792
PHI = 2 * SLOT
VIMG = PHI + 32768
MISC = 147456
STAT = MISC
CWB = STAT + 4096
WPHI = CWB + 3072
KVL = WPHI + 2048
WREGION = 36864
RS = 64 * 272
LDS_SIZE = 163840
FL_KV = 0x1000
FL_ACT = FL_KV + 512 * 256
FL_O = FL_ACT + 1024 * 256
KVD = FL_O + 1024 * 256
ACT = 0x140000
assert KVD + 512 * 1152 <= ACT
WS_USED = ACT + 64 * 118 * 1024
STAMP_OFF = 128 << 20
SPIN = 30000

sW, sSIG, sH, sTYPE, sG = 3, 4, 5, 6, 7
sRB = 30; sT0 = 31
sX, sWD, sPB, sW2, sWO, sOUT, sWS = 32, 36, 40, 44, 48, 52, 56
sSTR, sXO, sWOF, sM0X, sM0W, sSTR64 = 60, 61, 62, 63, 64, 65
sTAG, sMASK, sT1, sT2, sT3, sSTART, sSKIP, sRB2, sCB, sCNT = 66, 67, 68, 69, 70, 71, 72, 73, 74, 75
sST0 = 76
def srd(n): return f"s[{n}:{n+3}]"

vL = 0
vXO0, vXO1, vWO, vWO2, vL16, vBA, vEP = 1, 2, 3, 4, 5, 6, 9
vRSTD, vBC, vC1, vM2R = 10, 11, 12, 13
vT = 14
vS = 32
vXA, vWA, vSEL, vCS = 40, 44, 48, 52
vWF = 64
vA2, vA0, vA1 = 80, 96, 112
vX = 128
def v(n, k=1): return f"v{n}" if k == 1 else f"v[{n}:{n+k-1}]"

a = Asm()
nst = [0]
def stamp(i):
    if STAMP >= 0:
        a(f"s_memrealtime s[{sST0+2*i}:{sST0+2*i+1}]")
        nst[0] = max(nst[0], i + 1)

def mksrd(d, b, size):
    a(f"""s_mov_b32 s{d}, s{b}
    s_and_b32 s{d+1}, s{b+1}, 0xffff
    s_mov_b32 s{d+2}, {size}
    s_mov_b32 s{d+3}, 0x00020000""")

MF = "v_mfma_f32_32x32x16_bf16"
MF16 = "v_mfma_f32_16x16x32_bf16"
MF32 = "v_mfma_f32_32x32x2_f32"
LOG2E = "0x3fb8aa3b"

a(f"""s_cmp_ge_u32 s2, 256
s_cbranch_scc1 L_end""")
stamp(0)
a(f"""s_load_dwordx16 s[8:23], s[0:1], 0
s_load_dwordx4 s[24:27], s[0:1], 64
s_load_dwordx2 s[28:29], s[0:1], 80
v_lshrrev_b32 v1, 6, v0
v_and_b32 v{vL}, 63, v0
v_readfirstlane_b32 s{sW}, v1
s_and_b32 s{sT0}, s2, 7                  ; xcd
s_lshr_b32 s{sT1}, s2, 3                 ; idx
s_and_b32 s{sRB}, s{sT0}, 1
s_lshl_b32 s{sRB}, s{sRB}, 3
s_and_b32 s{sT2}, s{sT1}, 7
s_add_u32 s{sRB}, s{sRB}, s{sT2}         ; rb
s_lshr_b32 s{sT2}, s{sT1}, 3             ; j
s_lshr_b32 s{sTYPE}, s{sT2}, 1
s_and_b32 s{sT2}, s{sT2}, 1
s_and_b32 s{sG}, s{sT0}, 6
s_add_u32 s{sG}, s{sG}, s{sT2}           ; g
s_lshl_b32 s{sRB2}, s{sT0}, 2
s_and_b32 s{sT2}, s{sT1}, 3
s_add_u32 s{sRB2}, s{sRB2}, s{sT2}       ; rb2
s_lshr_b32 s{sCB}, s{sT1}, 2             ; cb
s_and_b32 s{sSIG}, s{sW}, 3
s_lshr_b32 s{sH}, s{sW}, 2
s_mul_i32 s{sSTART}, s{sG}, 11
s_add_u32 s{sSTART}, s{sSTART}, 1
s_lshr_b32 s{sSTART}, s{sSTART}, 1
s_min_u32 s{sSTART}, s{sSTART}, 38
s_mov_b32 s{sMASK}, 0xffff0000
s_cmp_eq_u32 s{sTYPE}, 0
s_mov_b32 s{sSTR}, 2752
s_cselect_b32 s{sSTR}, 3072, s{sSTR}
s_mov_b32 s{sT1}, 128
s_cselect_b32 s{sT1}, 1024, s{sT1}       ; stride between the two 128-B halves of a pass-1 row
s_lshl_b32 s{sT2}, s{sG}, 7
s_lshl_b32 s{sT3}, s{sSTART}, 6
s_cmp_eq_u32 s{sTYPE}, 0
s_cselect_b32 s{sT0}, s{sT2}, s{sT3}
s_cselect_b32 s{sT2}, 1024, 0
s_cselect_b32 s{sT3}, 0, 256
s_add_u32 s{sT2}, s{sT2}, s{sT0}
s_add_u32 s{sT3}, s{sT3}, s{sT0}
s_lshl_b32 s{sSTR64}, s{sSTR}, 6
""")
t0, t1, t2, t3, t4 = vT, vT + 1, vT + 2, vT + 3, vT + 4
a(f"""v_lshrrev_b32 v{t0}, 3, v{vL}          ; l>>3
v_and_b32 v{t1}, 7, v{vL}                ; l&7
v_lshrrev_b32 v{t2}, 4, v{vL}            ; l>>4
v_xor_b32 v{t3}, v{t1}, v{t2}
v_lshlrev_b32 v{t3}, 4, v{t3}
v_lshl_add_u32 v{vXO0}, v{t0}, 10, v{t3}
v_xor_b32 v{vXO1}, 64, v{vXO0}
v_add_u32 v{vXO1}, 8192, v{vXO1}
v_lshlrev_b32 v{t3}, 2, v{t2}            ; 4*(l>>4)
v_mul_lo_u32 v{vWO}, v{t3}, s{sSTR}
v_and_b32 v{t3}, 1, v{t0}                ; (l>>3)&1
v_mul_lo_u32 v{t3}, v{t3}, s{sT1}
v_lshl_add_u32 v{t3}, v{t1}, 4, v{t3}
v_add3_u32 v{vWO}, v{vWO}, v{t3}, s{sT2}
v_and_b32 v{t3}, 1, v{t2}
v_lshlrev_b32 v{t3}, 2, v{t3}
v_xor_b32 v{t3}, v{t3}, v{t1}
v_lshlrev_b32 v{t3}, 4, v{t3}
v_mul_lo_u32 v{vWO2}, v{t0}, s{sSTR}
v_add3_u32 v{vWO2}, v{vWO2}, v{t3}, s{sT3}
v_lshlrev_b32 v{vL16}, 4, v{vL}
s_lshl_b32 s{sXO}, s{sRB}, 17
s_lshl_b32 s{sT0}, s{sW}, 14
s_add_u32 s{sXO}, s{sXO}, s{sT0}         ; x soffset
s_lshr_b32 s{sT0}, s{sW}, 1              ; q4
s_and_b32 s{sT1}, s{sW}, 1
s_lshl_b32 s{sT1}, s{sT1}, 1             ; r0
s_lshl_b32 s{sT2}, s{sT0}, 4
s_add_u32 s{sT2}, s{sT2}, s{sT1}
s_mul_i32 s{sWOF}, s{sT2}, s{sSTR}       ; W soffset
s_lshl_b32 s{sM0X}, s{sW}, 11
s_mul_i32 s{sM0W}, s{sT0}, 4352
s_mul_i32 s{sT1}, s{sT1}, 1088
s_add_u32 s{sM0W}, s{sM0W}, s{sT1}
s_add_u32 s{sM0W}, s{sM0W}, 16384
s_waitcnt lgkmcnt(0)
""")
mksrd(sX, 8, 2048 * 1024)
a(f"""s_cmp_eq_u32 s{sTYPE}, 0
s_cselect_b32 s{sWD}, s10, s18
s_cselect_b32 s{sWD+1}, s11, s19
s_mov_b32 s{sWD+2}, {512*2752}
s_cselect_b32 s{sWD+2}, {512*3072}, s{sWD+2}
s_and_b32 s{sWD+1}, s{sWD+1}, 0xffff
s_mov_b32 s{sWD+3}, 0x00020000
""")

def dma_chunk(c):
    slot = (c & 3) * SLOT
    if c < 8:
        a(f"s_add_u32 m0, s{sM0X}, {slot}")
        a.vmem(f"buffer_load_dwordx4 v{vXO0}, {srd(sX)}, s{sXO} offen lds", f"c{c}")
        a(f"s_add_u32 m0, s{sM0X}, {slot+1024}")
        a.vmem(f"buffer_load_dwordx4 v{vXO1}, {srd(sX)}, s{sXO} offen lds", f"c{c}")
        a(f"s_add_u32 m0, s{sM0W}, {slot}")
        a(f"s_add_u32 s{sT0}, s{sWOF}, s{sSTR}")
        a.vmem(f"buffer_load_dwordx4 v{vWO}, {srd(sWD)}, s{sWOF} offen lds", f"c{c}")
        a(f"s_add_u32 m0, s{sM0W}, {slot+1088}")
        a(f"s_add_u32 s{sXO}, s{sXO}, 128")
        a.vmem(f"buffer_load_dwordx4 v{vWO}, {srd(sWD)}, s{sT0} offen lds", f"c{c}")
        a(f"s_add_u32 s{sWOF}, s{sWOF}, s{sSTR64}")
    else:
        u = c - 8
        if u == 0:
            a(f"""s_lshl_b32 s{sT0}, s{sW}, 5
            s_mul_i32 s{sWOF}, s{sT0}, s{sSTR}
            s_lshl_b32 s{sM0X}, s{sW}, 12
            s_lshl_b32 s{sM0W}, s{sSTR}, 3""")
        for i in range(4):
            a(f"s_add_u32 m0, s{sM0X}, {slot+i*1024}")
            a("s_nop 0")
            a.vmem(f"buffer_load_dwordx4 v{vWO2}, {srd(sWD)}, s{sWOF} offen lds", f"c{c}")
            if i < 3: a(f"s_add_u32 s{sWOF}, s{sWOF}, s{sM0W}")
        if u == 0:
            a(f"""s_mul_i32 s{sT0}, s{sSTR}, {256-24}
            s_add_u32 s{sWOF}, s{sWOF}, s{sT0}""")

for c in range(3): dma_chunk(c)
stamp(1)
a(f"""s_cmp_eq_u32 s{sTYPE}, 0
s_cselect_b32 s{sPB}, s12, s20
s_cselect_b32 s{sPB+1}, s13, s21
s_mov_b32 s{sPB+2}, 2752
s_cselect_b32 s{sPB+2}, 16384, s{sPB+2}
s_and_b32 s{sPB+1}, s{sPB+1}, 0xffff
s_mov_b32 s{sPB+3}, 0x00020000
""")
mksrd(sW2, 22, 1376 * 1024)
mksrd(sWO, 14, 512 * 1024)
mksrd(sOUT, 24, 2048 * 1024)
mksrd(sWS, 28, 256 << 20)
a(f"v_mov_b32 v{t0}, 0")
a.vmem(f"buffer_load_dword v{vEP}, v{t0}, {srd(sWS)}, 0 offen sc1", "misc")
st0 = a.save()
a(f"""s_cmp_eq_u32 s{sTYPE}, 0
s_cbranch_scc0 L_miscB
v_mov_b32 v{vBA}, 0
v_mov_b32 v{vBA+1}, 0
v_mov_b32 v{vBA+2}, 0
s_and_b32 s{sT0}, s{sW}, 1
s_lshl_b32 s{sT0}, s{sT0}, 10
s_add_u32 m0, s{sT0}, {WPHI}
s_lshl_b32 s{sT1}, s{sG}, 11
s_add_u32 s{sT1}, s{sT1}, s{sT0}
buffer_load_dwordx4 v{vL16}, {srd(sPB)}, s{sT1} offen lds
buffer_load_dwordx4 v{vL16}, {srd(sPB)}, s{sT1} offen lds
buffer_load_dwordx4 v{vL16}, {srd(sPB)}, s{sT1} offen lds
s_mov_b32 s{sSKIP}, 0
s_branch L_miscE
L_miscB:
v_and_b32 v{t0}, 31, v{vL}
v_lshlrev_b32 v{t0}, 1, v{t0}
s_add_u32 s{sT0}, s{sSTART}, s{sH}
s_lshl_b32 s{sT0}, s{sT0}, 6""")
a.vmem(f"buffer_load_ushort v{vBA}, v{t0}, {srd(sPB)}, s{sT0} offen", "misc")
a.vmem(f"buffer_load_ushort v{vBA+1}, v{t0}, {srd(sPB)}, s{sT0} offen offset:128", "misc")
a.vmem(f"buffer_load_ushort v{vBA+2}, v{t0}, {srd(sPB)}, s{sT0} offen offset:256", "misc")
a(f"""s_and_b32 s{sT0}, s{sG}, 1
s_cmp_ge_u32 s{sG}, 6
s_cselect_b32 s{sT0}, 1, s{sT0}
s_and_b32 s{sSKIP}, s{sT0}, s{sH}
L_miscE:""")

a(f"""s_xor_b32 s{sT0}, s{sSIG}, s{sH}        ; m
v_and_b32 v{t0}, 31, v{vL}
v_lshrrev_b32 v{t1}, 5, v{vL}             ; hi
v_bfe_u32 v{t2}, v{vL}, 1, 3              ; swz
v_xor_b32 v{t1}, v{t1}, v{t2}
v_lshlrev_b32 v{t1}, 4, v{t1}
v_lshl_add_u32 v{t1}, v{t0}, 7, v{t1}
s_lshl_b32 s{sT1}, s{sSIG}, 12
v_add_u32 v{t1}, s{sT1}, v{t1}            ; x base
v_bfe_u32 v{t2}, v{vL}, 2, 2              ; r
v_mul_u32_u24 v{t2}, 1088, v{t2}
v_lshrrev_b32 v{t3}, 5, v{vL}
v_lshl_add_u32 v{t2}, v{t3}, 9, v{t2}
v_bfe_u32 v{t3}, v{vL}, 4, 1
v_lshl_add_u32 v{t2}, v{t3}, 5, v{t2}
v_and_b32 v{t3}, 3, v{vL}
v_lshl_add_u32 v{t2}, v{t3}, 3, v{t2}
s_lshl_b32 s{sT1}, s{sH}, 6
s_add_u32 s{sT1}, s{sT1}, 16384
v_add_u32 v{t2}, s{sT1}, v{t2}            ; W base
""")
for ks in range(4):
    a(f"""s_xor_b32 s{sT1}, s{sT0}, {ks}
    s_lshl_b32 s{sT2}, s{sT1}, 5
    s_mul_i32 s{sT1}, s{sT1}, 4352
    v_xor_b32 v{vXA+ks}, s{sT2}, v{t1}
    v_add_u32 v{vWA+ks}, s{sT1}, v{t2}""")
a(f"""v_lshrrev_b32 v{t0}, 2, v{vL}
v_lshrrev_b32 v{t1}, 4, v{vL}
v_xor_b32 v{t0}, v{t0}, v{t1}
v_and_b32 v{t0}, 1, v{t0}
v_cmp_eq_u32 vcc, 0, v{t0}
v_mov_b32 v{t1}, 0x3f803f80
v_mov_b32 v{vS}, 0
v_mov_b32 v{vS+1}, 0
v_mov_b32 v{vS+2}, 0
v_mov_b32 v{vS+3}, 0""")
for i in range(4): a(f"v_cndmask_b32 v{vSEL+i}, 0, v{t1}, vcc")

def p1_reads(c, ks):
    po = (c & 1) * SLOT
    t = 4 * c + ks
    tg = f"k{ks}"
    a.ds(f"ds_read_b128 {v(vX+4*t,4)}, v{vXA+ks} offset:{po}", tg)
    for tile in range(2):
        b = vWF + 8 * ks + 4 * tile
        a.ds(f"ds_read_b64_tr_b16 {v(b,2)}, v{vWA+ks} offset:{po+tile*128}", tg)
        a.ds(f"ds_read_b64_tr_b16 {v(b+2,2)}, v{vWA+ks} offset:{po+tile*128+256}", tg)

def stats(t):
    for j in range(4):
        x = vX + 4 * t + j
        lo, hi = vS + 4 + 2 * (j & 1), vS + 5 + 2 * (j & 1)
        a(f"""v_lshlrev_b32 v{lo}, 16, v{x}
        v_and_b32 v{hi}, s{sMASK}, v{x}
        v_add_f32 v{vS}, v{vS}, v{lo}
        v_add_f32 v{vS+1}, v{vS+1}, v{hi}
        v_fmac_f32 v{vS+2}, v{lo}, v{lo}
        v_fmac_f32 v{vS+3}, v{hi}, v{hi}""")

def p1_mfma(c, ks):
    t = 4 * c + ks
    for tile, acc in ((0, vA0), (1, vA1)):
        b = vWF + 8 * ks + 4 * tile
        cc = "0" if t == 0 else v(acc, 16)
        a(f"{MF} {v(acc,16)}, {v(b,4)}, {v(vX+4*t,4)}, {cc}")
    if ks == 1:
        for tile in range(2):
            b = vWF + 8 * ks + 4 * tile
            cc = "0" if c == 0 else v(vCS + 4 * tile, 4)
            a(f"{MF16} {v(vCS+4*tile,4)}, {v(vSEL,4)}, {v(b,4)}, {cc}")

for c in range(8):
    a.wait(vm=f"c{c}")
    a("s_barrier")
    if c == 0: stamp(2)
    p1_reads(c, 0); p1_reads(c, 1)
    if c + 3 <= 9: dma_chunk(c + 3)
    p1_reads(c, 2)
    a.wait(lg="k0"); p1_mfma(c, 0); stats(4 * c)
    p1_reads(c, 3)
    a.wait(lg="k1"); p1_mfma(c, 1)
    a.wait(lg="k2"); p1_mfma(c, 2); stats(4 * c + 2)
    a.wait(lg="k3"); p1_mfma(c, 3)
    if c & 1 and c < 7:
        op = "v_add_u32" if (c & 2) == 0 else "v_subrev_u32"
        a(f"s_mov_b32 s{sT1}, {2*SLOT}")
        for i in range(8): a(f"{op} v{vXA+i}, s{sT1}, v{vXA+i}")
stamp(3)

vSA, vCA = vXA, vXA + 1
a(f"""v_add_f32 v{vS}, v{vS}, v{vS+1}
v_add_f32 v{vS+1}, v{vS+2}, v{vS+3}
v_and_b32 v{t0}, 31, v{vL}
v_lshrrev_b32 v{t1}, 5, v{vL}
s_lshl_b32 s{sT0}, s{sSIG}, 10
s_add_u32 s{sT0}, s{sT0}, {STAT}
v_lshlrev_b32 v{vSA}, 5, v{t0}
v_add_u32 v{vSA}, s{sT0}, v{vSA}
s_lshl_b32 s{sT1}, s{sH}, 4
v_lshl_add_u32 v{t2}, v{t1}, 3, v{vSA}
v_add_u32 v{t2}, s{sT1}, v{t2}
ds_write_b64 v{t2}, {v(vS,2)}
s_mul_i32 s{sT0}, s{sH}, 1536
s_add_u32 s{sT0}, s{sT0}, {CWB}
v_lshlrev_b32 v{vCA}, 4, v{t0}
v_add_u32 v{vCA}, s{sT0}, v{vCA}
s_lshl_b32 s{sT1}, s{sSIG}, 2
v_add_u32 v{vCA+1}, s{sT1}, v{vCA}
ds_write_b32 v{vCA+1}, v{vCS}
ds_write_b32 v{vCA+1}, v{vCS+4} offset:512
v_readfirstlane_b32 s{sTAG}, v{vEP}
v_cmp_gt_u32 s[{sT2-1}:{sT2}], 32, v{vL}
s_waitcnt lgkmcnt(0)
s_barrier""")
sLO = f"s[{sT2-1}:{sT2}]"
assert (sT2 - 1) % 2 == 0
a(f"""s_add_u32 s{sTAG}, s{sTAG}, 1
ds_read_b128 {v(vT,4)}, v{vSA}
ds_read_b128 {v(vT+4,4)}, v{vSA} offset:16
ds_read_b128 {v(vT+8,4)}, v{vCA}
ds_read_b128 {v(vT+12,4)}, v{vCA} offset:512
v_lshlrev_b32 v{vBA}, 16, v{vBA}
v_lshlrev_b32 v{vBA+1}, 16, v{vBA+1}
v_lshlrev_b32 v{vBA+2}, 16, v{vBA+2}
s_waitcnt lgkmcnt(2)
v_add_f32 v{vT}, v{vT}, v{vT+2}
v_add_f32 v{vT+1}, v{vT+1}, v{vT+3}
v_add_f32 v{vT+4}, v{vT+4}, v{vT+6}
v_add_f32 v{vT+5}, v{vT+5}, v{vT+7}
v_add_f32 v{vT}, v{vT}, v{vT+4}
v_add_f32 v{vT+1}, v{vT+1}, v{vT+5}
v_mul_f32 v{vT}, 0xbb000000, v{vT}          ; -mean
v_mul_f32 v{vT+1}, 0x3b000000, v{vT+1}      ; E[x^2]
v_fma_f32 v{vT+1}, -v{vT}, v{vT}, v{vT+1}
v_max_f32 v{vT+1}, 0, v{vT+1}
v_add_f32 v{vT+1}, 0x3727c5ac, v{vT+1}
v_rsq_f32 v{vRSTD}, v{vT+1}
s_waitcnt lgkmcnt(0)
v_add_f32 v{vT+8}, v{vT+8}, v{vT+9}
v_add_f32 v{vT+10}, v{vT+10}, v{vT+11}
v_add_f32 v{vT+12}, v{vT+12}, v{vT+13}
v_add_f32 v{vT+14}, v{vT+14}, v{vT+15}
v_mul_f32 v{vT+1}, v{vT+1}, v{vRSTD}        ; sd
v_add_f32 v{vT+8}, v{vT+8}, v{vT+10}
v_add_f32 v{vT+12}, v{vT+12}, v{vT+14}
v_cndmask_b32 v{vBC}, v{vT+1}, v{vT}, {sLO}
v_cndmask_b32 v{vT+8}, v{vBA}, v{vT+8}, {sLO}
v_cndmask_b32 v{vT+12}, v{vBA+1}, v{vT+12}, {sLO}
v_mul_f32 v{vC1}, {LOG2E}, v{vRSTD}
v_mul_f32 v{vM2R}, -2.0, v{vRSTD}
{MF32} {v(vA0,16)}, v{vT+8}, v{vBC}, {v(vA0,16)}
{MF32} {v(vA1,16)}, v{vT+12}, v{vBC}, {v(vA1,16)}
""")
a(f"""s_xor_b32 s{sT0}, s{sSIG}, s{sH}
v_bfe_u32 v{t0}, v{vL}, 2, 2              ; r
v_lshrrev_b32 v{t1}, 5, v{vL}
v_lshl_add_u32 v{t1}, v{t1}, 3, v{t0}     ; k = 8*(G>>1)+r
v_lshlrev_b32 v{t1}, 7, v{t1}
v_lshrrev_b32 v{t0}, 1, v{t0}
v_xor_b32 v{t0}, s{sH}, v{t0}
v_lshl_add_u32 v{t1}, v{t0}, 6, v{t1}
v_bfe_u32 v{t0}, v{vL}, 4, 1
v_lshl_add_u32 v{t1}, v{t0}, 5, v{t1}
v_and_b32 v{t0}, 3, v{vL}
v_lshl_add_u32 v{t1}, v{t0}, 3, v{t1}""")
for ks in range(4):
    a(f"""s_xor_b32 s{sT1}, s{sT0}, {ks}
    s_lshl_b32 s{sT1}, s{sT1}, 11
    v_add_u32 v{vWA+ks}, s{sT1}, v{t1}""")

def mish(acc, pk):
    for half in range(2):
        r = [acc + 8 * half + i for i in range(8)]
        u = [vT + i for i in range(8)]
        w = [vT + 8 + i for i in range(8)]
        for i in range(8): a(f"v_mul_f32 v{u[i]}, v{r[i]}, v{vC1}")
        for i in range(8): a(f"v_exp_f32 v{u[i]}, v{u[i]}")
        for i in range(8): a(f"v_add_f32 v{w[i]}, 2.0, v{u[i]}")
        for i in range(8): a(f"v_fma_f32 v{u[i]}, v{u[i]}, v{w[i]}, 2.0")
        for i in range(8): a(f"v_rcp_f32 v{u[i]}, v{u[i]}")
        for i in range(8): a(f"v_fma_f32 v{u[i]}, v{u[i]}, v{vM2R}, v{vRSTD}")
        for i in range(8): a(f"v_mul_f32 v{u[i]}, v{u[i]}, v{r[i]}")
        for i in range(4): a(f"v_cvt_pk_bf16_f32 v{pk+4*half+i}, v{u[2*i]}, v{u[2*i+1]}")

def act_store(pk, tile_add):
    a(f"""s_lshl_b32 s{sT0}, s{sRB}, 2
    s_add_u32 s{sT0}, s{sT0}, s{sSIG}
    s_mul_i32 s{sT0}, s{sT0}, 59
    s_add_u32 s{sT0}, s{sT0}, s{sSTART}
    s_add_u32 s{sT0}, s{sT0}, s{sH}
    s_lshl_b32 s{sT0}, s{sT0}, 11
    s_add_u32 s{sT0}, s{sT0}, {ACT + tile_add*2048}""")
    a.vmem(f"buffer_store_dwordx4 {v(pk,4)}, v{vL16}, {srd(sWS)}, s{sT0} offen sc1", "st")
    a.vmem(f"buffer_store_dwordx4 {v(pk+4,4)}, v{vL16}, {srd(sWS)}, s{sT0} offen offset:1024 sc1", "st")

def softmax(P, pk):
    m = vT
    a(f"v_max3_f32 v{m}, v{P}, v{P+1}, v{P+2}")
    a(f"v_max3_f32 v{m+1}, v{P+3}, v{P+4}, v{P+5}")
    for i in range(6, 14, 4):
        a(f"v_max3_f32 v{m}, v{m}, v{P+i}, v{P+i+1}")
        a(f"v_max3_f32 v{m+1}, v{m+1}, v{P+i+2}, v{P+i+3}")
    a(f"v_max3_f32 v{m}, v{m}, v{P+14}, v{P+15}")
    a(f"v_max_f32 v{m}, v{m}, v{m+1}")
    a(f"v_mul_f32 v{m}, v{m}, v{vC1}")
    for i in range(16): a(f"v_fma_f32 v{P+i}, v{P+i}, v{vC1}, -v{m}")
    for i in range(16): a(f"v_exp_f32 v{P+i}, v{P+i}")
    a(f"v_add_f32 v{m}, v{P}, v{P+1}")
    a(f"v_add_f32 v{m+1}, v{P+2}, v{P+3}")
    a(f"v_add_f32 v{m+2}, v{P+4}, v{P+5}")
    a(f"v_add_f32 v{m+3}, v{P+6}, v{P+7}")
    for i in range(8, 16): a(f"v_add_f32 v{m+(i&3)}, v{m+(i&3)}, v{P+i}")
    a(f"v_add_f32 v{m}, v{m}, v{m+1}")
    a(f"v_add_f32 v{m+2}, v{m+2}, v{m+3}")
    a(f"v_add_f32 v{m}, v{m}, v{m+2}")
    a(f"v_rcp_f32 v{m}, v{m}")
    for i in range(16): a(f"v_mul_f32 v{P+i}, v{P+i}, v{m}")
    for i in range(8): a(f"v_cvt_pk_bf16_f32 v{pk+i}, v{P+2*i}, v{P+2*i+1}")

vPH = vS
def feature_logits(acc, P0, P1, kb):
    for hh, P in ((0, P0), (1, P1)):
        for j in range(4):
            a(f"v_cvt_pk_bf16_f32 v{kb+4*hh+j}, v{acc+8*hh+2*j}, v{acc+8*hh+2*j+1}")
        a(f"{MF} {v(P,16)}, {v(vPH+4*hh,4)}, {v(kb+4*hh,4)}, 0")

st1 = a.save()
a(f"""s_cmp_eq_u32 s{sTYPE}, 0
s_cbranch_scc0 L_e1B""")
a(f"""v_bfe_u32 v{t0}, v{vL}, 2, 2
v_lshrrev_b32 v{t1}, 5, v{vL}
v_lshl_add_u32 v{t0}, v{t1}, 2, v{t0}      ; d = 4*half + r
v_lshlrev_b32 v{t0}, 5, v{t0}
v_bfe_u32 v{t1}, v{vL}, 4, 1
v_lshl_add_u32 v{t0}, v{t1}, 4, v{t0}
v_bfe_u32 v{t1}, v{vL}, 1, 1
v_lshl_add_u32 v{t0}, v{t1}, 3, v{t0}
s_lshl_b32 s{sT0}, s{sH}, 10
s_add_u32 s{sT0}, s{sT0}, {WPHI}
v_add_u32 v{t0}, s{sT0}, v{t0}
ds_read_b64_tr_b16 {v(vPH,2)}, v{t0}
ds_read_b64_tr_b16 {v(vPH+2,2)}, v{t0} offset:256
ds_read_b64_tr_b16 {v(vPH+4,2)}, v{t0} offset:512
ds_read_b64_tr_b16 {v(vPH+6,2)}, v{t0} offset:768
v_bfe_i32 v{t1}, v{vL}, 2, 1
v_and_b32 v{t1}, 0x80008000, v{t1}
s_waitcnt lgkmcnt(0)""")
for i in range(8): a(f"v_xor_b32 v{vPH+i}, v{t1}, v{vPH+i}")
feature_logits(vA0, vWF, vWF + 16, vT + 8)
for i in range(16): a(f"v_mul_f32 v{vA1+i}, v{vA1+i}, v{vRSTD}")
for i in range(8): a(f"v_cvt_pk_bf16_f32 v{vA1+i}, v{vA1+2*i}, v{vA1+2*i+1}")
a(f"""v_and_b32 v{t0}, 31, v{vL}
s_lshl_b32 s{sT0}, s{sSIG}, 5
v_add_u32 v{t0}, s{sT0}, v{t0}             ; s
v_mul_u32_u24 v{t1}, 144, v{t0}
v_add_u32 v{t1}, {VIMG}, v{t1}
v_mov_b32 v{t2}, 0x3f803f80
v_mov_b32 v{t3}, 0x3f803f80
ds_write_b64 v{t1}, {v(t2,2)} offset:128
v_lshrrev_b32 v{t4}, 5, v{vL}
v_lshl_add_u32 v{t1}, v{t4}, 4, v{t1}
s_lshl_b32 s{sT0}, s{sH}, 6
v_add_u32 v{t1}, s{sT0}, v{t1}
ds_write_b128 v{t1}, {v(vA1,4)}
ds_write_b128 v{t1}, {v(vA1+4,4)} offset:32
v_bfe_u32 v{t2}, v{vL}, 1, 2
v_lshlrev_b32 v{t4}, 1, v{t4}
v_xor_b32 v{t2}, v{t2}, v{t4}
v_lshlrev_b32 v{t2}, 4, v{t2}
v_lshl_add_u32 v{vT+4}, v{t0}, 6, v{t2}
s_lshl_b32 s{sT0}, s{sH}, 14
s_add_u32 s{sT0}, s{sT0}, {PHI}
v_add_u32 v{vT+4}, s{sT0}, v{vT+4}
v_xor_b32 v{vT+5}, 16, v{vT+4}""")
for hh in range(2):
    softmax(vWF + 16 * hh, vA0 + 8 * hh)
    a(f"ds_write_b128 v{vT+4}, {v(vA0+8*hh,4)} offset:{hh*8192}")
    a(f"ds_write_b128 v{vT+5}, {v(vA0+8*hh+4,4)} offset:{hh*8192}")
a("s_branch L_e1E")
a.label("L_e1B")
a.restore(st1)
mish(vA0, vWF); act_store(vWF, 0)
mish(vA1, vWF + 8); act_store(vWF + 8, 2)
a.wait(vm="c9")
a("s_branch L_e1E2")
a.label("L_e1E")
a("s_waitcnt vmcnt(0) lgkmcnt(0)")
a.label("L_e1E2")
a("s_barrier")
stamp(4)
a.vm = []; a.lg = []
a(f"""s_or_b32 s{sT0}, s{sTYPE}, s{sH}
s_cmp_eq_u32 s{sT0}, 0
s_cbranch_scc0 L_kvE
v_bfe_u32 v{t0}, v{vL}, 2, 2               ; r
v_lshrrev_b32 v{t1}, 5, v{vL}
v_lshl_add_u32 v{t1}, v{t1}, 3, v{t0}      ; s_in = 8*(G>>1)+r
v_and_b32 v{t2}, 1, v{vL}
v_bfe_u32 v{t3}, v{vL}, 4, 1               ; G&1
v_lshl_add_u32 v{t2}, v{t2}, 1, v{t3}      ; q
v_lshrrev_b32 v{t0}, 1, v{t0}
v_xor_b32 v{t2}, v{t2}, v{t0}
v_lshlrev_b32 v{t2}, 4, v{t2}
v_lshl_add_u32 v{t2}, v{t1}, 6, v{t2}
v_bfe_u32 v{t0}, v{vL}, 1, 1
v_lshl_add_u32 v{t2}, v{t0}, 3, v{t2}
s_lshl_b32 s{sT0}, s{sW}, 13
s_add_u32 s{sT0}, s{sT0}, {PHI}
v_add_u32 v{t2}, s{sT0}, v{t2}             ; A first
v_xor_b32 v{t4}, 32, v{t2}
v_mul_u32_u24 v{t1}, 144, v{t1}
v_and_b32 v{t0}, 3, v{vL}
v_lshlrev_b32 v{t0}, 3, v{t0}
s_lshl_b32 s{sT0}, s{sW}, 5
v_add_u32 v{t0}, s{sT0}, v{t0}
v_cmp_eq_u32 vcc, 1, v{t3}
v_mov_b32 v{t3}, 128
v_cndmask_b32 v{t0}, v{t0}, v{t3}, vcc
v_add_u32 v{t1}, v{t1}, v{t0}
v_add_u32 v{t1}, {VIMG}, v{t1}             ; B""")
def kv_reads(t):
    b = vWF + 8 * (t & 3)
    a.ds(f"ds_read_b64_tr_b16 {v(b,2)}, v{t2} offset:{t*1024}", f"kv{t}")
    a.ds(f"ds_read_b64_tr_b16 {v(b+2,2)}, v{t4} offset:{t*1024+256}", f"kv{t}")
    a.ds(f"ds_read_b64_tr_b16 {v(b+4,2)}, v{t1} offset:{t*2304}", f"kv{t}")
    a.ds(f"ds_read_b64_tr_b16 {v(b+6,2)}, v{t1} offset:{t*2304+576}", f"kv{t}")
for t in range(3): kv_reads(t)
for t in range(8):
    a.wait(lg=f"kv{t}")
    b = vWF + 8 * (t & 3)
    a(f"{MF} {v(vA0,16)}, {v(b,4)}, {v(b+4,4)}, {'0' if t == 0 else v(vA0,16)}")
    if t + 3 < 8: kv_reads(t + 3)
a(f"""s_lshl_b32 s{sT0}, s{sG}, 2
s_add_u32 s{sT0}, s{sT0}, s{sW}
s_lshl_b32 s{sT0}, s{sT0}, 4
s_add_u32 s{sT0}, s{sT0}, s{sRB}           ; (head*16+rb)
s_mul_i32 s{sT1}, s{sT0}, 1152
s_add_u32 s{sT1}, s{sT1}, {KVD}
s_lshl_b32 s{sT0}, s{sT0}, 8
s_add_u32 s{sT0}, s{sT0}, {FL_KV}
v_mov_b32 v{t0}, s{sTAG}
v_mov_b32 v{t1}, 0""")
for i in range(8): a(f"v_cvt_pk_bf16_f32 v{vA1+i}, v{vA0+2*i}, v{vA0+2*i+1}")
for i in range(4): a(f"v_permlane16_swap_b32 v{vA1+i}, v{vA1+4+i}")
a(f"""buffer_store_dwordx4 {v(vA1,4)}, v{vL16}, {srd(sWS)}, s{sT1} offen sc1
s_mov_b32 exec_lo, 0x00010001
s_mov_b32 exec_hi, 0x00010001
buffer_store_dwordx4 {v(vA1+4,4)}, v{vL}, {srd(sWS)}, s{sT1} offen offset:1024 sc1
s_mov_b64 exec, 1
s_waitcnt vmcnt(0)
buffer_store_dword v{t0}, v{t1}, {srd(sWS)}, s{sT0} offen sc1
s_mov_b64 exec, -1""")
a.label("L_kvE")
stamp(5)

a(f"""s_cmp_eq_u32 s{sSKIP}, 0
s_cbranch_scc0 L_p2E""")
def p2_reads(t):
    b = vWF + 4 * (t & 3)
    off = (t >> 4) * SLOT + ((t >> 2) & 3) * 8192
    a.ds(f"ds_read_b64_tr_b16 {v(b,2)}, v{vWA+(t&3)} offset:{off}", f"p{t}")
    a.ds(f"ds_read_b64_tr_b16 {v(b+2,2)}, v{vWA+(t&3)} offset:{off+512}", f"p{t}")
for t in range(3): p2_reads(t)
for t in range(32):
    a.wait(lg=f"p{t}")
    b = vWF + 4 * (t & 3)
    a(f"{MF} {v(vA2,16)}, {v(b,4)}, {v(vX+4*t,4)}, {'0' if t == 0 else v(vA2,16)}")
    if (t & 3) == 1:
        a(f"{MF16} {v(vCS+8,4)}, {v(vSEL,4)}, {v(b,4)}, {'0' if t == 1 else v(vCS+8,4)}")
    if t + 3 < 32: p2_reads(t + 3)
a(f"ds_write_b32 v{vCA+1}, v{vCS+8} offset:1024")
a.label("L_p2E")
a("""s_waitcnt lgkmcnt(0)
s_barrier""")
stamp(6)
a(f"ds_read_b128 {v(vT,4)}, v{vCA} offset:1024")

vW2O = vXO0
sKQ, sSTT = sSIG, sH
a(f"""v_lshrrev_b32 v{vT+4}, 3, v{vL}
v_and_b32 v{vT+5}, 7, v{vL}
v_bfe_u32 v{vT+6}, v{vL}, 4, 1
v_lshlrev_b32 v{vT+6}, 2, v{vT+6}
v_xor_b32 v{vT+5}, v{vT+5}, v{vT+6}
v_lshlrev_b32 v{vT+5}, 4, v{vT+5}
v_lshl_add_u32 v{vW2O}, v{vT+4}, 10, v{vT+5}
s_lshl_b32 s{sT0}, s{sSTT}, 13
s_lshl_b32 s{sT1}, s{sCB}, 7
s_add_u32 s{sT0}, s{sT0}, s{sT1}
v_add_u32 v{vW2O}, s{sT0}, v{vW2O}
s_mul_i32 s{sM0X}, s{sKQ}, {WREGION}
s_lshl_b32 s{sT0}, s{sSTT}, 10
s_add_u32 s{sM0X}, s{sM0X}, s{sT0}
s_lshl_b32 s{sXO}, s{sKQ}, 17               ; wo rows 128*kq
s_mul_i32 s{sWOF}, s{sKQ}, {22*16384}""")
def w_dma(pos, which, tag):
    so, d = (sXO, sWO) if which == "wo" else (sWOF, sW2)
    a(f"s_add_u32 m0, s{sM0X}, {pos*2048}")
    a("s_nop 0")
    a.vmem(f"buffer_load_dwordx4 v{vW2O}, {srd(d)}, s{so} offen lds", tag)
    a(f"s_add_u32 s{so}, s{so}, 16384")
for p in range(8): w_dma(p, "wo", "r1")
for p in range(8, 12): w_dma(p, "w2", "r1")
for p in range(12, 18): w_dma(p, "w2", "r2a")
vRES = vBA - 0
vRES = 60
a(f"""v_cmp_gt_u32 {sLO}, 32, v{vL}
s_waitcnt lgkmcnt(0)
v_add_f32 v{vT}, v{vT}, v{vT+1}
v_add_f32 v{vT+2}, v{vT+2}, v{vT+3}
v_add_f32 v{vT}, v{vT}, v{vT+2}
v_cndmask_b32 v{vT}, v{vBA+2}, v{vT}, {sLO}
{MF32} {v(vA2,16)}, v{vT}, v{vBC}, {v(vA2,16)}""")

vPQ = 40
st2 = a.save()
a(f"""s_cmp_eq_u32 s{sTYPE}, 0
s_cbranch_scc0 L_e2B""")
feature_logits(vA2, vA0, vA1, vT + 8)
softmax(vA0, vPQ)
softmax(vA1, vPQ + 8)
a("s_branch L_e2E")
a.label("L_e2B")
a(f"""s_cmp_eq_u32 s{sSKIP}, 0
s_cbranch_scc0 L_e2B2""")
mish(vA2, vWF); act_store(vWF, 4)
a.label("L_e2B2")
a(f"""s_lshl_b32 s{sT0}, s{sRB}, 3
s_add_u32 s{sT0}, s{sT0}, s{sG}
s_lshl_b32 s{sT0}, s{sT0}, 3
s_add_u32 s{sT0}, s{sT0}, s{sW}
s_lshl_b32 s{sT0}, s{sT0}, 8
s_add_u32 s{sT0}, s{sT0}, {FL_ACT}
v_mov_b32 v{t0}, s{sTAG}
v_mov_b32 v{t1}, 0
s_mov_b64 exec, 1
s_waitcnt vmcnt(0)
buffer_store_dword v{t0}, v{t1}, {srd(sWS)}, s{sT0} offen sc1
s_mov_b64 exec, -1""")
a.label("L_e2E")
a.restore(st2)
stamp(7)
vWR = 128
vAO, vA2P = 56, 58
a(f"""v_bfe_u32 v{t0}, v{vL}, 2, 2               ; r
v_lshrrev_b32 v{t1}, 1, v{t0}
v_lshlrev_b32 v{t1}, 6, v{t1}
v_lshl_add_u32 v{t1}, v{t0}, 7, v{t1}
v_bfe_u32 v{t0}, v{vL}, 4, 1
v_lshl_add_u32 v{t1}, v{t0}, 5, v{t1}
v_and_b32 v{t0}, 3, v{vL}
v_lshl_add_u32 v{t1}, v{t0}, 3, v{t1}
s_mul_i32 s{sT0}, s{sKQ}, {WREGION}
v_add_u32 v{t1}, s{sT0}, v{t1}
v_lshrrev_b32 v{t0}, 5, v{vL}
v_lshl_add_u32 v{vAO}, v{t0}, 10, v{t1}
v_lshl_add_u32 v{vA2P}, v{t0}, 9, v{t1}
v_xor_b32 v{vAO+1}, 64, v{vAO}
v_xor_b32 v{vA2P+1}, 64, v{vA2P}""")
a.wait(vm="r1")
a("s_barrier")
def w_frag(dst, pos, which, tag):
    ad, sec = (vAO, 512) if which == "wo" else (vA2P, 1024)
    for b in range(2):
        a.ds(f"ds_read_b64_tr_b16 {v(dst+4*b,2)}, v{ad+b} offset:{pos*2048}", tag)
        a.ds(f"ds_read_b64_tr_b16 {v(dst+4*b+2,2)}, v{ad+b} offset:{pos*2048+sec}", tag)
for p in range(12): w_frag(vWR + 8 * p, p, "wo" if p < 8 else "w2", "wr")
a.wait(lg="all")
a("s_barrier")

def poll(voff, nl_mask, soff, lab):
    a(f"""s_mov_b32 s{sCNT}, {SPIN}
    s_mov_b64 exec, {nl_mask}
    {lab}:
    buffer_load_dword v{vT}, v{voff}, {srd(sWS)}, s{soff} offen sc1
    s_sub_u32 s{sCNT}, s{sCNT}, 1
    s_waitcnt vmcnt(0)
    v_cmp_ne_u32 vcc, s{sTAG}, v{vT}
    s_cbranch_vccz {lab}_ok
    s_cmp_lg_u32 s{sCNT}, 0
    s_cbranch_scc1 {lab}
    {lab}_ok:
    s_mov_b64 exec, -1""")
    a.vm = []

st3 = a.save()
a(f"""s_cmp_eq_u32 s{sTYPE}, 0
s_cbranch_scc0 L_h1B""")
a(f"""s_lshl_b32 s{sT0}, s{sG}, 2
s_add_u32 s{sT0}, s{sT0}, s{sSIG}
s_lshl_b32 s{sT1}, s{sT0}, 12
s_add_u32 s{sT1}, s{sT1}, {FL_KV}
v_lshlrev_b32 v{vT+1}, 8, v{vL}""")
poll(vT + 1, "0xffff", sT1, "L_pollkv")
stamp(8)
a(f"""s_mul_i32 s{sT0}, s{sT0}, {16*1152}
s_add_u32 s{sT0}, s{sT0}, {KVD}
s_lshl_b32 s{sT1}, s{sH}, 9
s_add_u32 s{sT1}, s{sT1}, s{sT0}
s_lshl_b32 s{sT2}, s{sH}, 5
s_add_u32 s{sT0}, s{sT0}, s{sT2}
v_lshrrev_b32 v{t0}, 5, v{vL}
v_mul_u32_u24 v{t0}, 1152, v{t0}
v_and_b32 v{t1}, 31, v{vL}
v_lshl_add_u32 v{t0}, v{t1}, 4, v{t0}
v_and_b32 v{t1}, 15, v{vL}
v_mul_u32_u24 v{t1}, 1152, v{t1}
v_and_b32 v{t2}, 16, v{vL}
v_add_u32 v{t1}, v{t1}, v{t2}""")
vZ = vA0
a.vmem(f"buffer_load_dwordx4 {v(vZ,4)}, v{t1}, {srd(sWS)}, s{sT0} offen offset:1024 sc1", "z")
for i in range(8):
    a.vmem(f"buffer_load_dwordx4 {v(vWF+4*i,4)}, v{t0}, {srd(sWS)}, s{sT1} offen sc1", f"t{i}")
    if i < 7: a(f"s_add_u32 s{sT1}, s{sT1}, 2304")
for p in range(12): w_dma(p, "w2", "r2b")
a(f"""s_mul_i32 s{sT0}, s{sSIG}, 1088
s_mul_i32 s{sT1}, s{sH}, 544
s_add_u32 s{sT0}, s{sT0}, s{sT1}
s_add_u32 s{sT0}, s{sT0}, {KVL}
v_bfe_u32 v{t0}, v{vL}, 4, 1
v_mul_u32_u24 v{t0}, 272, v{t0}
v_add_u32 v{t0}, s{sT0}, v{t0}
v_and_b32 v{t1}, 15, v{vL}
v_lshl_add_u32 v{t1}, v{t1}, 4, v{t0}
v_lshrrev_b32 v{t2}, 5, v{vL}
v_lshl_add_u32 v{t1}, v{t2}, 3, v{t1}""")
a.wait(vm="z")
vZS = vA0 + 4
for j in range(4):
    a(f"v_lshlrev_b32 v{vZS+2*j}, 16, v{vZ+j}")
    a(f"v_and_b32 v{vZS+2*j+1}, s{sMASK}, v{vZ+j}")
for sh in (8, 4, 2, 1):
    for e in range(8): a(f"v_add_f32_dpp v{vZS+e}, v{vZS+e}, v{vZS+e} row_ror:{sh} row_mask:0xf bank_mask:0xf")
for j in range(4): a(f"v_cvt_pk_bf16_f32 v{vZ+j}, v{vZS+2*j}, v{vZS+2*j+1}")
a(f"""s_mov_b64 exec, 0x10001
ds_write_b128 v{t0}, {v(vZ,4)} offset:256
s_mov_b64 exec, -1""")
vTS = vA1
for i in range(8):
    a.wait(vm=f"t{i}")
    for j in range(4):
        x = vWF + 4 * i + j
        if i == 0:
            a(f"v_lshlrev_b32 v{vTS+2*j}, 16, v{x}")
            a(f"v_and_b32 v{vTS+2*j+1}, s{sMASK}, v{x}")
        else:
            a(f"v_lshlrev_b32 v{vTS+8}, 16, v{x}")
            a(f"v_and_b32 v{vTS+9}, s{sMASK}, v{x}")
            a(f"v_add_f32 v{vTS+2*j}, v{vTS+2*j}, v{vTS+8}")
            a(f"v_add_f32 v{vTS+2*j+1}, v{vTS+2*j+1}, v{vTS+9}")
for e in range(4): a(f"v_permlane32_swap_b32 v{vTS+e}, v{vTS+4+e}")
for e in range(4): a(f"v_add_f32 v{vTS+e}, v{vTS+e}, v{vTS+4+e}")
a(f"""v_cvt_pk_bf16_f32 v{vTS}, v{vTS}, v{vTS+1}
v_cvt_pk_bf16_f32 v{vTS+1}, v{vTS+2}, v{vTS+3}
ds_write_b64 v{t1}, {v(vTS,2)}
v_and_b32 v{t0}, 31, v{vL}
v_min_u32 v{t0}, 16, v{t0}
v_lshlrev_b32 v{t0}, 4, v{t0}
v_lshrrev_b32 v{t1}, 5, v{vL}
v_mul_u32_u24 v{t1}, 544, v{t1}
s_mul_i32 s{sT0}, s{sH}, 2176
s_add_u32 s{sT0}, s{sT0}, {KVL}
v_add3_u32 v{t0}, v{t0}, v{t1}, s{sT0}
s_waitcnt lgkmcnt(0)
s_barrier""")
for hh in range(2):
    for j in range(2):
        a(f"ds_read_b128 {v(vWF+8*hh+4*j,4)}, v{t0} offset:{hh*1088+j*272}")
a(f"""s_lshl_b32 s{sT0}, s{sRB}, 2
s_add_u32 s{sT0}, s{sT0}, s{sSIG}
s_mul_i32 s{sT0}, s{sT0}, 118
s_lshl_b32 s{sT1}, s{sG}, 2
s_add_u32 s{sT0}, s{sT0}, s{sT1}
s_lshl_b32 s{sT1}, s{sH}, 1
s_add_u32 s{sT0}, s{sT0}, s{sT1}
s_lshl_b32 s{sT0}, s{sT0}, 10
s_add_u32 s{sT0}, s{sT0}, {ACT + 86*1024}
s_lshl_b32 s{sT1}, s{sRB}, 3
s_add_u32 s{sT1}, s{sT1}, s{sG}
s_lshl_b32 s{sT1}, s{sT1}, 3
s_add_u32 s{sT1}, s{sT1}, s{sW}
s_lshl_b32 s{sT1}, s{sT1}, 8
s_add_u32 s{sT1}, s{sT1}, {FL_O}
s_waitcnt lgkmcnt(0)""")
for hh, D in ((0, vA0), (1, vA1)):
    a(f"{MF} {v(D,16)}, {v(vWF+8*hh,4)}, {v(vPQ+8*hh,4)}, 0")
    a(f"{MF} {v(D,16)}, {v(vWF+8*hh+4,4)}, {v(vPQ+8*hh+4,4)}, {v(D,16)}")
for hh, D in ((0, vA0), (1, vA1)):
    a(f"v_add_f32 v{D+8}, 0x358637bd, v{D+8}")
    a(f"v_rcp_f32 v{D+8}, v{D+8}")
    for i in range(8): a(f"v_mul_f32 v{D+i}, v{D+i}, v{D+8}")
    for i in range(4): a(f"v_cvt_pk_bf16_f32 v{D+12+i}, v{D+2*i}, v{D+2*i+1}")
    a(f"buffer_store_dwordx4 {v(D+12,4)}, v{vL16}, {srd(sWS)}, s{sT0} offen offset:{hh*1024} sc1")
a(f"""v_mov_b32 v{t0}, s{sTAG}
v_mov_b32 v{t1}, 0
s_mov_b64 exec, 1
s_waitcnt vmcnt(0)
buffer_store_dword v{t0}, v{t1}, {srd(sWS)}, s{sT1} offen sc1
s_mov_b64 exec, -1
s_branch L_h1E""")
a.label("L_h1B")
a.restore(st3)
stamp(8)
for p in range(12): w_dma(p, "w2", "r2b")
a.label("L_h1E")
stamp(9)

vFO = vT + 1
a(f"""s_lshr_b32 s{sT0}, s{sRB2}, 1
s_lshl_b32 s{sT0}, s{sT0}, 3
s_lshl_b32 s{sT1}, s{sKQ}, 1
s_add_u32 s{sT0}, s{sT0}, s{sT1}
s_lshl_b32 s{sT0}, s{sT0}, 3
s_and_b32 s{sT1}, s{sRB2}, 1
s_lshl_b32 s{sT1}, s{sT1}, 1
s_add_u32 s{sT0}, s{sT0}, s{sT1}
s_add_u32 s{sT0}, s{sT0}, s{sSTT}
s_lshl_b32 s{sT0}, s{sT0}, 8
s_add_u32 s{sT3}, s{sT0}, {FL_O}
s_add_u32 s{sT0}, s{sT0}, {FL_ACT}
v_lshlrev_b32 v{vFO}, 10, v{vL}
s_lshl_b32 s{sXO}, s{sRB2}, 1
s_add_u32 s{sXO}, s{sXO}, s{sSTT}
s_mul_i32 s{sXO}, s{sXO}, 118
s_lshl_b32 s{sT1}, s{sKQ}, 3
s_add_u32 s{sWOF}, s{sXO}, s{sT1}
s_lshl_b32 s{sWOF}, s{sWOF}, 10
s_add_u32 s{sWOF}, s{sWOF}, {ACT + 86*1024}     ; o fragments
s_mul_i32 s{sT1}, s{sKQ}, 22
s_add_u32 s{sXO}, s{sXO}, s{sT1}
s_lshl_b32 s{sXO}, s{sXO}, 10
s_add_u32 s{sXO}, s{sXO}, {ACT}""")
vOO = vXO1
a(f"""v_lshrrev_b32 v{vT+2}, 3, v{vL}
v_and_b32 v{vT+3}, 7, v{vL}
v_lshlrev_b32 v{vT+3}, 4, v{vT+3}
v_lshl_add_u32 v{vOO}, v{vT+2}, 10, v{vT+3}
s_lshl_b32 s{sM0W}, s{sRB2}, 16
s_lshl_b32 s{sT1}, s{sW}, 13
s_add_u32 s{sM0W}, s{sM0W}, s{sT1}
s_lshl_b32 s{sT1}, s{sCB}, 7
s_add_u32 s{sM0W}, s{sM0W}, s{sT1}
buffer_load_dwordx4 {v(vRES,4)}, v{vOO}, {srd(sX)}, s{sM0W} offen""")
poll(vFO, "15", sT0, "L_pollact")
a("s_barrier")
stamp(10)
vAF = 64
vACC = 224
vLW = 24
def act_load(i):
    if i % 4 == 0 and i: a(f"s_add_u32 s{sXO}, s{sXO}, 4096")
    a.vmem(f"buffer_load_dwordx4 {v(vAF+4*(i&15),4)}, v{vL16}, {srd(sWS)}, s{sXO} offen offset:{(i&3)*1024} sc1", f"a{i}")
def pos_of(i): return i + 8 if i < 10 else i - 10
for i in range(16): act_load(i)
w_frag(vLW, pos_of(4), "w2", "w4")
def p2step(wreg, breg, first):
    for b in range(2):
        a(f"{MF} {v(vACC+16*b,16)}, {v(wreg+4*b,4)}, {v(breg,4)}, {'0' if first else v(vACC+16*b,16)}")
for i in range(22):
    if i == 20:
        a(f"""s_cmp_eq_u32 s{sKQ}, 3
        s_cbranch_scc1 L_actE""")
    if i >= 4 and i + 1 < 22: w_frag(vLW + 8 * ((i + 1) & 1), pos_of(i + 1), "w2", f"w{i+1}")
    a.wait(vm=f"a{i}", lg=f"w{i}" if i >= 4 else None)
    p2step(vWR + 8 * (8 + i) if i < 4 else vLW + 8 * (i & 1), vAF + 4 * (i & 15), i == 0)
    if i + 16 < 22: act_load(i + 16)
a.label("L_actE")
a("s_waitcnt lgkmcnt(0)")
a.lg = []
poll(vFO, "15", sT3, "L_pollo")
stamp(11)
for i in range(8):
    if i == 4: a(f"s_add_u32 s{sWOF}, s{sWOF}, 4096")
    a.vmem(f"buffer_load_dwordx4 {v(vAF+4*i,4)}, v{vL16}, {srd(sWS)}, s{sWOF} offen offset:{(i&3)*1024} sc1", f"o{i}")
a(f"""v_and_b32 v{t0}, 31, v{vL}
v_mul_u32_u24 v{t0}, 272, v{t0}
v_lshrrev_b32 v{t1}, 5, v{vL}
v_lshl_add_u32 v{t0}, v{t1}, 4, v{t0}
s_mul_i32 s{sT0}, s{sKQ}, {RS}
s_mul_i32 s{sT1}, s{sSTT}, {32*272}
s_add_u32 s{sT0}, s{sT0}, s{sT1}
v_add_u32 v{t0}, s{sT0}, v{t0}
v_lshrrev_b32 v{t1}, 3, v{vL}
v_mul_u32_u24 v{t1}, 272, v{t1}
v_and_b32 v{t2}, 7, v{vL}
v_lshl_add_u32 v{t1}, v{t2}, 5, v{t1}
s_mul_i32 s{sT0}, s{sW}, {8*272}
v_add_u32 v{t1}, s{sT0}, v{t1}
s_barrier""")
for i in range(8):
    a.wait(vm=f"o{i}")
    p2step(vWR + 8 * i, vAF + 4 * i, False)
for b in range(2):
    for q in range(4):
        a(f"ds_write_b128 v{t0}, {v(vACC+16*b+4*q,4)} offset:{b*128+q*32}")
a("""s_waitcnt lgkmcnt(0)
s_barrier""")
for k in range(4):
    a(f"ds_read_b128 {v(vAF+8*k,4)}, v{t1} offset:{k*RS}")
    a(f"ds_read_b128 {v(vAF+8*k+4,4)}, v{t1} offset:{k*RS+16}")
for j in range(4):
    a(f"v_lshlrev_b32 v{vACC+2*j}, 16, v{vRES+j}")
    a(f"v_and_b32 v{vACC+2*j+1}, s{sMASK}, v{vRES+j}")
for k in range(4):
    a(f"s_waitcnt lgkmcnt({6-2*k})")
    for e in range(8): a(f"v_add_f32 v{vACC+e}, v{vACC+e}, v{vAF+8*k+e}")
for j in range(4): a(f"v_cvt_pk_bf16_f32 v{vACC+8+j}, v{vACC+2*j}, v{vACC+2*j+1}")
a(f"buffer_store_dwordx4 {v(vACC+8,4)}, v{vOO}, {srd(sOUT)}, s{sM0W} offen")
stamp(12)
a(f"""s_or_b32 s{sT0}, s2, s{sW}
s_cmp_eq_u32 s{sT0}, 0
s_cbranch_scc0 L_noep
v_lshlrev_b32 v{vFO}, 11, v{vL}
s_mov_b32 s{sT0}, {FL_ACT}""")
poll(vFO, "-1", sT0, "L_pe1")
a(f"s_mov_b32 s{sT0}, {FL_ACT + 64*2048}")
poll(vFO, "-1", sT0, "L_pe2")
a(f"""v_mov_b32 v{t0}, s{sTAG}
v_mov_b32 v{t1}, 0
s_mov_b64 exec, 1
buffer_store_dword v{t0}, v{t1}, {srd(sWS)}, 0 offen sc1
s_mov_b64 exec, -1""")
a.label("L_noep")
if STAMP >= 0:
    n = nst[0]
    a(f"""s_cmp_eq_u32 s{sW}, {STAMP}
    s_cbranch_scc0 L_end
    s_waitcnt lgkmcnt(0)
    s_mul_i32 s{sT0}, s2, {n*8}
    s_add_u32 s{sT0}, s{sT0}, {STAMP_OFF}
    v_mov_b32 v{t1}, 0
    s_mov_b64 exec, 1""")
    for i in range(n):
        a(f"v_mov_b32 v{64+2*i}, s{sST0+2*i}")
        a(f"v_mov_b32 v{65+2*i}, s{sST0+2*i+1}")
        a(f"buffer_store_dwordx2 {v(64+2*i,2)}, v{t1}, {srd(sWS)}, s{sT0} offen offset:{i*8}")
a.label("L_end")
a.pad()
open(out_path, "w").write(header(256, 512, LDS_SIZE) + a.text() + footer(vgpr=256))
print("instructions:", sum(1 for x in a.L if x.states), "stamps", nst[0])
```

```python
import sys
from asmdsl import Asm
from gen_common import header, footer

OPT = dict(a.split("=") for a in sys.argv[2:])
def opt(k, d): return type(d)(OPT.get(k, d))
STAMP = opt("stamp", -1)
CYC = opt("cyc", 0)
out_path = sys.argv[1]
X_NODMA, X_NOREAD, X_NOMFMA, X_STOP, X_NOCLR = opt("nodma", 0), opt("noread", 0), opt("nomfma", 0), opt("stop", 0), opt("noclr", 0)

SLOT = 33792
LREG = 0
UREG = 2 * SLOT
TOP = UREG + 11 * 8192
CWC, CWAB, WPHI, KVL = TOP, TOP + 1024, TOP + 3072, TOP + 1024
PHI = UREG + 32768
VIMG = PHI + 32768
RED = 0
LDS_SIZE = 163840
REC1 = 0x1000
REC2 = REC1 + 2048 * 16
KVD = 0x20000
ACT = 0x140000
STAMP_OFF = 128 << 20
SPIN = 200000

sW, sSIG, sH, sTYPE, sG = 3, 4, 5, 6, 7
sRB = 30; sT0 = 31
sX, sWD, sWE, sW2, sWO, sOUT, sWS = 32, 36, 40, 44, 48, 52, 56
sSTR, sXO, sWOF, sM0X, sM0W, sSTR64 = 60, 61, 62, 63, 64, 65
sTAG, sMASK, sT1, sT2, sT3, sSTART, sSKIP, sRB2, sCB, sCNT = 66, 67, 68, 69, 70, 71, 72, 73, 74, 75
sST0 = 76
sSB0, sSB1, sSB2, sREC = 8, 9, 10, 11
sHALF, sISQ = 16, 18
sLOm, sSTE, sM0R = 24, 26, 27
sWB = [28, 29, 12]
sAB = [13, 14, 15]
sOB, sKB = 20, 21
sLO = f"s[{sLOm}:{sLOm+1}]"
def srd(n): return f"s[{n}:{n+3}]"
def sp(n): return f"s[{n}:{n+1}]"

vL = 0
vXO0, vXO1, vWO, vWO2, vL16, vBA, vEP = 1, 2, 3, 4, 5, 6, 9
vW2O, vKA0, vKA1, vKB = 1, 2, 3, 9
vBC, vSD, vC1, vRSTD = 10, 11, 12, 13
vCAW, vCAR, vP2A, vVW, vVP, vPW0, vPW1 = 14, 15, 16, 20, 21, 22, 23
vT = 24
vPH = 32
vXA, vWA, vSEL, vCS = 40, 44, 48, 52
vU = 40
vWF = 64
vA2, vA0, vA1 = 80, 96, 112
vX = 128
def v(n, k=1): return f"v{n}" if k == 1 else f"v[{n}:{n+k-1}]"

a = Asm()
nst = [0]
FINE = opt("fine", 0)
def stamp(i, fine=0):
    if FINE != fine and i > 2: return
    if STAMP >= 0:
        a(f"{'s_memtime' if CYC else 's_memrealtime'} s[{sST0+2*i}:{sST0+2*i+1}]")
        nst[0] = max(nst[0], i + 1)

def mksrd(d, b, size):
    a(f"""s_mov_b32 s{d}, s{b}
    s_and_b32 s{d+1}, s{b+1}, 0xffff
    s_mov_b32 s{d+2}, {size}
    s_mov_b32 s{d+3}, 0x00020000""")

MF = "v_mfma_f32_32x32x16_bf16"
MF16 = "v_mfma_f32_16x16x32_bf16"
MF32 = "v_mfma_f32_32x32x2_f32"
LOG2E = "0x3fb8aa3b"

def lines(txt): return [l.strip() for l in txt.strip().split("\n") if l.strip()]
def cost(x):
    if callable(x): return getattr(x, "cost", 1)
    return 2 if ("v_exp" in x or "v_rcp" in x) else (0 if x.startswith("s_") else 1)
def emit(x):
    if callable(x): x()
    else: a(x)
def fn(f, c=1):
    f.cost = c; return f
class Filler:
    def __init__(self, items): self.q = list(items)
    def take(self, budget):
        while self.q and budget > 0:
            x = self.q.pop(0); budget -= cost(x); emit(x)
        while self.q and cost(self.q[0]) == 0: emit(self.q.pop(0))
    def flush(self): self.take(1 << 30)
def merge(main, side, start=0, end=None):
    end = len(main) if end is None else end
    tot = sum(cost(x) for x in main[start:end]); out = list(main[:start]); acc = 0; k = 0
    for x in main[start:end]:
        while k < len(side) and acc >= k * tot / len(side): out.append(side[k]); k += 1
        out.append(x); acc += cost(x)
    return out + side[k:] + list(main[end:])

retries = []
def checked(cmp_lines, reload, name):
    lab = a.newlabel(name)
    a.label(lab + "_c")
    for l in cmp_lines: a(l)
    a(f"s_cbranch_vccnz {lab}_r")
    a.label(lab + "_k")
    def blk():
        a.label(lab + "_r")
        a(f"""s_cmp_eq_u32 s{sCNT}, 0
        s_cbranch_scc1 {lab}_k
        s_sub_u32 s{sCNT}, s{sCNT}, 1""")
        reload()
        a(f"""s_waitcnt vmcnt(0)
        s_branch {lab}_c""")
    retries.append(blk)

a(f"""s_cmp_ge_u32 s2, 256
s_cbranch_scc1 L_end""")
stamp(0)
a(f"""s_load_dwordx16 s[8:23], s[0:1], 0
s_load_dwordx4 s[24:27], s[0:1], 64
s_load_dwordx2 s[28:29], s[0:1], 80
v_lshrrev_b32 v1, 6, v0
v_and_b32 v{vL}, 63, v0
v_readfirstlane_b32 s{sW}, v1
s_and_b32 s{sT0}, s2, 7                  ; xcd
s_lshr_b32 s{sT1}, s2, 3                 ; idx
s_and_b32 s{sRB}, s{sT0}, 1
s_lshl_b32 s{sRB}, s{sRB}, 3
s_and_b32 s{sT2}, s{sT1}, 7
s_add_u32 s{sRB}, s{sRB}, s{sT2}         ; rb
s_lshr_b32 s{sT2}, s{sT1}, 3             ; j
s_lshr_b32 s{sTYPE}, s{sT2}, 1
s_and_b32 s{sT2}, s{sT2}, 1
s_and_b32 s{sG}, s{sT0}, 6
s_add_u32 s{sG}, s{sG}, s{sT2}           ; g
s_lshl_b32 s{sRB2}, s{sT0}, 2
s_and_b32 s{sT2}, s{sT1}, 3
s_add_u32 s{sRB2}, s{sRB2}, s{sT2}       ; rb2
s_lshr_b32 s{sCB}, s{sT1}, 2             ; cb
s_and_b32 s{sSIG}, s{sW}, 3
s_lshr_b32 s{sH}, s{sW}, 2
s_mul_i32 s{sSTART}, s{sG}, 11
s_add_u32 s{sSTART}, s{sSTART}, 1
s_lshr_b32 s{sSTART}, s{sSTART}, 1
s_min_u32 s{sSTART}, s{sSTART}, 38
s_mov_b32 s{sMASK}, 0xffff0000
s_mov_b32 s{sCNT}, {SPIN}
s_lshl_b32 s{sT2}, s{sG}, 7
s_lshl_b32 s{sT3}, s{sSTART}, 6
s_add_u32 s{sT0}, s{sT2}, 1024
s_add_u32 s{sXO}, s{sT3}, 256
s_cmp_eq_u32 s{sTYPE}, 0
s_mov_b32 s{sSTR}, 2752
s_cselect_b32 s{sSTR}, 3072, s{sSTR}
s_mov_b32 s{sT1}, 128
s_cselect_b32 s{sT1}, 1024, s{sT1}
s_cselect_b32 s{sT3}, s{sT0}, s{sT3}
s_cselect_b32 s{sT2}, s{sXO}, s{sT2}
s_sub_u32 s{sSKIP}, {2752+3072}, s{sSTR}
s_lshl_b32 s{sSTR64}, s{sSTR}, 6
""")
t0, t1, t2, t3, t4 = vT, vT + 1, vT + 2, vT + 3, vT + 4
a(f"""v_lshrrev_b32 v{t0}, 3, v{vL}          ; l>>3
v_and_b32 v{t1}, 7, v{vL}                ; l&7
v_lshrrev_b32 v{t2}, 4, v{vL}            ; l>>4
v_xor_b32 v{t3}, v{t1}, v{t2}
v_lshlrev_b32 v{t3}, 4, v{t3}
v_lshl_add_u32 v{vXO0}, v{t0}, 10, v{t3}
v_xor_b32 v{vXO1}, 64, v{vXO0}
v_add_u32 v{vXO1}, 8192, v{vXO1}
v_lshlrev_b32 v{t3}, 2, v{t2}            ; 4*(l>>4)
v_mul_lo_u32 v{vWO}, v{t3}, s{sSTR}
v_and_b32 v{t3}, 1, v{t0}                ; (l>>3)&1
v_mul_lo_u32 v{t3}, v{t3}, s{sT1}
v_lshl_add_u32 v{t3}, v{t1}, 4, v{t3}
v_add3_u32 v{vWO}, v{vWO}, v{t3}, s{sT3}
v_and_b32 v{t3}, 1, v{t2}
v_lshlrev_b32 v{t3}, 2, v{t3}
v_xor_b32 v{t3}, v{t3}, v{t1}
v_lshlrev_b32 v{t3}, 4, v{t3}
v_mul_lo_u32 v{vWO2}, v{t0}, s{sSKIP}
v_add3_u32 v{vWO2}, v{vWO2}, v{t3}, s{sT2}
v_lshlrev_b32 v{vL16}, 4, v{vL}
v_mov_b32 v{t4}, 0
s_lshl_b32 s{sXO}, s{sRB}, 17
s_lshr_b32 s{sT3}, s{sSIG}, 1
s_lshl_b32 s{sT3}, s{sT3}, 6
s_lshl_b32 s{sT2}, s{sTYPE}, 5
s_add_u32 s{sT3}, s{sT3}, s{sT2}
s_lshl_b32 s{sT2}, s{sG}, 2
s_add_u32 s{sT3}, s{sT3}, s{sT2}
s_and_b32 s{sT2}, s{sSIG}, 1
s_lshl_b32 s{sT2}, s{sT2}, 1
s_add_u32 s{sT3}, s{sT3}, s{sT2}
s_add_u32 s{sT3}, s{sT3}, s{sH}
s_lshl_b32 s{sT3}, s{sT3}, 10
s_add_u32 s{sT3}, s{sT3}, s{sXO}
s_lshl_b32 s{sT0}, s{sW}, 14
s_add_u32 s{sXO}, s{sXO}, s{sT0}         ; x soffset
s_lshr_b32 s{sT0}, s{sW}, 1              ; q4
s_and_b32 s{sT1}, s{sW}, 1
s_lshl_b32 s{sT1}, s{sT1}, 1             ; r0
s_lshl_b32 s{sT2}, s{sT0}, 4
s_add_u32 s{sT2}, s{sT2}, s{sT1}
s_mul_i32 s{sWOF}, s{sT2}, s{sSTR}       ; W soffset
s_lshl_b32 s{sM0X}, s{sW}, 11
s_mul_i32 s{sM0W}, s{sT0}, 4352
s_mul_i32 s{sT1}, s{sT1}, 1088
s_add_u32 s{sM0W}, s{sM0W}, s{sT1}
s_add_u32 s{sM0W}, s{sM0W}, 16384
s_waitcnt lgkmcnt(0)
""")
mksrd(sX, 8, 2048 * 1024)
mksrd(sWS, 28, 256 << 20)
vXR = vA0
a.vmem(f"buffer_load_dwordx4 {v(vXR,4)}, v{vL16}, {srd(sX)}, s{sT3} offen", "xr")
a.vmem(f"buffer_load_dword v{vEP}, v{t4}, {srd(sWS)}, 0 offen sc1", "xr")
a(f"""s_cmp_eq_u32 s{sTYPE}, 0
s_cselect_b32 s{sWD}, s10, s18
s_cselect_b32 s{sWD+1}, s11, s19
s_lshl_b32 s{sWD+2}, s{sSTR}, 9
s_and_b32 s{sWD+1}, s{sWD+1}, 0xffff
s_mov_b32 s{sWD+3}, 0x00020000
""")

def dma_pieces(c):
    slot = (c & 3) * SLOT
    P = []
    if c < 8:
        def p0():
            a(f"s_add_u32 m0, s{sM0X}, {slot}")
            a.vmem(f"buffer_load_dwordx4 v{vXO0}, {srd(sX)}, s{sXO} offen lds", f"c{c}")
        def p1():
            a(f"s_add_u32 m0, s{sM0X}, {slot+1024}")
            a.vmem(f"buffer_load_dwordx4 v{vXO1}, {srd(sX)}, s{sXO} offen lds", f"c{c}")
            a(f"s_add_u32 s{sXO}, s{sXO}, 128")
        def p2():
            a(f"s_add_u32 m0, s{sM0W}, {slot}")
            a.vmem(f"buffer_load_dwordx4 v{vWO}, {srd(sWD)}, s{sWOF} offen lds", f"c{c}")
            a(f"s_add_u32 s{sWOF}, s{sWOF}, s{sSTR}")
        def p3():
            a(f"s_add_u32 m0, s{sM0W}, {slot+1088}")
            a.vmem(f"buffer_load_dwordx4 v{vWO}, {srd(sWD)}, s{sWOF} offen lds", f"c{c}")
            a(f"s_add_u32 s{sWOF}, s{sWOF}, s{sSTR64}")
        P = [p0, p1, p2, p3]
    else:
        u = c - 8
        def mk(i):
            def p():
                if u == 0 and i == 0:
                    a(f"""s_lshl_b32 s{sT0}, s{sW}, 5
                    s_mul_i32 s{sWOF}, s{sT0}, s{sSTE}
                    s_lshl_b32 s{sM0X}, s{sW}, 12
                    s_lshl_b32 s{sM0W}, s{sSTE}, 3
                    s_mul_i32 s{sSTR64}, s{sSTE}, {256-24}""")
                a(f"s_add_u32 m0, s{sM0X}, {slot+i*1024}")
                a.vmem(f"buffer_load_dwordx4 v{vWO2}, {srd(sWE)}, s{sWOF} offen lds", f"c{c}")
                a(f"s_add_u32 s{sWOF}, s{sWOF}, s{sM0W if i < 3 else sSTR64}")
            return p
        P = [mk(i) for i in range(4)]
    return [fn(p, 4) for p in P]

a(f"s_sub_u32 s{sSTR64}, s{sSTR64}, s{sSTR}")
for c in range(2):
    for p in dma_pieces(c): p()
stamp(1)
a(f"""s_cmp_eq_u32 s{sTYPE}, 0
s_cselect_b32 s{sWE}, s18, s10
s_cselect_b32 s{sWE+1}, s19, s11
s_lshl_b32 s{sWE+2}, s{sSKIP}, 9
s_and_b32 s{sWE+1}, s{sWE+1}, 0xffff
s_mov_b32 s{sWE+3}, 0x00020000
""")
mksrd(sW2, 22, 1376 * 1024)
mksrd(sWO, 14, 512 * 1024)
mksrd(sOUT, 24, 2048 * 1024)
sPH, sB1 = 12, 20
a(f"""s_and_b32 s{sPH+1}, s{sPH+1}, 0xffff
s_mov_b32 s{sPH+2}, 16384
s_mov_b32 s{sPH+3}, 0x00020000
s_and_b32 s{sB1+1}, s{sB1+1}, 0xffff
s_mov_b32 s{sB1+2}, 2752
s_mov_b32 s{sB1+3}, 0x00020000
s_mov_b32 s{sSTE}, s{sSKIP}
s_lshr_b32 s{sREC}, s{sT3}, 6
s_and_b32 s{sT0}, s{sG}, 1
s_cmp_ge_u32 s{sG}, 6
s_cselect_b32 s{sT0}, 1, s{sT0}
s_and_b32 s{sSKIP}, s{sT0}, s{sH}
s_lshl_b32 s{sT0}, s{sRB}, 2
s_add_u32 s{sT0}, s{sT0}, s{sSIG}
s_mul_i32 s{sT0}, s{sT0}, 59
s_add_u32 s{sT1}, s{sT0}, s{sSTART}
s_add_u32 s{sT1}, s{sT1}, s{sH}
s_lshl_b32 s{sT1}, s{sT1}, 11
s_add_u32 s{sSB0}, s{sT1}, {ACT}         ; tile a
s_add_u32 s{sSB1}, s{sT1}, {ACT+4096}    ; tile b
s_add_u32 s{sT1}, s{sT1}, {ACT+8192}     ; tile c
s_lshl_b32 s{sT2}, s{sG}, 1
s_add_u32 s{sT0}, s{sT0}, s{sT2}
s_add_u32 s{sT0}, s{sT0}, s{sH}
s_lshl_b32 s{sT0}, s{sT0}, 11
s_add_u32 s{sSB2}, s{sT0}, {ACT+43*2048} ; o
s_lshl_b32 s{sT0}, s{sG}, 2
s_add_u32 s{sT0}, s{sT0}, s{sSIG}
s_lshl_b32 s{sT0}, s{sT0}, 4
s_add_u32 s{sT0}, s{sT0}, s{sRB}
s_mul_i32 s{sT0}, s{sT0}, 1152
s_add_u32 s{sT0}, s{sT0}, {KVD}
s_lshl_b32 s{sT2}, s2, 11
s_lshl_b32 s{sT3}, s{sW}, 4
s_add_u32 s{sT2}, s{sT2}, s{sT3}
s_add_u32 s{sT2}, s{sT2}, {ACT + 64*118*1024}
v_mov_b32 v{t0}, -1
v_mov_b32 v{t1}, -1
v_mov_b32 v{t2}, -1
v_mov_b32 v{t3}, -1
s_cmp_eq_u32 s{sTYPE}, 0
s_cbranch_scc0 L_clrB
s_cmp_eq_u32 s{sSKIP}, 0
s_cselect_b32 s{sSB0}, s{sT1}, s{sT2}
s_cselect_b64 exec, -1, 1
buffer_store_dwordx4 {v(t0,4)}, v{vL16}, {srd(sWS)}, s{sSB0} offen sc1
buffer_store_dwordx4 {v(t0,4)}, v{vL16}, {srd(sWS)}, s{sSB0} offen offset:1024 sc1
s_cmp_eq_u32 s{sH}, 0
s_cselect_b32 s{sSB1}, s{sT0}, s{sT2}
s_cselect_b64 exec, -1, 1
buffer_store_dwordx4 {v(t0,4)}, v{vL16}, {srd(sWS)}, s{sSB1} offen sc1
s_cselect_b64 exec, 15, 1
buffer_store_dwordx4 {v(t0,4)}, v{vL16}, {srd(sWS)}, s{sSB1} offen offset:1024 sc1
s_mov_b64 exec, 1
buffer_store_dwordx4 {v(t0,4)}, v{vL16}, {srd(sWS)}, s{sT2} offen sc1
buffer_store_dwordx4 {v(t0,4)}, v{vL16}, {srd(sWS)}, s{sT2} offen offset:1024 sc1
s_mov_b64 exec, -1
s_branch L_clrE
L_clrB:""")
for sb in (sSB0, sSB1, sSB2):
    a.vmem(f"buffer_store_dwordx4 {v(t0,4)}, v{vL16}, {srd(sWS)}, s{sb} offen sc1", "clr")
    a.vmem(f"buffer_store_dwordx4 {v(t0,4)}, v{vL16}, {srd(sWS)}, s{sb} offen offset:1024 sc1", "clr")
a.label("L_clrE")
if X_NOCLR:
    a.vm = [t for t in a.vm if t != "clr"]
    a.L = [x for x in a.L if not x.op.startswith("buffer_store")]

u0, u1, u2, u3 = vA1, vA1 + 1, vA1 + 2, vA1 + 3
a(f"""s_xor_b32 s{sT0}, s{sSIG}, s{sH}        ; m
v_and_b32 v{u0}, 31, v{vL}
v_lshrrev_b32 v{u1}, 5, v{vL}             ; hi
v_bfe_u32 v{u2}, v{vL}, 1, 3              ; swz
v_xor_b32 v{u1}, v{u1}, v{u2}
v_lshlrev_b32 v{u1}, 4, v{u1}
v_lshl_add_u32 v{u1}, v{u0}, 7, v{u1}
s_lshl_b32 s{sT1}, s{sSIG}, 12
v_add_u32 v{u1}, s{sT1}, v{u1}            ; x base
v_bfe_u32 v{u2}, v{vL}, 2, 2              ; r
v_mul_u32_u24 v{u2}, 1088, v{u2}
v_lshrrev_b32 v{u3}, 5, v{vL}
v_lshl_add_u32 v{u2}, v{u3}, 9, v{u2}
v_bfe_u32 v{u3}, v{vL}, 4, 1
v_lshl_add_u32 v{u2}, v{u3}, 5, v{u2}
v_and_b32 v{u3}, 3, v{vL}
v_lshl_add_u32 v{u2}, v{u3}, 3, v{u2}
s_lshl_b32 s{sT1}, s{sH}, 6
s_add_u32 s{sT1}, s{sT1}, 16384
v_add_u32 v{u2}, s{sT1}, v{u2}            ; W base
""")
for ks in range(4):
    a(f"""s_xor_b32 s{sT1}, s{sT0}, {ks}
    s_lshl_b32 s{sT2}, s{sT1}, 5
    s_mul_i32 s{sT1}, s{sT1}, 4352
    v_xor_b32 v{vXA+ks}, s{sT2}, v{u1}
    v_add_u32 v{vWA+ks}, s{sT1}, v{u2}""")
a(f"""v_lshrrev_b32 v{u1}, 2, v{vL}
v_lshrrev_b32 v{u2}, 4, v{vL}
v_xor_b32 v{u1}, v{u1}, v{u2}
v_and_b32 v{u1}, 1, v{u1}
v_cmp_eq_u32 vcc, 0, v{u1}
v_mov_b32 v{u2}, 0x3f803f80
v_lshlrev_b32 v{u0}, 1, v{u0}
s_mov_b32 s{sHALF}, -0.5
s_mov_b32 s{sHALF+1}, -0.5
s_mov_b32 s{sISQ}, 0x3f3504f3
s_mov_b32 s{sISQ+1}, 0x3f3504f3
s_mov_b32 s{sLOm}, -1
s_mov_b32 s{sLOm+1}, 0""")
for i in range(4): a(f"v_cndmask_b32 v{vSEL+i}, 0, v{u2}, vcc")

e = vXR + 4
r0, r1 = vXR + 12, vXR + 13
vRC = vT
def allsum(r):
    L = [f"v_add_f32_dpp v{r}, v{r}, v{r} row_ror:{s} row_mask:0xf bank_mask:0xf" for s in (8, 4, 2, 1)]
    L += [f"v_mov_b32 v{r1}, v{r}", f"v_permlane16_swap_b32 v{r}, v{r1}", f"v_add_f32 v{r}, v{r}, v{r1}",
          f"v_mov_b32 v{r1}, v{r}", f"v_permlane32_swap_b32 v{r}, v{r1}", f"v_add_f32 v{r}, v{r}, v{r1}"]
    return L
S = []
for j in range(4):
    S += [f"v_lshlrev_b32 v{e+2*j}, 16, v{vXR+j}", f"v_and_b32 v{e+2*j+1}, s{sMASK}, v{vXR+j}"]
S += [f"v_add_f32 v{vXR+j}, v{e+2*j}, v{e+2*j+1}" for j in range(4)]
S += [f"v_add_f32 v{vXR}, v{vXR}, v{vXR+1}", f"v_add_f32 v{vXR+2}, v{vXR+2}, v{vXR+3}", f"v_add_f32 v{r0}, v{vXR}, v{vXR+2}"]
S += allsum(r0)
S += [f"v_mul_f32 v{vRC}, 0xbb000000, v{r0}"]
S += [f"v_add_f32 v{e+j}, v{e+j}, v{vRC}" for j in range(8)]
S += [f"v_mul_f32 v{vXR+j}, v{e+j}, v{e+j}" for j in range(4)]
S += [f"v_fmac_f32 v{vXR+j}, v{e+4+j}, v{e+4+j}" for j in range(4)]
S += [f"v_add_f32 v{vXR}, v{vXR}, v{vXR+1}", f"v_add_f32 v{vXR+2}, v{vXR+2}, v{vXR+3}", f"v_add_f32 v{r0}, v{vXR}, v{vXR+2}"]
S += allsum(r0)
S += [f"v_mov_b32 v{r1}, 0x3727c5ac", f"v_fmac_f32 v{r1}, 0x3b000000, v{r0}", f"v_rsq_f32 v{vRC+2}, v{r1}",
      f"v_add_u32 v{vRC+3}, 1, v{vEP}", f"v_mul_f32 v{vRC+1}, v{r1}, v{vRC+2}", f"v_readfirstlane_b32 s{sTAG}, v{vRC+3}"]
a.wait(vm="xr")
for x in merge(S, dma_pieces(2)): emit(x)
def rec_store(base):
    a(f"s_add_u32 s{sT0}, s{sREC}, {base}")
    a("s_mov_b64 exec, 1")
    a.vmem(f"buffer_store_dwordx4 {v(vRC,4)}, v{vL16}, {srd(sWS)}, s{sT0} offen sc1", "rec")
    a("s_mov_b64 exec, -1")
rec_store(REC1)
a(f"""s_and_b32 s{sT0}, s{sW}, 1
s_lshl_b32 s{sT0}, s{sT0}, 10
s_add_u32 m0, s{sT0}, {WPHI}
s_lshl_b32 s{sT1}, s{sG}, 11
s_add_u32 s{sT1}, s{sT1}, s{sT0}
s_add_u32 s{sT0}, s{sSTART}, s{sH}
s_lshl_b32 s{sT0}, s{sT0}, 6""")
a.vmem(f"buffer_load_dwordx4 v{vL16}, {srd(sPH)}, s{sT1} offen lds", "misc")
for i in range(3):
    a.vmem(f"buffer_load_ushort v{vBA+i}, v{u0}, {srd(sB1)}, s{sT0} offen offset:{128*i}", "misc")

def p1_reads(c, ks):
    po = (c & 1) * SLOT
    t = 4 * c + ks
    tg = f"k{t}"
    if (c & 1) == 0 and c > 0:
        op = "v_add_u32" if (c & 2) else "v_subrev_u32"
        a(f"{op} v{vXA+ks}, {2*SLOT}, v{vXA+ks}")
        a(f"{op} v{vWA+ks}, {2*SLOT}, v{vWA+ks}")
    if X_NOREAD & 1 == 0: a.ds(f"ds_read_b128 {v(vX+4*t,4)}, v{vXA+ks} offset:{po}", tg)
    for tile in range(2):
        if X_NOREAD & (2 << tile): continue
        b = vWF + 8 * ks + 4 * tile
        a.ds(f"ds_read_b64_tr_b16 {v(b,2)}, v{vWA+ks} offset:{po+tile*128}", tg)
        a.ds(f"ds_read_b64_tr_b16 {v(b+2,2)}, v{vWA+ks} offset:{po+tile*128+256}", tg)

def p1_mfma(c, ks):
    t = 4 * c + ks
    a.wait(lg=f"k{t}")
    if X_NOMFMA: return
    for tile, acc in ((0, vA0), (1, vA1)):
        b = vWF + 8 * ks + 4 * tile
        cc = "0" if t == 0 else v(acc, 16)
        a(f"{MF} {v(acc,16)}, {v(b,4)}, {v(vX+4*t,4)}, {cc}")
    if ks == 0:
        for tile in range(2):
            b = vWF + 8 * ks + 4 * tile
            cc = "0" if c == 0 else v(vCS + 4 * tile, 4)
            a(f"{MF16} {v(vCS+4*tile,4)}, {v(vSEL,4)}, {v(b,4)}, {cc}")

sKQ, sSTT = sSIG, sH
SEQ = ([(0, i) for i in range(4)] + [(1, i) for i in range(4)] + [(0, 4 + i) for i in range(4)] + [(1, 4 + i) for i in range(4)]
       + [(1, 8), (1, 9), (0, 8), (0, 9), (0, 10), (0, 11)] + [(2, i) for i in range(8)])
def wloc(i):
    if i < 11: return UREG + i * 8192
    if i < 19: return LREG + (i - 11) * 8192
    return UREG + (i - 19) * 8192
def w_dma(i, tag):
    def p():
        b, st = SEQ[i]
        a(f"s_add_u32 m0, s{sM0R}, {wloc(i)}")
        a(f"s_add_u32 s{sT0}, s{sWB[b]}, {st*16384}")
        a.vmem(f"buffer_load_dwordx4 v{vW2O}, {srd(sWO if b == 2 else sW2)}, s{sT0} offen lds", tag)
    return fn(p, 4)

w0, w1, w2, w3 = vT + 4, vT + 5, vT + 6, vT + 7
FILL = {c: [] for c in range(8)}
FILL[0] = lines(f"""
v_and_b32 v{w0}, 31, v{vL}
s_lshl_b32 s{sT1}, s{sH}, 9
s_add_u32 s{sT1}, s{sT1}, {CWC}
v_lshlrev_b32 v{vCAR}, 4, v{w0}
v_add_u32 v{vCAR}, s{sT1}, v{vCAR}
s_lshl_b32 s{sT1}, s{sSIG}, 2
v_add_u32 v{vCAW}, s{sT1}, v{vCAR}
v_bfe_u32 v{w0}, v{vL}, 2, 2
v_lshrrev_b32 v{w1}, 5, v{vL}
v_lshl_add_u32 v{w1}, v{w1}, 3, v{w0}
v_lshlrev_b32 v{w1}, 7, v{w1}
v_lshrrev_b32 v{w0}, 1, v{w0}
v_xor_b32 v{w0}, s{sH}, v{w0}
v_lshl_add_u32 v{w1}, v{w0}, 6, v{w1}
v_bfe_u32 v{w0}, v{vL}, 4, 1
v_lshl_add_u32 v{w1}, v{w0}, 5, v{w1}
v_and_b32 v{w0}, 3, v{vL}
v_lshl_add_u32 v{w1}, v{w0}, 3, v{w1}
s_xor_b32 s{sT2}, s{sSIG}, s{sH}
s_lshl_b32 s{sT2}, s{sT2}, 11
v_add_u32 v{vP2A}, s{sT2}, v{w1}
v_xor_b32 v{vP2A+1}, 2048, v{vP2A}
v_xor_b32 v{vP2A+2}, 4096, v{vP2A}
v_xor_b32 v{vP2A+3}, 6144, v{vP2A}""")
FILL[1] = lines(f"""
v_and_b32 v{w0}, 31, v{vL}
s_lshl_b32 s{sT1}, s{sSIG}, 5
v_add_u32 v{w0}, s{sT1}, v{w0}
v_mul_u32_u24 v{vVP}, 144, v{w0}
v_add_u32 v{vVP}, {VIMG}, v{vVP}
v_lshrrev_b32 v{w1}, 5, v{vL}
v_lshl_add_u32 v{vVW}, v{w1}, 4, v{vVP}
s_lshl_b32 s{sT1}, s{sH}, 6
v_add_u32 v{vVW}, s{sT1}, v{vVW}
v_bfe_u32 v{w2}, v{vL}, 1, 2
v_lshlrev_b32 v{w1}, 1, v{w1}
v_xor_b32 v{w2}, v{w2}, v{w1}
v_lshlrev_b32 v{w2}, 4, v{w2}
v_lshl_add_u32 v{vPW0}, v{w0}, 6, v{w2}
s_lshl_b32 s{sT1}, s{sH}, 14
s_add_u32 s{sT1}, s{sT1}, {PHI}
v_add_u32 v{vPW0}, s{sT1}, v{vPW0}
v_xor_b32 v{vPW1}, 16, v{vPW0}""")
FILL[2] = [fn(lambda: rec_store(REC2), 4)] + lines(f"""
v_bfe_u32 v{w0}, v{vL}, 2, 2
v_lshrrev_b32 v{w1}, 5, v{vL}
v_lshl_add_u32 v{w0}, v{w1}, 2, v{w0}
v_lshlrev_b32 v{w0}, 5, v{w0}
v_bfe_u32 v{w1}, v{vL}, 4, 1
v_lshl_add_u32 v{w0}, v{w1}, 4, v{w0}
v_bfe_u32 v{w1}, v{vL}, 1, 1
v_lshl_add_u32 v{w0}, v{w1}, 3, v{w0}
s_lshl_b32 s{sT1}, s{sH}, 10
s_add_u32 s{sT1}, s{sT1}, {WPHI}
v_add_u32 v{w0}, s{sT1}, v{w0}
v_bfe_i32 v{w1}, v{vL}, 2, 1
v_and_b32 v{w1}, 0x80008000, v{w1}""")
def phi_reads():
    for i in range(4): a.ds(f"ds_read_b64_tr_b16 {v(vPH+2*i,2)}, v{w0} offset:{256*i}", "ph")
FILL[3] = [fn(phi_reads, 4)] + lines(f"""
s_lshl_b32 s{sM0R}, s{sKQ}, 11
s_lshl_b32 s{sT1}, s{sSTT}, 10
s_add_u32 s{sM0R}, s{sM0R}, s{sT1}
s_mul_i32 s{sWB[0]}, s{sKQ}, {22*16384}
s_cmp_eq_u32 s{sKQ}, 3
s_cselect_b32 s{sT1}, 10, 12
s_lshl_b32 s{sT2}, s{sT1}, 14
s_add_u32 s{sWB[1]}, s{sWB[0]}, s{sT2}
s_lshl_b32 s{sWB[2]}, s{sKQ}, 17
s_lshl_b32 s{sT2}, s{sRB2}, 1
s_add_u32 s{sT2}, s{sT2}, s{sSTT}
s_mul_i32 s{sT2}, s{sT2}, 118
s_lshl_b32 s{sT3}, s{sKQ}, 3
s_add_u32 s{sT3}, s{sT3}, s{sT2}
s_lshl_b32 s{sT3}, s{sT3}, 10
s_add_u32 s{sAB[2]}, s{sT3}, {ACT + 86*1024}
s_mul_i32 s{sT3}, s{sKQ}, 22
s_add_u32 s{sT3}, s{sT3}, s{sT2}
s_lshl_b32 s{sT3}, s{sT3}, 10
s_add_u32 s{sAB[0]}, s{sT3}, {ACT}
s_lshl_b32 s{sT1}, s{sT1}, 10
s_add_u32 s{sAB[1]}, s{sAB[0]}, s{sT1}
s_lshl_b32 s{sOB}, s{sRB2}, 16
s_lshl_b32 s{sT1}, s{sSTT}, 15
s_add_u32 s{sOB}, s{sOB}, s{sT1}
s_lshl_b32 s{sT1}, s{sCB}, 7
s_add_u32 s{sOB}, s{sOB}, s{sT1}
s_lshl_b32 s{sT1}, s{sKQ}, 5
s_add_u32 s{sOB}, s{sOB}, s{sT1}
s_lshl_b32 s{sT1}, s{sG}, 2
s_add_u32 s{sT1}, s{sT1}, s{sSIG}
s_mul_i32 s{sKB}, s{sT1}, {16*1152}
s_add_u32 s{sKB}, s{sKB}, {KVD}
s_cmp_eq_u32 s{sTYPE}, 0
s_cselect_b32 s{sT1}, 0, s{sMASK}
s_cselect_b32 s{sT2}, s{sMASK}, 0
v_lshlrev_b32 v{vBA}, 16, v{vBA}
v_lshlrev_b32 v{vBA+1}, 16, v{vBA+1}
v_lshlrev_b32 v{vBA+2}, 16, v{vBA+2}
v_and_b32 v{vBA}, s{sT1}, v{vBA}
v_and_b32 v{vBA+1}, s{sT1}, v{vBA+1}
v_and_b32 v{vBA+2}, s{sT2}, v{vBA+2}""")
FILL[4] = [f"v_xor_b32 v{vPH+i}, v{w1}, v{vPH+i}" for i in range(8)]
def rec1_load(tag="rec1"):
    a(f"""s_lshl_b32 s{sT1}, s{sRB}, 11
    s_lshl_b32 s{sT2}, s{sSIG}, 9
    s_add_u32 s{sT1}, s{sT1}, s{sT2}
    s_add_u32 s{sT1}, s{sT1}, {REC1}""")
    a.vmem(f"buffer_load_dwordx4 {v(vBC,4)}, v{vT}, {srd(sWS)}, s{sT1} offen sc1", tag)
FILL5 = lines(f"""
v_and_b32 v{vT}, 496, v{vL16}
v_lshrrev_b32 v{w0}, 3, v{vL}
v_and_b32 v{w1}, 7, v{vL}
v_bfe_u32 v{w2}, v{vL}, 4, 1
v_lshlrev_b32 v{w2}, 2, v{w2}
v_xor_b32 v{w1}, v{w1}, v{w2}
v_lshlrev_b32 v{w1}, 4, v{w1}
v_lshl_add_u32 v{vW2O}, v{w0}, 10, v{w1}
s_lshl_b32 s{sT1}, s{sSTT}, 13
s_lshl_b32 s{sT2}, s{sCB}, 7
s_add_u32 s{sT1}, s{sT1}, s{sT2}
v_add_u32 v{vW2O}, s{sT1}, v{vW2O}""")
FILL[5] = [FILL5[0]]
FILL[6] = [fn(rec1_load, 4)] + FILL5[1:] + lines(f"""
v_bfe_u32 v{w0}, v{vL}, 2, 2
v_lshrrev_b32 v{w1}, 5, v{vL}
v_lshl_add_u32 v{w1}, v{w1}, 3, v{w0}
v_and_b32 v{w2}, 1, v{vL}
v_bfe_u32 v{w3}, v{vL}, 4, 1
v_lshl_add_u32 v{w2}, v{w2}, 1, v{w3}
v_lshrrev_b32 v{w0}, 1, v{w0}
v_xor_b32 v{w2}, v{w2}, v{w0}
v_lshlrev_b32 v{w2}, 4, v{w2}
v_lshl_add_u32 v{w2}, v{w1}, 6, v{w2}
v_bfe_u32 v{w0}, v{vL}, 1, 1
v_lshl_add_u32 v{w2}, v{w0}, 3, v{w2}
s_lshl_b32 s{sT1}, s{sSIG}, 13
s_add_u32 s{sT1}, s{sT1}, {PHI}
v_add_u32 v{vKA0}, s{sT1}, v{w2}
v_xor_b32 v{vKA1}, 32, v{vKA0}
v_mul_u32_u24 v{w1}, 144, v{w1}
v_and_b32 v{w0}, 3, v{vL}
v_lshlrev_b32 v{w0}, 3, v{w0}
s_lshl_b32 s{sT1}, s{sSIG}, 5
v_add_u32 v{w0}, s{sT1}, v{w0}
v_cmp_eq_u32 vcc, 1, v{w3}
v_mov_b32 v{w3}, 128
v_cndmask_b32 v{w0}, v{w0}, v{w3}, vcc
v_add_u32 v{w1}, v{w1}, v{w0}
v_add_u32 v{vKB}, {VIMG}, v{w1}""")

def p2_reads(t):
    b = vWF + 4 * (t & 3)
    off = (t >> 4) * SLOT + ((t >> 2) & 3) * 8192
    a.ds(f"ds_read_b64_tr_b16 {v(b,2)}, v{vP2A+(t&3)} offset:{off}", f"p{t}")
    a.ds(f"ds_read_b64_tr_b16 {v(b+2,2)}, v{vP2A+(t&3)} offset:{off+512}", f"p{t}")

a.wait(vm="c0")
a("s_barrier")
stamp(2)
LA = opt("la", 2)
BP = opt("bp", 1)
assert BP + LA <= 4
for t in range(LA): p1_reads(0, t)
DQ = []
for t in range(32):
    c, ks = t >> 2, t & 3
    if ks == 0:
        F = Filler(FILL[c]); fb = (sum(cost(x) for x in FILL[c]) + 3) // 4
        if c == 0: DQ += dma_pieces(3)
    if ks == 0 and c > 0: stamp(2 + c, 1)
    if t == 31:
        stamp(10, 1)
        a.wait(vm="rec1")
        stamp(11, 1)
        checked([f"v_cmp_ne_u32 vcc, s{sTAG}, v{vRSTD}"], lambda: rec1_load("x"), "L_rec1")
        a(f"""v_cndmask_b32 v{vBC}, v{vSD}, v{vBC}, {sLO}
        v_mov_b32 v{vRSTD}, v{vC1}
        v_mul_f32 v{vC1}, {LOG2E}, v{vC1}""")
        a.wait(vm="c8", lg="all")
        a("s_barrier")
        a.ds(f"ds_read_b128 {v(vT,4)}, v{vCAR} offset:1024", "cw")
        a.ds(f"ds_read_b128 {v(vT+4,4)}, v{vCAR} offset:2048", "cw")
    p1_mfma(c, ks)
    if ks == BP:
        if c < 7: a.wait(vm=f"c{c+1}")
        a("s_barrier")
        if c > 0: DQ += dma_pieces(c + 3) if c < 7 else [w_dma(i, "r0") for i in range(4)]
    if t + LA < 32: p1_reads((t + LA) >> 2, (t + LA) & 3)
    if t == 29:
        a.ds(f"ds_write_b32 v{vCAW}, v{vCS} offset:1024", "cw")
        a.ds(f"ds_write_b32 v{vCAW}, v{vCS+4} offset:2048", "cw")
    if t == 31:
        for u in range(3): p2_reads(u)
    if DQ:
        d = DQ.pop(0)
        if not X_NODMA: d()
    if ks == 3: F.flush()
    else: F.take(fb)
for d in DQ:
    if not X_NODMA: d()
stamp(3); stamp(12, 1)
if X_STOP: a("s_branch L_fin")
a.wait(lg="cw")
a(f"""v_add_f32 v{vT}, v{vT}, v{vT+1}
v_add_f32 v{vT+2}, v{vT+2}, v{vT+3}
v_add_f32 v{vT+4}, v{vT+4}, v{vT+5}
v_add_f32 v{vT+6}, v{vT+6}, v{vT+7}
v_add_f32 v{vT}, v{vT}, v{vT+2}
v_add_f32 v{vT+4}, v{vT+4}, v{vT+6}
v_cndmask_b32 v{vT}, v{vBA}, v{vT}, {sLO}
v_cndmask_b32 v{vT+4}, v{vBA+1}, v{vT+4}, {sLO}
{MF32} {v(vA0,16)}, v{vT}, v{vBC}, {v(vA0,16)}
{MF32} {v(vA1,16)}, v{vT+4}, v{vBC}, {v(vA1,16)}""")

def P2(n): return v(n, 2)
def mish(acc, pk, tmp=vT):
    L = []
    for g in (0, 8):
        r = [acc + g + i for i in range(8)]; u = [tmp + i for i in range(8)]
        if pk:
            L += [f"v_pk_fma_f32 {P2(u[i])}, {P2(r[i])}, {P2(vC1)}, {sp(sHALF)} op_sel_hi:[1,0,1]" for i in range(0, 8, 2)]
            L += [f"v_exp_f32 v{u[i]}, v{u[i]}" for i in range(8)]
            L += [f"v_pk_add_f32 {P2(u[i])}, {P2(u[i])}, {sp(sISQ)}" for i in range(0, 8, 2)]
            L += [f"v_pk_fma_f32 {P2(u[i])}, {P2(u[i])}, {P2(u[i])}, {sp(sHALF)} neg_lo:[1,0,0] neg_hi:[1,0,0]" for i in range(0, 8, 2)]
            L += [f"v_rcp_f32 v{u[i]}, v{u[i]}" for i in range(8)]
            L += [f"v_pk_fma_f32 {P2(r[i])}, {P2(r[i])}, {P2(u[i])}, {P2(r[i])}" for i in range(0, 8, 2)]
        else:
            L += [f"v_fma_f32 v{u[i]}, v{r[i]}, v{vC1}, -0.5" for i in range(8)]
            L += [f"v_exp_f32 v{u[i]}, v{u[i]}" for i in range(8)]
            L += [f"v_add_f32 v{u[i]}, s{sISQ}, v{u[i]}" for i in range(8)]
            L += [f"v_fma_f32 v{u[i]}, -v{u[i]}, v{u[i]}, -0.5" for i in range(8)]
            L += [f"v_rcp_f32 v{u[i]}, v{u[i]}" for i in range(8)]
            L += [f"v_fmac_f32 v{r[i]}, v{r[i]}, v{u[i]}" for i in range(8)]
        L += [f"v_cvt_pk_bf16_f32 v{acc+g//2+i}, v{r[2*i]}, v{r[2*i+1]}" for i in range(4)]
        L.append(("half", g // 8))
    return L
def frag_store(reg, sb, half):
    return fn(lambda: a.vmem(f"buffer_store_dwordx4 {v(reg,4)}, v{vL16}, {srd(sWS)}, s{sb} offen offset:{half*1024} sc1", "st"), 2)
def mish_store(acc, pk, sb, tmp=vT):
    return [frag_store(acc + 4 * x[1], sb, x[1]) if isinstance(x, tuple) else x for x in mish(acc, pk, tmp)]

def softmax(P, out, pk, m):
    L = [f"v_max3_f32 v{m}, v{P}, v{P+1}, v{P+2}", f"v_max3_f32 v{m+1}, v{P+3}, v{P+4}, v{P+5}"]
    for i in range(6, 14, 4):
        L += [f"v_max3_f32 v{m}, v{m}, v{P+i}, v{P+i+1}", f"v_max3_f32 v{m+1}, v{m+1}, v{P+i+2}, v{P+i+3}"]
    L += [f"v_max3_f32 v{m}, v{m}, v{P+14}, v{P+15}", f"v_max_f32 v{m}, v{m}, v{m+1}", f"v_mul_f32 v{m}, v{m}, v{vC1}"]
    if pk:
        L += [f"v_pk_fma_f32 {P2(P+i)}, {P2(P+i)}, {P2(vC1)}, {P2(m)} op_sel_hi:[1,0,0] neg_lo:[0,0,1] neg_hi:[0,0,1]" for i in range(0, 16, 2)]
        L += [f"v_exp_f32 v{P+i}, v{P+i}" for i in range(16)]
        L += [f"v_pk_add_f32 {P2(m)}, {P2(P)}, {P2(P+2)}", f"v_pk_add_f32 {P2(m+2)}, {P2(P+4)}, {P2(P+6)}"]
        L += [f"v_pk_add_f32 {P2(m+(i&2))}, {P2(m+(i&2))}, {P2(P+i)}" for i in range(8, 16, 2)]
        L += [f"v_pk_add_f32 {P2(m)}, {P2(m)}, {P2(m+2)}", f"v_add_f32 v{m}, v{m}, v{m+1}", f"v_rcp_f32 v{m}, v{m}"]
        L += [f"v_pk_mul_f32 {P2(P+i)}, {P2(P+i)}, {P2(m)} op_sel_hi:[1,0]" for i in range(0, 16, 2)]
    else:
        L += [f"v_fma_f32 v{P+i}, v{P+i}, v{vC1}, -v{m}" for i in range(16)]
        L += [f"v_exp_f32 v{P+i}, v{P+i}" for i in range(16)]
        L += [f"v_add_f32 v{m+i}, v{P+2*i}, v{P+2*i+1}" for i in range(4)]
        L += [f"v_add_f32 v{m+(i&3)}, v{m+(i&3)}, v{P+i}" for i in range(8, 16)]
        L += [f"v_add_f32 v{m}, v{m}, v{m+1}", f"v_add_f32 v{m+2}, v{m+2}, v{m+3}", f"v_add_f32 v{m}, v{m}, v{m+2}", f"v_rcp_f32 v{m}, v{m}"]
        L += [f"v_mul_f32 v{P+i}, v{P+i}, v{m}" for i in range(16)]
    L += [f"v_cvt_pk_bf16_f32 v{out+i}, v{P+2*i}, v{P+2*i+1}" for i in range(8)]
    return L
def dsw(txt, tag="w"): return fn(lambda: a.ds(txt, tag), 2)

vRS2, vKF = vCS, vCS + 2
def rec2_addr():
    return lines(f"""s_lshl_b32 s{sT1}, s{sSTT}, 9
    v_xor_b32 v{vCS+3}, s{sT1}, v{vL16}
    v_and_b32 v{vCS+4}, 15, v{vL}
    v_lshlrev_b32 v{vCS+4}, 11, v{vCS+4}""")
def rec2_load(kv, tag="rec2"):
    a(f"""s_lshl_b32 s{sT1}, s{sRB2}, 10
    s_add_u32 s{sT1}, s{sT1}, {REC2}""")
    a.vmem(f"buffer_load_dwordx2 {v(vRS2,2)}, v{vCS+3}, {srd(sWS)}, s{sT1} offen offset:8 sc1", tag)
    if kv:
        a(f"""s_lshr_b32 s{sT1}, s{sSIG}, 1
        s_lshl_b32 s{sT1}, s{sT1}, 10
        s_lshl_b32 s{sT2}, s{sG}, 6
        s_add_u32 s{sT1}, s{sT1}, s{sT2}
        s_and_b32 s{sT2}, s{sSIG}, 1
        s_lshl_b32 s{sT2}, s{sT2}, 5
        s_add_u32 s{sT1}, s{sT1}, s{sT2}
        s_add_u32 s{sT1}, s{sT1}, {REC2}""")
        a.vmem(f"buffer_load_dword v{vKF}, v{vCS+4}, {srd(sWS)}, s{sT1} offen offset:12 sc1", tag)
def rec2_check(kv):
    a.wait(vm="rec2")
    L = [f"v_cmp_ne_u32 vcc, s{sTAG}, v{vRS2+1}"]
    if kv: L = [f"v_xor_b32 v{vCS+5}, s{sTAG}, v{vRS2+1}", f"v_xor_b32 v{vCS+6}, s{sTAG}, v{vKF}",
                f"v_or_b32 v{vCS+5}, v{vCS+5}, v{vCS+6}", f"v_cmp_ne_u32 vcc, 0, v{vCS+5}"]
    checked(L, lambda: rec2_load(kv, "x"), "L_rec2")
    a(f"""v_mov_b32 v{vRS2+1}, v{vRS2}
    v_permlane32_swap_b32 v{vRS2}, v{vRS2+1}""")

def pass2(F, per, after_mid, hook=None):
    for t in range(32):
        if t == 13:
            a.wait(vm="c9", lg="all")
            a("s_barrier")
            F.q = merge(F.q, after_mid, 0, min(len(F.q), 40)) if F.q else list(after_mid)
        a.wait(lg=f"p{t}")
        b = vWF + 4 * (t & 3)
        a(f"{MF} {v(vA2,16)}, {v(b,4)}, {v(vX+4*t,4)}, {'0' if t == 0 else v(vA2,16)}")
        if (t & 3) == 1:
            a(f"{MF16} {v(vCS+8,4)}, {v(vSEL,4)}, {v(b,4)}, {'0' if t == 1 else v(vCS+8,4)}")
        if t + 3 < 32: p2_reads(t + 3)
        if t == 30: a.ds(f"ds_write_b32 v{vCAW}, v{vCS+8}", "cw")
        F.take(per)
        if hook and not F.q and t >= 13:
            hook(); hook = None
    F.flush()
    if hook: hook()
def corr_c():
    return [fn(lambda: a.wait(lg="cw"), 0)] + lines(f"""v_add_f32 v{vU}, v{vU}, v{vU+1}
    v_add_f32 v{vU+2}, v{vU+2}, v{vU+3}
    v_add_f32 v{vU}, v{vU}, v{vU+2}
    v_cndmask_b32 v{vU}, v{vBA+2}, v{vU}, {sLO}
    {MF32} {v(vA2,16)}, v{vU}, v{vBC}, {v(vA2,16)}""")

vWR = 128
vACC = 216
vLW = [248, 32]
vA2U, vA2L, vAO, vA2X = 14, 16, 18, 20
vOO, vRES, vRA = 22, 60, 6
vEC = 56
FB = [64, 68, 72, 76, 96, 100, 104, 108, 80, 84, 88, 92, 112, 116, 120, 124]
GRP = [(0, 4), (4, 8), (8, 12), (12, 16), (16, 20), (20, 22), (22, 26), (26, 30)]
def fbuf(i):
    g = [k for k, (s, e) in enumerate(GRP) if s <= i < e][0]
    return FB[(g & 3) * 4 + i - GRP[g][0]]
def p2_addrs():
    x0, x1 = vU + 4, vU + 5
    return lines(f"""v_bfe_u32 v{x0}, v{vL}, 2, 2
    v_lshrrev_b32 v{x1}, 1, v{x0}
    v_lshlrev_b32 v{x1}, 6, v{x1}
    v_lshl_add_u32 v{x1}, v{x0}, 7, v{x1}
    v_bfe_u32 v{x0}, v{vL}, 4, 1
    v_lshl_add_u32 v{x1}, v{x0}, 5, v{x1}
    v_and_b32 v{x0}, 3, v{vL}
    v_lshl_add_u32 v{x1}, v{x0}, 3, v{x1}
    s_mul_i32 s{sT1}, s{sKQ}, {2048+32}
    v_xor_b32 v{x1}, s{sT1}, v{x1}
    v_lshrrev_b32 v{x0}, 5, v{vL}
    v_lshl_add_u32 v{vU+6}, v{x0}, 9, v{x1}
    v_lshl_add_u32 v{vU+7}, v{x0}, 10, v{x1}""")
def p2_addrs2():
    return lines(f"""v_mov_b32 v{vA2L}, v{vU+6}
    v_xor_b32 v{vA2L+1}, 64, v{vU+6}
    v_add_u32 v{vA2U}, {UREG}, v{vA2L}
    v_add_u32 v{vA2U+1}, {UREG}, v{vA2L+1}
    v_add_u32 v{vA2X}, {UREG+65536}, v{vA2L}
    v_add_u32 v{vA2X+1}, {UREG+65536}, v{vA2L+1}
    v_add_u32 v{vAO}, {UREG+3*8192}, v{vU+7}
    v_xor_b32 v{vAO+1}, 64, v{vAO}""")
def w_frag(dst, i, tag):
    if i >= 22: ad, off, sec = vAO, (i - 22) * 8192, 512
    elif i >= 19: ad, off, sec = vA2U, (i - 19) * 8192, 1024
    elif i >= 11: ad, off, sec = vA2L, (i - 11) * 8192, 1024
    elif i >= 8: ad, off, sec = vA2X, (i - 8) * 8192, 1024
    else: ad, off, sec = vA2U, i * 8192, 1024
    L = []
    for b in range(2):
        L.append(dsw(f"ds_read_b64_tr_b16 {v(dst+4*b,2)}, v{ad+b} offset:{off}", tag))
        L.append(dsw(f"ds_read_b64_tr_b16 {v(dst+4*b+2,2)}, v{ad+b} offset:{off+sec}", tag))
    return L
def g_load(i, tag=None):
    def p():
        b, st = SEQ[i]
        a(f"s_add_u32 s{sT0}, s{sAB[b]}, {st*1024}")
        a.vmem(f"buffer_load_dwordx4 {v(fbuf(i),4)}, v{vL16}, {srd(sWS)}, s{sT0} offen sc1", tag or f"a{i}")
    return fn(p, 4)

def phase2(T, issued, side, bars):
    for g in range(issued, 4):
        for i in range(*GRP[g]): g_load(i)()
    a(f"""v_and_b32 v{vU}, 31, v{vL}
    v_lshrrev_b32 v{vU+1}, 5, v{vL}
    v_lshlrev_b32 v{vU+1}, 4, v{vU+1}
    v_lshl_add_u32 v{vOO}, v{vU}, 10, v{vU+1}
    s_mul_i32 s{sT1}, s{sSTT}, {4*6144}""")
    for r in (1, 2, 3):
        a(f"""s_xor_b32 s{sT2}, s{sKQ}, {r}
        s_mul_i32 s{sT2}, s{sT2}, 6144
        s_add_u32 s{sT2}, s{sT2}, s{sT1}
        s_add_u32 s{sT2}, s{sT2}, {RED + (r-1)*2048}
        v_add_u32 v{vRA+r-1}, s{sT2}, v{vL16}""")
    a(f"""s_mul_i32 s{sT2}, s{sW}, 6144
    v_add_u32 v{vRA+3}, s{sT2}, v{vL16}""")
    st_skip = None
    for g, (s, e) in enumerate(GRP):
        if g == 5:
            a(f"""s_cmp_eq_u32 s{sKQ}, 3
            s_cbranch_scc1 L_skip{T}""")
            st_skip = a.save()
        if g == 6:
            a.label(f"L_skip{T}")
            a.restore(st_skip)
            a.wait(lg="all")
            a("s_barrier")
            stamp(10)
            for x in w_frag(vLW[0], 22, "w22"): x()
        a.wait(vm=f"a{e-1}")
        regs = [fbuf(i) for i in range(s, e)]
        if len(regs) == 4:
            C = [f"v_max3_u32 v{vU}, v{regs[0]}, v{regs[1]}, v{regs[2]}", f"v_max_u32 v{vU}, v{vU}, v{regs[3]}"]
        else:
            C = [f"v_max_u32 v{vU}, v{regs[0]}, v{regs[1]}"]
        def reload(g=g):
            for k in range(g, min(g + 4, 8)):
                for i in range(*GRP[k]): g_load(i, "x")()
        checked(C + [f"v_cmp_eq_u32 vcc, -1, v{vU}"], reload, "L_g")
        if g == 0: stamp(9)
        for i in range(s, e):
            if i in bars:
                a.wait(vm=bars[i], lg="all" if bars[i] is None else None)
                a("s_barrier")
            nx = i + 1
            if 11 <= nx < 30 and nx != 22:
                for x in w_frag(vLW[nx & 1], nx, f"w{nx}"): x()
            a.wait(lg=f"w{i}")
            wreg = vWR + 8 * i if i < 11 else vLW[i & 1]
            for b in range(2):
                a(f"{MF} {v(vACC+16*b,16)}, {v(wreg+4*b,4)}, {v(fbuf(i),4)}, {'0' if i == 0 else v(vACC+16*b,16)}")
            if g + 4 < 8:
                s2, e2 = GRP[g + 4]
                k = s2 + i - s - 1
                if i > s and k < e2: g_load(k)()
                if i == e - 1 and k + 1 < e2: pend = k + 1
                else: pend = None
                if pend is not None: g_load(pend)()
            for x in side.get(i, []): emit(x)
    stamp(11)
    for r in (1, 2, 3):
        for q in range(2):
            a(f"ds_write_b128 v{vRA+r-1}, {v(vACC+8*r+4*q,4)} offset:{q*1024}")
    for j in range(4):
        a(f"v_lshlrev_b32 v{vU+2*j}, 16, v{vRES+j}")
        a(f"v_and_b32 v{vU+2*j+1}, s{sMASK}, v{vRES+j}")
    a("""s_waitcnt lgkmcnt(0)
    s_barrier""")
    for k in range(6):
        a(f"ds_read_b128 {v(64+4*k,4)}, v{vRA+3} offset:{RED+k*1024}")
    a(f"""s_or_b32 s{sT0}, s2, s{sW}
    s_cmp_eq_u32 s{sT0}, 0
    s_cbranch_scc0 L_noep{T}""")
    checked([f"v_xor_b32 v{vEC+i}, s{sTAG}, v{vEC+i}" for i in range(4)] +
            [f"v_or3_b32 v{vEC}, v{vEC}, v{vEC+1}, v{vEC+2}", f"v_or_b32 v{vEC}, v{vEC}, v{vEC+3}", f"v_cmp_ne_u32 vcc, 0, v{vEC}"],
            ep_loads, "L_ep")
    a(f"""v_mov_b32 v{vEC}, s{sTAG}
    s_mov_b64 exec, 1
    buffer_store_dword v{vEC}, v{vL}, {srd(sWS)}, 0 offen sc1
    s_mov_b64 exec, -1""")
    a.label(f"L_noep{T}")
    for k in range(3):
        a(f"s_waitcnt lgkmcnt({4-2*k})")
        for j in range(0, 8, 2): a(f"v_pk_add_f32 {P2(vACC+j)}, {P2(vACC+j)}, {P2(64+8*k+j)}")
    for j in range(4): a(f"v_permlane32_swap_b32 v{vACC+j}, v{vACC+4+j}")
    for j in range(0, 8, 2): a(f"v_pk_fma_f32 {P2(vACC+j)}, {P2(vACC+j)}, {P2(vRS2)}, {P2(vU+j)} op_sel_hi:[1,0,1]")
    for j in range(4): a(f"v_cvt_pk_bf16_f32 v{vACC+8+j}, v{vACC+2*j}, v{vACC+2*j+1}")
    a(f"buffer_store_dwordx4 {v(vACC+8,4)}, v{vOO}, {srd(sOUT)}, s{sOB} offen")
    stamp(12)
    a("s_branch L_fin")
def ep_loads():
    a(f"""v_lshrrev_b32 v{vEC}, 4, v{vL}
    v_lshlrev_b32 v{vEC}, 11, v{vEC}
    v_and_b32 v{vEC+1}, 15, v{vL}
    v_lshl_add_u32 v{vOO+1}, v{vEC+1}, 6, v{vEC}""")
    for i in range(4):
        a(f"s_mov_b32 s{sT0}, {REC2 + i*8192}")
        a(f"buffer_load_dword v{vEC+i}, v{vOO+1}, {srd(sWS)}, s{sT0} offen offset:12 sc1")
def ep_early(T):
    def p():
        a(f"""s_or_b32 s{sT0}, s2, s{sW}
        s_cmp_eq_u32 s{sT0}, 0
        s_cbranch_scc0 L_noel{T}""")
        ep_loads()
        a.label(f"L_noel{T}")
    return p
def res_load():
    a.vmem(f"buffer_load_dwordx4 {v(vRES,4)}, v{vOO}, {srd(sX)}, s{sOB} offen", "res")

st1 = a.save()
a(f"""s_cmp_eq_u32 s{sTYPE}, 0
s_cbranch_scc0 L_typeB""")
PERA = opt("pera", 9)
kb = vT
FA = p2_addrs() + rec2_addr() + [f"v_mov_b32 v{vU}, 0x3f803f80", f"v_mov_b32 v{vU+1}, 0x3f803f80",
     dsw(f"ds_write_b64 v{vVP}, {v(vU,2)} offset:128")]
FA += [f"v_cvt_pk_bf16_f32 v{kb+j}, v{vA0+2*j}, v{vA0+2*j+1}" for j in range(8)]
FA += [f"{MF} {v(vA0,16)}, {v(vPH,4)}, {v(kb,4)}, 0"]
FA += [f"v_mul_f32 v{vA1+i}, v{vA1+i}, v{vRSTD}" for i in range(16)]
FA += [f"v_cvt_pk_bf16_f32 v{vU+i}, v{vA1+2*i}, v{vA1+2*i+1}" for i in range(4)]
FA += [dsw(f"ds_write_b128 v{vVW}, {v(vU,4)}")]
FA += [f"v_cvt_pk_bf16_f32 v{kb+i}, v{vA1+8+2*i}, v{vA1+9+2*i}" for i in range(4)]
FA += [f"{MF} {v(vA1,16)}, {v(vPH+4,4)}, {v(kb+4,4)}, 0"]
FA += [dsw(f"ds_write_b128 v{vVW}, {v(kb,4)} offset:32")]
for hh, P in ((0, vA0), (1, vA1)):
    FA += softmax(P, P, False, vT + 4)
    FA += [dsw(f"ds_write_b128 v{vPW0}, {v(P,4)} offset:{hh*8192}"), dsw(f"ds_write_b128 v{vPW1}, {v(P+4,4)} offset:{hh*8192}")]
def kv_block():
    a.wait(lg="all")
    a("s_barrier")
    stamp(4)
    st = a.save()
    a(f"""s_cmp_eq_u32 s{sH}, 0
    s_cbranch_scc0 L_kvE""")
    KB = [vA1, vA1 + 8, vT]
    def kv_reads(t):
        b = KB[t % 3]
        a.ds(f"ds_read_b64_tr_b16 {v(b,2)}, v{vKA0} offset:{t*1024}", f"kv{t}")
        a.ds(f"ds_read_b64_tr_b16 {v(b+2,2)}, v{vKA1} offset:{t*1024+256}", f"kv{t}")
        a.ds(f"ds_read_b64_tr_b16 {v(b+4,2)}, v{vKB} offset:{t*2304}", f"kv{t}")
        a.ds(f"ds_read_b64_tr_b16 {v(b+6,2)}, v{vKB} offset:{t*2304+576}", f"kv{t}")
    for t in range(3): kv_reads(t)
    for t in range(8):
        a.wait(lg=f"kv{t}")
        b = KB[t % 3]
        a(f"{MF} {v(vA0,16)}, {v(b,4)}, {v(b+4,4)}, {'0' if t == 0 else v(vA0,16)}")
        if t >= 1 and t + 2 < 8: kv_reads(t + 2)
    for i in range(8): a(f"v_cvt_pk_bf16_f32 v{vA1+i}, v{vA0+2*i}, v{vA0+2*i+1}")
    for i in range(4): a(f"v_permlane16_swap_b32 v{vA1+i}, v{vA1+4+i}")
    a(f"""buffer_store_dwordx4 {v(vA1,4)}, v{vL16}, {srd(sWS)}, s{sSB1} offen sc1
    s_mov_b32 exec_lo, 0x00010001
    s_mov_b32 exec_hi, 0x00010001
    buffer_store_dwordx4 {v(vA1+4,4)}, v{vL}, {srd(sWS)}, s{sSB1} offen offset:1024 sc1
    s_mov_b64 exec, -1""")
    a.label("L_kvE")
    a.restore(st)
    stamp(5)
pass2(Filler(FA), PERA, [w_dma(i, "r1") for i in range(11, 15)] + [fn(lambda: rec2_load(False), 4)], kv_block)
a.wait(lg="all")
a("s_barrier")
stamp(6)
a.ds(f"ds_read_b128 {v(vU,4)}, v{vCAR}", "cw")
pre = [w_dma(i, "r0") for i in range(4, 7)] + corr_c() + p2_addrs2() + [w_dma(i, "r0") for i in range(7, 11)]
for x in pre: emit(x)
rec2_check(False)
sideA = [w_dma(i, "r1") for i in range(15, 19)] + [g_load(i) for i in range(8)]
stA = a.save()
a(f"""s_cmp_eq_u32 s{sSKIP}, 0
s_cbranch_scc0 L_skipc""")
for x in merge(mish_store(vA2, True, sSB0), sideA): emit(x)
a("s_branch L_skipcE")
a.label("L_skipc")
a.restore(stA)
for x in sideA: emit(x)
a.label("L_skipcE")
stamp(7)
a.wait(vm="r0")
a("s_barrier")
for i in range(11):
    for x in w_frag(vWR + 8 * i, i, f"w{i}"): x()
stamp(8)
side = {i: [w_dma(19 + i - 4, "r2")] for i in range(4, 15)}
side[1] = [ep_early("A")]; side[2] = [res_load]
phase2("A", 2, side, {4: None, 18: "r2"})

a.label("L_typeB")
a.restore(st1)
PERB = opt("perb", 6)
FBq = merge(p2_addrs() + rec2_addr() + mish_store(vA0, False, sSB0), [w_dma(i, "r0") for i in range(4, 11)], 0, 60)
pass2(Filler(FBq), PERB, [w_dma(i, "r1") for i in range(11, 15)] + [fn(lambda: rec2_load(True), 4)])
stamp(4); stamp(5)
a.wait(vm="r0", lg="all")
a("s_barrier")
stamp(6)
a.ds(f"ds_read_b128 {v(vU,4)}, v{vCAR}", "cw")
for x in p2_addrs2() + [w_dma(15, "r1")] + corr_c(): emit(x)
side1 = sum([w_frag(vWR + 8 * i, i, f"w{i}") for i in range(11)], [])
for x in merge(merge(mish_store(vA1, True, sSB1), side1, 0, 60), [w_dma(i, "r1") for i in range(16, 19)]): emit(x)
rec2_check(True)
for j in range(8): a(f"v_cvt_pk_bf16_f32 v{vT+j}, v{vA2+2*j}, v{vA2+2*j+1}")
a(f"{MF} {v(vA2,16)}, {v(vPH,4)}, {v(vT,4)}, 0")
a(f"{MF} {v(vA1,16)}, {v(vPH+4,4)}, {v(vT+4,4)}, 0")
a.wait(lg="all")
a("s_barrier")
stamp(7)
vTL, vZL = 216, 248
vGA, vGZ = vKA0, vKA1
vS0, vS1 = vPH, vPH + 4
def t_load(i, tag=None):
    def p():
        a(f"s_add_u32 s{sT0}, s{sKB}, {(i>>1)*4*1152}")
        a.vmem(f"buffer_load_dwordx4 {v(vTL+4*i,4)}, v{vGA}, {srd(sWS)}, s{sT0} offen offset:{(i&1)*256} sc1", tag or "t")
    return fn(p, 4)
def z_load(tag=None):
    return fn(lambda: a.vmem(f"buffer_load_dwordx4 {v(vZL,4)}, v{vGZ}, {srd(sWS)}, s{sKB} offen offset:1024 sc1", tag or "t"), 4)
a(f"""v_lshrrev_b32 v{vU}, 4, v{vL}
v_mul_u32_u24 v{vU}, 1152, v{vU}
v_and_b32 v{vU+1}, 15, v{vL}
v_lshl_add_u32 v{vGA}, v{vU+1}, 4, v{vU}
s_lshl_b32 s{sT1}, s{sH}, 9
v_add_u32 v{vGA}, s{sT1}, v{vGA}
v_bfe_u32 v{vU+2}, v{vL}, 1, 2
v_mul_u32_u24 v{vU+2}, {4*1152}, v{vU+2}
v_and_b32 v{vU+3}, 1, v{vL}
v_lshlrev_b32 v{vU+3}, 4, v{vU+3}
v_add3_u32 v{vGZ}, v{vU}, v{vU+2}, v{vU+3}
s_lshl_b32 s{sT1}, s{sH}, 5
v_add_u32 v{vGZ}, s{sT1}, v{vGZ}""")
vPQ = [vA2, vA1]
NR2 = opt("nr2", 4)
side2 = ([w_dma(19 + i, "r2") for i in range(NR2)] + [z_load()] + [t_load(i) for i in range(8)]
         + [w_dma(19 + i, "r2") for i in range(NR2, 11)] + [g_load(i) for i in range(8)])
SELC = lines(f"""v_and_b32 v{vU}, 1, v{vL}
v_mov_b32 v{vU+2}, 0x3f80
v_lshlrev_b32 v{vU}, 4, v{vU}
v_lshlrev_b32 v{vU+2}, v{vU}, v{vU+2}
v_lshrrev_b32 v{vU+1}, 1, v{vU+1}""")
for r in range(8):
    SELC += [f"v_cmp_eq_u32 vcc, {r}, v{vU+1}", f"v_cndmask_b32 v{vS0+r}, 0, v{vU+2}, vcc"]
SELC += lines(f"""s_mul_i32 s{sT1}, s{sSIG}, 1088
s_mul_i32 s{sT2}, s{sH}, 544
s_add_u32 s{sT1}, s{sT1}, s{sT2}
s_add_u32 s{sT1}, s{sT1}, {KVL}
v_bfe_u32 v{vU}, v{vL}, 4, 1
v_lshlrev_b32 v{vU}, 3, v{vU}
v_add_u32 v{vU}, s{sT1}, v{vU}
v_lshrrev_b32 v{vU+1}, 5, v{vL}
v_mul_u32_u24 v{vU+2}, 272, v{vU+1}
v_and_b32 v{vU+3}, 15, v{vL}
v_lshlrev_b32 v{vU+3}, 4, v{vU+3}
v_add3_u32 v{vU+4}, v{vU}, v{vU+2}, v{vU+3}
v_and_b32 v{vU+3}, 1, v{vL}
v_mul_u32_u24 v{vU+3}, 272, v{vU+3}
v_add_u32 v{vU+5}, v{vU}, v{vU+3}
v_and_b32 v{vU}, 31, v{vL}
v_min_u32 v{vU}, 16, v{vU}
v_lshlrev_b32 v{vU}, 4, v{vU}
v_mul_u32_u24 v{vU+1}, 544, v{vU+1}
s_mul_i32 s{sT1}, s{sH}, 2176
s_add_u32 s{sT1}, s{sT1}, {KVL}
v_add3_u32 v{vU+6}, v{vU}, v{vU+1}, s{sT1}""")
for x in merge(softmax(vA2, vA2, True, vT) + softmax(vA1, vA1, True, vT) + SELC, side2): emit(x)
a.wait(vm="t")
def t_reload():
    z_load("x")()
    for i in range(8): t_load(i, "x")()
checked([f"v_max3_u32 v{vT}, v{vTL}, v{vTL+4}, v{vTL+8}", f"v_max3_u32 v{vT+1}, v{vTL+12}, v{vTL+16}, v{vTL+20}",
         f"v_max3_u32 v{vT}, v{vT}, v{vTL+24}, v{vTL+28}", f"v_max3_u32 v{vT}, v{vT}, v{vT+1}, v{vZL}",
         f"v_cmp_eq_u32 vcc, -1, v{vT}"], t_reload, "L_t")
stamp(8)
vD, vDZ = vT, vT + 4
a(f"{MF16} {v(vDZ,4)}, {v(vS0,4)}, {v(vZL,4)}, 0")
for i in range(8):
    a(f"{MF16} {v(vD,4)}, {v(vS0+4*(i&1),4)}, {v(vTL+4*i,4)}, {'0' if i == 0 else v(vD,4)}")
for sh in (2, 4):
    for j in range(4): a(f"v_add_f32_dpp v{vDZ+j}, v{vDZ+j}, v{vDZ+j} row_ror:{sh} row_mask:0xf bank_mask:0xf")
a(f"""v_cvt_pk_bf16_f32 v{vDZ}, v{vDZ}, v{vDZ+1}
v_cvt_pk_bf16_f32 v{vDZ+1}, v{vDZ+2}, v{vDZ+3}
s_mov_b64 exec, 0x30003
ds_write_b64 v{vU+5}, {v(vDZ,2)} offset:256
s_mov_b64 exec, -1
v_cvt_pk_bf16_f32 v{vD}, v{vD}, v{vD+1}
v_cvt_pk_bf16_f32 v{vD+1}, v{vD+2}, v{vD+3}
ds_write_b64 v{vU+4}, {v(vD,2)}
s_waitcnt lgkmcnt(0)
s_barrier""")
vKF2 = vT
for hh in range(2):
    for j in range(2):
        a(f"ds_read_b128 {v(vKF2+8*hh+4*j,4)}, v{vU+6} offset:{hh*1088+j*272}")
for hh, D in ((0, vTL), (1, vTL + 16)):
    a(f"s_waitcnt lgkmcnt({2-2*hh})")
    a(f"{MF} {v(D,16)}, {v(vKF2+8*hh,4)}, {v(vPQ[hh],4)}, 0")
    a(f"{MF} {v(D,16)}, {v(vKF2+8*hh+4,4)}, {v(vPQ[hh]+4,4)}, {v(D,16)}")
for hh, D in ((0, vTL), (1, vTL + 16)):
    a(f"v_add_f32 v{D+8}, 0x358637bd, v{D+8}")
    a(f"v_rcp_f32 v{D+8}, v{D+8}")
    a(f"v_mul_f32 v{D+8}, v{D+8}, v{vSD}")
    for i in range(0, 8, 2): a(f"v_pk_mul_f32 {P2(D+i)}, {P2(D+i)}, {P2(D+8)} op_sel_hi:[1,0]")
    for i in range(4): a(f"v_cvt_pk_bf16_f32 v{vT+4*hh+i}, v{D+2*i}, v{D+2*i+1}")
    frag_store(vT + 4 * hh, sSB2, hh)()
phase2("B", 2, {1: [ep_early("B")], 2: [res_load]}, {8: "r2"})

for blk in retries: blk()
a.label("L_fin")
if STAMP >= 0:
    n = nst[0]
    a(f"""s_cmp_eq_u32 s{sW}, {STAMP}
    s_cbranch_scc0 L_end
    s_waitcnt lgkmcnt(0)
    s_sub_u32 s{sT0}, {SPIN}, s{sCNT}
    s_mul_i32 s{sT0}, s{sT0}, 100
    s_add_u32 s{sST0+2}, s{sST0}, s{sT0}
    s_addc_u32 s{sST0+3}, s{sST0+1}, 0
    s_mul_i32 s{sT0}, s2, {n*8}
    s_add_u32 s{sT0}, s{sT0}, {STAMP_OFF}
    v_mov_b32 v{t1}, 0
    s_mov_b64 exec, 1""")
    for i in range(n):
        a(f"v_mov_b32 v{64+2*i}, s{sST0+2*i}")
        a(f"v_mov_b32 v{65+2*i}, s{sST0+2*i+1}")
        a(f"buffer_store_dwordx2 {v(64+2*i,2)}, v{t1}, {srd(sWS)}, s{sT0} offen offset:{i*8}")
a.label("L_end")
a.pad()
open(out_path, "w").write(header(256, 512, LDS_SIZE) + a.text() + footer(vgpr=256))
print("instructions:", sum(1 for x in a.L if x.states), "stamps", nst[0])
```

```python
import sys
from asmdsl import Asm
from gen_common import header, footer

OPT = dict(a.split("=") for a in sys.argv[2:])
def opt(k, d): return type(d)(OPT.get(k, d))
STAMP = opt("stamp", -1)
CYC = opt("cyc", 0)
out_path = sys.argv[1]
X_NODMA, X_NOREAD, X_NOMFMA, X_STOP, X_NOCLR = opt("nodma", 0), opt("noread", 0), opt("nomfma", 0), opt("stop", 0), opt("noclr", 0)

SLOT = 33792
LREG = 0
UREG = 2 * SLOT
TOP = UREG + 11 * 8192
CWC, CWAB, WPHI, KVL = TOP, TOP + 1024, TOP + 3072, TOP + 1024
PHI = UREG + 32768
VIMG = PHI + 32768
RED = 0
LDS_SIZE = 163840
REC1 = 0x1000
REC2 = REC1 + 2048 * 16
KVD = 0x20000
ACT = 0x140000
STAMP_OFF = 128 << 20
SPIN = 200000

sW, sSIG, sH, sTYPE, sG = 3, 4, 5, 6, 7
sRB = 30; sT0 = 31
sX, sWD, sWE, sW2, sWO, sOUT, sWS = 32, 36, 40, 44, 48, 52, 56
sSTR, sXO, sWOF, sM0X, sM0W, sSTR64 = 60, 61, 62, 63, 64, 65
sTAG, sMASK, sT1, sT2, sT3, sSTART, sSKIP, sRB2, sCB, sCNT = 66, 67, 68, 69, 70, 71, 72, 73, 74, 75
sST0 = 76
sSB0, sSB1, sSB2, sREC = 8, 9, 10, 11
sHALF, sISQ = 16, 18
sLOm, sSTE, sM0R = 24, 26, 27
sWB = [28, 29, 12]
sAB = [13, 14, 15]
sOB, sKB = 20, 21
sLO = f"s[{sLOm}:{sLOm+1}]"
def srd(n): return f"s[{n}:{n+3}]"
def sp(n): return f"s[{n}:{n+1}]"

vL = 0
vXO0, vXO1, vWO, vWO2, vL16, vBA, vEP = 1, 2, 3, 4, 5, 6, 9
vW2O, vKA0, vKA1, vKB = 1, 2, 3, 9
vBC, vSD, vC1, vRSTD = 10, 11, 12, 13
vCAW, vCAR, vP2A, vVW, vVP, vPW0, vPW1 = 14, 15, 16, 20, 21, 22, 23
vT = 24
vPH = 32
vXA, vWA, vSEL, vCS = 40, 44, 48, 52
vU = 40
vWF = 64
vA2, vA0, vA1 = 80, 96, 112
vX = 128
def v(n, k=1): return f"v{n}" if k == 1 else f"v[{n}:{n+k-1}]"

a = Asm()
nst = [0]
FINE = opt("fine", 0)
def stamp(i, fine=0):
    if FINE != fine and i > 2: return
    if STAMP >= 0:
        a(f"{'s_memtime' if CYC else 's_memrealtime'} s[{sST0+2*i}:{sST0+2*i+1}]")
        nst[0] = max(nst[0], i + 1)

def mksrd(d, b, size):
    a(f"""s_mov_b32 s{d}, s{b}
    s_and_b32 s{d+1}, s{b+1}, 0xffff
    s_mov_b32 s{d+2}, {size}
    s_mov_b32 s{d+3}, 0x00020000""")

MF = "v_mfma_f32_32x32x16_bf16"
MF16 = "v_mfma_f32_16x16x32_bf16"
MF32 = "v_mfma_f32_32x32x2_f32"
LOG2E = "0x3fb8aa3b"

def lines(txt): return [l.strip() for l in txt.strip().split("\n") if l.strip()]
def cost(x):
    if callable(x): return getattr(x, "cost", 1)
    return 2 if ("v_exp" in x or "v_rcp" in x) else (0 if x.startswith("s_") else 1)
def emit(x):
    if callable(x): x()
    else: a(x)
def fn(f, c=1):
    f.cost = c; return f
class Filler:
    def __init__(self, items): self.q = list(items)
    def take(self, budget):
        while self.q and budget > 0:
            x = self.q.pop(0); budget -= cost(x); emit(x)
        while self.q and cost(self.q[0]) == 0: emit(self.q.pop(0))
    def flush(self): self.take(1 << 30)
def merge(main, side, start=0, end=None):
    end = len(main) if end is None else end
    tot = sum(cost(x) for x in main[start:end]); out = list(main[:start]); acc = 0; k = 0
    for x in main[start:end]:
        while k < len(side) and acc >= k * tot / len(side): out.append(side[k]); k += 1
        out.append(x); acc += cost(x)
    return out + side[k:] + list(main[end:])

retries = []
def checked(cmp_lines, reload, name):
    lab = a.newlabel(name)
    a.label(lab + "_c")
    for l in cmp_lines: a(l)
    a(f"s_cbranch_vccnz {lab}_r")
    a.label(lab + "_k")
    def blk():
        a.label(lab + "_r")
        a(f"""s_cmp_eq_u32 s{sCNT}, 0
        s_cbranch_scc1 {lab}_k
        s_sub_u32 s{sCNT}, s{sCNT}, 1""")
        reload()
        a(f"""s_waitcnt vmcnt(0)
        s_branch {lab}_c""")
    retries.append(blk)

a(f"""s_cmp_ge_u32 s2, 256
s_cbranch_scc1 L_end""")
stamp(0)
PF = opt("pf", 0)
pfh = f"""s_getpc_b64 s[{sOUT}:{sOUT+1}]
L_pc:
s_and_b32 s{sOUT+1}, s{sOUT+1}, 0xffff
s_mov_b32 s{sOUT+2}, L_end-L_pc
s_mov_b32 s{sOUT+3}, 0x00020000
buffer_load_dword v{vT+7}, v2, {srd(sOUT)}, 0 offen""" if PF else ""
a(f"""s_load_dwordx16 s[8:23], s[0:1], 0
s_load_dwordx4 s[24:27], s[0:1], 64
s_load_dwordx2 s[28:29], s[0:1], 80
v_lshrrev_b32 v1, 6, v0
v_lshlrev_b32 v2, 6, v0
v_and_b32 v{vL}, 63, v0
v_readfirstlane_b32 s{sW}, v1
{pfh}
s_and_b32 s{sT0}, s2, 7                  ; xcd
s_lshr_b32 s{sT1}, s2, 3                 ; idx
s_and_b32 s{sRB}, s{sT0}, 1
s_lshl_b32 s{sRB}, s{sRB}, 3
s_and_b32 s{sT2}, s{sT1}, 7
s_add_u32 s{sRB}, s{sRB}, s{sT2}         ; rb
s_lshr_b32 s{sT2}, s{sT1}, 3             ; j
s_lshr_b32 s{sTYPE}, s{sT2}, 1
s_and_b32 s{sT2}, s{sT2}, 1
s_and_b32 s{sG}, s{sT0}, 6
s_add_u32 s{sG}, s{sG}, s{sT2}           ; g
s_lshl_b32 s{sRB2}, s{sT0}, 2
s_and_b32 s{sT2}, s{sT1}, 3
s_add_u32 s{sRB2}, s{sRB2}, s{sT2}       ; rb2
s_lshr_b32 s{sCB}, s{sT1}, 2             ; cb
s_and_b32 s{sSIG}, s{sW}, 3
s_lshr_b32 s{sH}, s{sW}, 2
s_mul_i32 s{sSTART}, s{sG}, 11
s_add_u32 s{sSTART}, s{sSTART}, 1
s_lshr_b32 s{sSTART}, s{sSTART}, 1
s_min_u32 s{sSTART}, s{sSTART}, 38
s_mov_b32 s{sMASK}, 0xffff0000
s_mov_b32 s{sCNT}, {SPIN}
s_lshl_b32 s{sT2}, s{sG}, 7
s_lshl_b32 s{sT3}, s{sSTART}, 6
s_add_u32 s{sT0}, s{sT2}, 1024
s_add_u32 s{sXO}, s{sT3}, 256
s_cmp_eq_u32 s{sTYPE}, 0
s_mov_b32 s{sSTR}, 2752
s_cselect_b32 s{sSTR}, 3072, s{sSTR}
s_mov_b32 s{sT1}, 128
s_cselect_b32 s{sT1}, 1024, s{sT1}
s_cselect_b32 s{sT3}, s{sT0}, s{sT3}
s_cselect_b32 s{sT2}, s{sXO}, s{sT2}
s_sub_u32 s{sSKIP}, {2752+3072}, s{sSTR}
s_lshl_b32 s{sSTR64}, s{sSTR}, 6
""")
t0, t1, t2, t3, t4 = vT, vT + 1, vT + 2, vT + 3, vT + 4
a(f"""v_lshrrev_b32 v{t0}, 3, v{vL}          ; l>>3
v_and_b32 v{t1}, 7, v{vL}                ; l&7
v_lshrrev_b32 v{t2}, 4, v{vL}            ; l>>4
v_xor_b32 v{t3}, v{t1}, v{t2}
v_lshlrev_b32 v{t3}, 4, v{t3}
v_lshl_add_u32 v{vXO0}, v{t0}, 10, v{t3}
v_xor_b32 v{vXO1}, 64, v{vXO0}
v_add_u32 v{vXO1}, 8192, v{vXO1}
v_lshlrev_b32 v{t3}, 2, v{t2}            ; 4*(l>>4)
v_mul_lo_u32 v{vWO}, v{t3}, s{sSTR}
v_and_b32 v{t3}, 1, v{t0}                ; (l>>3)&1
v_mul_lo_u32 v{t3}, v{t3}, s{sT1}
v_lshl_add_u32 v{t3}, v{t1}, 4, v{t3}
v_add3_u32 v{vWO}, v{vWO}, v{t3}, s{sT3}
v_and_b32 v{t3}, 1, v{t2}
v_lshlrev_b32 v{t3}, 2, v{t3}
v_xor_b32 v{t3}, v{t3}, v{t1}
v_lshlrev_b32 v{t3}, 4, v{t3}
v_mul_lo_u32 v{vWO2}, v{t0}, s{sSKIP}
v_add3_u32 v{vWO2}, v{vWO2}, v{t3}, s{sT2}
v_lshlrev_b32 v{vL16}, 4, v{vL}
v_mov_b32 v{t4}, 0
s_lshl_b32 s{sXO}, s{sRB}, 17
s_lshr_b32 s{sT3}, s{sSIG}, 1
s_lshl_b32 s{sT3}, s{sT3}, 6
s_lshl_b32 s{sT2}, s{sTYPE}, 5
s_add_u32 s{sT3}, s{sT3}, s{sT2}
s_lshl_b32 s{sT2}, s{sG}, 2
s_add_u32 s{sT3}, s{sT3}, s{sT2}
s_and_b32 s{sT2}, s{sSIG}, 1
s_lshl_b32 s{sT2}, s{sT2}, 1
s_add_u32 s{sT3}, s{sT3}, s{sT2}
s_add_u32 s{sT3}, s{sT3}, s{sH}
s_lshl_b32 s{sT3}, s{sT3}, 10
s_add_u32 s{sT3}, s{sT3}, s{sXO}
s_lshl_b32 s{sT0}, s{sW}, 14
s_add_u32 s{sXO}, s{sXO}, s{sT0}         ; x soffset
s_lshr_b32 s{sT0}, s{sW}, 1              ; q4
s_and_b32 s{sT1}, s{sW}, 1
s_lshl_b32 s{sT1}, s{sT1}, 1             ; r0
s_lshl_b32 s{sT2}, s{sT0}, 4
s_add_u32 s{sT2}, s{sT2}, s{sT1}
s_mul_i32 s{sWOF}, s{sT2}, s{sSTR}       ; W soffset
s_lshl_b32 s{sM0X}, s{sW}, 11
s_mul_i32 s{sM0W}, s{sT0}, 4352
s_mul_i32 s{sT1}, s{sT1}, 1088
s_add_u32 s{sM0W}, s{sM0W}, s{sT1}
s_add_u32 s{sM0W}, s{sM0W}, 16384
s_waitcnt lgkmcnt(0)
""")
mksrd(sX, 8, 2048 * 1024)
mksrd(sWS, 28, 256 << 20)
vXR = vA0
a.vmem(f"buffer_load_dwordx4 {v(vXR,4)}, v{vL16}, {srd(sX)}, s{sT3} offen", "xr")
a.vmem(f"buffer_load_dword v{vEP}, v{t4}, {srd(sWS)}, 0 offen sc1", "xr")
a(f"""s_cmp_eq_u32 s{sTYPE}, 0
s_cselect_b32 s{sWD}, s10, s18
s_cselect_b32 s{sWD+1}, s11, s19
s_lshl_b32 s{sWD+2}, s{sSTR}, 9
s_and_b32 s{sWD+1}, s{sWD+1}, 0xffff
s_mov_b32 s{sWD+3}, 0x00020000
""")

def dma_pieces(c):
    slot = (c & 3) * SLOT
    P = []
    if c < 8:
        def p0():
            a(f"s_add_u32 m0, s{sM0X}, {slot}")
            a.vmem(f"buffer_load_dwordx4 v{vXO0}, {srd(sX)}, s{sXO} offen lds", f"c{c}")
        def p1():
            a(f"s_add_u32 m0, s{sM0X}, {slot+1024}")
            a.vmem(f"buffer_load_dwordx4 v{vXO1}, {srd(sX)}, s{sXO} offen lds", f"c{c}")
            a(f"s_add_u32 s{sXO}, s{sXO}, 128")
        def p2():
            a(f"s_add_u32 m0, s{sM0W}, {slot}")
            a.vmem(f"buffer_load_dwordx4 v{vWO}, {srd(sWD)}, s{sWOF} offen lds", f"c{c}")
            a(f"s_add_u32 s{sWOF}, s{sWOF}, s{sSTR}")
        def p3():
            a(f"s_add_u32 m0, s{sM0W}, {slot+1088}")
            a.vmem(f"buffer_load_dwordx4 v{vWO}, {srd(sWD)}, s{sWOF} offen lds", f"c{c}")
            a(f"s_add_u32 s{sWOF}, s{sWOF}, s{sSTR64}")
        P = [p0, p1, p2, p3]
    else:
        u = c - 8
        def mk(i):
            def p():
                if u == 0 and i == 0:
                    a(f"""s_lshl_b32 s{sT0}, s{sW}, 5
                    s_mul_i32 s{sWOF}, s{sT0}, s{sSTE}
                    s_lshl_b32 s{sM0X}, s{sW}, 12
                    s_lshl_b32 s{sM0W}, s{sSTE}, 3
                    s_mul_i32 s{sSTR64}, s{sSTE}, {256-24}""")
                a(f"s_add_u32 m0, s{sM0X}, {slot+i*1024}")
                a.vmem(f"buffer_load_dwordx4 v{vWO2}, {srd(sWE)}, s{sWOF} offen lds", f"c{c}")
                a(f"s_add_u32 s{sWOF}, s{sWOF}, s{sM0W if i < 3 else sSTR64}")
            return p
        P = [mk(i) for i in range(4)]
    return [fn(p, 4) for p in P]

a(f"s_sub_u32 s{sSTR64}, s{sSTR64}, s{sSTR}")
for c in range(2):
    for p in dma_pieces(c): p()
stamp(1)
a(f"""s_cmp_eq_u32 s{sTYPE}, 0
s_cselect_b32 s{sWE}, s18, s10
s_cselect_b32 s{sWE+1}, s19, s11
s_lshl_b32 s{sWE+2}, s{sSKIP}, 9
s_and_b32 s{sWE+1}, s{sWE+1}, 0xffff
s_mov_b32 s{sWE+3}, 0x00020000
""")
mksrd(sW2, 22, 1376 * 1024)
mksrd(sWO, 14, 512 * 1024)
mksrd(sOUT, 24, 2048 * 1024)
sPH, sB1 = 12, 20
a(f"""s_and_b32 s{sPH+1}, s{sPH+1}, 0xffff
s_mov_b32 s{sPH+2}, 16384
s_mov_b32 s{sPH+3}, 0x00020000
s_and_b32 s{sB1+1}, s{sB1+1}, 0xffff
s_mov_b32 s{sB1+2}, 2752
s_mov_b32 s{sB1+3}, 0x00020000
s_mov_b32 s{sSTE}, s{sSKIP}
s_lshr_b32 s{sREC}, s{sT3}, 6
s_and_b32 s{sT0}, s{sG}, 1
s_cmp_ge_u32 s{sG}, 6
s_cselect_b32 s{sT0}, 1, s{sT0}
s_and_b32 s{sSKIP}, s{sT0}, s{sH}
s_lshl_b32 s{sT0}, s{sRB}, 2
s_add_u32 s{sT0}, s{sT0}, s{sSIG}
s_mul_i32 s{sT0}, s{sT0}, 59
s_add_u32 s{sT1}, s{sT0}, s{sSTART}
s_add_u32 s{sT1}, s{sT1}, s{sH}
s_lshl_b32 s{sT1}, s{sT1}, 11
s_add_u32 s{sSB0}, s{sT1}, {ACT}         ; tile a
s_add_u32 s{sSB1}, s{sT1}, {ACT+4096}    ; tile b
s_add_u32 s{sT1}, s{sT1}, {ACT+8192}     ; tile c
s_lshl_b32 s{sT2}, s{sG}, 1
s_add_u32 s{sT0}, s{sT0}, s{sT2}
s_add_u32 s{sT0}, s{sT0}, s{sH}
s_lshl_b32 s{sT0}, s{sT0}, 11
s_add_u32 s{sSB2}, s{sT0}, {ACT+43*2048} ; o
s_lshl_b32 s{sT0}, s{sG}, 2
s_add_u32 s{sT0}, s{sT0}, s{sSIG}
s_lshl_b32 s{sT0}, s{sT0}, 4
s_add_u32 s{sT0}, s{sT0}, s{sRB}
s_mul_i32 s{sT0}, s{sT0}, 1152
s_add_u32 s{sT0}, s{sT0}, {KVD}
s_lshl_b32 s{sT2}, s2, 11
s_lshl_b32 s{sT3}, s{sW}, 4
s_add_u32 s{sT2}, s{sT2}, s{sT3}
s_add_u32 s{sT2}, s{sT2}, {ACT + 64*118*1024}
v_mov_b32 v{t0}, -1
v_mov_b32 v{t1}, -1
v_mov_b32 v{t2}, -1
v_mov_b32 v{t3}, -1
s_cmp_eq_u32 s{sTYPE}, 0
s_cbranch_scc0 L_clrB
s_cmp_eq_u32 s{sSKIP}, 0
s_cselect_b32 s{sSB0}, s{sT1}, s{sT2}
s_cselect_b64 exec, -1, 1
buffer_store_dwordx4 {v(t0,4)}, v{vL16}, {srd(sWS)}, s{sSB0} offen sc1
buffer_store_dwordx4 {v(t0,4)}, v{vL16}, {srd(sWS)}, s{sSB0} offen offset:1024 sc1
s_cmp_eq_u32 s{sH}, 0
s_cselect_b32 s{sSB1}, s{sT0}, s{sT2}
s_cselect_b64 exec, -1, 1
buffer_store_dwordx4 {v(t0,4)}, v{vL16}, {srd(sWS)}, s{sSB1} offen sc1
s_cselect_b64 exec, 15, 1
buffer_store_dwordx4 {v(t0,4)}, v{vL16}, {srd(sWS)}, s{sSB1} offen offset:1024 sc1
s_mov_b64 exec, 1
buffer_store_dwordx4 {v(t0,4)}, v{vL16}, {srd(sWS)}, s{sT2} offen sc1
buffer_store_dwordx4 {v(t0,4)}, v{vL16}, {srd(sWS)}, s{sT2} offen offset:1024 sc1
s_mov_b64 exec, -1
s_branch L_clrE
L_clrB:""")
for sb in (sSB0, sSB1, sSB2):
    a.vmem(f"buffer_store_dwordx4 {v(t0,4)}, v{vL16}, {srd(sWS)}, s{sb} offen sc1", "clr")
    a.vmem(f"buffer_store_dwordx4 {v(t0,4)}, v{vL16}, {srd(sWS)}, s{sb} offen offset:1024 sc1", "clr")
a.label("L_clrE")
if X_NOCLR:
    a.vm = [t for t in a.vm if t != "clr"]
    a.L = [x for x in a.L if not x.op.startswith("buffer_store")]

u0, u1, u2, u3 = vA1, vA1 + 1, vA1 + 2, vA1 + 3
a(f"""s_xor_b32 s{sT0}, s{sSIG}, s{sH}        ; m
v_and_b32 v{u0}, 31, v{vL}
v_lshrrev_b32 v{u1}, 5, v{vL}             ; hi
v_bfe_u32 v{u2}, v{vL}, 1, 3              ; swz
v_xor_b32 v{u1}, v{u1}, v{u2}
v_lshlrev_b32 v{u1}, 4, v{u1}
v_lshl_add_u32 v{u1}, v{u0}, 7, v{u1}
s_lshl_b32 s{sT1}, s{sSIG}, 12
v_add_u32 v{u1}, s{sT1}, v{u1}            ; x base
v_bfe_u32 v{u2}, v{vL}, 2, 2              ; r
v_mul_u32_u24 v{u2}, 1088, v{u2}
v_lshrrev_b32 v{u3}, 5, v{vL}
v_lshl_add_u32 v{u2}, v{u3}, 9, v{u2}
v_bfe_u32 v{u3}, v{vL}, 4, 1
v_lshl_add_u32 v{u2}, v{u3}, 5, v{u2}
v_and_b32 v{u3}, 3, v{vL}
v_lshl_add_u32 v{u2}, v{u3}, 3, v{u2}
s_lshl_b32 s{sT1}, s{sH}, 6
s_add_u32 s{sT1}, s{sT1}, 16384
v_add_u32 v{u2}, s{sT1}, v{u2}            ; W base
""")
for ks in range(4):
    a(f"""s_xor_b32 s{sT1}, s{sT0}, {ks}
    s_lshl_b32 s{sT2}, s{sT1}, 5
    s_mul_i32 s{sT1}, s{sT1}, 4352
    v_xor_b32 v{vXA+ks}, s{sT2}, v{u1}
    v_add_u32 v{vWA+ks}, s{sT1}, v{u2}""")
a(f"""v_lshrrev_b32 v{u1}, 2, v{vL}
v_lshrrev_b32 v{u2}, 4, v{vL}
v_xor_b32 v{u1}, v{u1}, v{u2}
v_and_b32 v{u1}, 1, v{u1}
v_cmp_eq_u32 vcc, 0, v{u1}
v_mov_b32 v{u2}, 0x3f803f80
v_lshlrev_b32 v{u0}, 1, v{u0}
s_mov_b32 s{sHALF}, -0.5
s_mov_b32 s{sHALF+1}, -0.5
s_mov_b32 s{sISQ}, 0x3f3504f3
s_mov_b32 s{sISQ+1}, 0x3f3504f3
s_mov_b32 s{sLOm}, -1
s_mov_b32 s{sLOm+1}, 0""")
for i in range(4): a(f"v_cndmask_b32 v{vSEL+i}, 0, v{u2}, vcc")

e = vXR + 4
r0, r1 = vXR + 12, vXR + 13
vRC = vT
def allsum(r):
    L = [f"v_add_f32_dpp v{r}, v{r}, v{r} row_ror:{s} row_mask:0xf bank_mask:0xf" for s in (8, 4, 2, 1)]
    L += [f"v_mov_b32 v{r1}, v{r}", f"v_permlane16_swap_b32 v{r}, v{r1}", f"v_add_f32 v{r}, v{r}, v{r1}",
          f"v_mov_b32 v{r1}, v{r}", f"v_permlane32_swap_b32 v{r}, v{r1}", f"v_add_f32 v{r}, v{r}, v{r1}"]
    return L
S = []
for j in range(4):
    S += [f"v_lshlrev_b32 v{e+2*j}, 16, v{vXR+j}", f"v_and_b32 v{e+2*j+1}, s{sMASK}, v{vXR+j}"]
S += [f"v_add_f32 v{vXR+j}, v{e+2*j}, v{e+2*j+1}" for j in range(4)]
S += [f"v_add_f32 v{vXR}, v{vXR}, v{vXR+1}", f"v_add_f32 v{vXR+2}, v{vXR+2}, v{vXR+3}", f"v_add_f32 v{r0}, v{vXR}, v{vXR+2}"]
S += allsum(r0)
S += [f"v_mul_f32 v{vRC}, 0xbb000000, v{r0}"]
S += [f"v_add_f32 v{e+j}, v{e+j}, v{vRC}" for j in range(8)]
S += [f"v_mul_f32 v{vXR+j}, v{e+j}, v{e+j}" for j in range(4)]
S += [f"v_fmac_f32 v{vXR+j}, v{e+4+j}, v{e+4+j}" for j in range(4)]
S += [f"v_add_f32 v{vXR}, v{vXR}, v{vXR+1}", f"v_add_f32 v{vXR+2}, v{vXR+2}, v{vXR+3}", f"v_add_f32 v{r0}, v{vXR}, v{vXR+2}"]
S += allsum(r0)
S += [f"v_mov_b32 v{r1}, 0x3727c5ac", f"v_fmac_f32 v{r1}, 0x3b000000, v{r0}", f"v_rsq_f32 v{vRC+2}, v{r1}",
      f"v_add_u32 v{vRC+3}, 1, v{vEP}", f"v_mul_f32 v{vRC+1}, v{r1}, v{vRC+2}", f"v_readfirstlane_b32 s{sTAG}, v{vRC+3}"]
a.wait(vm="xr")
for x in merge(S, dma_pieces(2)): emit(x)
def rec_store(base):
    a(f"s_add_u32 s{sT0}, s{sREC}, {base}")
    a("s_mov_b64 exec, 1")
    a.vmem(f"buffer_store_dwordx4 {v(vRC,4)}, v{vL16}, {srd(sWS)}, s{sT0} offen sc1", "rec")
    a("s_mov_b64 exec, -1")
rec_store(REC1)
a(f"""s_and_b32 s{sT0}, s{sW}, 1
s_lshl_b32 s{sT0}, s{sT0}, 10
s_add_u32 m0, s{sT0}, {WPHI}
s_lshl_b32 s{sT1}, s{sG}, 11
s_add_u32 s{sT1}, s{sT1}, s{sT0}
s_add_u32 s{sT0}, s{sSTART}, s{sH}
s_lshl_b32 s{sT0}, s{sT0}, 6""")
a.vmem(f"buffer_load_dwordx4 v{vL16}, {srd(sPH)}, s{sT1} offen lds", "misc")
for i in range(3):
    a.vmem(f"buffer_load_ushort v{vBA+i}, v{u0}, {srd(sB1)}, s{sT0} offen offset:{128*i}", "misc")

def p1_reads(c, ks):
    po = (c & 1) * SLOT
    t = 4 * c + ks
    tg = f"k{t}"
    if (c & 1) == 0 and c > 0:
        op = "v_add_u32" if (c & 2) else "v_subrev_u32"
        a(f"{op} v{vXA+ks}, {2*SLOT}, v{vXA+ks}")
        a(f"{op} v{vWA+ks}, {2*SLOT}, v{vWA+ks}")
    if X_NOREAD & 1 == 0: a.ds(f"ds_read_b128 {v(vX+4*t,4)}, v{vXA+ks} offset:{po}", tg)
    for tile in range(2):
        if X_NOREAD & (2 << tile): continue
        b = vWF + 8 * ks + 4 * tile
        a.ds(f"ds_read_b64_tr_b16 {v(b,2)}, v{vWA+ks} offset:{po+tile*128}", tg)
        a.ds(f"ds_read_b64_tr_b16 {v(b+2,2)}, v{vWA+ks} offset:{po+tile*128+256}", tg)

def p1_mfma(c, ks):
    t = 4 * c + ks
    a.wait(lg=f"k{t}")
    if X_NOMFMA: return
    for tile, acc in ((0, vA0), (1, vA1)):
        b = vWF + 8 * ks + 4 * tile
        cc = "0" if t == 0 else v(acc, 16)
        a(f"{MF} {v(acc,16)}, {v(b,4)}, {v(vX+4*t,4)}, {cc}")
    if ks == 0:
        for tile in range(2):
            b = vWF + 8 * ks + 4 * tile
            cc = "0" if c == 0 else v(vCS + 4 * tile, 4)
            a(f"{MF16} {v(vCS+4*tile,4)}, {v(vSEL,4)}, {v(b,4)}, {cc}")

sKQ, sSTT = sSIG, sH
SEQ = ([(0, i) for i in range(4)] + [(1, i) for i in range(4)] + [(0, 4 + i) for i in range(4)] + [(1, 4 + i) for i in range(4)]
       + [(1, 8), (1, 9), (0, 8), (0, 9), (0, 10), (0, 11)] + [(2, i) for i in range(8)])
def wloc(i):
    if i < 11: return UREG + i * 8192
    if i < 19: return LREG + (i - 11) * 8192
    return UREG + (i - 19) * 8192
def w_dma(i, tag):
    def p():
        b, st = SEQ[i]
        a(f"s_add_u32 m0, s{sM0R}, {wloc(i)}")
        a(f"s_add_u32 s{sT0}, s{sWB[b]}, {st*16384}")
        a.vmem(f"buffer_load_dwordx4 v{vW2O}, {srd(sWO if b == 2 else sW2)}, s{sT0} offen lds", tag)
    return fn(p, 4)

w0, w1, w2, w3 = vT + 4, vT + 5, vT + 6, vT + 7
FILL = {c: [] for c in range(8)}
FILL[0] = lines(f"""
v_and_b32 v{w0}, 31, v{vL}
s_lshl_b32 s{sT1}, s{sH}, 9
s_add_u32 s{sT1}, s{sT1}, {CWC}
v_lshlrev_b32 v{vCAR}, 4, v{w0}
v_add_u32 v{vCAR}, s{sT1}, v{vCAR}
s_lshl_b32 s{sT1}, s{sSIG}, 2
v_add_u32 v{vCAW}, s{sT1}, v{vCAR}
v_bfe_u32 v{w0}, v{vL}, 2, 2
v_lshrrev_b32 v{w1}, 5, v{vL}
v_lshl_add_u32 v{w1}, v{w1}, 3, v{w0}
v_lshlrev_b32 v{w1}, 7, v{w1}
v_lshrrev_b32 v{w0}, 1, v{w0}
v_xor_b32 v{w0}, s{sH}, v{w0}
v_lshl_add_u32 v{w1}, v{w0}, 6, v{w1}
v_bfe_u32 v{w0}, v{vL}, 4, 1
v_lshl_add_u32 v{w1}, v{w0}, 5, v{w1}
v_and_b32 v{w0}, 3, v{vL}
v_lshl_add_u32 v{w1}, v{w0}, 3, v{w1}
s_xor_b32 s{sT2}, s{sSIG}, s{sH}
s_lshl_b32 s{sT2}, s{sT2}, 11
v_add_u32 v{vP2A}, s{sT2}, v{w1}
v_xor_b32 v{vP2A+1}, 2048, v{vP2A}
v_xor_b32 v{vP2A+2}, 4096, v{vP2A}
v_xor_b32 v{vP2A+3}, 6144, v{vP2A}""")
FILL[1] = lines(f"""
v_and_b32 v{w0}, 31, v{vL}
s_lshl_b32 s{sT1}, s{sSIG}, 5
v_add_u32 v{w0}, s{sT1}, v{w0}
v_mul_u32_u24 v{vVP}, 144, v{w0}
v_add_u32 v{vVP}, {VIMG}, v{vVP}
v_lshrrev_b32 v{w1}, 5, v{vL}
v_lshl_add_u32 v{vVW}, v{w1}, 4, v{vVP}
s_lshl_b32 s{sT1}, s{sH}, 6
v_add_u32 v{vVW}, s{sT1}, v{vVW}
v_bfe_u32 v{w2}, v{vL}, 1, 2
v_lshlrev_b32 v{w1}, 1, v{w1}
v_xor_b32 v{w2}, v{w2}, v{w1}
v_lshlrev_b32 v{w2}, 4, v{w2}
v_lshl_add_u32 v{vPW0}, v{w0}, 6, v{w2}
s_lshl_b32 s{sT1}, s{sH}, 14
s_add_u32 s{sT1}, s{sT1}, {PHI}
v_add_u32 v{vPW0}, s{sT1}, v{vPW0}
v_xor_b32 v{vPW1}, 16, v{vPW0}""")
FILL[2] = [fn(lambda: rec_store(REC2), 4)] + lines(f"""
v_bfe_u32 v{w0}, v{vL}, 2, 2
v_lshrrev_b32 v{w1}, 5, v{vL}
v_lshl_add_u32 v{w0}, v{w1}, 2, v{w0}
v_lshlrev_b32 v{w0}, 5, v{w0}
v_bfe_u32 v{w1}, v{vL}, 4, 1
v_lshl_add_u32 v{w0}, v{w1}, 4, v{w0}
v_bfe_u32 v{w1}, v{vL}, 1, 1
v_lshl_add_u32 v{w0}, v{w1}, 3, v{w0}
s_lshl_b32 s{sT1}, s{sH}, 10
s_add_u32 s{sT1}, s{sT1}, {WPHI}
v_add_u32 v{w0}, s{sT1}, v{w0}
v_bfe_i32 v{w1}, v{vL}, 2, 1
v_and_b32 v{w1}, 0x80008000, v{w1}""")
def phi_reads():
    for i in range(4): a.ds(f"ds_read_b64_tr_b16 {v(vPH+2*i,2)}, v{w0} offset:{256*i}", "ph")
FILL[3] = [fn(phi_reads, 4)] + lines(f"""
s_lshl_b32 s{sM0R}, s{sKQ}, 11
s_lshl_b32 s{sT1}, s{sSTT}, 10
s_add_u32 s{sM0R}, s{sM0R}, s{sT1}
s_mul_i32 s{sWB[0]}, s{sKQ}, {22*16384}
s_cmp_eq_u32 s{sKQ}, 3
s_cselect_b32 s{sT1}, 10, 12
s_lshl_b32 s{sT2}, s{sT1}, 14
s_add_u32 s{sWB[1]}, s{sWB[0]}, s{sT2}
s_lshl_b32 s{sWB[2]}, s{sKQ}, 17
s_lshl_b32 s{sT2}, s{sRB2}, 1
s_add_u32 s{sT2}, s{sT2}, s{sSTT}
s_mul_i32 s{sT2}, s{sT2}, 118
s_lshl_b32 s{sT3}, s{sKQ}, 3
s_add_u32 s{sT3}, s{sT3}, s{sT2}
s_lshl_b32 s{sT3}, s{sT3}, 10
s_add_u32 s{sAB[2]}, s{sT3}, {ACT + 86*1024}
s_mul_i32 s{sT3}, s{sKQ}, 22
s_add_u32 s{sT3}, s{sT3}, s{sT2}
s_lshl_b32 s{sT3}, s{sT3}, 10
s_add_u32 s{sAB[0]}, s{sT3}, {ACT}
s_lshl_b32 s{sT1}, s{sT1}, 10
s_add_u32 s{sAB[1]}, s{sAB[0]}, s{sT1}
s_lshl_b32 s{sOB}, s{sRB2}, 16
s_lshl_b32 s{sT1}, s{sSTT}, 15
s_add_u32 s{sOB}, s{sOB}, s{sT1}
s_lshl_b32 s{sT1}, s{sCB}, 7
s_add_u32 s{sOB}, s{sOB}, s{sT1}
s_lshl_b32 s{sT1}, s{sKQ}, 5
s_add_u32 s{sOB}, s{sOB}, s{sT1}
s_lshl_b32 s{sT1}, s{sG}, 2
s_add_u32 s{sT1}, s{sT1}, s{sSIG}
s_mul_i32 s{sKB}, s{sT1}, {16*1152}
s_add_u32 s{sKB}, s{sKB}, {KVD}
s_cmp_eq_u32 s{sTYPE}, 0
s_cselect_b32 s{sT1}, 0, s{sMASK}
s_cselect_b32 s{sT2}, s{sMASK}, 0
v_lshlrev_b32 v{vBA}, 16, v{vBA}
v_lshlrev_b32 v{vBA+1}, 16, v{vBA+1}
v_lshlrev_b32 v{vBA+2}, 16, v{vBA+2}
v_and_b32 v{vBA}, s{sT1}, v{vBA}
v_and_b32 v{vBA+1}, s{sT1}, v{vBA+1}
v_and_b32 v{vBA+2}, s{sT2}, v{vBA+2}""")
FILL[4] = [f"v_xor_b32 v{vPH+i}, v{w1}, v{vPH+i}" for i in range(8)]
def rec1_load(tag="rec1"):
    a(f"""s_lshl_b32 s{sT1}, s{sRB}, 11
    s_lshl_b32 s{sT2}, s{sSIG}, 9
    s_add_u32 s{sT1}, s{sT1}, s{sT2}
    s_add_u32 s{sT1}, s{sT1}, {REC1}""")
    a.vmem(f"buffer_load_dwordx4 {v(vBC,4)}, v{vT}, {srd(sWS)}, s{sT1} offen sc1", tag)
FILL5 = lines(f"""
v_and_b32 v{vT}, 496, v{vL16}
v_lshrrev_b32 v{w0}, 3, v{vL}
v_and_b32 v{w1}, 7, v{vL}
v_bfe_u32 v{w2}, v{vL}, 4, 1
v_lshlrev_b32 v{w2}, 2, v{w2}
v_xor_b32 v{w1}, v{w1}, v{w2}
v_lshlrev_b32 v{w1}, 4, v{w1}
v_lshl_add_u32 v{vW2O}, v{w0}, 10, v{w1}
s_lshl_b32 s{sT1}, s{sSTT}, 13
s_lshl_b32 s{sT2}, s{sCB}, 7
s_add_u32 s{sT1}, s{sT1}, s{sT2}
v_add_u32 v{vW2O}, s{sT1}, v{vW2O}""")
FILL[5] = [FILL5[0]]
FILL[6] = [fn(rec1_load, 4)] + FILL5[1:] + lines(f"""
v_bfe_u32 v{w0}, v{vL}, 2, 2
v_lshrrev_b32 v{w1}, 5, v{vL}
v_lshl_add_u32 v{w1}, v{w1}, 3, v{w0}
v_and_b32 v{w2}, 1, v{vL}
v_bfe_u32 v{w3}, v{vL}, 4, 1
v_lshl_add_u32 v{w2}, v{w2}, 1, v{w3}
v_lshrrev_b32 v{w0}, 1, v{w0}
v_xor_b32 v{w2}, v{w2}, v{w0}
v_lshlrev_b32 v{w2}, 4, v{w2}
v_lshl_add_u32 v{w2}, v{w1}, 6, v{w2}
v_bfe_u32 v{w0}, v{vL}, 1, 1
v_lshl_add_u32 v{w2}, v{w0}, 3, v{w2}
s_lshl_b32 s{sT1}, s{sSIG}, 13
s_add_u32 s{sT1}, s{sT1}, {PHI}
v_add_u32 v{vKA0}, s{sT1}, v{w2}
v_xor_b32 v{vKA1}, 32, v{vKA0}
v_mul_u32_u24 v{w1}, 144, v{w1}
v_and_b32 v{w0}, 3, v{vL}
v_lshlrev_b32 v{w0}, 3, v{w0}
s_lshl_b32 s{sT1}, s{sSIG}, 5
v_add_u32 v{w0}, s{sT1}, v{w0}
v_cmp_eq_u32 vcc, 1, v{w3}
v_mov_b32 v{w3}, 128
v_cndmask_b32 v{w0}, v{w0}, v{w3}, vcc
v_add_u32 v{w1}, v{w1}, v{w0}
v_add_u32 v{vKB}, {VIMG}, v{w1}""")

def p2_reads(t):
    b = vWF + 4 * (t & 3)
    off = (t >> 4) * SLOT + ((t >> 2) & 3) * 8192
    a.ds(f"ds_read_b64_tr_b16 {v(b,2)}, v{vP2A+(t&3)} offset:{off}", f"p{t}")
    a.ds(f"ds_read_b64_tr_b16 {v(b+2,2)}, v{vP2A+(t&3)} offset:{off+512}", f"p{t}")

a.wait(vm="c0")
a("s_barrier")
stamp(2)
LA = opt("la", 2)
BP = opt("bp", 1)
assert BP + LA <= 4
for t in range(LA): p1_reads(0, t)
DQ = []
for t in range(32):
    c, ks = t >> 2, t & 3
    if ks == 0:
        F = Filler(FILL[c]); fb = (sum(cost(x) for x in FILL[c]) + 3) // 4
        if c == 0: DQ += dma_pieces(3)
    if ks == 0 and c > 0: stamp(2 + c, 1)
    if t == 31:
        stamp(10, 1)
        a.wait(vm="rec1")
        stamp(11, 1)
        checked([f"v_cmp_ne_u32 vcc, s{sTAG}, v{vRSTD}"], lambda: rec1_load("x"), "L_rec1")
        a(f"""v_cndmask_b32 v{vBC}, v{vSD}, v{vBC}, {sLO}
        v_mov_b32 v{vRSTD}, v{vC1}
        v_mul_f32 v{vC1}, {LOG2E}, v{vC1}""")
        a.wait(vm="c8", lg="all")
        a("s_barrier")
        a.ds(f"ds_read_b128 {v(vT,4)}, v{vCAR} offset:1024", "cw")
        a.ds(f"ds_read_b128 {v(vT+4,4)}, v{vCAR} offset:2048", "cw")
    p1_mfma(c, ks)
    if ks == BP:
        if c < 7: a.wait(vm=f"c{c+1}")
        a("s_barrier")
        if c > 0: DQ += dma_pieces(c + 3) if c < 7 else [w_dma(i, "r0") for i in range(4)]
    if t + LA < 32: p1_reads((t + LA) >> 2, (t + LA) & 3)
    if t == 29:
        a.ds(f"ds_write_b32 v{vCAW}, v{vCS} offset:1024", "cw")
        a.ds(f"ds_write_b32 v{vCAW}, v{vCS+4} offset:2048", "cw")
    if t == 31:
        for u in range(3): p2_reads(u)
    if DQ:
        d = DQ.pop(0)
        if not X_NODMA: d()
    if ks == 3: F.flush()
    else: F.take(fb)
for d in DQ:
    if not X_NODMA: d()
stamp(3); stamp(12, 1)
if X_STOP: a("s_branch L_fin")
a.wait(lg="cw")
a(f"""v_add_f32 v{vT}, v{vT}, v{vT+1}
v_add_f32 v{vT+2}, v{vT+2}, v{vT+3}
v_add_f32 v{vT+4}, v{vT+4}, v{vT+5}
v_add_f32 v{vT+6}, v{vT+6}, v{vT+7}
v_add_f32 v{vT}, v{vT}, v{vT+2}
v_add_f32 v{vT+4}, v{vT+4}, v{vT+6}
v_cndmask_b32 v{vT}, v{vBA}, v{vT}, {sLO}
v_cndmask_b32 v{vT+4}, v{vBA+1}, v{vT+4}, {sLO}
{MF32} {v(vA0,16)}, v{vT}, v{vBC}, {v(vA0,16)}
{MF32} {v(vA1,16)}, v{vT+4}, v{vBC}, {v(vA1,16)}""")

def P2(n): return v(n, 2)
def mish(acc, pk, tmp=vT):
    L = []
    for g in (0, 8):
        r = [acc + g + i for i in range(8)]; u = [tmp + i for i in range(8)]
        if pk:
            L += [f"v_pk_fma_f32 {P2(u[i])}, {P2(r[i])}, {P2(vC1)}, {sp(sHALF)} op_sel_hi:[1,0,1]" for i in range(0, 8, 2)]
            L += [f"v_exp_f32 v{u[i]}, v{u[i]}" for i in range(8)]
            L += [f"v_pk_add_f32 {P2(u[i])}, {P2(u[i])}, {sp(sISQ)}" for i in range(0, 8, 2)]
            L += [f"v_pk_fma_f32 {P2(u[i])}, {P2(u[i])}, {P2(u[i])}, {sp(sHALF)} neg_lo:[1,0,0] neg_hi:[1,0,0]" for i in range(0, 8, 2)]
            L += [f"v_rcp_f32 v{u[i]}, v{u[i]}" for i in range(8)]
            L += [f"v_pk_fma_f32 {P2(r[i])}, {P2(r[i])}, {P2(u[i])}, {P2(r[i])}" for i in range(0, 8, 2)]
        else:
            L += [f"v_fma_f32 v{u[i]}, v{r[i]}, v{vC1}, -0.5" for i in range(8)]
            L += [f"v_exp_f32 v{u[i]}, v{u[i]}" for i in range(8)]
            L += [f"v_add_f32 v{u[i]}, s{sISQ}, v{u[i]}" for i in range(8)]
            L += [f"v_fma_f32 v{u[i]}, -v{u[i]}, v{u[i]}, -0.5" for i in range(8)]
            L += [f"v_rcp_f32 v{u[i]}, v{u[i]}" for i in range(8)]
            L += [f"v_fmac_f32 v{r[i]}, v{r[i]}, v{u[i]}" for i in range(8)]
        L += [f"v_cvt_pk_bf16_f32 v{acc+g//2+i}, v{r[2*i]}, v{r[2*i+1]}" for i in range(4)]
        L.append(("half", g // 8))
    return L
def frag_store(reg, sb, half):
    return fn(lambda: a.vmem(f"buffer_store_dwordx4 {v(reg,4)}, v{vL16}, {srd(sWS)}, s{sb} offen offset:{half*1024} sc1", "st"), 2)
def mish_store(acc, pk, sb, tmp=vT):
    return [frag_store(acc + 4 * x[1], sb, x[1]) if isinstance(x, tuple) else x for x in mish(acc, pk, tmp)]

def softmax(P, out, pk, m):
    L = [f"v_max3_f32 v{m}, v{P}, v{P+1}, v{P+2}", f"v_max3_f32 v{m+1}, v{P+3}, v{P+4}, v{P+5}"]
    for i in range(6, 14, 4):
        L += [f"v_max3_f32 v{m}, v{m}, v{P+i}, v{P+i+1}", f"v_max3_f32 v{m+1}, v{m+1}, v{P+i+2}, v{P+i+3}"]
    L += [f"v_max3_f32 v{m}, v{m}, v{P+14}, v{P+15}", f"v_max_f32 v{m}, v{m}, v{m+1}", f"v_mul_f32 v{m}, v{m}, v{vC1}"]
    if pk:
        L += [f"v_pk_fma_f32 {P2(P+i)}, {P2(P+i)}, {P2(vC1)}, {P2(m)} op_sel_hi:[1,0,0] neg_lo:[0,0,1] neg_hi:[0,0,1]" for i in range(0, 16, 2)]
        L += [f"v_exp_f32 v{P+i}, v{P+i}" for i in range(16)]
        L += [f"v_pk_add_f32 {P2(m)}, {P2(P)}, {P2(P+2)}", f"v_pk_add_f32 {P2(m+2)}, {P2(P+4)}, {P2(P+6)}"]
        L += [f"v_pk_add_f32 {P2(m+(i&2))}, {P2(m+(i&2))}, {P2(P+i)}" for i in range(8, 16, 2)]
        L += [f"v_pk_add_f32 {P2(m)}, {P2(m)}, {P2(m+2)}", f"v_add_f32 v{m}, v{m}, v{m+1}", f"v_rcp_f32 v{m}, v{m}"]
        L += [f"v_pk_mul_f32 {P2(P+i)}, {P2(P+i)}, {P2(m)} op_sel_hi:[1,0]" for i in range(0, 16, 2)]
    else:
        L += [f"v_fma_f32 v{P+i}, v{P+i}, v{vC1}, -v{m}" for i in range(16)]
        L += [f"v_exp_f32 v{P+i}, v{P+i}" for i in range(16)]
        L += [f"v_add_f32 v{m+i}, v{P+2*i}, v{P+2*i+1}" for i in range(4)]
        L += [f"v_add_f32 v{m+(i&3)}, v{m+(i&3)}, v{P+i}" for i in range(8, 16)]
        L += [f"v_add_f32 v{m}, v{m}, v{m+1}", f"v_add_f32 v{m+2}, v{m+2}, v{m+3}", f"v_add_f32 v{m}, v{m}, v{m+2}", f"v_rcp_f32 v{m}, v{m}"]
        L += [f"v_mul_f32 v{P+i}, v{P+i}, v{m}" for i in range(16)]
    L += [f"v_cvt_pk_bf16_f32 v{out+i}, v{P+2*i}, v{P+2*i+1}" for i in range(8)]
    return L
def dsw(txt, tag="w"): return fn(lambda: a.ds(txt, tag), 2)

vRS2, vKF = vCS, vCS + 2
def rec2_addr():
    return lines(f"""s_lshl_b32 s{sT1}, s{sSTT}, 9
    v_xor_b32 v{vCS+3}, s{sT1}, v{vL16}
    v_and_b32 v{vCS+4}, 15, v{vL}
    v_lshlrev_b32 v{vCS+4}, 11, v{vCS+4}""")
def rec2_load(kv, tag="rec2"):
    a(f"""s_lshl_b32 s{sT1}, s{sRB2}, 10
    s_add_u32 s{sT1}, s{sT1}, {REC2}""")
    a.vmem(f"buffer_load_dwordx2 {v(vRS2,2)}, v{vCS+3}, {srd(sWS)}, s{sT1} offen offset:8 sc1", tag)
    if kv:
        a(f"""s_lshr_b32 s{sT1}, s{sSIG}, 1
        s_lshl_b32 s{sT1}, s{sT1}, 10
        s_lshl_b32 s{sT2}, s{sG}, 6
        s_add_u32 s{sT1}, s{sT1}, s{sT2}
        s_and_b32 s{sT2}, s{sSIG}, 1
        s_lshl_b32 s{sT2}, s{sT2}, 5
        s_add_u32 s{sT1}, s{sT1}, s{sT2}
        s_add_u32 s{sT1}, s{sT1}, {REC2}""")
        a.vmem(f"buffer_load_dword v{vKF}, v{vCS+4}, {srd(sWS)}, s{sT1} offen offset:12 sc1", tag)
def rec2_check(kv):
    a.wait(vm="rec2")
    L = [f"v_cmp_ne_u32 vcc, s{sTAG}, v{vRS2+1}"]
    if kv: L = [f"v_xor_b32 v{vCS+5}, s{sTAG}, v{vRS2+1}", f"v_xor_b32 v{vCS+6}, s{sTAG}, v{vKF}",
                f"v_or_b32 v{vCS+5}, v{vCS+5}, v{vCS+6}", f"v_cmp_ne_u32 vcc, 0, v{vCS+5}"]
    checked(L, lambda: rec2_load(kv, "x"), "L_rec2")
    a(f"""v_mov_b32 v{vRS2+1}, v{vRS2}
    v_permlane32_swap_b32 v{vRS2}, v{vRS2+1}""")

def pass2(F, per, after_mid, hook=None):
    for t in range(32):
        if t == 13:
            a.wait(vm="c9", lg="all")
            a("s_barrier")
            F.q = merge(F.q, after_mid, 0, min(len(F.q), 40)) if F.q else list(after_mid)
        a.wait(lg=f"p{t}")
        b = vWF + 4 * (t & 3)
        a(f"{MF} {v(vA2,16)}, {v(b,4)}, {v(vX+4*t,4)}, {'0' if t == 0 else v(vA2,16)}")
        if (t & 3) == 1:
            a(f"{MF16} {v(vCS+8,4)}, {v(vSEL,4)}, {v(b,4)}, {'0' if t == 1 else v(vCS+8,4)}")
        if t + 3 < 32: p2_reads(t + 3)
        if t == 30: a.ds(f"ds_write_b32 v{vCAW}, v{vCS+8}", "cw")
        F.take(per)
        if hook and not F.q and t >= 13:
            hook(); hook = None
    F.flush()
    if hook: hook()
def corr_c():
    return [fn(lambda: a.wait(lg="cw"), 0)] + lines(f"""v_add_f32 v{vU}, v{vU}, v{vU+1}
    v_add_f32 v{vU+2}, v{vU+2}, v{vU+3}
    v_add_f32 v{vU}, v{vU}, v{vU+2}
    v_cndmask_b32 v{vU}, v{vBA+2}, v{vU}, {sLO}
    {MF32} {v(vA2,16)}, v{vU}, v{vBC}, {v(vA2,16)}""")

vWR = 128
vACC = 216
vLW = [248, 32]
vA2U, vA2L, vAO, vA2X = 14, 16, 18, 20
vOO, vRES, vRA = 22, 60, 6
vEC = 56
FB = [64, 68, 72, 76, 96, 100, 104, 108, 80, 84, 88, 92, 112, 116, 120, 124]
GRP = [(0, 4), (4, 8), (8, 12), (12, 16), (16, 20), (20, 22), (22, 26), (26, 30)]
def fbuf(i):
    g = [k for k, (s, e) in enumerate(GRP) if s <= i < e][0]
    return FB[(g & 3) * 4 + i - GRP[g][0]]
def p2_addrs():
    x0, x1 = vU + 4, vU + 5
    return lines(f"""v_bfe_u32 v{x0}, v{vL}, 2, 2
    v_lshrrev_b32 v{x1}, 1, v{x0}
    v_lshlrev_b32 v{x1}, 6, v{x1}
    v_lshl_add_u32 v{x1}, v{x0}, 7, v{x1}
    v_bfe_u32 v{x0}, v{vL}, 4, 1
    v_lshl_add_u32 v{x1}, v{x0}, 5, v{x1}
    v_and_b32 v{x0}, 3, v{vL}
    v_lshl_add_u32 v{x1}, v{x0}, 3, v{x1}
    s_mul_i32 s{sT1}, s{sKQ}, {2048+32}
    v_xor_b32 v{x1}, s{sT1}, v{x1}
    v_lshrrev_b32 v{x0}, 5, v{vL}
    v_lshl_add_u32 v{vU+6}, v{x0}, 9, v{x1}
    v_lshl_add_u32 v{vU+7}, v{x0}, 10, v{x1}""")
def p2_addrs2():
    return lines(f"""v_mov_b32 v{vA2L}, v{vU+6}
    v_xor_b32 v{vA2L+1}, 64, v{vU+6}
    v_add_u32 v{vA2U}, {UREG}, v{vA2L}
    v_add_u32 v{vA2U+1}, {UREG}, v{vA2L+1}
    v_add_u32 v{vA2X}, {UREG+65536}, v{vA2L}
    v_add_u32 v{vA2X+1}, {UREG+65536}, v{vA2L+1}
    v_add_u32 v{vAO}, {UREG+3*8192}, v{vU+7}
    v_xor_b32 v{vAO+1}, 64, v{vAO}""")
def w_frag(dst, i, tag):
    if i >= 22: ad, off, sec = vAO, (i - 22) * 8192, 512
    elif i >= 19: ad, off, sec = vA2U, (i - 19) * 8192, 1024
    elif i >= 11: ad, off, sec = vA2L, (i - 11) * 8192, 1024
    elif i >= 8: ad, off, sec = vA2X, (i - 8) * 8192, 1024
    else: ad, off, sec = vA2U, i * 8192, 1024
    L = []
    for b in range(2):
        L.append(dsw(f"ds_read_b64_tr_b16 {v(dst+4*b,2)}, v{ad+b} offset:{off}", tag))
        L.append(dsw(f"ds_read_b64_tr_b16 {v(dst+4*b+2,2)}, v{ad+b} offset:{off+sec}", tag))
    return L
def g_load(i, tag=None):
    def p():
        b, st = SEQ[i]
        a(f"s_add_u32 s{sT0}, s{sAB[b]}, {st*1024}")
        a.vmem(f"buffer_load_dwordx4 {v(fbuf(i),4)}, v{vL16}, {srd(sWS)}, s{sT0} offen sc1", tag or f"a{i}")
    return fn(p, 4)

def phase2(T, issued, side, bars):
    for g in range(issued, 4):
        for i in range(*GRP[g]): g_load(i)()
    a(f"""v_and_b32 v{vU}, 31, v{vL}
    v_lshrrev_b32 v{vU+1}, 5, v{vL}
    v_lshlrev_b32 v{vU+1}, 4, v{vU+1}
    v_lshl_add_u32 v{vOO}, v{vU}, 10, v{vU+1}
    s_mul_i32 s{sT1}, s{sSTT}, {4*6144}""")
    for r in (1, 2, 3):
        a(f"""s_xor_b32 s{sT2}, s{sKQ}, {r}
        s_mul_i32 s{sT2}, s{sT2}, 6144
        s_add_u32 s{sT2}, s{sT2}, s{sT1}
        s_add_u32 s{sT2}, s{sT2}, {RED + (r-1)*2048}
        v_add_u32 v{vRA+r-1}, s{sT2}, v{vL16}""")
    a(f"""s_mul_i32 s{sT2}, s{sW}, 6144
    v_add_u32 v{vRA+3}, s{sT2}, v{vL16}""")
    st_skip = None
    for g, (s, e) in enumerate(GRP):
        if g == 5:
            a(f"""s_cmp_eq_u32 s{sKQ}, 3
            s_cbranch_scc1 L_skip{T}""")
            st_skip = a.save()
        if g == 6:
            a.label(f"L_skip{T}")
            a.restore(st_skip)
            a.wait(lg="all")
            a("s_barrier")
            stamp(10)
            for x in w_frag(vLW[0], 22, "w22"): x()
        a.wait(vm=f"a{e-1}")
        regs = [fbuf(i) for i in range(s, e)]
        if len(regs) == 4:
            C = [f"v_max3_u32 v{vU}, v{regs[0]}, v{regs[1]}, v{regs[2]}", f"v_max_u32 v{vU}, v{vU}, v{regs[3]}"]
        else:
            C = [f"v_max_u32 v{vU}, v{regs[0]}, v{regs[1]}"]
        def reload(g=g):
            for k in range(g, min(g + 4, 8)):
                for i in range(*GRP[k]): g_load(i, "x")()
        checked(C + [f"v_cmp_eq_u32 vcc, -1, v{vU}"], reload, "L_g")
        if g == 0: stamp(9)
        for i in range(s, e):
            if i in bars:
                a.wait(vm=bars[i], lg="all" if bars[i] is None else None)
                a("s_barrier")
            nx = i + 1
            if 11 <= nx < 30 and nx != 22:
                for x in w_frag(vLW[nx & 1], nx, f"w{nx}"): x()
            a.wait(lg=f"w{i}")
            wreg = vWR + 8 * i if i < 11 else vLW[i & 1]
            for b in range(2):
                a(f"{MF} {v(vACC+16*b,16)}, {v(wreg+4*b,4)}, {v(fbuf(i),4)}, {'0' if i == 0 else v(vACC+16*b,16)}")
            if g + 4 < 8:
                s2, e2 = GRP[g + 4]
                k = s2 + i - s - 1
                if i > s and k < e2: g_load(k)()
                if i == e - 1 and k + 1 < e2: pend = k + 1
                else: pend = None
                if pend is not None: g_load(pend)()
            for x in side.get(i, []): emit(x)
    stamp(11)
    for r in (1, 2, 3):
        for q in range(2):
            a(f"ds_write_b128 v{vRA+r-1}, {v(vACC+8*r+4*q,4)} offset:{q*1024}")
    for j in range(4):
        a(f"v_lshlrev_b32 v{vU+2*j}, 16, v{vRES+j}")
        a(f"v_and_b32 v{vU+2*j+1}, s{sMASK}, v{vRES+j}")
    a("""s_waitcnt lgkmcnt(0)
    s_barrier""")
    for k in range(6):
        a(f"ds_read_b128 {v(64+4*k,4)}, v{vRA+3} offset:{RED+k*1024}")
    a(f"""s_or_b32 s{sT0}, s2, s{sW}
    s_cmp_eq_u32 s{sT0}, 0
    s_cbranch_scc0 L_noep{T}""")
    checked([f"v_xor_b32 v{vEC+i}, s{sTAG}, v{vEC+i}" for i in range(4)] +
            [f"v_or3_b32 v{vEC}, v{vEC}, v{vEC+1}, v{vEC+2}", f"v_or_b32 v{vEC}, v{vEC}, v{vEC+3}", f"v_cmp_ne_u32 vcc, 0, v{vEC}"],
            ep_loads, "L_ep")
    a(f"""v_mov_b32 v{vEC}, s{sTAG}
    s_mov_b64 exec, 1
    buffer_store_dword v{vEC}, v{vL}, {srd(sWS)}, 0 offen sc1
    s_mov_b64 exec, -1""")
    a.label(f"L_noep{T}")
    for k in range(3):
        a(f"s_waitcnt lgkmcnt({4-2*k})")
        for j in range(0, 8, 2): a(f"v_pk_add_f32 {P2(vACC+j)}, {P2(vACC+j)}, {P2(64+8*k+j)}")
    for j in range(4): a(f"v_permlane32_swap_b32 v{vACC+j}, v{vACC+4+j}")
    for j in range(0, 8, 2): a(f"v_pk_fma_f32 {P2(vACC+j)}, {P2(vACC+j)}, {P2(vRS2)}, {P2(vU+j)} op_sel_hi:[1,0,1]")
    for j in range(4): a(f"v_cvt_pk_bf16_f32 v{vACC+8+j}, v{vACC+2*j}, v{vACC+2*j+1}")
    a(f"buffer_store_dwordx4 {v(vACC+8,4)}, v{vOO}, {srd(sOUT)}, s{sOB} offen {OPT.get('outsc','').replace('+',' ')}")
    stamp(12)
    a("s_branch L_fin")
def ep_loads():
    a(f"""v_lshrrev_b32 v{vEC}, 4, v{vL}
    v_lshlrev_b32 v{vEC}, 11, v{vEC}
    v_and_b32 v{vEC+1}, 15, v{vL}
    v_lshl_add_u32 v{vOO+1}, v{vEC+1}, 6, v{vEC}""")
    for i in range(4):
        a(f"s_mov_b32 s{sT0}, {REC2 + i*8192}")
        a(f"buffer_load_dword v{vEC+i}, v{vOO+1}, {srd(sWS)}, s{sT0} offen offset:12 sc1")
def ep_early(T):
    def p():
        a(f"""s_or_b32 s{sT0}, s2, s{sW}
        s_cmp_eq_u32 s{sT0}, 0
        s_cbranch_scc0 L_noel{T}""")
        ep_loads()
        a.label(f"L_noel{T}")
    return p
def res_load():
    a.vmem(f"buffer_load_dwordx4 {v(vRES,4)}, v{vOO}, {srd(sX)}, s{sOB} offen", "res")

st1 = a.save()
a(f"""s_cmp_eq_u32 s{sTYPE}, 0
s_cbranch_scc0 L_typeB""")
PERA = opt("pera", 9)
kb = vT
FA = p2_addrs() + rec2_addr() + [f"v_mov_b32 v{vU}, 0x3f803f80", f"v_mov_b32 v{vU+1}, 0x3f803f80",
     dsw(f"ds_write_b64 v{vVP}, {v(vU,2)} offset:128")]
FA += [f"v_cvt_pk_bf16_f32 v{kb+j}, v{vA0+2*j}, v{vA0+2*j+1}" for j in range(8)]
FA += [f"{MF} {v(vA0,16)}, {v(vPH,4)}, {v(kb,4)}, 0"]
FA += [f"v_mul_f32 v{vA1+i}, v{vA1+i}, v{vRSTD}" for i in range(16)]
FA += [f"v_cvt_pk_bf16_f32 v{vU+i}, v{vA1+2*i}, v{vA1+2*i+1}" for i in range(4)]
FA += [dsw(f"ds_write_b128 v{vVW}, {v(vU,4)}")]
FA += [f"v_cvt_pk_bf16_f32 v{kb+i}, v{vA1+8+2*i}, v{vA1+9+2*i}" for i in range(4)]
FA += [f"{MF} {v(vA1,16)}, {v(vPH+4,4)}, {v(kb+4,4)}, 0"]
FA += [dsw(f"ds_write_b128 v{vVW}, {v(kb,4)} offset:32")]
for hh, P in ((0, vA0), (1, vA1)):
    FA += softmax(P, P, False, vT + 4)
    FA += [dsw(f"ds_write_b128 v{vPW0}, {v(P,4)} offset:{hh*8192}"), dsw(f"ds_write_b128 v{vPW1}, {v(P+4,4)} offset:{hh*8192}")]
def kv_block():
    a.wait(lg="all")
    a("s_barrier")
    stamp(4)
    st = a.save()
    a(f"""s_cmp_eq_u32 s{sH}, 0
    s_cbranch_scc0 L_kvE""")
    KB = [vA1, vA1 + 8, vT]
    def kv_reads(t):
        b = KB[t % 3]
        a.ds(f"ds_read_b64_tr_b16 {v(b,2)}, v{vKA0} offset:{t*1024}", f"kv{t}")
        a.ds(f"ds_read_b64_tr_b16 {v(b+2,2)}, v{vKA1} offset:{t*1024+256}", f"kv{t}")
        a.ds(f"ds_read_b64_tr_b16 {v(b+4,2)}, v{vKB} offset:{t*2304}", f"kv{t}")
        a.ds(f"ds_read_b64_tr_b16 {v(b+6,2)}, v{vKB} offset:{t*2304+576}", f"kv{t}")
    for t in range(3): kv_reads(t)
    for t in range(8):
        a.wait(lg=f"kv{t}")
        b = KB[t % 3]
        a(f"{MF} {v(vA0,16)}, {v(b,4)}, {v(b+4,4)}, {'0' if t == 0 else v(vA0,16)}")
        if t >= 1 and t + 2 < 8: kv_reads(t + 2)
    for i in range(8): a(f"v_cvt_pk_bf16_f32 v{vA1+i}, v{vA0+2*i}, v{vA0+2*i+1}")
    for i in range(4): a(f"v_permlane16_swap_b32 v{vA1+i}, v{vA1+4+i}")
    a(f"""buffer_store_dwordx4 {v(vA1,4)}, v{vL16}, {srd(sWS)}, s{sSB1} offen sc1
    s_mov_b32 exec_lo, 0x00010001
    s_mov_b32 exec_hi, 0x00010001
    buffer_store_dwordx4 {v(vA1+4,4)}, v{vL}, {srd(sWS)}, s{sSB1} offen offset:1024 sc1
    s_mov_b64 exec, -1""")
    a.label("L_kvE")
    a.restore(st)
    stamp(5)
pass2(Filler(FA), PERA, [w_dma(i, "r1") for i in range(11, 15)] + [fn(lambda: rec2_load(False), 4)], kv_block)
a.wait(lg="all")
a("s_barrier")
stamp(6)
a.ds(f"ds_read_b128 {v(vU,4)}, v{vCAR}", "cw")
pre = [w_dma(i, "r0") for i in range(4, 7)] + corr_c() + p2_addrs2() + [w_dma(i, "r0") for i in range(7, 11)]
for x in pre: emit(x)
rec2_check(False)
sideA = [w_dma(i, "r1") for i in range(15, 19)] + [g_load(i) for i in range(8)]
stA = a.save()
a(f"""s_cmp_eq_u32 s{sSKIP}, 0
s_cbranch_scc0 L_skipc""")
for x in merge(mish_store(vA2, True, sSB0), sideA): emit(x)
a("s_branch L_skipcE")
a.label("L_skipc")
a.restore(stA)
for x in sideA: emit(x)
a.label("L_skipcE")
stamp(7)
a.wait(vm="r0")
a("s_barrier")
for i in range(11):
    for x in w_frag(vWR + 8 * i, i, f"w{i}"): x()
stamp(8)
side = {i: [w_dma(19 + i - 4, "r2")] for i in range(4, 15)}
side[1] = [ep_early("A")]; side[2] = [res_load]
phase2("A", 2, side, {4: None, 18: "r2"})

a.label("L_typeB")
a.restore(st1)
PERB = opt("perb", 6)
FBq = merge(p2_addrs() + rec2_addr() + mish_store(vA0, False, sSB0), [w_dma(i, "r0") for i in range(4, 11)], 0, 60)
pass2(Filler(FBq), PERB, [w_dma(i, "r1") for i in range(11, 15)] + [fn(lambda: rec2_load(True), 4)])
stamp(4); stamp(5)
a.wait(vm="r0", lg="all")
a("s_barrier")
stamp(6)
a.ds(f"ds_read_b128 {v(vU,4)}, v{vCAR}", "cw")
for x in p2_addrs2() + [w_dma(15, "r1")] + corr_c(): emit(x)
side1 = sum([w_frag(vWR + 8 * i, i, f"w{i}") for i in range(11)], [])
for x in merge(merge(mish_store(vA1, True, sSB1), side1, 0, 60), [w_dma(i, "r1") for i in range(16, 19)]): emit(x)
rec2_check(True)
for j in range(8): a(f"v_cvt_pk_bf16_f32 v{vT+j}, v{vA2+2*j}, v{vA2+2*j+1}")
a(f"{MF} {v(vA2,16)}, {v(vPH,4)}, {v(vT,4)}, 0")
a(f"{MF} {v(vA1,16)}, {v(vPH+4,4)}, {v(vT+4,4)}, 0")
a.wait(lg="all")
a("s_barrier")
stamp(7)
vTL, vZL = 216, 248
vGA, vGZ = vKA0, vKA1
vS0, vS1 = vPH, vPH + 4
def t_load(i, tag=None):
    def p():
        a(f"s_add_u32 s{sT0}, s{sKB}, {(i>>1)*4*1152}")
        a.vmem(f"buffer_load_dwordx4 {v(vTL+4*i,4)}, v{vGA}, {srd(sWS)}, s{sT0} offen offset:{(i&1)*256} sc1", tag or "t")
    return fn(p, 4)
def z_load(tag=None):
    return fn(lambda: a.vmem(f"buffer_load_dwordx4 {v(vZL,4)}, v{vGZ}, {srd(sWS)}, s{sKB} offen offset:1024 sc1", tag or "t"), 4)
a(f"""v_lshrrev_b32 v{vU}, 4, v{vL}
v_mul_u32_u24 v{vU}, 1152, v{vU}
v_and_b32 v{vU+1}, 15, v{vL}
v_lshl_add_u32 v{vGA}, v{vU+1}, 4, v{vU}
s_lshl_b32 s{sT1}, s{sH}, 9
v_add_u32 v{vGA}, s{sT1}, v{vGA}
v_bfe_u32 v{vU+2}, v{vL}, 1, 2
v_mul_u32_u24 v{vU+2}, {4*1152}, v{vU+2}
v_and_b32 v{vU+3}, 1, v{vL}
v_lshlrev_b32 v{vU+3}, 4, v{vU+3}
v_add3_u32 v{vGZ}, v{vU}, v{vU+2}, v{vU+3}
s_lshl_b32 s{sT1}, s{sH}, 5
v_add_u32 v{vGZ}, s{sT1}, v{vGZ}""")
vPQ = [vA2, vA1]
NR2 = opt("nr2", 4)
side2 = ([w_dma(19 + i, "r2") for i in range(NR2)] + [z_load()] + [t_load(i) for i in range(8)]
         + [w_dma(19 + i, "r2") for i in range(NR2, 11)] + [g_load(i) for i in range(8)])
SELC = lines(f"""v_and_b32 v{vU}, 1, v{vL}
v_mov_b32 v{vU+2}, 0x3f80
v_lshlrev_b32 v{vU}, 4, v{vU}
v_lshlrev_b32 v{vU+2}, v{vU}, v{vU+2}
v_lshrrev_b32 v{vU+1}, 1, v{vU+1}""")
for r in range(8):
    SELC += [f"v_cmp_eq_u32 vcc, {r}, v{vU+1}", f"v_cndmask_b32 v{vS0+r}, 0, v{vU+2}, vcc"]
SELC += lines(f"""s_mul_i32 s{sT1}, s{sSIG}, 1088
s_mul_i32 s{sT2}, s{sH}, 544
s_add_u32 s{sT1}, s{sT1}, s{sT2}
s_add_u32 s{sT1}, s{sT1}, {KVL}
v_bfe_u32 v{vU}, v{vL}, 4, 1
v_lshlrev_b32 v{vU}, 3, v{vU}
v_add_u32 v{vU}, s{sT1}, v{vU}
v_lshrrev_b32 v{vU+1}, 5, v{vL}
v_mul_u32_u24 v{vU+2}, 272, v{vU+1}
v_and_b32 v{vU+3}, 15, v{vL}
v_lshlrev_b32 v{vU+3}, 4, v{vU+3}
v_add3_u32 v{vU+4}, v{vU}, v{vU+2}, v{vU+3}
v_and_b32 v{vU+3}, 1, v{vL}
v_mul_u32_u24 v{vU+3}, 272, v{vU+3}
v_add_u32 v{vU+5}, v{vU}, v{vU+3}
v_and_b32 v{vU}, 31, v{vL}
v_min_u32 v{vU}, 16, v{vU}
v_lshlrev_b32 v{vU}, 4, v{vU}
v_mul_u32_u24 v{vU+1}, 544, v{vU+1}
s_mul_i32 s{sT1}, s{sH}, 2176
s_add_u32 s{sT1}, s{sT1}, {KVL}
v_add3_u32 v{vU+6}, v{vU}, v{vU+1}, s{sT1}""")
for x in merge(softmax(vA2, vA2, True, vT) + softmax(vA1, vA1, True, vT) + SELC, side2): emit(x)
a.wait(vm="t")
def t_reload():
    z_load("x")()
    for i in range(8): t_load(i, "x")()
checked([f"v_max3_u32 v{vT}, v{vTL}, v{vTL+4}, v{vTL+8}", f"v_max3_u32 v{vT+1}, v{vTL+12}, v{vTL+16}, v{vTL+20}",
         f"v_max3_u32 v{vT}, v{vT}, v{vTL+24}, v{vTL+28}", f"v_max3_u32 v{vT}, v{vT}, v{vT+1}, v{vZL}",
         f"v_cmp_eq_u32 vcc, -1, v{vT}"], t_reload, "L_t")
stamp(8)
vD, vDZ = vT, vT + 4
a(f"{MF16} {v(vDZ,4)}, {v(vS0,4)}, {v(vZL,4)}, 0")
for i in range(8):
    a(f"{MF16} {v(vD,4)}, {v(vS0+4*(i&1),4)}, {v(vTL+4*i,4)}, {'0' if i == 0 else v(vD,4)}")
for sh in (2, 4):
    for j in range(4): a(f"v_add_f32_dpp v{vDZ+j}, v{vDZ+j}, v{vDZ+j} row_ror:{sh} row_mask:0xf bank_mask:0xf")
a(f"""v_cvt_pk_bf16_f32 v{vDZ}, v{vDZ}, v{vDZ+1}
v_cvt_pk_bf16_f32 v{vDZ+1}, v{vDZ+2}, v{vDZ+3}
s_mov_b64 exec, 0x30003
ds_write_b64 v{vU+5}, {v(vDZ,2)} offset:256
s_mov_b64 exec, -1
v_cvt_pk_bf16_f32 v{vD}, v{vD}, v{vD+1}
v_cvt_pk_bf16_f32 v{vD+1}, v{vD+2}, v{vD+3}
ds_write_b64 v{vU+4}, {v(vD,2)}
s_waitcnt lgkmcnt(0)
s_barrier""")
vKF2 = vT
for hh in range(2):
    for j in range(2):
        a(f"ds_read_b128 {v(vKF2+8*hh+4*j,4)}, v{vU+6} offset:{hh*1088+j*272}")
for hh, D in ((0, vTL), (1, vTL + 16)):
    a(f"s_waitcnt lgkmcnt({2-2*hh})")
    a(f"{MF} {v(D,16)}, {v(vKF2+8*hh,4)}, {v(vPQ[hh],4)}, 0")
    a(f"{MF} {v(D,16)}, {v(vKF2+8*hh+4,4)}, {v(vPQ[hh]+4,4)}, {v(D,16)}")
for hh, D in ((0, vTL), (1, vTL + 16)):
    a(f"v_add_f32 v{D+8}, 0x358637bd, v{D+8}")
    a(f"v_rcp_f32 v{D+8}, v{D+8}")
    a(f"v_mul_f32 v{D+8}, v{D+8}, v{vSD}")
    for i in range(0, 8, 2): a(f"v_pk_mul_f32 {P2(D+i)}, {P2(D+i)}, {P2(D+8)} op_sel_hi:[1,0]")
    for i in range(4): a(f"v_cvt_pk_bf16_f32 v{vT+4*hh+i}, v{D+2*i}, v{D+2*i+1}")
    frag_store(vT + 4 * hh, sSB2, hh)()
phase2("B", 2, {1: [ep_early("B")], 2: [res_load]}, {8: "r2"})

for blk in retries: blk()
a.label("L_fin")
if STAMP >= 0:
    n = nst[0]
    a(f"""s_cmp_eq_u32 s{sW}, {STAMP}
    s_cbranch_scc0 L_end
    s_waitcnt lgkmcnt(0)
    s_sub_u32 s{sT0}, {SPIN}, s{sCNT}
    s_mul_i32 s{sT0}, s{sT0}, 100
    s_add_u32 s{sST0+2}, s{sST0}, s{sT0}
    s_addc_u32 s{sST0+3}, s{sST0+1}, 0
    s_mul_i32 s{sT0}, s2, {n*8}
    s_add_u32 s{sT0}, s{sT0}, {STAMP_OFF}
    v_mov_b32 v{t1}, 0
    s_mov_b64 exec, 1""")
    for i in range(n):
        a(f"v_mov_b32 v{64+2*i}, s{sST0+2*i}")
        a(f"v_mov_b32 v{65+2*i}, s{sST0+2*i+1}")
        a(f"buffer_store_dwordx2 {v(64+2*i,2)}, v{t1}, {srd(sWS)}, s{sT0} offen offset:{i*8}")
a.label("L_end")
a.pad()
open(out_path, "w").write(header(256, 512, LDS_SIZE) + a.text() + footer(vgpr=256))
print("instructions:", sum(1 for x in a.L if x.states), "stamps", nst[0])
```

```python
import sys
from asmdsl import Asm
from gen_common import header, footer

OPT = dict(a.split("=") for a in sys.argv[2:])
def opt(k, d): return type(d)(OPT.get(k, d))
STAMP = opt("stamp", -1)
CYC = opt("cyc", 0)
out_path = sys.argv[1]
X_NODMA, X_NOREAD, X_NOMFMA, X_STOP, X_NOCLR = opt("nodma", 0), opt("noread", 0), opt("nomfma", 0), opt("stop", 0), opt("noclr", 0)

SLOT = 33792
LREG = 0
UREG = 2 * SLOT
TOP = UREG + 11 * 8192
CWC, CWAB, WPHI, KVL = TOP, TOP + 1024, TOP + 3072, TOP + 1024
PHI = UREG + 32768
VIMG = PHI + 32768
RED = 0
LDS_SIZE = 163840
REC1 = 0x1000
REC2 = REC1 + 2048 * 16
KVD = 0x20000
ACT = 0x140000
STAMP_OFF = 128 << 20
SPIN = 200000

sW, sSIG, sH, sTYPE, sG = 3, 4, 5, 6, 7
sRB = 30; sT0 = 31
sX, sWD, sWE, sW2, sWO, sOUT, sWS = 32, 36, 40, 44, 48, 52, 56
sSTR, sXO, sWOF, sM0X, sM0W, sSTR64 = 60, 61, 62, 63, 64, 65
sTAG, sMASK, sT1, sT2, sT3, sSTART, sSKIP, sRB2, sCB, sCNT = 66, 67, 68, 69, 70, 71, 72, 73, 74, 75
sST0 = 76
sSB0, sSB1, sSB2, sREC = 8, 9, 10, 11
sHALF, sISQ = 16, 18
sLOm, sSTE, sM0R = 24, 26, 27
sWB = [28, 29, 12]
sAB = [13, 14, 15]
sOB, sKB = 20, 21
sLO = f"s[{sLOm}:{sLOm+1}]"
def srd(n): return f"s[{n}:{n+3}]"
def sp(n): return f"s[{n}:{n+1}]"

vL = 0
vXO0, vXO1, vWO, vWO2, vL16, vBA, vEP = 1, 2, 3, 4, 5, 6, 9
vW2O, vKA0, vKA1, vKB = 1, 2, 3, 9
vBC, vSD, vC1, vRSTD = 10, 11, 12, 13
vCAW, vCAR, vP2A, vVW, vVP, vPW0, vPW1 = 14, 15, 16, 20, 21, 22, 23
vT = 24
vPH = 32
vXA, vWA, vSEL, vCS = 40, 44, 48, 52
vU = 40
vWF = 64
vA2, vA0, vA1 = 80, 96, 112
vX = 128
def v(n, k=1): return f"v{n}" if k == 1 else f"v[{n}:{n+k-1}]"

a = Asm()
nst = [0]
FINE = opt("fine", 0)
def stamp(i, fine=0):
    if FINE != fine and i > 2: return
    if STAMP >= 0:
        a(f"{'s_memtime' if CYC else 's_memrealtime'} s[{sST0+2*i}:{sST0+2*i+1}]")
        nst[0] = max(nst[0], i + 1)

def mksrd(d, b, size):
    a(f"""s_mov_b32 s{d}, s{b}
    s_and_b32 s{d+1}, s{b+1}, 0xffff
    s_mov_b32 s{d+2}, {size}
    s_mov_b32 s{d+3}, 0x00020000""")

MF = "v_mfma_f32_32x32x16_bf16"
MF16 = "v_mfma_f32_16x16x32_bf16"
MF32 = "v_mfma_f32_32x32x2_f32"
LOG2E = "0x3fb8aa3b"

def lines(txt): return [l.strip() for l in txt.strip().split("\n") if l.strip()]
def cost(x):
    if callable(x): return getattr(x, "cost", 1)
    return 2 if ("v_exp" in x or "v_rcp" in x) else (0 if x.startswith("s_") else 1)
def emit(x):
    if callable(x): x()
    else: a(x)
def fn(f, c=1):
    f.cost = c; return f
class Filler:
    def __init__(self, items): self.q = list(items)
    def take(self, budget):
        while self.q and budget > 0:
            x = self.q.pop(0); budget -= cost(x); emit(x)
        while self.q and cost(self.q[0]) == 0: emit(self.q.pop(0))
    def flush(self): self.take(1 << 30)
def merge(main, side, start=0, end=None):
    end = len(main) if end is None else end
    tot = sum(cost(x) for x in main[start:end]); out = list(main[:start]); acc = 0; k = 0
    for x in main[start:end]:
        while k < len(side) and acc >= k * tot / len(side): out.append(side[k]); k += 1
        out.append(x); acc += cost(x)
    return out + side[k:] + list(main[end:])

retries = []
def checked(cmp_lines, reload, name):
    lab = a.newlabel(name)
    a.label(lab + "_c")
    for l in cmp_lines: a(l)
    a(f"s_cbranch_vccnz {lab}_r")
    a.label(lab + "_k")
    def blk():
        a.label(lab + "_r")
        a(f"""s_cmp_eq_u32 s{sCNT}, 0
        s_cbranch_scc1 {lab}_k
        s_sub_u32 s{sCNT}, s{sCNT}, 1""")
        reload()
        a(f"""s_waitcnt vmcnt(0)
        s_branch {lab}_c""")
    retries.append(blk)

a(f"""s_cmp_ge_u32 s2, 256
s_cbranch_scc1 L_end""")
stamp(0)
PF = opt("pf", 0)
pfh = f"""s_getpc_b64 s[{sOUT}:{sOUT+1}]
L_pc:
s_and_b32 s{sOUT+1}, s{sOUT+1}, 0xffff
s_mov_b32 s{sOUT+2}, L_end-L_pc
s_mov_b32 s{sOUT+3}, 0x00020000
buffer_load_dword v{vT+7}, v2, {srd(sOUT)}, 0 offen""" if PF else ""
a(f"""s_load_dwordx16 s[8:23], s[0:1], 0
s_load_dwordx4 s[24:27], s[0:1], 64
s_load_dwordx2 s[28:29], s[0:1], 80
v_lshrrev_b32 v1, 6, v0
v_lshlrev_b32 v2, 6, v0
v_and_b32 v{vL}, 63, v0
v_readfirstlane_b32 s{sW}, v1
{pfh}
s_and_b32 s{sT0}, s2, 7                  ; xcd
s_lshr_b32 s{sT1}, s2, 3                 ; idx
s_and_b32 s{sRB}, s{sT0}, 1
s_lshl_b32 s{sRB}, s{sRB}, 3
s_and_b32 s{sT2}, s{sT1}, 7
s_add_u32 s{sRB}, s{sRB}, s{sT2}         ; rb
s_lshr_b32 s{sT2}, s{sT1}, 3             ; j
s_lshr_b32 s{sTYPE}, s{sT2}, 1
s_and_b32 s{sT2}, s{sT2}, 1
s_and_b32 s{sG}, s{sT0}, 6
s_add_u32 s{sG}, s{sG}, s{sT2}           ; g
s_lshl_b32 s{sRB2}, s{sT0}, 2
s_and_b32 s{sT2}, s{sT1}, 3
s_add_u32 s{sRB2}, s{sRB2}, s{sT2}       ; rb2
s_lshr_b32 s{sCB}, s{sT1}, 2             ; cb
s_and_b32 s{sSIG}, s{sW}, 3
s_lshr_b32 s{sH}, s{sW}, 2
s_mul_i32 s{sSTART}, s{sG}, 11
s_add_u32 s{sSTART}, s{sSTART}, 1
s_lshr_b32 s{sSTART}, s{sSTART}, 1
s_min_u32 s{sSTART}, s{sSTART}, 38
s_mov_b32 s{sMASK}, 0xffff0000
s_mov_b32 s{sCNT}, {SPIN}
s_lshl_b32 s{sT2}, s{sG}, 7
s_lshl_b32 s{sT3}, s{sSTART}, 6
s_add_u32 s{sT0}, s{sT2}, 1024
s_add_u32 s{sXO}, s{sT3}, 256
s_cmp_eq_u32 s{sTYPE}, 0
s_mov_b32 s{sSTR}, 2752
s_cselect_b32 s{sSTR}, 3072, s{sSTR}
s_mov_b32 s{sT1}, 128
s_cselect_b32 s{sT1}, 1024, s{sT1}
s_cselect_b32 s{sT3}, s{sT0}, s{sT3}
s_cselect_b32 s{sT2}, s{sXO}, s{sT2}
s_sub_u32 s{sSKIP}, {2752+3072}, s{sSTR}
s_lshl_b32 s{sSTR64}, s{sSTR}, 6
""")
t0, t1, t2, t3, t4 = vT, vT + 1, vT + 2, vT + 3, vT + 4
a(f"""v_lshrrev_b32 v{t0}, 3, v{vL}          ; l>>3
v_and_b32 v{t1}, 7, v{vL}                ; l&7
v_lshrrev_b32 v{t2}, 4, v{vL}            ; l>>4
v_xor_b32 v{t3}, v{t1}, v{t2}
v_lshlrev_b32 v{t3}, 4, v{t3}
v_lshl_add_u32 v{vXO0}, v{t0}, 10, v{t3}
v_xor_b32 v{vXO1}, 64, v{vXO0}
v_add_u32 v{vXO1}, 8192, v{vXO1}
v_lshlrev_b32 v{t3}, 2, v{t2}            ; 4*(l>>4)
v_mul_lo_u32 v{vWO}, v{t3}, s{sSTR}
v_and_b32 v{t3}, 1, v{t0}                ; (l>>3)&1
v_mul_lo_u32 v{t3}, v{t3}, s{sT1}
v_lshl_add_u32 v{t3}, v{t1}, 4, v{t3}
v_add3_u32 v{vWO}, v{vWO}, v{t3}, s{sT3}
v_and_b32 v{t3}, 1, v{t2}
v_lshlrev_b32 v{t3}, 2, v{t3}
v_xor_b32 v{t3}, v{t3}, v{t1}
v_lshlrev_b32 v{t3}, 4, v{t3}
v_mul_lo_u32 v{vWO2}, v{t0}, s{sSKIP}
v_add3_u32 v{vWO2}, v{vWO2}, v{t3}, s{sT2}
v_lshlrev_b32 v{vL16}, 4, v{vL}
v_mov_b32 v{t4}, 0
s_lshl_b32 s{sXO}, s{sRB}, 17
s_lshr_b32 s{sT3}, s{sSIG}, 1
s_lshl_b32 s{sT3}, s{sT3}, 6
s_lshl_b32 s{sT2}, s{sTYPE}, 5
s_add_u32 s{sT3}, s{sT3}, s{sT2}
s_lshl_b32 s{sT2}, s{sG}, 2
s_add_u32 s{sT3}, s{sT3}, s{sT2}
s_and_b32 s{sT2}, s{sSIG}, 1
s_lshl_b32 s{sT2}, s{sT2}, 1
s_add_u32 s{sT3}, s{sT3}, s{sT2}
s_add_u32 s{sT3}, s{sT3}, s{sH}
s_lshl_b32 s{sT3}, s{sT3}, 10
s_add_u32 s{sT3}, s{sT3}, s{sXO}
s_lshl_b32 s{sT0}, s{sW}, 14
s_add_u32 s{sXO}, s{sXO}, s{sT0}         ; x soffset
s_lshr_b32 s{sT0}, s{sW}, 1              ; q4
s_and_b32 s{sT1}, s{sW}, 1
s_lshl_b32 s{sT1}, s{sT1}, 1             ; r0
s_lshl_b32 s{sT2}, s{sT0}, 4
s_add_u32 s{sT2}, s{sT2}, s{sT1}
s_mul_i32 s{sWOF}, s{sT2}, s{sSTR}       ; W soffset
s_lshl_b32 s{sM0X}, s{sW}, 11
s_mul_i32 s{sM0W}, s{sT0}, 4352
s_mul_i32 s{sT1}, s{sT1}, 1088
s_add_u32 s{sM0W}, s{sM0W}, s{sT1}
s_add_u32 s{sM0W}, s{sM0W}, 16384
s_waitcnt lgkmcnt(0)
""")
mksrd(sX, 8, 2048 * 1024)
mksrd(sWS, 28, 256 << 20)
vXR = vA0
a.vmem(f"buffer_load_dwordx4 {v(vXR,4)}, v{vL16}, {srd(sX)}, s{sT3} offen", "xr")
a.vmem(f"buffer_load_dword v{vEP}, v{t4}, {srd(sWS)}, 0 offen sc1", "xr")
a(f"""s_cmp_eq_u32 s{sTYPE}, 0
s_cselect_b32 s{sWD}, s10, s18
s_cselect_b32 s{sWD+1}, s11, s19
s_lshl_b32 s{sWD+2}, s{sSTR}, 9
s_and_b32 s{sWD+1}, s{sWD+1}, 0xffff
s_mov_b32 s{sWD+3}, 0x00020000
""")

def dma_pieces(c):
    slot = (c & 3) * SLOT
    P = []
    if c < 8:
        def p0():
            a(f"s_add_u32 m0, s{sM0X}, {slot}")
            a.vmem(f"buffer_load_dwordx4 v{vXO0}, {srd(sX)}, s{sXO} offen lds", f"c{c}")
        def p1():
            a(f"s_add_u32 m0, s{sM0X}, {slot+1024}")
            a.vmem(f"buffer_load_dwordx4 v{vXO1}, {srd(sX)}, s{sXO} offen lds", f"c{c}")
            a(f"s_add_u32 s{sXO}, s{sXO}, 128")
        def p2():
            a(f"s_add_u32 m0, s{sM0W}, {slot}")
            a.vmem(f"buffer_load_dwordx4 v{vWO}, {srd(sWD)}, s{sWOF} offen lds", f"c{c}")
            a(f"s_add_u32 s{sWOF}, s{sWOF}, s{sSTR}")
        def p3():
            a(f"s_add_u32 m0, s{sM0W}, {slot+1088}")
            a.vmem(f"buffer_load_dwordx4 v{vWO}, {srd(sWD)}, s{sWOF} offen lds", f"c{c}")
            a(f"s_add_u32 s{sWOF}, s{sWOF}, s{sSTR64}")
        P = [p0, p1, p2, p3]
    else:
        u = c - 8
        def mk(i):
            def p():
                if u == 0 and i == 0:
                    a(f"""s_lshl_b32 s{sT0}, s{sW}, 5
                    s_mul_i32 s{sWOF}, s{sT0}, s{sSTE}
                    s_lshl_b32 s{sM0X}, s{sW}, 12
                    s_lshl_b32 s{sM0W}, s{sSTE}, 3
                    s_mul_i32 s{sSTR64}, s{sSTE}, {256-24}""")
                a(f"s_add_u32 m0, s{sM0X}, {slot+i*1024}")
                a.vmem(f"buffer_load_dwordx4 v{vWO2}, {srd(sWE)}, s{sWOF} offen lds", f"c{c}")
                a(f"s_add_u32 s{sWOF}, s{sWOF}, s{sM0W if i < 3 else sSTR64}")
            return p
        P = [mk(i) for i in range(4)]
    return [fn(p, 4) for p in P]

a(f"s_sub_u32 s{sSTR64}, s{sSTR64}, s{sSTR}")
for c in range(2):
    for p in dma_pieces(c): p()
stamp(1)
a(f"""s_cmp_eq_u32 s{sTYPE}, 0
s_cselect_b32 s{sWE}, s18, s10
s_cselect_b32 s{sWE+1}, s19, s11
s_lshl_b32 s{sWE+2}, s{sSKIP}, 9
s_and_b32 s{sWE+1}, s{sWE+1}, 0xffff
s_mov_b32 s{sWE+3}, 0x00020000
""")
mksrd(sW2, 22, 1376 * 1024)
mksrd(sWO, 14, 512 * 1024)
mksrd(sOUT, 24, 2048 * 1024)
sPH, sB1 = 12, 20
a(f"""s_and_b32 s{sPH+1}, s{sPH+1}, 0xffff
s_mov_b32 s{sPH+2}, 16384
s_mov_b32 s{sPH+3}, 0x00020000
s_and_b32 s{sB1+1}, s{sB1+1}, 0xffff
s_mov_b32 s{sB1+2}, 2752
s_mov_b32 s{sB1+3}, 0x00020000
s_mov_b32 s{sSTE}, s{sSKIP}
s_lshr_b32 s{sREC}, s{sT3}, 6
s_and_b32 s{sT0}, s{sG}, 1
s_cmp_ge_u32 s{sG}, 6
s_cselect_b32 s{sT0}, 1, s{sT0}
s_and_b32 s{sSKIP}, s{sT0}, s{sH}
s_lshl_b32 s{sT0}, s{sRB}, 2
s_add_u32 s{sT0}, s{sT0}, s{sSIG}
s_mul_i32 s{sT0}, s{sT0}, 59
s_add_u32 s{sT1}, s{sT0}, s{sSTART}
s_add_u32 s{sT1}, s{sT1}, s{sH}
s_lshl_b32 s{sT1}, s{sT1}, 11
s_add_u32 s{sSB0}, s{sT1}, {ACT}         ; tile a
s_add_u32 s{sSB1}, s{sT1}, {ACT+4096}    ; tile b
s_add_u32 s{sT1}, s{sT1}, {ACT+8192}     ; tile c
s_lshl_b32 s{sT2}, s{sG}, 1
s_add_u32 s{sT0}, s{sT0}, s{sT2}
s_add_u32 s{sT0}, s{sT0}, s{sH}
s_lshl_b32 s{sT0}, s{sT0}, 11
s_add_u32 s{sSB2}, s{sT0}, {ACT+43*2048} ; o
s_lshl_b32 s{sT0}, s{sG}, 2
s_add_u32 s{sT0}, s{sT0}, s{sSIG}
s_lshl_b32 s{sT0}, s{sT0}, 4
s_add_u32 s{sT0}, s{sT0}, s{sRB}
s_mul_i32 s{sT0}, s{sT0}, 1152
s_add_u32 s{sT0}, s{sT0}, {KVD}
s_lshl_b32 s{sT2}, s2, 11
s_lshl_b32 s{sT3}, s{sW}, 4
s_add_u32 s{sT2}, s{sT2}, s{sT3}
s_add_u32 s{sT2}, s{sT2}, {ACT + 64*118*1024}
v_mov_b32 v{t0}, -1
v_mov_b32 v{t1}, -1
v_mov_b32 v{t2}, -1
v_mov_b32 v{t3}, -1
s_cmp_eq_u32 s{sTYPE}, 0
s_cbranch_scc0 L_clrB
s_cmp_eq_u32 s{sSKIP}, 0
s_cselect_b32 s{sSB0}, s{sT1}, s{sT2}
s_cselect_b64 exec, -1, 1
buffer_store_dwordx4 {v(t0,4)}, v{vL16}, {srd(sWS)}, s{sSB0} offen sc1
buffer_store_dwordx4 {v(t0,4)}, v{vL16}, {srd(sWS)}, s{sSB0} offen offset:1024 sc1
s_cmp_eq_u32 s{sH}, 0
s_cselect_b32 s{sSB1}, s{sT0}, s{sT2}
s_cselect_b64 exec, -1, 1
buffer_store_dwordx4 {v(t0,4)}, v{vL16}, {srd(sWS)}, s{sSB1} offen sc1
s_cselect_b64 exec, 15, 1
buffer_store_dwordx4 {v(t0,4)}, v{vL16}, {srd(sWS)}, s{sSB1} offen offset:1024 sc1
s_mov_b64 exec, 1
buffer_store_dwordx4 {v(t0,4)}, v{vL16}, {srd(sWS)}, s{sT2} offen sc1
buffer_store_dwordx4 {v(t0,4)}, v{vL16}, {srd(sWS)}, s{sT2} offen offset:1024 sc1
s_mov_b64 exec, -1
s_branch L_clrE
L_clrB:""")
for sb in (sSB0, sSB1, sSB2):
    a.vmem(f"buffer_store_dwordx4 {v(t0,4)}, v{vL16}, {srd(sWS)}, s{sb} offen sc1", "clr")
    a.vmem(f"buffer_store_dwordx4 {v(t0,4)}, v{vL16}, {srd(sWS)}, s{sb} offen offset:1024 sc1", "clr")
a.label("L_clrE")
if X_NOCLR:
    a.vm = [t for t in a.vm if t != "clr"]
    a.L = [x for x in a.L if not x.op.startswith("buffer_store")]

u0, u1, u2, u3 = vA1, vA1 + 1, vA1 + 2, vA1 + 3
a(f"""s_xor_b32 s{sT0}, s{sSIG}, s{sH}        ; m
v_and_b32 v{u0}, 31, v{vL}
v_lshrrev_b32 v{u1}, 5, v{vL}             ; hi
v_bfe_u32 v{u2}, v{vL}, 1, 3              ; swz
v_xor_b32 v{u1}, v{u1}, v{u2}
v_lshlrev_b32 v{u1}, 4, v{u1}
v_lshl_add_u32 v{u1}, v{u0}, 7, v{u1}
s_lshl_b32 s{sT1}, s{sSIG}, 12
v_add_u32 v{u1}, s{sT1}, v{u1}            ; x base
v_bfe_u32 v{u2}, v{vL}, 2, 2              ; r
v_mul_u32_u24 v{u2}, 1088, v{u2}
v_lshrrev_b32 v{u3}, 5, v{vL}
v_lshl_add_u32 v{u2}, v{u3}, 9, v{u2}
v_bfe_u32 v{u3}, v{vL}, 4, 1
v_lshl_add_u32 v{u2}, v{u3}, 5, v{u2}
v_and_b32 v{u3}, 3, v{vL}
v_lshl_add_u32 v{u2}, v{u3}, 3, v{u2}
s_lshl_b32 s{sT1}, s{sH}, 6
s_add_u32 s{sT1}, s{sT1}, 16384
v_add_u32 v{u2}, s{sT1}, v{u2}            ; W base
""")
for ks in range(4):
    a(f"""s_xor_b32 s{sT1}, s{sT0}, {ks}
    s_lshl_b32 s{sT2}, s{sT1}, 5
    s_mul_i32 s{sT1}, s{sT1}, 4352
    v_xor_b32 v{vXA+ks}, s{sT2}, v{u1}
    v_add_u32 v{vWA+ks}, s{sT1}, v{u2}""")
a(f"""v_lshrrev_b32 v{u1}, 2, v{vL}
v_lshrrev_b32 v{u2}, 4, v{vL}
v_xor_b32 v{u1}, v{u1}, v{u2}
v_and_b32 v{u1}, 1, v{u1}
v_cmp_eq_u32 vcc, 0, v{u1}
v_mov_b32 v{u2}, 0x3f803f80
v_lshlrev_b32 v{u0}, 1, v{u0}
s_mov_b32 s{sHALF}, -0.5
s_mov_b32 s{sHALF+1}, -0.5
s_mov_b32 s{sISQ}, 0x3f3504f3
s_mov_b32 s{sISQ+1}, 0x3f3504f3
s_mov_b32 s{sLOm}, -1
s_mov_b32 s{sLOm+1}, 0""")
for i in range(4): a(f"v_cndmask_b32 v{vSEL+i}, 0, v{u2}, vcc")

e = vXR + 4
r0, r1 = vXR + 12, vXR + 13
vRC = vT
def allsum(r):
    L = [f"v_add_f32_dpp v{r}, v{r}, v{r} row_ror:{s} row_mask:0xf bank_mask:0xf" for s in (8, 4, 2, 1)]
    L += [f"v_mov_b32 v{r1}, v{r}", f"v_permlane16_swap_b32 v{r}, v{r1}", f"v_add_f32 v{r}, v{r}, v{r1}",
          f"v_mov_b32 v{r1}, v{r}", f"v_permlane32_swap_b32 v{r}, v{r1}", f"v_add_f32 v{r}, v{r}, v{r1}"]
    return L
S = []
for j in range(4):
    S += [f"v_lshlrev_b32 v{e+2*j}, 16, v{vXR+j}", f"v_and_b32 v{e+2*j+1}, s{sMASK}, v{vXR+j}"]
S += [f"v_add_f32 v{vXR+j}, v{e+2*j}, v{e+2*j+1}" for j in range(4)]
S += [f"v_add_f32 v{vXR}, v{vXR}, v{vXR+1}", f"v_add_f32 v{vXR+2}, v{vXR+2}, v{vXR+3}", f"v_add_f32 v{r0}, v{vXR}, v{vXR+2}"]
S += allsum(r0)
S += [f"v_mul_f32 v{vRC}, 0xbb000000, v{r0}"]
S += [f"v_add_f32 v{e+j}, v{e+j}, v{vRC}" for j in range(8)]
S += [f"v_mul_f32 v{vXR+j}, v{e+j}, v{e+j}" for j in range(4)]
S += [f"v_fmac_f32 v{vXR+j}, v{e+4+j}, v{e+4+j}" for j in range(4)]
S += [f"v_add_f32 v{vXR}, v{vXR}, v{vXR+1}", f"v_add_f32 v{vXR+2}, v{vXR+2}, v{vXR+3}", f"v_add_f32 v{r0}, v{vXR}, v{vXR+2}"]
S += allsum(r0)
S += [f"v_mov_b32 v{r1}, 0x3727c5ac", f"v_fmac_f32 v{r1}, 0x3b000000, v{r0}", f"v_rsq_f32 v{vRC+2}, v{r1}",
      f"v_add_u32 v{vRC+3}, 1, v{vEP}", f"v_mul_f32 v{vRC+1}, v{r1}, v{vRC+2}", f"v_readfirstlane_b32 s{sTAG}, v{vRC+3}"]
a.wait(vm="xr")
for x in merge(S, dma_pieces(2)): emit(x)
def rec_store(base):
    a(f"s_add_u32 s{sT0}, s{sREC}, {base}")
    a("s_mov_b64 exec, 1")
    a.vmem(f"buffer_store_dwordx4 {v(vRC,4)}, v{vL16}, {srd(sWS)}, s{sT0} offen sc1", "rec")
    a("s_mov_b64 exec, -1")
rec_store(REC1)
a(f"""s_and_b32 s{sT0}, s{sW}, 1
s_lshl_b32 s{sT0}, s{sT0}, 10
s_add_u32 m0, s{sT0}, {WPHI}
s_lshl_b32 s{sT1}, s{sG}, 11
s_add_u32 s{sT1}, s{sT1}, s{sT0}
s_add_u32 s{sT0}, s{sSTART}, s{sH}
s_lshl_b32 s{sT0}, s{sT0}, 6""")
a.vmem(f"buffer_load_dwordx4 v{vL16}, {srd(sPH)}, s{sT1} offen lds", "misc")
for i in range(3):
    a.vmem(f"buffer_load_ushort v{vBA+i}, v{u0}, {srd(sB1)}, s{sT0} offen offset:{128*i}", "misc")

def p1_reads(c, ks):
    po = (c & 1) * SLOT
    t = 4 * c + ks
    tg = f"k{t}"
    if (c & 1) == 0 and c > 0:
        op = "v_add_u32" if (c & 2) else "v_subrev_u32"
        a(f"{op} v{vXA+ks}, {2*SLOT}, v{vXA+ks}")
        a(f"{op} v{vWA+ks}, {2*SLOT}, v{vWA+ks}")
    if X_NOREAD & 1 == 0: a.ds(f"ds_read_b128 {v(vX+4*t,4)}, v{vXA+ks} offset:{po}", tg)
    for tile in range(2):
        if X_NOREAD & (2 << tile): continue
        b = vWF + 8 * ks + 4 * tile
        a.ds(f"ds_read_b64_tr_b16 {v(b,2)}, v{vWA+ks} offset:{po+tile*128}", tg)
        a.ds(f"ds_read_b64_tr_b16 {v(b+2,2)}, v{vWA+ks} offset:{po+tile*128+256}", tg)

def p1_mfma(c, ks):
    t = 4 * c + ks
    a.wait(lg=f"k{t}")
    if X_NOMFMA: return
    for tile, acc in ((0, vA0), (1, vA1)):
        b = vWF + 8 * ks + 4 * tile
        cc = "0" if t == 0 else v(acc, 16)
        a(f"{MF} {v(acc,16)}, {v(b,4)}, {v(vX+4*t,4)}, {cc}")
    if ks == 0:
        for tile in range(2):
            b = vWF + 8 * ks + 4 * tile
            cc = "0" if c == 0 else v(vCS + 4 * tile, 4)
            a(f"{MF16} {v(vCS+4*tile,4)}, {v(vSEL,4)}, {v(b,4)}, {cc}")

sKQ, sSTT = sSIG, sH
SEQ = ([(0, i) for i in range(4)] + [(1, i) for i in range(4)] + [(0, 4 + i) for i in range(4)] + [(1, 4 + i) for i in range(4)]
       + [(1, 8), (1, 9), (0, 8), (0, 9), (0, 10), (0, 11)] + [(2, i) for i in range(8)])
def wloc(i):
    if i < 11: return UREG + i * 8192
    if i < 19: return LREG + (i - 11) * 8192
    return UREG + (i - 19) * 8192
def w_dma(i, tag):
    def p():
        b, st = SEQ[i]
        a(f"s_add_u32 m0, s{sM0R}, {wloc(i)}")
        a(f"s_add_u32 s{sT0}, s{sWB[b]}, {st*16384}")
        a.vmem(f"buffer_load_dwordx4 v{vW2O}, {srd(sWO if b == 2 else sW2)}, s{sT0} offen lds", tag)
    return fn(p, 4)

w0, w1, w2, w3 = vT + 4, vT + 5, vT + 6, vT + 7
FILL = {c: [] for c in range(8)}
FILL[0] = lines(f"""
v_and_b32 v{w0}, 31, v{vL}
s_lshl_b32 s{sT1}, s{sH}, 9
s_add_u32 s{sT1}, s{sT1}, {CWC}
v_lshlrev_b32 v{vCAR}, 4, v{w0}
v_add_u32 v{vCAR}, s{sT1}, v{vCAR}
s_lshl_b32 s{sT1}, s{sSIG}, 2
v_add_u32 v{vCAW}, s{sT1}, v{vCAR}
v_bfe_u32 v{w0}, v{vL}, 2, 2
v_lshrrev_b32 v{w1}, 5, v{vL}
v_lshl_add_u32 v{w1}, v{w1}, 3, v{w0}
v_lshlrev_b32 v{w1}, 7, v{w1}
v_lshrrev_b32 v{w0}, 1, v{w0}
v_xor_b32 v{w0}, s{sH}, v{w0}
v_lshl_add_u32 v{w1}, v{w0}, 6, v{w1}
v_bfe_u32 v{w0}, v{vL}, 4, 1
v_lshl_add_u32 v{w1}, v{w0}, 5, v{w1}
v_and_b32 v{w0}, 3, v{vL}
v_lshl_add_u32 v{w1}, v{w0}, 3, v{w1}
s_xor_b32 s{sT2}, s{sSIG}, s{sH}
s_lshl_b32 s{sT2}, s{sT2}, 11
v_add_u32 v{vP2A}, s{sT2}, v{w1}
v_xor_b32 v{vP2A+1}, 2048, v{vP2A}
v_xor_b32 v{vP2A+2}, 4096, v{vP2A}
v_xor_b32 v{vP2A+3}, 6144, v{vP2A}""")
FILL[1] = lines(f"""
v_and_b32 v{w0}, 31, v{vL}
s_lshl_b32 s{sT1}, s{sSIG}, 5
v_add_u32 v{w0}, s{sT1}, v{w0}
v_mul_u32_u24 v{vVP}, 144, v{w0}
v_add_u32 v{vVP}, {VIMG}, v{vVP}
v_lshrrev_b32 v{w1}, 5, v{vL}
v_lshl_add_u32 v{vVW}, v{w1}, 4, v{vVP}
s_lshl_b32 s{sT1}, s{sH}, 6
v_add_u32 v{vVW}, s{sT1}, v{vVW}
v_bfe_u32 v{w2}, v{vL}, 1, 2
v_lshlrev_b32 v{w1}, 1, v{w1}
v_xor_b32 v{w2}, v{w2}, v{w1}
v_lshlrev_b32 v{w2}, 4, v{w2}
v_lshl_add_u32 v{vPW0}, v{w0}, 6, v{w2}
s_lshl_b32 s{sT1}, s{sH}, 14
s_add_u32 s{sT1}, s{sT1}, {PHI}
v_add_u32 v{vPW0}, s{sT1}, v{vPW0}
v_xor_b32 v{vPW1}, 16, v{vPW0}""")
FILL[2] = [fn(lambda: rec_store(REC2), 4)] + lines(f"""
v_bfe_u32 v{w0}, v{vL}, 2, 2
v_lshrrev_b32 v{w1}, 5, v{vL}
v_lshl_add_u32 v{w0}, v{w1}, 2, v{w0}
v_lshlrev_b32 v{w0}, 5, v{w0}
v_bfe_u32 v{w1}, v{vL}, 4, 1
v_lshl_add_u32 v{w0}, v{w1}, 4, v{w0}
v_bfe_u32 v{w1}, v{vL}, 1, 1
v_lshl_add_u32 v{w0}, v{w1}, 3, v{w0}
s_lshl_b32 s{sT1}, s{sH}, 10
s_add_u32 s{sT1}, s{sT1}, {WPHI}
v_add_u32 v{w0}, s{sT1}, v{w0}
v_bfe_i32 v{w1}, v{vL}, 2, 1
v_and_b32 v{w1}, 0x80008000, v{w1}""")
def phi_reads():
    for i in range(4): a.ds(f"ds_read_b64_tr_b16 {v(vPH+2*i,2)}, v{w0} offset:{256*i}", "ph")
FILL[3] = [fn(phi_reads, 4)] + lines(f"""
s_lshl_b32 s{sM0R}, s{sKQ}, 11
s_lshl_b32 s{sT1}, s{sSTT}, 10
s_add_u32 s{sM0R}, s{sM0R}, s{sT1}
s_mul_i32 s{sWB[0]}, s{sKQ}, {22*16384}
s_cmp_eq_u32 s{sKQ}, 3
s_cselect_b32 s{sT1}, 10, 12
s_lshl_b32 s{sT2}, s{sT1}, 14
s_add_u32 s{sWB[1]}, s{sWB[0]}, s{sT2}
s_lshl_b32 s{sWB[2]}, s{sKQ}, 17
s_lshl_b32 s{sT2}, s{sRB2}, 1
s_add_u32 s{sT2}, s{sT2}, s{sSTT}
s_mul_i32 s{sT2}, s{sT2}, 118
s_lshl_b32 s{sT3}, s{sKQ}, 3
s_add_u32 s{sT3}, s{sT3}, s{sT2}
s_lshl_b32 s{sT3}, s{sT3}, 10
s_add_u32 s{sAB[2]}, s{sT3}, {ACT + 86*1024}
s_mul_i32 s{sT3}, s{sKQ}, 22
s_add_u32 s{sT3}, s{sT3}, s{sT2}
s_lshl_b32 s{sT3}, s{sT3}, 10
s_add_u32 s{sAB[0]}, s{sT3}, {ACT}
s_lshl_b32 s{sT1}, s{sT1}, 10
s_add_u32 s{sAB[1]}, s{sAB[0]}, s{sT1}
s_lshl_b32 s{sOB}, s{sRB2}, 16
s_lshl_b32 s{sT1}, s{sSTT}, 15
s_add_u32 s{sOB}, s{sOB}, s{sT1}
s_lshl_b32 s{sT1}, s{sCB}, 7
s_add_u32 s{sOB}, s{sOB}, s{sT1}
s_lshl_b32 s{sT1}, s{sKQ}, 5
s_add_u32 s{sOB}, s{sOB}, s{sT1}
s_lshl_b32 s{sT1}, s{sG}, 2
s_add_u32 s{sT1}, s{sT1}, s{sSIG}
s_mul_i32 s{sKB}, s{sT1}, {16*1152}
s_add_u32 s{sKB}, s{sKB}, {KVD}
s_cmp_eq_u32 s{sTYPE}, 0
s_cselect_b32 s{sT1}, 0, s{sMASK}
s_cselect_b32 s{sT2}, s{sMASK}, 0
v_lshlrev_b32 v{vBA}, 16, v{vBA}
v_lshlrev_b32 v{vBA+1}, 16, v{vBA+1}
v_lshlrev_b32 v{vBA+2}, 16, v{vBA+2}
v_and_b32 v{vBA}, s{sT1}, v{vBA}
v_and_b32 v{vBA+1}, s{sT1}, v{vBA+1}
v_and_b32 v{vBA+2}, s{sT2}, v{vBA+2}""")
FILL[4] = [f"v_xor_b32 v{vPH+i}, v{w1}, v{vPH+i}" for i in range(8)]
def rec1_load(tag="rec1"):
    a(f"""s_lshl_b32 s{sT1}, s{sRB}, 11
    s_lshl_b32 s{sT2}, s{sSIG}, 9
    s_add_u32 s{sT1}, s{sT1}, s{sT2}
    s_add_u32 s{sT1}, s{sT1}, {REC1}""")
    a.vmem(f"buffer_load_dwordx4 {v(vBC,4)}, v{vT}, {srd(sWS)}, s{sT1} offen sc1", tag)
FILL5 = lines(f"""
v_and_b32 v{vT}, 496, v{vL16}
v_lshrrev_b32 v{w0}, 3, v{vL}
v_and_b32 v{w1}, 7, v{vL}
v_bfe_u32 v{w2}, v{vL}, 4, 1
v_lshlrev_b32 v{w2}, 2, v{w2}
v_xor_b32 v{w1}, v{w1}, v{w2}
v_lshlrev_b32 v{w1}, 4, v{w1}
v_lshl_add_u32 v{vW2O}, v{w0}, 10, v{w1}
s_lshl_b32 s{sT1}, s{sSTT}, 13
s_lshl_b32 s{sT2}, s{sCB}, 7
s_add_u32 s{sT1}, s{sT1}, s{sT2}
v_add_u32 v{vW2O}, s{sT1}, v{vW2O}""")
FILL[5] = [FILL5[0]]
FILL[6] = [fn(rec1_load, 4)] + FILL5[1:] + lines(f"""
v_bfe_u32 v{w0}, v{vL}, 2, 2
v_lshrrev_b32 v{w1}, 5, v{vL}
v_lshl_add_u32 v{w1}, v{w1}, 3, v{w0}
v_and_b32 v{w2}, 1, v{vL}
v_bfe_u32 v{w3}, v{vL}, 4, 1
v_lshl_add_u32 v{w2}, v{w2}, 1, v{w3}
v_lshrrev_b32 v{w0}, 1, v{w0}
v_xor_b32 v{w2}, v{w2}, v{w0}
v_lshlrev_b32 v{w2}, 4, v{w2}
v_lshl_add_u32 v{w2}, v{w1}, 6, v{w2}
v_bfe_u32 v{w0}, v{vL}, 1, 1
v_lshl_add_u32 v{w2}, v{w0}, 3, v{w2}
s_lshl_b32 s{sT1}, s{sSIG}, 13
s_add_u32 s{sT1}, s{sT1}, {PHI}
v_add_u32 v{vKA0}, s{sT1}, v{w2}
v_xor_b32 v{vKA1}, 32, v{vKA0}
v_mul_u32_u24 v{w1}, 144, v{w1}
v_and_b32 v{w0}, 3, v{vL}
v_lshlrev_b32 v{w0}, 3, v{w0}
s_lshl_b32 s{sT1}, s{sSIG}, 5
v_add_u32 v{w0}, s{sT1}, v{w0}
v_cmp_eq_u32 vcc, 1, v{w3}
v_mov_b32 v{w3}, 128
v_cndmask_b32 v{w0}, v{w0}, v{w3}, vcc
v_add_u32 v{w1}, v{w1}, v{w0}
v_add_u32 v{vKB}, {VIMG}, v{w1}""")

def p2_reads(t):
    b = vWF + 4 * (t & 3)
    off = (t >> 4) * SLOT + ((t >> 2) & 3) * 8192
    a.ds(f"ds_read_b64_tr_b16 {v(b,2)}, v{vP2A+(t&3)} offset:{off}", f"p{t}")
    a.ds(f"ds_read_b64_tr_b16 {v(b+2,2)}, v{vP2A+(t&3)} offset:{off+512}", f"p{t}")

a.wait(vm="c0")
a("s_barrier")
stamp(2)
LA = opt("la", 2)
BP = opt("bp", 1)
assert BP + LA <= 4
for t in range(LA): p1_reads(0, t)
DQ = []
for t in range(32):
    c, ks = t >> 2, t & 3
    if ks == 0:
        F = Filler(FILL[c]); fb = (sum(cost(x) for x in FILL[c]) + 3) // 4
        if c == 0: DQ += dma_pieces(3)
    if ks == 0 and c > 0: stamp(2 + c, 1)
    if t == 31:
        stamp(10, 1)
        a.wait(vm="rec1")
        stamp(11, 1)
        checked([f"v_cmp_ne_u32 vcc, s{sTAG}, v{vRSTD}"], lambda: rec1_load("x"), "L_rec1")
        a(f"""v_cndmask_b32 v{vBC}, v{vSD}, v{vBC}, {sLO}
        v_mov_b32 v{vRSTD}, v{vC1}
        v_mul_f32 v{vC1}, {LOG2E}, v{vC1}""")
        a.wait(vm="c8", lg="all")
        a("s_barrier")
        a.ds(f"ds_read_b128 {v(vT,4)}, v{vCAR} offset:1024", "cw")
        a.ds(f"ds_read_b128 {v(vT+4,4)}, v{vCAR} offset:2048", "cw")
    p1_mfma(c, ks)
    if ks == BP:
        if c < 7: a.wait(vm=f"c{c+1}")
        a("s_barrier")
        if c > 0: DQ += dma_pieces(c + 3) if c < 7 else [w_dma(i, "r0") for i in range(4)]
    if t + LA < 32: p1_reads((t + LA) >> 2, (t + LA) & 3)
    if t == 29:
        a.ds(f"ds_write_b32 v{vCAW}, v{vCS} offset:1024", "cw")
        a.ds(f"ds_write_b32 v{vCAW}, v{vCS+4} offset:2048", "cw")
    if t == 31:
        for u in range(3): p2_reads(u)
    if DQ:
        d = DQ.pop(0)
        if not X_NODMA: d()
    if ks == 3: F.flush()
    else: F.take(fb)
for d in DQ:
    if not X_NODMA: d()
stamp(3); stamp(12, 1)
if X_STOP: a("s_branch L_fin")
a.wait(lg="cw")
a(f"""v_add_f32 v{vT}, v{vT}, v{vT+1}
v_add_f32 v{vT+2}, v{vT+2}, v{vT+3}
v_add_f32 v{vT+4}, v{vT+4}, v{vT+5}
v_add_f32 v{vT+6}, v{vT+6}, v{vT+7}
v_add_f32 v{vT}, v{vT}, v{vT+2}
v_add_f32 v{vT+4}, v{vT+4}, v{vT+6}
v_cndmask_b32 v{vT}, v{vBA}, v{vT}, {sLO}
v_cndmask_b32 v{vT+4}, v{vBA+1}, v{vT+4}, {sLO}
{MF32} {v(vA0,16)}, v{vT}, v{vBC}, {v(vA0,16)}
{MF32} {v(vA1,16)}, v{vT+4}, v{vBC}, {v(vA1,16)}""")

def P2(n): return v(n, 2)
def mish(acc, pk, tmp=vT):
    L = []
    for g in (0, 8):
        r = [acc + g + i for i in range(8)]; u = [tmp + i for i in range(8)]
        if pk:
            L += [f"v_pk_fma_f32 {P2(u[i])}, {P2(r[i])}, {P2(vC1)}, {sp(sHALF)} op_sel_hi:[1,0,1]" for i in range(0, 8, 2)]
            L += [f"v_exp_f32 v{u[i]}, v{u[i]}" for i in range(8)]
            L += [f"v_pk_add_f32 {P2(u[i])}, {P2(u[i])}, {sp(sISQ)}" for i in range(0, 8, 2)]
            L += [f"v_pk_fma_f32 {P2(u[i])}, {P2(u[i])}, {P2(u[i])}, {sp(sHALF)} neg_lo:[1,0,0] neg_hi:[1,0,0]" for i in range(0, 8, 2)]
            L += [f"v_rcp_f32 v{u[i]}, v{u[i]}" for i in range(8)]
            L += [f"v_pk_fma_f32 {P2(r[i])}, {P2(r[i])}, {P2(u[i])}, {P2(r[i])}" for i in range(0, 8, 2)]
        else:
            L += [f"v_fma_f32 v{u[i]}, v{r[i]}, v{vC1}, -0.5" for i in range(8)]
            L += [f"v_exp_f32 v{u[i]}, v{u[i]}" for i in range(8)]
            L += [f"v_add_f32 v{u[i]}, s{sISQ}, v{u[i]}" for i in range(8)]
            L += [f"v_fma_f32 v{u[i]}, -v{u[i]}, v{u[i]}, -0.5" for i in range(8)]
            L += [f"v_rcp_f32 v{u[i]}, v{u[i]}" for i in range(8)]
            L += [f"v_fmac_f32 v{r[i]}, v{r[i]}, v{u[i]}" for i in range(8)]
        L += [f"v_cvt_pk_bf16_f32 v{acc+g//2+i}, v{r[2*i]}, v{r[2*i+1]}" for i in range(4)]
        L.append(("half", g // 8))
    return L
def frag_store(reg, sb, half):
    return fn(lambda: a.vmem(f"buffer_store_dwordx4 {v(reg,4)}, v{vL16}, {srd(sWS)}, s{sb} offen offset:{half*1024} sc1", "st"), 2)
def mish_store(acc, pk, sb, tmp=vT):
    return [frag_store(acc + 4 * x[1], sb, x[1]) if isinstance(x, tuple) else x for x in mish(acc, pk, tmp)]

def softmax(P, out, pk, m):
    L = [f"v_max3_f32 v{m}, v{P}, v{P+1}, v{P+2}", f"v_max3_f32 v{m+1}, v{P+3}, v{P+4}, v{P+5}"]
    for i in range(6, 14, 4):
        L += [f"v_max3_f32 v{m}, v{m}, v{P+i}, v{P+i+1}", f"v_max3_f32 v{m+1}, v{m+1}, v{P+i+2}, v{P+i+3}"]
    L += [f"v_max3_f32 v{m}, v{m}, v{P+14}, v{P+15}", f"v_max_f32 v{m}, v{m}, v{m+1}", f"v_mul_f32 v{m}, v{m}, v{vC1}"]
    if pk:
        L += [f"v_pk_fma_f32 {P2(P+i)}, {P2(P+i)}, {P2(vC1)}, {P2(m)} op_sel_hi:[1,0,0] neg_lo:[0,0,1] neg_hi:[0,0,1]" for i in range(0, 16, 2)]
        L += [f"v_exp_f32 v{P+i}, v{P+i}" for i in range(16)]
        L += [f"v_pk_add_f32 {P2(m)}, {P2(P)}, {P2(P+2)}", f"v_pk_add_f32 {P2(m+2)}, {P2(P+4)}, {P2(P+6)}"]
        L += [f"v_pk_add_f32 {P2(m+(i&2))}, {P2(m+(i&2))}, {P2(P+i)}" for i in range(8, 16, 2)]
        L += [f"v_pk_add_f32 {P2(m)}, {P2(m)}, {P2(m+2)}", f"v_add_f32 v{m}, v{m}, v{m+1}", f"v_rcp_f32 v{m}, v{m}"]
        L += [f"v_pk_mul_f32 {P2(P+i)}, {P2(P+i)}, {P2(m)} op_sel_hi:[1,0]" for i in range(0, 16, 2)]
    else:
        L += [f"v_fma_f32 v{P+i}, v{P+i}, v{vC1}, -v{m}" for i in range(16)]
        L += [f"v_exp_f32 v{P+i}, v{P+i}" for i in range(16)]
        L += [f"v_add_f32 v{m+i}, v{P+2*i}, v{P+2*i+1}" for i in range(4)]
        L += [f"v_add_f32 v{m+(i&3)}, v{m+(i&3)}, v{P+i}" for i in range(8, 16)]
        L += [f"v_add_f32 v{m}, v{m}, v{m+1}", f"v_add_f32 v{m+2}, v{m+2}, v{m+3}", f"v_add_f32 v{m}, v{m}, v{m+2}", f"v_rcp_f32 v{m}, v{m}"]
        L += [f"v_mul_f32 v{P+i}, v{P+i}, v{m}" for i in range(16)]
    L += [f"v_cvt_pk_bf16_f32 v{out+i}, v{P+2*i}, v{P+2*i+1}" for i in range(8)]
    return L
def dsw(txt, tag="w"): return fn(lambda: a.ds(txt, tag), 2)

vRS2, vKF = vCS, vCS + 2
def rec2_addr():
    return lines(f"""s_lshl_b32 s{sT1}, s{sSTT}, 9
    v_xor_b32 v{vCS+3}, s{sT1}, v{vL16}
    v_and_b32 v{vCS+4}, 15, v{vL}
    v_lshlrev_b32 v{vCS+4}, 11, v{vCS+4}""")
def rec2_load(kv, tag="rec2"):
    a(f"""s_lshl_b32 s{sT1}, s{sRB2}, 10
    s_add_u32 s{sT1}, s{sT1}, {REC2}""")
    a.vmem(f"buffer_load_dwordx2 {v(vRS2,2)}, v{vCS+3}, {srd(sWS)}, s{sT1} offen offset:8 sc1", tag)
    if kv:
        a(f"""s_lshr_b32 s{sT1}, s{sSIG}, 1
        s_lshl_b32 s{sT1}, s{sT1}, 10
        s_lshl_b32 s{sT2}, s{sG}, 6
        s_add_u32 s{sT1}, s{sT1}, s{sT2}
        s_and_b32 s{sT2}, s{sSIG}, 1
        s_lshl_b32 s{sT2}, s{sT2}, 5
        s_add_u32 s{sT1}, s{sT1}, s{sT2}
        s_add_u32 s{sT1}, s{sT1}, {REC2}""")
        a.vmem(f"buffer_load_dword v{vKF}, v{vCS+4}, {srd(sWS)}, s{sT1} offen offset:12 sc1", tag)
def rec2_check(kv):
    a.wait(vm="rec2")
    L = [f"v_cmp_ne_u32 vcc, s{sTAG}, v{vRS2+1}"]
    if kv: L = [f"v_xor_b32 v{vCS+5}, s{sTAG}, v{vRS2+1}", f"v_xor_b32 v{vCS+6}, s{sTAG}, v{vKF}",
                f"v_or_b32 v{vCS+5}, v{vCS+5}, v{vCS+6}", f"v_cmp_ne_u32 vcc, 0, v{vCS+5}"]
    checked(L, lambda: rec2_load(kv, "x"), "L_rec2")
    a(f"""v_mov_b32 v{vRS2+1}, v{vRS2}
    v_permlane32_swap_b32 v{vRS2}, v{vRS2+1}""")

def pass2(F, per, after_mid, hook=None):
    for t in range(32):
        if t == 13:
            a.wait(vm="c9", lg="all")
            a("s_barrier")
            F.q = merge(F.q, after_mid, 0, min(len(F.q), 40)) if F.q else list(after_mid)
        a.wait(lg=f"p{t}")
        b = vWF + 4 * (t & 3)
        a(f"{MF} {v(vA2,16)}, {v(b,4)}, {v(vX+4*t,4)}, {'0' if t == 0 else v(vA2,16)}")
        if (t & 3) == 1:
            a(f"{MF16} {v(vCS+8,4)}, {v(vSEL,4)}, {v(b,4)}, {'0' if t == 1 else v(vCS+8,4)}")
        if t + 3 < 32: p2_reads(t + 3)
        if t == 30: a.ds(f"ds_write_b32 v{vCAW}, v{vCS+8}", "cw")
        F.take(per)
        if hook and not F.q and t >= 13:
            hook(); hook = None
    F.flush()
    if hook: hook()
def corr_c():
    return [fn(lambda: a.wait(lg="cw"), 0)] + lines(f"""v_add_f32 v{vU}, v{vU}, v{vU+1}
    v_add_f32 v{vU+2}, v{vU+2}, v{vU+3}
    v_add_f32 v{vU}, v{vU}, v{vU+2}
    v_cndmask_b32 v{vU}, v{vBA+2}, v{vU}, {sLO}
    {MF32} {v(vA2,16)}, v{vU}, v{vBC}, {v(vA2,16)}""")

vWR = 128
vACC = 216
vLW = [248, 32]
vA2U, vA2L, vAO, vA2X = 14, 16, 18, 20
vOO, vRES, vRA = 22, 60, 6
vEC = 56
FB = [64, 68, 72, 76, 96, 100, 104, 108, 80, 84, 88, 92, 112, 116, 120, 124]
GRP = [(0, 4), (4, 8), (8, 12), (12, 16), (16, 20), (20, 22), (22, 26), (26, 30)]
def fbuf(i):
    g = [k for k, (s, e) in enumerate(GRP) if s <= i < e][0]
    return FB[(g & 3) * 4 + i - GRP[g][0]]
def p2_addrs():
    x0, x1 = vU + 4, vU + 5
    return lines(f"""v_bfe_u32 v{x0}, v{vL}, 2, 2
    v_lshrrev_b32 v{x1}, 1, v{x0}
    v_lshlrev_b32 v{x1}, 6, v{x1}
    v_lshl_add_u32 v{x1}, v{x0}, 7, v{x1}
    v_bfe_u32 v{x0}, v{vL}, 4, 1
    v_lshl_add_u32 v{x1}, v{x0}, 5, v{x1}
    v_and_b32 v{x0}, 3, v{vL}
    v_lshl_add_u32 v{x1}, v{x0}, 3, v{x1}
    s_mul_i32 s{sT1}, s{sKQ}, {2048+32}
    v_xor_b32 v{x1}, s{sT1}, v{x1}
    v_lshrrev_b32 v{x0}, 5, v{vL}
    v_lshl_add_u32 v{vU+6}, v{x0}, 9, v{x1}
    v_lshl_add_u32 v{vU+7}, v{x0}, 10, v{x1}""")
def p2_addrs2():
    return lines(f"""v_mov_b32 v{vA2L}, v{vU+6}
    v_xor_b32 v{vA2L+1}, 64, v{vU+6}
    v_add_u32 v{vA2U}, {UREG}, v{vA2L}
    v_add_u32 v{vA2U+1}, {UREG}, v{vA2L+1}
    v_add_u32 v{vA2X}, {UREG+65536}, v{vA2L}
    v_add_u32 v{vA2X+1}, {UREG+65536}, v{vA2L+1}
    v_add_u32 v{vAO}, {UREG+3*8192}, v{vU+7}
    v_xor_b32 v{vAO+1}, 64, v{vAO}""")
def w_frag(dst, i, tag):
    if i >= 22: ad, off, sec = vAO, (i - 22) * 8192, 512
    elif i >= 19: ad, off, sec = vA2U, (i - 19) * 8192, 1024
    elif i >= 11: ad, off, sec = vA2L, (i - 11) * 8192, 1024
    elif i >= 8: ad, off, sec = vA2X, (i - 8) * 8192, 1024
    else: ad, off, sec = vA2U, i * 8192, 1024
    L = []
    for b in range(2):
        L.append(dsw(f"ds_read_b64_tr_b16 {v(dst+4*b,2)}, v{ad+b} offset:{off}", tag))
        L.append(dsw(f"ds_read_b64_tr_b16 {v(dst+4*b+2,2)}, v{ad+b} offset:{off+sec}", tag))
    return L
def g_load(i, tag=None):
    def p():
        b, st = SEQ[i]
        a(f"s_add_u32 s{sT0}, s{sAB[b]}, {st*1024}")
        a.vmem(f"buffer_load_dwordx4 {v(fbuf(i),4)}, v{vL16}, {srd(sWS)}, s{sT0} offen sc1", tag or f"a{i}")
    return fn(p, 4)

def phase2(T, issued, side, bars):
    for g in range(issued, 4):
        for i in range(*GRP[g]): g_load(i)()
    a(f"""v_and_b32 v{vU}, 31, v{vL}
    v_lshrrev_b32 v{vU+1}, 5, v{vL}
    v_lshlrev_b32 v{vU+1}, 4, v{vU+1}
    v_lshl_add_u32 v{vOO}, v{vU}, 10, v{vU+1}
    s_mul_i32 s{sT1}, s{sSTT}, {4*6144}""")
    for r in (1, 2, 3):
        a(f"""s_xor_b32 s{sT2}, s{sKQ}, {r}
        s_mul_i32 s{sT2}, s{sT2}, 6144
        s_add_u32 s{sT2}, s{sT2}, s{sT1}
        s_add_u32 s{sT2}, s{sT2}, {RED + (r-1)*2048}
        v_add_u32 v{vRA+r-1}, s{sT2}, v{vL16}""")
    a(f"""s_mul_i32 s{sT2}, s{sW}, 6144
    v_add_u32 v{vRA+3}, s{sT2}, v{vL16}""")
    st_skip = None
    for g, (s, e) in enumerate(GRP):
        if g == 5:
            a(f"""s_cmp_eq_u32 s{sKQ}, 3
            s_cbranch_scc1 L_skip{T}""")
            st_skip = a.save()
        if g == 6:
            a.label(f"L_skip{T}")
            a.restore(st_skip)
            a.wait(lg="all")
            a("s_barrier")
            stamp(10)
            for x in w_frag(vLW[0], 22, "w22"): x()
        a.wait(vm=f"a{e-1}")
        regs = [fbuf(i) for i in range(s, e)]
        if len(regs) == 4:
            C = [f"v_max3_u32 v{vU}, v{regs[0]}, v{regs[1]}, v{regs[2]}", f"v_max_u32 v{vU}, v{vU}, v{regs[3]}"]
        else:
            C = [f"v_max_u32 v{vU}, v{regs[0]}, v{regs[1]}"]
        def reload(g=g):
            for k in range(g, min(g + 4, 8)):
                for i in range(*GRP[k]): g_load(i, "x")()
        checked(C + [f"v_cmp_eq_u32 vcc, -1, v{vU}"], reload, "L_g")
        if g == 0: stamp(9)
        for i in range(s, e):
            if i in bars:
                a.wait(vm=bars[i], lg="all" if bars[i] is None else None)
                a("s_barrier")
            nx = i + 1
            if 11 <= nx < 30 and nx != 22:
                for x in w_frag(vLW[nx & 1], nx, f"w{nx}"): x()
            a.wait(lg=f"w{i}")
            wreg = vWR + 8 * i if i < 11 else vLW[i & 1]
            for b in range(2):
                a(f"{MF} {v(vACC+16*b,16)}, {v(wreg+4*b,4)}, {v(fbuf(i),4)}, {'0' if i == 0 else v(vACC+16*b,16)}")
            if g + 4 < 8:
                s2, e2 = GRP[g + 4]
                k = s2 + i - s - 1
                if i > s and k < e2: g_load(k)()
                if i == e - 1 and k + 1 < e2: pend = k + 1
                else: pend = None
                if pend is not None: g_load(pend)()
            for x in side.get(i, []): emit(x)
    stamp(11)
    for r in (1, 2, 3):
        for q in range(2):
            a(f"ds_write_b128 v{vRA+r-1}, {v(vACC+8*r+4*q,4)} offset:{q*1024}")
    for j in range(4):
        a(f"v_lshlrev_b32 v{vU+2*j}, 16, v{vRES+j}")
        a(f"v_and_b32 v{vU+2*j+1}, s{sMASK}, v{vRES+j}")
    a("""s_waitcnt lgkmcnt(0)
    s_barrier""")
    for k in range(6):
        a(f"ds_read_b128 {v(64+4*k,4)}, v{vRA+3} offset:{RED+k*1024}")
    a(f"""s_or_b32 s{sT0}, s2, s{sW}
    s_cmp_eq_u32 s{sT0}, 0
    s_cbranch_scc0 L_noep{T}""")
    checked([f"v_xor_b32 v{vEC+i}, s{sTAG}, v{vEC+i}" for i in range(4)] +
            [f"v_or3_b32 v{vEC}, v{vEC}, v{vEC+1}, v{vEC+2}", f"v_or_b32 v{vEC}, v{vEC}, v{vEC+3}", f"v_cmp_ne_u32 vcc, 0, v{vEC}"],
            ep_loads, "L_ep")
    a(f"""v_mov_b32 v{vEC}, s{sTAG}
    s_mov_b64 exec, 1
    buffer_store_dword v{vEC}, v{vL}, {srd(sWS)}, 0 offen sc1
    s_mov_b64 exec, -1""")
    a.label(f"L_noep{T}")
    for k in range(3):
        a(f"s_waitcnt lgkmcnt({4-2*k})")
        for j in range(0, 8, 2): a(f"v_pk_add_f32 {P2(vACC+j)}, {P2(vACC+j)}, {P2(64+8*k+j)}")
    for j in range(4): a(f"v_permlane32_swap_b32 v{vACC+j}, v{vACC+4+j}")
    for j in range(0, 8, 2): a(f"v_pk_fma_f32 {P2(vACC+j)}, {P2(vACC+j)}, {P2(vRS2)}, {P2(vU+j)} op_sel_hi:[1,0,1]")
    for j in range(4): a(f"v_cvt_pk_bf16_f32 v{vACC+8+j}, v{vACC+2*j}, v{vACC+2*j+1}")
    a(f"buffer_store_dwordx4 {v(vACC+8,4)}, v{vOO}, {srd(sOUT)}, s{sOB} offen {OPT.get('outsc','').replace('+',' ')}")
    stamp(12)
    a("s_branch L_fin")
def ep_loads():
    a(f"""v_lshrrev_b32 v{vEC}, 4, v{vL}
    v_lshlrev_b32 v{vEC}, 11, v{vEC}
    v_and_b32 v{vEC+1}, 15, v{vL}
    v_lshl_add_u32 v{vOO+1}, v{vEC+1}, 6, v{vEC}""")
    for i in range(4):
        a(f"s_mov_b32 s{sT0}, {REC2 + i*8192}")
        a(f"buffer_load_dword v{vEC+i}, v{vOO+1}, {srd(sWS)}, s{sT0} offen offset:12 sc1")
def ep_early(T):
    def p():
        a(f"""s_or_b32 s{sT0}, s2, s{sW}
        s_cmp_eq_u32 s{sT0}, 0
        s_cbranch_scc0 L_noel{T}""")
        ep_loads()
        a.label(f"L_noel{T}")
    return p
def res_load():
    a.vmem(f"buffer_load_dwordx4 {v(vRES,4)}, v{vOO}, {srd(sX)}, s{sOB} offen", "res")

st1 = a.save()
a(f"""s_cmp_eq_u32 s{sTYPE}, 0
s_cbranch_scc0 L_typeB""")
PERA = opt("pera", 9)
kb = vT
FA = p2_addrs() + rec2_addr() + [f"v_mov_b32 v{vU}, 0x3f803f80", f"v_mov_b32 v{vU+1}, 0x3f803f80",
     dsw(f"ds_write_b64 v{vVP}, {v(vU,2)} offset:128")]
FA += [f"v_cvt_pk_bf16_f32 v{kb+j}, v{vA0+2*j}, v{vA0+2*j+1}" for j in range(8)]
FA += [f"{MF} {v(vA0,16)}, {v(vPH,4)}, {v(kb,4)}, 0"]
FA += [f"v_mul_f32 v{vA1+i}, v{vA1+i}, v{vRSTD}" for i in range(16)]
FA += [f"v_cvt_pk_bf16_f32 v{vU+i}, v{vA1+2*i}, v{vA1+2*i+1}" for i in range(4)]
FA += [dsw(f"ds_write_b128 v{vVW}, {v(vU,4)}")]
FA += [f"v_cvt_pk_bf16_f32 v{kb+i}, v{vA1+8+2*i}, v{vA1+9+2*i}" for i in range(4)]
FA += [f"{MF} {v(vA1,16)}, {v(vPH+4,4)}, {v(kb+4,4)}, 0"]
FA += [dsw(f"ds_write_b128 v{vVW}, {v(kb,4)} offset:32")]
for hh, P in ((0, vA0), (1, vA1)):
    FA += softmax(P, P, False, vT + 4)
    FA += [dsw(f"ds_write_b128 v{vPW0}, {v(P,4)} offset:{hh*8192}"), dsw(f"ds_write_b128 v{vPW1}, {v(P+4,4)} offset:{hh*8192}")]
def kv_block():
    a.wait(lg="all")
    a("s_barrier")
    stamp(4)
    st = a.save()
    a(f"""s_cmp_eq_u32 s{sH}, 0
    s_cbranch_scc0 L_kvE""")
    KB = [vA1, vA1 + 8, vT]
    def kv_reads(t):
        b = KB[t % 3]
        a.ds(f"ds_read_b64_tr_b16 {v(b,2)}, v{vKA0} offset:{t*1024}", f"kv{t}")
        a.ds(f"ds_read_b64_tr_b16 {v(b+2,2)}, v{vKA1} offset:{t*1024+256}", f"kv{t}")
        a.ds(f"ds_read_b64_tr_b16 {v(b+4,2)}, v{vKB} offset:{t*2304}", f"kv{t}")
        a.ds(f"ds_read_b64_tr_b16 {v(b+6,2)}, v{vKB} offset:{t*2304+576}", f"kv{t}")
    for t in range(3): kv_reads(t)
    for t in range(8):
        a.wait(lg=f"kv{t}")
        b = KB[t % 3]
        a(f"{MF} {v(vA0,16)}, {v(b,4)}, {v(b+4,4)}, {'0' if t == 0 else v(vA0,16)}")
        if t >= 1 and t + 2 < 8: kv_reads(t + 2)
    for i in range(8): a(f"v_cvt_pk_bf16_f32 v{vA1+i}, v{vA0+2*i}, v{vA0+2*i+1}")
    for i in range(4): a(f"v_permlane16_swap_b32 v{vA1+i}, v{vA1+4+i}")
    a(f"""buffer_store_dwordx4 {v(vA1,4)}, v{vL16}, {srd(sWS)}, s{sSB1} offen sc1
    s_mov_b32 exec_lo, 0x00010001
    s_mov_b32 exec_hi, 0x00010001
    buffer_store_dwordx4 {v(vA1+4,4)}, v{vL}, {srd(sWS)}, s{sSB1} offen offset:1024 sc1
    s_mov_b64 exec, -1""")
    a.label("L_kvE")
    a.restore(st)
    stamp(5)
pass2(Filler(FA), PERA, [w_dma(i, "r1") for i in range(11, 15)] + [fn(lambda: rec2_load(False), 4)], kv_block)
a.wait(lg="all")
a("s_barrier")
stamp(6)
a.ds(f"ds_read_b128 {v(vU,4)}, v{vCAR}", "cw")
pre = [w_dma(i, "r0") for i in range(4, 7)] + corr_c() + p2_addrs2() + [w_dma(i, "r0") for i in range(7, 11)]
for x in pre: emit(x)
rec2_check(False)
sideA = [w_dma(i, "r1") for i in range(15, 19)] + [g_load(i) for i in range(8)]
stA = a.save()
a(f"""s_cmp_eq_u32 s{sSKIP}, 0
s_cbranch_scc0 L_skipc""")
for x in merge(mish_store(vA2, True, sSB0), sideA): emit(x)
a("s_branch L_skipcE")
a.label("L_skipc")
a.restore(stA)
for x in sideA: emit(x)
a.label("L_skipcE")
stamp(7)
a.wait(vm="r0")
a("s_barrier")
for i in range(11):
    for x in w_frag(vWR + 8 * i, i, f"w{i}"): x()
stamp(8)
side = {i: [w_dma(19 + i - 4, "r2")] for i in range(4, 15)}
side[1] = [ep_early("A")]; side[2] = [res_load]
phase2("A", 2, side, {4: None, 18: "r2"})

a.label("L_typeB")
a.restore(st1)
PERB = opt("perb", 6)
FBq = merge(p2_addrs() + rec2_addr() + mish_store(vA0, False, sSB0), [w_dma(i, "r0") for i in range(4, 11)], 0, 60)
pass2(Filler(FBq), PERB, [w_dma(i, "r1") for i in range(11, 15)] + [fn(lambda: rec2_load(True), 4)])
stamp(4); stamp(5)
a.wait(vm="r0", lg="all")
a("s_barrier")
stamp(6)
a.ds(f"ds_read_b128 {v(vU,4)}, v{vCAR}", "cw")
for x in p2_addrs2() + [w_dma(15, "r1")] + corr_c(): emit(x)
side1 = sum([w_frag(vWR + 8 * i, i, f"w{i}") for i in range(11)], [])
for x in merge(merge(mish_store(vA1, True, sSB1), side1, 0, 60), [w_dma(i, "r1") for i in range(16, 19)]): emit(x)
rec2_check(True)
for j in range(8): a(f"v_cvt_pk_bf16_f32 v{vT+j}, v{vA2+2*j}, v{vA2+2*j+1}")
a(f"{MF} {v(vA2,16)}, {v(vPH,4)}, {v(vT,4)}, 0")
a(f"{MF} {v(vA1,16)}, {v(vPH+4,4)}, {v(vT+4,4)}, 0")
a.wait(lg="all")
a("s_barrier")
stamp(7)
vTL, vZL = 216, 248
vGA, vGZ = vKA0, vKA1
vS0, vS1 = vPH, vPH + 4
def t_load(i, tag=None):
    def p():
        a(f"s_add_u32 s{sT0}, s{sKB}, {(i>>1)*4*1152}")
        a.vmem(f"buffer_load_dwordx4 {v(vTL+4*i,4)}, v{vGA}, {srd(sWS)}, s{sT0} offen offset:{(i&1)*256} sc1", tag or "t")
    return fn(p, 4)
def z_load(tag=None):
    return fn(lambda: a.vmem(f"buffer_load_dwordx4 {v(vZL,4)}, v{vGZ}, {srd(sWS)}, s{sKB} offen offset:1024 sc1", tag or "t"), 4)
a(f"""v_lshrrev_b32 v{vU}, 4, v{vL}
v_mul_u32_u24 v{vU}, 1152, v{vU}
v_and_b32 v{vU+1}, 15, v{vL}
v_lshl_add_u32 v{vGA}, v{vU+1}, 4, v{vU}
s_lshl_b32 s{sT1}, s{sH}, 9
v_add_u32 v{vGA}, s{sT1}, v{vGA}
v_bfe_u32 v{vU+2}, v{vL}, 1, 2
v_mul_u32_u24 v{vU+2}, {4*1152}, v{vU+2}
v_and_b32 v{vU+3}, 1, v{vL}
v_lshlrev_b32 v{vU+3}, 4, v{vU+3}
v_add3_u32 v{vGZ}, v{vU}, v{vU+2}, v{vU+3}
s_lshl_b32 s{sT1}, s{sH}, 5
v_add_u32 v{vGZ}, s{sT1}, v{vGZ}""")
vPQ = [vA2, vA1]
NR2 = opt("nr2", 4)
side2 = ([w_dma(19 + i, "r2") for i in range(NR2)] + [z_load()] + [t_load(i) for i in range(8)]
         + [w_dma(19 + i, "r2") for i in range(NR2, 11)] + [g_load(i) for i in range(8)])
SELC = lines(f"""v_and_b32 v{vU}, 1, v{vL}
v_mov_b32 v{vU+2}, 0x3f80
v_lshlrev_b32 v{vU}, 4, v{vU}
v_lshlrev_b32 v{vU+2}, v{vU}, v{vU+2}
v_lshrrev_b32 v{vU+1}, 1, v{vU+1}""")
for r in range(8):
    SELC += [f"v_cmp_eq_u32 vcc, {r}, v{vU+1}", f"v_cndmask_b32 v{vS0+r}, 0, v{vU+2}, vcc"]
SELC += lines(f"""s_mul_i32 s{sT1}, s{sSIG}, 1088
s_mul_i32 s{sT2}, s{sH}, 544
s_add_u32 s{sT1}, s{sT1}, s{sT2}
s_add_u32 s{sT1}, s{sT1}, {KVL}
v_bfe_u32 v{vU}, v{vL}, 4, 1
v_lshlrev_b32 v{vU}, 3, v{vU}
v_add_u32 v{vU}, s{sT1}, v{vU}
v_lshrrev_b32 v{vU+1}, 5, v{vL}
v_mul_u32_u24 v{vU+2}, 272, v{vU+1}
v_and_b32 v{vU+3}, 15, v{vL}
v_lshlrev_b32 v{vU+3}, 4, v{vU+3}
v_add3_u32 v{vU+4}, v{vU}, v{vU+2}, v{vU+3}
v_and_b32 v{vU+3}, 1, v{vL}
v_mul_u32_u24 v{vU+3}, 272, v{vU+3}
v_add_u32 v{vU+5}, v{vU}, v{vU+3}
v_and_b32 v{vU}, 31, v{vL}
v_min_u32 v{vU}, 16, v{vU}
v_lshlrev_b32 v{vU}, 4, v{vU}
v_mul_u32_u24 v{vU+1}, 544, v{vU+1}
s_mul_i32 s{sT1}, s{sH}, 2176
s_add_u32 s{sT1}, s{sT1}, {KVL}
v_add3_u32 v{vU+6}, v{vU}, v{vU+1}, s{sT1}""")
for x in merge(softmax(vA2, vA2, True, vT) + softmax(vA1, vA1, True, vT) + SELC, side2): emit(x)
a.wait(vm="t")
def t_reload():
    z_load("x")()
    for i in range(8): t_load(i, "x")()
checked([f"v_max3_u32 v{vT}, v{vTL}, v{vTL+4}, v{vTL+8}", f"v_max3_u32 v{vT+1}, v{vTL+12}, v{vTL+16}, v{vTL+20}",
         f"v_max3_u32 v{vT}, v{vT}, v{vTL+24}, v{vTL+28}", f"v_max3_u32 v{vT}, v{vT}, v{vT+1}, v{vZL}",
         f"v_cmp_eq_u32 vcc, -1, v{vT}"], t_reload, "L_t")
stamp(8)
vD, vDZ = vT, vT + 4
a(f"{MF16} {v(vDZ,4)}, {v(vS0,4)}, {v(vZL,4)}, 0")
for i in range(8):
    a(f"{MF16} {v(vD,4)}, {v(vS0+4*(i&1),4)}, {v(vTL+4*i,4)}, {'0' if i == 0 else v(vD,4)}")
for sh in (2, 4):
    for j in range(4): a(f"v_add_f32_dpp v{vDZ+j}, v{vDZ+j}, v{vDZ+j} row_ror:{sh} row_mask:0xf bank_mask:0xf")
a(f"""v_cvt_pk_bf16_f32 v{vDZ}, v{vDZ}, v{vDZ+1}
v_cvt_pk_bf16_f32 v{vDZ+1}, v{vDZ+2}, v{vDZ+3}
s_mov_b64 exec, 0x30003
ds_write_b64 v{vU+5}, {v(vDZ,2)} offset:256
s_mov_b64 exec, -1
v_cvt_pk_bf16_f32 v{vD}, v{vD}, v{vD+1}
v_cvt_pk_bf16_f32 v{vD+1}, v{vD+2}, v{vD+3}
ds_write_b64 v{vU+4}, {v(vD,2)}
s_waitcnt lgkmcnt(0)
s_barrier""")
vKF2 = vT
for hh in range(2):
    for j in range(2):
        a(f"ds_read_b128 {v(vKF2+8*hh+4*j,4)}, v{vU+6} offset:{hh*1088+j*272}")
for hh, D in ((0, vTL), (1, vTL + 16)):
    a(f"s_waitcnt lgkmcnt({2-2*hh})")
    a(f"{MF} {v(D,16)}, {v(vKF2+8*hh,4)}, {v(vPQ[hh],4)}, 0")
    a(f"{MF} {v(D,16)}, {v(vKF2+8*hh+4,4)}, {v(vPQ[hh]+4,4)}, {v(D,16)}")
for hh, D in ((0, vTL), (1, vTL + 16)):
    a(f"v_add_f32 v{D+8}, 0x358637bd, v{D+8}")
    a(f"v_rcp_f32 v{D+8}, v{D+8}")
    a(f"v_mul_f32 v{D+8}, v{D+8}, v{vSD}")
    for i in range(0, 8, 2): a(f"v_pk_mul_f32 {P2(D+i)}, {P2(D+i)}, {P2(D+8)} op_sel_hi:[1,0]")
    for i in range(4): a(f"v_cvt_pk_bf16_f32 v{vT+4*hh+i}, v{D+2*i}, v{D+2*i+1}")
    frag_store(vT + 4 * hh, sSB2, hh)()
phase2("B", 2, {1: [ep_early("B")], 2: [res_load]}, {8: "r2"})

for blk in retries: blk()
a.label("L_fin")
if STAMP >= 0 and opt("dbgst", 0):
    n = nst[0]
    a(f"""s_cmp_eq_u32 s{sW}, {STAMP}
    s_cbranch_scc0 L_end
    s_load_dwordx2 s[8:9], s[0:1], 72
    s_waitcnt vmcnt(0)
    s_memrealtime s[12:13]
    s_waitcnt lgkmcnt(0)
    s_and_b32 s9, s9, 0xffff
    s_mov_b32 s10, 256
    s_mov_b32 s11, 0x00020000
    s_not_b32 s14, s{sST0}
    v_mov_b32 v{t1}, 0
    s_mov_b64 exec, 1
    v_mov_b32 v64, s14
    v_mov_b32 v65, s12
    buffer_atomic_umax v64, v{t1}, s[8:11], 0 offen
    buffer_atomic_umax v65, v{t1}, s[8:11], 0 offen offset:60""")
    for i in range(n):
        a(f"v_mov_b32 v{66+i}, s{sST0+2*i}")
        a(f"buffer_atomic_umax v{66+i}, v{t1}, s[8:11], 0 offen offset:{4+i*4}")
elif STAMP >= 0:
    n = nst[0]
    a(f"""s_cmp_eq_u32 s{sW}, {STAMP}
    s_cbranch_scc0 L_end
    s_waitcnt lgkmcnt(0)
    s_sub_u32 s{sT0}, {SPIN}, s{sCNT}
    s_mul_i32 s{sT0}, s{sT0}, 100
    s_add_u32 s{sST0+2}, s{sST0}, s{sT0}
    s_addc_u32 s{sST0+3}, s{sST0+1}, 0
    s_mul_i32 s{sT0}, s2, {n*8}
    s_add_u32 s{sT0}, s{sT0}, {STAMP_OFF}
    v_mov_b32 v{t1}, 0
    s_mov_b64 exec, 1""")
    for i in range(n):
        a(f"v_mov_b32 v{64+2*i}, s{sST0+2*i}")
        a(f"v_mov_b32 v{65+2*i}, s{sST0+2*i+1}")
        a(f"buffer_store_dwordx2 {v(64+2*i,2)}, v{t1}, {srd(sWS)}, s{sT0} offen offset:{i*8}")
a.label("L_end")
a.pad()
open(out_path, "w").write(header(256, 512, LDS_SIZE) + a.text() + footer(vgpr=256))
print("instructions:", sum(1 for x in a.L if x.states), "stamps", nst[0])
```

```python
import sys
from asmdsl import Asm
from gen_common import header, footer

OPT = dict(a.split("=") for a in sys.argv[2:])
def opt(k, d): return type(d)(OPT.get(k, d))
STAMP = opt("stamp", -1)
CYC = opt("cyc", 0)
FINE = 3 if "pts" in OPT else opt("fine", 0)
X_STOP = opt("stop", 0)
ROTM = opt("rotm", 7)
ROT2 = opt("rot2", 7)
out_path = sys.argv[1]

W0, W1, X0, X1, X2, X3, W2S, W3S = 0, 17408, 34816, 51200, 67584, 83968, 100352, 117760
XS = [X0, X1, X2, X3]; WSL = [W0, W1, W2S, W3S]
RT = 136192
MISC = RT + 16384
CW, WPHI, KVL = MISC, MISC + 2048, MISC + 4096
PHI, VIMG = X2, W3S
P2B = [W0, X0, W1, X1]
SL = [RT, W2S, W0, X0, W1, X1, X2, X3, W3S]
REDR = [X3, W3S, RT, W2S]
LDS_SIZE = 163840
REC1 = 0x1000
FLG = 0x9000
KVD = 0x20000
ACT = 0x140000
STAMP_OFF = 128 << 20
SPIN = opt("spin", 200000)

sW, sSIG, sH, sTYPE, sT0 = 3, 4, 5, 6, 7
sX, sWD, sWE, sW2, sWO, sOUT, sWS = 8, 12, 16, 20, 24, 28, 32
sPH, sB1, sPC = 36, 40, 44
sHALF, sISQ, sLOm, sFM, sEX = 36, 38, 40, 42, 44
sU, sWOF, sWEF = 48, 52, 56
sM0R, sM0W, sTAG, sCNT = 60, 61, 62, 63
sMASK, sT1, sT2, sT3 = 64, 65, 66, 67
sSKIP, sP6, sC0, sC1, sSB0, sFL, sOB, sRA, sRW, sAO, sWDL, sR2, sRED = range(68, 81)
sST0 = 82
sRB, sG, sRB2, sCB, sSTART, sSTR, sSTE, sRHO, sREC, sGAM, sST2 = range(88, 99)
sLO = f"s[{sLOm}:{sLOm+1}]"
def srd(n): return f"s[{n}:{n+3}]"
def sp(n): return f"s[{n}:{n+1}]"

vL = 0
vXO0, vXO1, vWO0, vWO1, vWE0, vL16, vBA, vWE1 = 1, 2, 3, 4, 5, 6, 7, 9
vBC, vSD, vC1, vRSTD = 10, 11, 12, 13
vCAW, vCAR, vP2A, vW2O, vFL, vACT = 14, 15, 16, 20, 22, 23
vT = 24
vRA1, vTG = 28, 29
vK = 32
vPHA, vSGN = 32, 33
vPW0, vPW1, vKA0, vKA1, vKB = 34, 35, 36, 37, 38
vVW, vVP = 34, 35
vGA, vGZ, vKW, vZW, vKR = 34, 35, 36, 37, 38
vA2B = 39
vXA, vWA, vSEL, vCS, vWB = 40, 44, 48, 52, 60
vWF = 64
vA2, vA0, vA1 = 80, 96, 112
vX = 128
def v(n, k=1): return f"v{n}" if k == 1 else f"v[{n}:{n+k-1}]"
def P2(n): return v(n, 2)

a = Asm()
nst = [0]
pend = []
def stamp(i, fine=0):
    if FINE != fine and i > 2: return
    if STAMP >= 0 and fine == 2:
        if i > 4:
            a("s_waitcnt lgkmcnt(0)")
            for j, r in pend: a(f"v_mov_b32 v{200+2*j}, s{r}\nv_mov_b32 v{201+2*j}, s{r+1}")
            pend.clear()
        if i == 10: return
        r = 86 if i == 3 else 100
        a(f"s_memtime s[{r}:{r+1}]"); pend.append((i, r))
        nst[0] = max(nst[0], i + 1)
        return
    if STAMP >= 0:
        assert i < 10
        a(f"{'s_memtime' if CYC else 's_memrealtime'} s[{sST0+2*i}:{sST0+2*i+1}]")
        nst[0] = max(nst[0], i + 1)

PTS = [p for p in opt("pts", "").split(",") if p]
def pt(name):
    if name in PTS and STAMP >= 0: stamp(3 + PTS.index(name), FINE)
def ptf(name): return fn(lambda: pt(name), 0)
MF = "v_mfma_f32_32x32x16_bf16"
MF16 = "v_mfma_f32_16x16x32_bf16"
MF32 = "v_mfma_f32_32x32x2_f32"
LOG2E = "0x3fb8aa3b"

def lines(txt): return [l.strip() for l in txt.strip().split("\n") if l.strip()]
def cost(x):
    if callable(x): return getattr(x, "cost", 1)
    return 2 if ("v_exp" in x or "v_rcp" in x) else 1
def emit(x):
    if callable(x): x()
    else: a(x)
def emits(L):
    for x in L: emit(x)
def fn(f, c=1):
    f.cost = c; return f
def merge(main, side, start=0, end=None):
    end = len(main) if end is None else min(end, len(main))
    tot = sum(cost(x) for x in main[start:end]); out = list(main[:start]); acc = 0; k = 0
    for x in main[start:end]:
        while k < len(side) and acc >= k * tot / len(side): out.append(side[k]); k += 1
        out.append(x); acc += cost(x)
    return out + side[k:] + list(main[end:])
def vm(txt, tag): return fn(lambda: a.vmem(txt, tag), 3)
def dsw(txt, tag="w"): return fn(lambda: a.ds(txt, tag), 2)
def wt(**kw): return fn(lambda: a.wait(**kw), 0)

retries = []
def checked(cmp_lines, reload, name):
    lab = a.newlabel(name)
    a.label(lab + "_c")
    for l in cmp_lines: a(l)
    a(f"s_cbranch_vccnz {lab}_r")
    a.label(lab + "_k")
    def blk():
        a.label(lab + "_r")
        a(f"""s_cmp_eq_u32 s{sCNT}, 0
        s_cbranch_scc1 {lab}_k
        s_sub_u32 s{sCNT}, s{sCNT}, 1""")
        reload()
        a(f"""s_waitcnt vmcnt(0)
        s_branch {lab}_c""")
    retries.append(blk)
def skip_if(cmp_line, body, name):
    lab = a.newlabel(name)
    a(cmp_line); a(f"s_cbranch_scc0 {lab}")
    st = a.save()
    body()
    a.label(lab)
    a.restore(st)

t0, t1, t2, t3 = vT, vT + 1, vT + 2, vT + 3
a(f"""s_cmp_ge_u32 s2, 256
s_cbranch_scc1 L_end""")
stamp(0)
a(f"""s_load_dwordx2 {sp(sX)}, s[0:1], 0
s_lshr_b32 s{sTYPE}, s2, 7
s_lshl_b32 s{sT0}, s{sTYPE}, 5
s_add_u32 s{sT1}, s{sT0}, 8
s_sub_u32 s{sT2}, 40, s{sT0}
s_load_dwordx2 {sp(sWD)}, s[0:1], s{sT1}
s_load_dwordx2 {sp(sWS)}, s[0:1], 80
s_getpc_b64 {sp(sPC)}
L_pc:
v_lshrrev_b32 v{t0}, 6, v0
v_lshlrev_b32 v{t1}, 6, v0
s_mov_b32 s{sPC+2}, L_end-L_pc
s_mov_b32 s{sPC+3}, 0x00020000
v_readfirstlane_b32 s{sW}, v{t0}
v_and_b32 v{vL}, 63, v0
buffer_load_dword v{vT+7}, v{t1}, {srd(sPC)}, 0 offen
s_load_dwordx2 {sp(sWE)}, s[0:1], s{sT2}
s_load_dwordx2 {sp(sPH)}, s[0:1], 16
s_load_dwordx2 {sp(sB1)}, s[0:1], 48
s_load_dwordx2 {sp(sW2)}, s[0:1], 56
s_load_dwordx2 {sp(sWO)}, s[0:1], 24
s_load_dwordx2 {sp(sOUT)}, s[0:1], 64
s_bfe_u32 s{sT0}, s2, 0x30003
s_and_b32 s{sT1}, s2, 1
s_lshl3_add_u32 s{sRB}, s{sT1}, s{sT0}       ; rb
s_bfe_u32 s{sT1}, s2, 0x10006
s_and_b32 s{sG}, s2, 6
s_or_b32 s{sG}, s{sG}, s{sT1}                ; g
s_lshr_b32 s{sT1}, s2, 6
s_lshl1_add_u32 s{sRHO}, s{sT1}, s{sT0}
s_and_b32 s{sRHO}, s{sRHO}, {ROTM}
s_lshl_b32 s{sRHO}, s{sRHO}, 7
s_mul_i32 s{sSTART}, s{sG}, 11
s_add_u32 s{sSTART}, s{sSTART}, 1
s_lshr_b32 s{sSTART}, s{sSTART}, 1
s_min_u32 s{sSTART}, s{sSTART}, 38
s_lshl_b32 s{sT2}, s{sG}, 7
s_lshl_b32 s{sT3}, s{sSTART}, 6
s_add_u32 s{sT0}, s{sT2}, 1024
s_add_u32 s{sREC}, s{sT3}, 256
s_movk_i32 s{sSTR}, 2752
s_movk_i32 s{sT1}, 128
s_cmp_eq_u32 s{sTYPE}, 0
s_cselect_b32 s{sSTR}, 3072, s{sSTR}
s_cselect_b32 s{sT1}, 1024, s{sT1}
s_cselect_b32 s{sT3}, s{sT0}, s{sT3}
s_cselect_b32 s{sCB}, s{sREC}, s{sT2}
v_lshrrev_b32 v{t0}, 3, v{vL}                ; l>>3
v_and_b32 v{t1}, 7, v{vL}                    ; l&7
v_lshrrev_b32 v{t2}, 4, v{vL}                ; l>>4
s_lshl_b32 s{sT0}, s{sRB}, 3
s_add_u32 s{sT2}, s{sT0}, s{sW}
s_lshl_b32 s{sT2}, s{sT2}, 14
v_xor_b32 v{t3}, v{t1}, v{t2}
v_lshl_or_b32 v{t3}, v{t3}, 4, s{sT2}
v_lshl_add_u32 v{vXO0}, v{t0}, 10, v{t3}
s_lshr_b32 s{sT2}, s{sW}, 1
s_and_b32 s{sM0W}, s{sW}, 1
s_lshl3_add_u32 s{sT2}, s{sT2}, s{sM0W}
s_lshl_b32 s{sT2}, s{sT2}, 1
v_xor_b32 v{vXO1}, 64, v{vXO0}
v_add_u32 v{vXO1}, {8192-1024}, v{vXO1}
v_lshl_add_u32 v{t3}, v{t2}, 2, s{sT2}
v_mul_u32_u24 v{vWO0}, s{sSTR}, v{t3}
v_and_b32 v{t3}, 1, v{t0}
v_mad_u32_u24 v{vWO0}, v{t3}, s{sT1}, v{vWO0}
v_lshl_add_u32 v{t3}, v{t1}, 4, s{sT3}
v_add_u32 v{vWO0}, v{vWO0}, v{t3}
s_sub_u32 s{sT1}, s{sSTR}, 1088
v_add_u32 v{vWO1}, s{sT1}, v{vWO0}
v_lshlrev_b32 v{vL16}, 4, v{vL}
s_lshl_b32 s{sM0R}, s{sW}, 11
s_mul_i32 s{sM0W}, s{sW}, 2176
s_lshr_b32 s{sST2}, s{sSTR}, 1
s_lshl1_add_u32 s{sT0}, s{sRB}, s{sTYPE}
s_lshl3_add_u32 s{sT0}, s{sT0}, s{sG}
s_lshl3_add_u32 s{sREC}, s{sT0}, s{sW}
s_lshl_b32 s{sT3}, s{sREC}, 10
s_mov_b32 s{sX+2}, {2048*1024}
s_mov_b32 s{sX+3}, 0x00020000
s_lshl_b32 s{sWD+2}, s{sSTR}, 9
s_mov_b32 s{sWD+3}, 0x00020000
s_mov_b32 s{sWS+2}, {256<<20}
s_mov_b32 s{sWS+3}, 0x00020000
s_mul_i32 s{sT1}, s{sRHO}, s{sST2}
s_add_u32 m0, s{sM0R}, {XS[0]}""")
stamp(3, 2)
a("s_waitcnt lgkmcnt(0)")
stamp(4, 2)
vXR = vA0
vEP = vT + 6
def x_pair(c, su):
    return [vm(f"buffer_load_dwordx4 v{vXO0}, {srd(sX)}, s{su} offen lds", f"c{c}"),
            vm(f"buffer_load_dwordx4 v{vXO1}, {srd(sX)}, s{su} offen offset:1024 lds", f"c{c}")]
def w_pair(c, sw):
    return [vm(f"buffer_load_dwordx4 v{vWO0}, {srd(sWD)}, s{sw} offen lds", f"c{c}"),
            vm(f"buffer_load_dwordx4 v{vWO1}, {srd(sWD)}, s{sw} offen offset:1088 lds", f"c{c}")]
def m0x(c): return f"s_add_u32 m0, s{sM0R}, {XS[c & 3]}"
def m0w(c): return f"s_add_u32 m0, s{sM0W}, {WSL[c & 3]}"
def uoff(c, su, sw):
    return lines(f"""s_add_u32 s{su}, s{sRHO}, {128*c}
    s_and_b32 s{su}, s{su}, 0x380
    s_mul_i32 s{sw}, s{su}, s{sST2}""")
emits(x_pair(0, sRHO) + [m0w(0)])
a.vmem(f"buffer_load_dwordx4 {v(vXR,4)}, v{vL16}, {srd(sX)}, s{sT3} offen", "xr")
emits(w_pair(0, sT1))
a.vmem(f"buffer_load_dword v{vEP}, off, {srd(sWS)}, 0 sc1", "xr")
def chunk_pro(c, su, sw):
    u = uoff(c, su, sw); X = x_pair(c, su); W = w_pair(c, sw)
    return [[m0x(c)] + u[:2] + X[:1], X[1:], [m0w(c), u[2]] + W[:1], W[1:]]
def grp(L): return fn(lambda: emits(L), 3)
for L in chunk_pro(1, sU, sWOF): emits(L)
stamp(1)
stamp(5, 2)

u0, u1, u2, u3 = vA1, vA1 + 1, vA1 + 2, vA1 + 3
B2 = lines(f"""s_mov_b32 s{sPH+2}, 16384
s_mov_b32 s{sPH+3}, 0x00020000
s_movk_i32 s{sB1+2}, 2752
s_mov_b32 s{sB1+3}, 0x00020000
s_and_b32 s{sSIG}, s{sW}, 3
s_lshr_b32 s{sH}, s{sW}, 2
s_and_b32 s{sT0}, s{sW}, 1
s_lshl_b32 s{sT0}, s{sT0}, 10
s_add_u32 m0, s{sT0}, {WPHI}
s_lshl_b32 s{sT1}, s{sG}, 11
s_add_u32 s{sT1}, s{sT1}, s{sT0}
v_and_b32 v{u0}, 31, v{vL}""") + [vm(f"buffer_load_dwordx4 v{vL16}, {srd(sPH)}, s{sT1} offen lds", "misc")] + lines(f"""
s_lshl_b32 s{sT0}, s{sH}, 1
s_cmp_eq_u32 s{sTYPE}, 0
s_cselect_b32 s{sT0}, 4, s{sT0}
s_add_u32 s{sGAM}, s{sT0}, s{sSTART}         ; first w1 tile of this wave
s_lshl_b32 s{sT0}, s{sGAM}, 6
v_lshlrev_b32 v{u1}, 1, v{u0}""") + [
    vm(f"buffer_load_ushort v{vBA+i}, v{u1}, {srd(sB1)}, s{sT0} offen offset:{64*i}", "misc") for i in range(2)]
emits(B2)
B3 = lines(f"""s_sub_u32 s{sSTE}, {2752+3072}, s{sSTR}
s_lshl_b32 s{sWE+2}, s{sSTE}, 9
s_mov_b32 s{sWE+3}, 0x00020000
v_and_b32 v{t3}, 1, v{t2}
v_lshlrev_b32 v{t3}, 2, v{t3}
v_xor_b32 v{t3}, v{t3}, v{t1}
v_lshlrev_b32 v{t3}, 4, v{t3}
s_lshl_b32 s{sT0}, s{sSIG}, 4
v_add_u32 v{u1}, s{sT0}, v{t0}
v_mul_u32_u24 v{vWE0}, s{sSTE}, v{u1}
v_add3_u32 v{vWE0}, v{vWE0}, v{t3}, s{sCB}
s_lshl_b32 s{sT0}, s{sSTE}, 3
s_sub_u32 s{sT0}, s{sT0}, 1024
v_add_u32 v{vWE1}, s{sT0}, v{vWE0}
v_lshl_add_u32 v{vW2O}, v{t0}, 10, v{t3}
s_xor_b32 s{sT3}, s{sSIG}, s{sH}
v_lshrrev_b32 v{u1}, 5, v{vL}
v_bfe_u32 v{u2}, v{vL}, 1, 3
v_xor_b32 v{u2}, v{u1}, v{u2}
v_lshlrev_b32 v{u2}, 4, v{u2}
v_lshl_add_u32 v{u2}, v{u0}, 7, v{u2}
s_lshl_b32 s{sT0}, s{sSIG}, 12
s_lshl_b32 s{sT1}, s{sT3}, 5
s_add_u32 s{sT0}, s{sT0}, s{sT1}
s_add_u32 s{sT0}, s{sT0}, {X0}
v_xor_b32 v{vXA}, s{sT0}, v{u2}
v_xor_b32 v{vXA+1}, 32, v{vXA}
v_xor_b32 v{vXA+2}, 64, v{vXA}
v_xor_b32 v{vXA+3}, 96, v{vXA}
v_bfe_u32 v{t0}, v{vL}, 2, 2
v_bfe_u32 v{t1}, v{vL}, 4, 1
v_and_b32 v{t2}, 3, v{vL}
v_lshlrev_b32 v{t2}, 3, v{t2}
v_lshl_add_u32 v{t2}, v{t1}, 5, v{t2}
v_lshl_add_u32 v{t3}, v{u1}, 9, v{t2}
v_mul_u32_u24 v{u2}, 1088, v{t0}
s_lshl_b32 s{sT0}, s{sH}, 7
v_add3_u32 v{u2}, v{u2}, v{t3}, s{sT0}""")
assert X0 % 128 == 0
B3 = [l.replace(f"v_xor_b32 v{vXA}, s{sT0}, v{u2}", f"v_xad_u32 v{vXA}, v{u2}, s{sT1}, v{u3}") for l in B3]
i = B3.index(f"s_add_u32 s{sT0}, s{sT0}, s{sT1}")
B3[i:i+2] = [f"s_add_u32 s{sT0}, s{sT0}, {X0}", f"v_mov_b32 v{u3}, s{sT0}"]
for ks in range(4):
    B3 += lines(f"""s_xor_b32 s{sT1}, s{sT3}, {ks}
    s_mul_i32 s{sT1}, s{sT1}, 4352
    v_add_u32 v{vWA+ks}, s{sT1}, v{u2}
    v_add_u32 v{vWB+ks}, {W2S}, v{vWA+ks}""")
B3 += lines(f"""v_lshrrev_b32 v{u2}, 1, v{t0}
v_lshlrev_b32 v{u2}, 6, v{u2}
v_lshl_add_u32 v{u2}, v{t0}, 7, v{u2}
v_add3_u32 v{vA2B}, v{u2}, v{t3}, s{sM0R}
v_add_u32 v{u2}, v{u2}, v{t2}
v_lshl_add_u32 v{u2}, v{u1}, 10, v{u2}
s_lshl_b32 s{sT0}, s{sT3}, 5
s_add_u32 s{sT0}, s{sT0}, s{sH}
s_lshl_b32 s{sT0}, s{sT0}, 6
v_xor_b32 v{vP2A}, s{sT0}, v{u2}
v_xor_b32 v{vP2A+1}, 2048, v{vP2A}
v_xor_b32 v{vP2A+2}, 4096, v{vP2A}
v_xor_b32 v{vP2A+3}, 6144, v{vP2A}
v_xor_b32 v{u2}, v{t0}, v{t1}
v_and_b32 v{u2}, 1, v{u2}
v_cmp_eq_u32 vcc, 0, v{u2}
v_mov_b32 v{u2}, 0x3f803f80
s_mov_b32 s{sMASK}, 0xffff0000
s_mov_b32 s{sCNT}, {SPIN}""")
B3 += [f"v_cndmask_b32 v{vSEL+i}, 0, v{u2}, vcc" for i in range(4)]
emits(merge(B3, [grp(L) for L in chunk_pro(2, sU, sWOF)]))
stamp(6, 2)

e = vXR + 4
r0, r1 = vXR + 12, vXR + 13
vRC = vA2
def allsum(r):
    L = [f"v_add_f32_dpp v{r}, v{r}, v{r} row_ror:{s} row_mask:0xf bank_mask:0xf" for s in (8, 4, 2, 1)]
    L += [f"v_mov_b32 v{r1}, v{r}", f"v_permlane16_swap_b32 v{r}, v{r1}", f"v_add_f32 v{r}, v{r}, v{r1}",
          f"v_mov_b32 v{r1}, v{r}", f"v_permlane32_swap_b32 v{r}, v{r1}", f"v_add_f32 v{r}, v{r}, v{r1}"]
    return L
S = []
for j in range(4):
    S += [f"v_lshlrev_b32 v{e+2*j}, 16, v{vXR+j}", f"v_and_b32 v{e+2*j+1}, s{sMASK}, v{vXR+j}"]
S += [f"v_add_f32 v{vXR+j}, v{e+2*j}, v{e+2*j+1}" for j in range(4)]
S += [f"v_add_f32 v{vXR}, v{vXR}, v{vXR+1}", f"v_add_f32 v{vXR+2}, v{vXR+2}, v{vXR+3}", f"v_add_f32 v{r0}, v{vXR}, v{vXR+2}"]
S += allsum(r0)
S += [f"v_mul_f32 v{vRC}, 0xbb000000, v{r0}"]
S += [f"v_add_f32 v{e+j}, v{e+j}, v{vRC}" for j in range(8)]
S += [f"v_mul_f32 v{vXR+j}, v{e+j}, v{e+j}" for j in range(4)]
S += [f"v_fmac_f32 v{vXR+j}, v{e+4+j}, v{e+4+j}" for j in range(4)]
S += [f"v_add_f32 v{vXR}, v{vXR}, v{vXR+1}", f"v_add_f32 v{vXR+2}, v{vXR+2}, v{vXR+3}", f"v_add_f32 v{r0}, v{vXR}, v{vXR+2}"]
S += allsum(r0)
S += [f"v_mov_b32 v{r1}, 0x3727c5ac", f"v_fmac_f32 v{r1}, 0x3b000000, v{r0}", f"v_rsq_f32 v{vRC+2}, v{r1}",
      f"v_add_u32 v{vRC+3}, 1, v{vEP}", f"v_mul_f32 v{vRC+1}, v{r1}, v{vRC+2}", f"v_readfirstlane_b32 s{sTAG}, v{vRC+3}",
      f"v_mov_b32 v{vTG}, v{vRC+3}"]
SC = lines(f"""s_mov_b32 s{sW2+2}, {1376*1024}
s_mov_b32 s{sW2+3}, 0x00020000
s_mov_b32 s{sWO+2}, {512*1024}
s_mov_b32 s{sWO+3}, 0x00020000
s_mov_b32 s{sOUT+2}, {2048*1024}
s_mov_b32 s{sOUT+3}, 0x00020000
s_mov_b32 s{sHALF}, -0.5
s_mov_b32 s{sHALF+1}, -0.5
s_mov_b32 s{sISQ}, 0x3f3504f3
s_mov_b32 s{sISQ+1}, 0x3f3504f3
s_mov_b32 s{sLOm}, -1
s_mov_b32 s{sLOm+1}, 0
s_lshl_b32 s{sREC}, s{sREC}, 4
s_add_u32 s{sREC}, s{sREC}, {REC1}""")
for c in range(4, 8): SC += uoff(c, sU + c - 4, sWOF + c - 4)
SC += lines(f"""s_lshr_b32 s{sST2}, s{sSTE}, 1
s_lshl_b32 s{sT0}, s{sH}, 7
s_add_u32 s{sRHO}, s{sRHO}, s{sT0}""")
for i in range(4): SC += uoff(2 * i, sT0, sWEF + i)

C1 = lines(f"""s_and_b32 s{sT0}, s2, 7
s_bfe_u32 s{sT1}, s2, 0x20003
s_lshl2_add_u32 s{sRB2}, s{sT0}, s{sT1}      ; rb2
s_lshr_b32 s{sCB}, s2, 5                     ; cb
s_lshl_b32 s{sT1}, s{sT1}, 1
s_xor_b32 s{sT1}, s{sT1}, s{sCB}
s_and_b32 s{sT1}, s{sT1}, {ROT2}
s_lshl_b32 s{sRA}, s{sT1}, 11
s_lshl_b32 s{sRW}, s{sT1}, 14
s_lshl_b32 s{sT0}, s{sH}, 9
s_add_u32 s{sT0}, s{sT0}, {CW}
v_lshl_add_u32 v{vCAR}, v{u0}, 4, s{sT0}
s_lshl_b32 s{sT0}, s{sSIG}, 2
v_add_u32 v{vCAW}, s{sT0}, v{vCAR}
s_lshl2_add_u32 s{sT0}, s{sRB}, s{sSIG}
s_lshl_b32 s{sT0}, s{sT0}, 9
s_add_u32 s{sT0}, s{sT0}, {REC1}
v_lshl_add_u32 v{vRA1}, v{u0}, 4, s{sT0}
s_lshr_b32 s{sT0}, s{sSIG}, 1
s_lshl1_add_u32 s{sT0}, s{sRB}, s{sT0}
s_mul_i32 s{sT0}, s{sT0}, 236
s_and_b32 s{sT1}, s{sSIG}, 1
s_add_u32 s{sT0}, s{sT0}, s{sT1}
s_lshl2_add_u32 s{sT1}, s{sGAM}, s{sT0}
s_lshl_b32 s{sT1}, s{sT1}, 10
s_add_u32 s{sSB0}, s{sT1}, {ACT}
s_lshl1_add_u32 s{sT1}, s{sG}, s{sH}
s_lshl2_add_u32 s{sT1}, s{sT1}, s{sT0}
s_lshl_b32 s{sT1}, s{sT1}, 10
s_add_u32 s{sC0}, s{sT1}, {ACT + 172*1024}
s_lshl3_add_u32 s{sT0}, s{sRB}, s{sG}
s_lshl1_add_u32 s{sT0}, s{sT0}, s{sTYPE}
s_lshl3_add_u32 s{sT0}, s{sT0}, s{sW}
s_lshl2_add_u32 s{sFL}, s{sT0}, {FLG}
s_and_b32 s{sSKIP}, s{sG}, 1
s_cmp_ge_u32 s{sG}, 6
s_cselect_b32 s{sSKIP}, 1, s{sSKIP}
s_lshl1_add_u32 s{sGAM}, s{sSIG}, s{sH}
s_mul_i32 s{sT3}, s{sGAM}, 11
s_add_u32 s{sT3}, s{sT3}, 1
s_lshr_b32 s{sT3}, s{sT3}, 1
s_min_u32 s{sT3}, s{sT3}, 38
s_mul_i32 s{sT0}, s{sRB2}, 59
s_add_u32 s{sT0}, s{sT0}, s{sT3}
s_lshl_b32 s{sT0}, s{sT0}, 12
s_add_u32 s{sT0}, s{sT0}, {ACT}
v_add_u32 v{vACT}, s{sT0}, v{vL16}
s_lshl_b32 s{sT1}, s{sGAM}, 1
s_sub_u32 s{sT1}, s{sT1}, s{sT3}
s_lshl_b32 s{sWDL}, s{sT1}, 15               ; wo rows - w2 rows (bytes, signed)
s_add_u32 s{sT1}, s{sT1}, 43
s_lshl_b32 s{sAO}, s{sT1}, 12
s_lshl_b32 s{sT0}, s{sT3}, 8
s_add_u32 s{sT0}, s{sT0}, s{sCB}
s_lshl_b32 s{sT0}, s{sT0}, 7
v_add_u32 v{vW2O}, s{sT0}, v{vW2O}
v_add_u32 v{vW2O+1}, {8192-1024}, v{vW2O}
s_lshr_b32 s{sT0}, s{sRB2}, 1
s_lshl3_add_u32 s{sT0}, s{sT0}, s{sGAM}
s_lshl_b32 s{sT0}, s{sT0}, 6
s_add_u32 s{sT0}, s{sT0}, {FLG}
v_and_b32 v{u2}, 15, v{vL}
v_lshl_add_u32 v{vFL}, v{u2}, 2, s{sT0}
s_and_b32 s{sT0}, s{sRB2}, 1
s_lshl_b32 s{sT0}, s{sT0}, 1
s_lshl_b32 s{sFM}, 0x3330, s{sT0}
s_mov_b32 s{sFM+1}, 0
s_lshl1_add_u32 s{sT0}, s{sRB2}, s{sH}
s_lshl_b32 s{sR2}, s{sT0}, 9
s_add_u32 s{sR2}, s{sR2}, {REC1}
s_lshl_b32 s{sT0}, s{sT0}, 10
s_lshl2_add_u32 s{sT1}, s{sCB}, s{sSIG}
s_add_u32 s{sT0}, s{sT0}, s{sT1}
s_lshl_b32 s{sOB}, s{sT0}, 5
v_lshl_add_u32 v{u3}, v{u1}, 2, v{t0}
v_lshlrev_b32 v{u3}, 5, v{u3}
v_lshl_add_u32 v{u3}, v{t1}, 4, v{u3}
v_bfe_u32 v{t3}, v{vL}, 1, 1
v_lshl_add_u32 v{u3}, v{t3}, 3, v{u3}
s_lshl_b32 s{sT0}, s{sH}, 10
s_add_u32 s{sT0}, s{sT0}, {WPHI}
v_add_u32 v{vPHA}, s{sT0}, v{u3}
v_bfe_i32 v{vSGN}, v{vL}, 2, 1
v_and_b32 v{vSGN}, 0x80008000, v{vSGN}
s_mov_b64 {sp(sEX)}, -1
s_lshl2_add_u32 s{sT3}, s{sG}, s{sSIG}
s_lshl_b32 s{sT2}, s{sSIG}, 5""")
emits(merge(C1, [grp(L) for L in chunk_pro(3, sU, sWOF)]))
stamp(7, 2)
a(f"""s_cmp_eq_u32 s{sTYPE}, 0
s_cbranch_scc0 L_pcB
v_add_u32 v{u0}, s{sT2}, v{u0}
s_mov_b32 s{sC0}, s{sSB0}
s_cmp_eq_u32 s{sH}, 0
s_cbranch_scc0 L_pcA1
s_lshl4_add_u32 s{sT0}, s{sT3}, s{sRB}
s_mul_i32 s{sT0}, s{sT0}, 1152
s_add_u32 s{sC0}, s{sT0}, {KVD}
s_add_u32 s{sC1}, s{sT0}, {KVD+1024}
s_mov_b64 {sp(sEX)}, 15
v_bfe_u32 v{u2}, v{vL}, 1, 2
v_lshlrev_b32 v{u3}, 1, v{u1}
v_xor_b32 v{u2}, v{u2}, v{u3}
v_lshlrev_b32 v{u2}, 4, v{u2}
v_lshl_add_u32 v{vPW0}, v{u0}, 6, v{u2}
v_add_u32 v{vPW0}, {PHI}, v{vPW0}
v_xor_b32 v{vPW1}, 16, v{vPW0}
v_lshl_add_u32 v{u1}, v{u1}, 3, v{t0}
v_and_b32 v{u2}, 1, v{vL}
v_lshl_add_u32 v{u2}, v{u2}, 1, v{t1}
v_lshrrev_b32 v{u3}, 1, v{t0}
v_xor_b32 v{u2}, v{u2}, v{u3}
v_lshlrev_b32 v{u2}, 4, v{u2}
v_lshl_add_u32 v{u2}, v{u1}, 6, v{u2}
v_lshl_add_u32 v{u2}, v{t3}, 3, v{u2}
s_lshl_b32 s{sT0}, s{sSIG}, 13
s_add_u32 s{sT0}, s{sT0}, {PHI}
v_add_u32 v{vKA0}, s{sT0}, v{u2}
v_xor_b32 v{vKA1}, 32, v{vKA0}
v_mul_u32_u24 v{u1}, 144, v{u1}
v_add_u32 v{u2}, s{sT2}, v{t2}
v_cmp_eq_u32 vcc, 1, v{t1}
v_mov_b32 v{u3}, 128
v_add_u32 v{u1}, {VIMG}, v{u1}
v_cndmask_b32 v{u2}, v{u2}, v{u3}, vcc
v_add_u32 v{vKB}, v{u1}, v{u2}
s_branch L_pcE
L_pcA1:
v_mul_u32_u24 v{vVP}, 144, v{u0}
v_add_u32 v{vVP}, {VIMG}, v{vVP}
v_lshl_add_u32 v{vVW}, v{u1}, 4, v{vVP}
s_branch L_pcD
L_pcB:
s_mul_i32 s{sT0}, s{sT3}, {16*1152}
s_add_u32 s{sT0}, s{sT0}, {KVD}
v_lshrrev_b32 v{u3}, 4, v{vL}
v_mul_u32_u24 v{u3}, 1152, v{u3}
v_add_u32 v{u3}, s{sT0}, v{u3}
s_lshl_b32 s{sT1}, s{sH}, 9
v_lshlrev_b32 v{t2}, 4, v{u2}
v_add3_u32 v{vGA}, v{u3}, v{t2}, s{sT1}
v_bfe_u32 v{vGZ}, v{vL}, 1, 2
v_mul_u32_u24 v{vGZ}, {4*1152}, v{vGZ}
v_and_b32 v{t3}, 1, v{vL}
v_lshl_add_u32 v{u3}, v{t3}, 4, v{u3}
s_lshl_b32 s{sT1}, s{sH}, 5
v_add3_u32 v{vGZ}, v{vGZ}, v{u3}, s{sT1}
s_lshl_b32 s{sT0}, s{sG}, 6
s_lshl2_add_u32 s{sT0}, s{sSIG}, s{sT0}
s_add_u32 s{sT0}, s{sT0}, {FLG}
v_lshl_add_u32 v{u3}, v{u2}, 9, s{sT0}
v_cmp_eq_u32 vcc, 1, v{t1}
s_or_b32 s{sFM}, s{sFM}, s{sMASK}
s_mul_i32 s{sT0}, s{sGAM}, 544
s_add_u32 s{sT0}, s{sT0}, {KVL}
v_cndmask_b32 v{vFL}, v{vFL}, v{u3}, vcc
v_lshl_add_u32 v{u3}, v{t1}, 3, s{sT0}
v_mul_u32_u24 v{vKW}, 272, v{u1}
v_add3_u32 v{vKW}, v{vKW}, v{u3}, v{t2}
v_mul_u32_u24 v{vZW}, 272, v{t3}
v_add_u32 v{vZW}, v{vZW}, v{u3}
v_and_b32 v{u3}, 3, v{vL}
v_bfe_u32 v{t3}, v{vL}, 2, 1
v_lshl_add_u32 v{u3}, v{t3}, 3, v{u3}
v_bfe_u32 v{t3}, v{vL}, 3, 1
v_lshl_add_u32 v{u3}, v{t3}, 2, v{u3}
v_cndmask_b32 v{u3}, v{u3}, 16, vcc
v_lshlrev_b32 v{u3}, 4, v{u3}
v_mul_u32_u24 v{u1}, 544, v{u1}
s_mul_i32 s{sT1}, s{sH}, 2176
s_add_u32 s{sT1}, s{sT1}, {KVL}
v_add3_u32 v{vKR}, v{u3}, v{u1}, s{sT1}
L_pcD:
s_add_u32 s{sC1}, s{sC0}, 2048
L_pcE:""")
stamp(8, 2)
a.wait(vm="xr")
emits(merge(S, SC))
stamp(9, 2)
a("s_mov_b64 exec, 1")
a.vmem(f"buffer_store_dwordx4 {v(vRC,4)}, off, {srd(sWS)}, s{sREC} sc1", "rec")
a("s_mov_b64 exec, -1")
for i in range(4): a(f"v_mov_b32 v{vT+i}, -1")

def p1_reads(t):
    c, ks = t >> 2, t & 3
    tg = f"k{t}"
    wa = (vWB if c & 2 else vWA) + ks
    po = (c & 1) * 17408
    L = [dsw(f"ds_read_b128 {v(vX+4*t,4)}, v{vXA+ks} offset:{(c&3)*16384}", tg)]
    for tile in range(2):
        b = vWF + 8 * ks + 4 * tile
        L.append(dsw(f"ds_read_b64_tr_b16 {v(b,2)}, v{wa} offset:{po+tile*64}", tg))
        L.append(dsw(f"ds_read_b64_tr_b16 {v(b+2,2)}, v{wa} offset:{po+tile*64+256}", tg))
    return L

def slot(j): return SL[j if j < 9 else j - 9]
def w_dma(j):
    so = (f"s_xor_b32 s{sT0}, s{sRW}, {j << 14}" if j < 8 else f"s_mov_b32 s{sT0}, {(j if j < 12 else j - 12) << 14}")
    d = srd(sW2 if j < 12 else sWO)
    return [[f"s_add_u32 m0, s{sM0R}, {slot(j)}", so],
            vm(f"buffer_load_dwordx4 v{vW2O}, {d}, s{sT0} offen lds", f"w{j}"),
            vm(f"buffer_load_dwordx4 v{vW2O+1}, {d}, s{sT0} offen offset:1024 lds", f"w{j}")]
def w_item(j):
    s, l0, l1 = w_dma(j)
    return fn(lambda: emits(s + [l0, l1]), 6)
def chunk_q(c):
    if c < 8:
        X = x_pair(c, sU + c - 4); W = w_pair(c, sWOF + c - 4)
        return [([m0x(c)], X[0]), ([], X[1]), ([m0w(c)], W[0]), ([], W[1])]
    if c < 10:
        Q = []
        for i in (2 * (c - 8), 2 * (c - 8) + 1):
            Q.append(([f"s_add_u32 m0, s{sM0R}, {P2B[i]}"],
                      vm(f"buffer_load_dwordx4 v{vWE0}, {srd(sWE)}, s{sWEF+i} offen lds", f"c{c}")))
            Q.append(([], vm(f"buffer_load_dwordx4 v{vWE1}, {srd(sWE)}, s{sWEF+i} offen offset:1024 lds", f"c{c}")))
        return Q
    Q = []
    for j in (0, 1):
        s, l0, l1 = w_dma(j)
        Q += [(s, l0), ([], l1)]
    return Q
def clr(sb, off=0): return f"buffer_store_dwordx4 {v(vT,4)}, v{vL16}, {srd(sWS)}, s{sb} offen offset:{off} sc1"
def clears():
    a.vmem(clr(sC0), "clr")
    a(f"s_mov_b64 exec, {sp(sEX)}")
    a.vmem(clr(sC1), "clr")
    a("s_mov_b64 exec, -1")
def clears2():
    a(f"""s_lshl1_add_u32 s{sT1}, s{sTYPE}, s{sSKIP}
    s_add_u32 s{sT2}, s{sC0}, 4096""")
    skip_if(f"s_cmp_lt_u32 s{sT1}, s{sH}", lambda: (a(clr(sT2)), a(clr(sT2, 2048))), "L_clr")
def flag_store():
    a(f"""s_mov_b64 exec, 1
    buffer_store_dword v{vTG}, off, {srd(sWS)}, s{sFL} sc1
    s_mov_b64 exec, -1""")
def rec1_load(tag="rec1"):
    a.vmem(f"buffer_load_dwordx4 {v(vBC,4)}, v{vRA1}, {srd(sWS)}, 0 offen sc1", tag)
EXTRA = {1: clears, 2: clears2, 18: lambda: skip_if(f"s_cmp_eq_u32 s{sTYPE}, 0", flag_store, "L_f0"), 22: rec1_load}

stamp(10, 2)
a.wait(vm="c0")
a("s_barrier")
stamp(2)
if FINE == 2: a("s_branch L_fin")
PRIO = opt("prio", 0)
if PRIO:
    skip_if(f"s_cmp_eq_u32 s{sH}, 1", lambda: a("s_setprio 1"), "L_prio")
LA = 2
SPL = opt("spl", 3)
for t in range(LA): emits(p1_reads(t))
DQ = []
for t in range(32):
    c, ks = t >> 2, t & 3
    if ks == 0 and c > 0: stamp(2 + c, 1)
    if t == 31:
        pt("e0")
        a.wait(vm="rec1")
        checked([f"v_cmp_ne_u32 vcc, s{sTAG}, v{vRSTD}"], lambda: rec1_load("x"), "L_rec1")
        a(f"""v_cndmask_b32 v{vBC}, v{vSD}, v{vBC}, {sLO}
        v_mov_b32 v{vRSTD}, v{vC1}
        v_mul_f32 v{vC1}, {LOG2E}, v{vC1}""")
        pt("e1")
        a.wait(vm="c8", lg="all")
        pt("e2")
        a("s_barrier")
        pt("e3")
        a.ds(f"ds_read_b128 {v(vT,4)}, v{vCAR}", "cw")
        a.ds(f"ds_read_b128 {v(vCS,4)}, v{vCAR} offset:1024", "cw")
    R = p1_reads(t + LA) if t + LA < 32 else []
    d = DQ.pop(0) if DQ else ([], None)
    a.wait(lg=f"k{t}")
    b = vWF + 8 * ks
    a(f"{MF} {v(vA0,16)}, {v(b,4)}, {v(vX+4*t,4)}, {'0' if t == 0 else v(vA0,16)}")
    emits(d[0] + R[:SPL])
    a(f"{MF} {v(vA1,16)}, {v(b+4,4)}, {v(vX+4*t,4)}, {'0' if t == 0 else v(vA1,16)}")
    emits(R[SPL:])
    if d[1]: d[1]()
    if ks == 0:
        for tile in range(2):
            a(f"{MF16} {v(vCS+4*tile,4)}, {v(vSEL,4)}, {v(b+4*tile,4)}, {'0' if c == 0 else v(vCS+4*tile,4)}")
    if t in EXTRA: EXTRA[t]()
    if ks == 1:
        if c < 7: a.wait(vm=f"c{c+1}")
        a("s_barrier")
        if c > 0: DQ += chunk_q(c + 3)
    if t == 29:
        a.ds(f"ds_write_b32 v{vCAW}, v{vCS}", "cw")
        a.ds(f"ds_write_b32 v{vCAW}, v{vCS+4} offset:1024", "cw")
for s, l in DQ:
    emits(s); l()
stamp(3)
pt("p1")
if X_STOP: a("s_branch L_fin")

def mish(acc, pk, tmp=vT):
    L = []
    for g in (0, 8):
        r = [acc + g + i for i in range(8)]; u = [tmp + i for i in range(8)]
        if pk:
            L += [f"v_pk_fma_f32 {P2(u[i])}, {P2(r[i])}, {P2(vC1)}, {sp(sHALF)} op_sel_hi:[1,0,1]" for i in range(0, 8, 2)]
            L += [f"v_exp_f32 v{u[i]}, v{u[i]}" for i in range(8)]
            L += [f"v_pk_add_f32 {P2(u[i])}, {P2(u[i])}, {sp(sISQ)}" for i in range(0, 8, 2)]
            L += [f"v_pk_fma_f32 {P2(u[i])}, {P2(u[i])}, {P2(u[i])}, {sp(sHALF)} neg_lo:[1,0,0] neg_hi:[1,0,0]" for i in range(0, 8, 2)]
            L += [f"v_rcp_f32 v{u[i]}, v{u[i]}" for i in range(8)]
            L += [f"v_pk_fma_f32 {P2(r[i])}, {P2(r[i])}, {P2(u[i])}, {P2(r[i])}" for i in range(0, 8, 2)]
        else:
            L += [f"v_fma_f32 v{u[i]}, v{r[i]}, v{vC1}, -0.5" for i in range(8)]
            L += [f"v_exp_f32 v{u[i]}, v{u[i]}" for i in range(8)]
            L += [f"v_add_f32 v{u[i]}, s{sISQ}, v{u[i]}" for i in range(8)]
            L += [f"v_fma_f32 v{u[i]}, -v{u[i]}, v{u[i]}, -0.5" for i in range(8)]
            L += [f"v_rcp_f32 v{u[i]}, v{u[i]}" for i in range(8)]
            L += [f"v_fmac_f32 v{r[i]}, v{r[i]}, v{u[i]}" for i in range(8)]
        L += [f"v_cvt_pk_bf16_f32 v{acc+g//2+i}, v{r[2*i]}, v{r[2*i+1]}" for i in range(4)]
        L.append(("half", g // 8))
    return L
def frag_store(reg, sb, half):
    return vm(f"buffer_store_dwordx4 {v(reg,4)}, v{vL16}, {srd(sWS)}, s{sb} offen offset:{half*2048} sc1", "st")
def mish_store(acc, pk, sb, tmp):
    return [frag_store(acc + 4 * x[1], sb, x[1]) if isinstance(x, tuple) else x for x in mish(acc, pk, tmp)]

def softmax(P, out, pk, m):
    L = [f"v_max3_f32 v{m}, v{P}, v{P+1}, v{P+2}", f"v_max3_f32 v{m+1}, v{P+3}, v{P+4}, v{P+5}"]
    for i in range(6, 14, 4):
        L += [f"v_max3_f32 v{m}, v{m}, v{P+i}, v{P+i+1}", f"v_max3_f32 v{m+1}, v{m+1}, v{P+i+2}, v{P+i+3}"]
    L += [f"v_max3_f32 v{m}, v{m}, v{P+14}, v{P+15}", f"v_max_f32 v{m}, v{m}, v{m+1}", f"v_mul_f32 v{m}, v{m}, v{vC1}"]
    if pk:
        L += [f"v_pk_fma_f32 {P2(P+i)}, {P2(P+i)}, {P2(vC1)}, {P2(m)} op_sel_hi:[1,0,0] neg_lo:[0,0,1] neg_hi:[0,0,1]" for i in range(0, 16, 2)]
        L += [f"v_exp_f32 v{P+i}, v{P+i}" for i in range(16)]
        L += [f"v_pk_add_f32 {P2(m)}, {P2(P)}, {P2(P+2)}", f"v_pk_add_f32 {P2(m+2)}, {P2(P+4)}, {P2(P+6)}"]
        L += [f"v_pk_add_f32 {P2(m+(i&2))}, {P2(m+(i&2))}, {P2(P+i)}" for i in range(8, 16, 2)]
        L += [f"v_pk_add_f32 {P2(m)}, {P2(m)}, {P2(m+2)}", f"v_add_f32 v{m}, v{m}, v{m+1}", f"v_rcp_f32 v{m}, v{m}"]
        L += [f"v_pk_mul_f32 {P2(P+i)}, {P2(P+i)}, {P2(m)} op_sel_hi:[1,0]" for i in range(0, 16, 2)]
    else:
        L += [f"v_fma_f32 v{P+i}, v{P+i}, v{vC1}, -v{m}" for i in range(16)]
        L += [f"v_exp_f32 v{P+i}, v{P+i}" for i in range(16)]
        L += [f"v_add_f32 v{m+i}, v{P+2*i}, v{P+2*i+1}" for i in range(4)]
        L += [f"v_add_f32 v{m+(i&3)}, v{m+(i&3)}, v{P+i}" for i in range(8, 16)]
        L += [f"v_add_f32 v{m}, v{m}, v{m+1}", f"v_add_f32 v{m+2}, v{m+2}, v{m+3}", f"v_add_f32 v{m}, v{m}, v{m+2}", f"v_rcp_f32 v{m}, v{m}"]
        L += [f"v_mul_f32 v{P+i}, v{P+i}, v{m}" for i in range(16)]
    L += [f"v_cvt_pk_bf16_f32 v{out+i}, v{P+2*i}, v{P+2*i+1}" for i in range(8)]
    return L

def corr(pairs, bias):
    L = [wt(lg="cw")]
    if bias: L = [f"v_lshlrev_b32 v{vBA+i}, 16, v{vBA+i}" for i in range(len(pairs))] + L
    for q, _ in pairs: L += [f"v_add_f32 v{q}, v{q}, v{q+1}", f"v_add_f32 v{q+2}, v{q+2}, v{q+3}"]
    for q, _ in pairs: L += [f"v_add_f32 v{q}, v{q}, v{q+2}"]
    for i, (q, _) in enumerate(pairs): L += [f"v_cndmask_b32 v{q}, {v(vBA+i) if bias else 0}, v{q}, {sLO}"]
    for q, acc in pairs: L += [f"{MF32} {v(acc,16)}, v{q}, v{vBC}, {v(acc,16)}"]
    return L
def phi_frags(dst, n, off=0):
    R = [dsw(f"ds_read_b64_tr_b16 {v(dst+2*i,2)}, v{vPHA} offset:{off+256*i}", "ph") for i in range(2 * n)]
    return R, [f"v_xor_b32 v{dst+i}, v{vSGN}, v{dst+i}" for i in range(4 * n)]

vP2X = 44
def p2_reads(t, two):
    off = P2B[t >> 3] + ((t >> 2) & 1) * 8192
    L = []
    for k in range(2 if two else 1):
        b = vWF + (8 * (t & 3) + 4 * k if two else 4 * (t & 3))
        ad = ((vP2X if k == 0 else vP2A) if two else vP2A) + (t & 3)
        L.append(dsw(f"ds_read_b64_tr_b16 {v(b,2)}, v{ad} offset:{off}", f"p{t}"))
        L.append(dsw(f"ds_read_b64_tr_b16 {v(b+2,2)}, v{ad} offset:{off+512}", f"p{t}"))
    return L
def pass2(accs, side):
    two = len(accs) == 2
    for t in range(32):
        if t == 0: pt("q0")
        if t == 13:
            pt("m0")
            a.wait(vm="c9", lg="all")
            pt("m1")
            a("s_barrier")
            pt("m2")
        a.wait(lg=f"p{t}")
        R = p2_reads(t + 3, two) if t + 3 < 32 else []
        for k, acc in enumerate(accs):
            b = vWF + (8 * (t & 3) + 4 * k if two else 4 * (t & 3))
            a(f"{MF} {v(acc,16)}, {v(b,4)}, {v(vX+4*t,4)}, {'0' if t == 0 else v(acc,16)}")
            emits(R[2*k:2*k+2])
        if (t & 3) == 1:
            for k in range(len(accs)):
                b = vWF + (8 * (t & 3) + 4 * k if two else 4 * (t & 3))
                a(f"{MF16} {v(vCS+4*k,4)}, {v(vSEL,4)}, {v(b,4)}, {'0' if t == 1 else v(vCS+4*k,4)}")
        if t == 30:
            for k in range(len(accs)): a.ds(f"ds_write_b32 v{vCAW}, v{vCS+4*k} offset:{1024*k}", "cw")
        emits(side.get(t, []))

vACC = 64
vAB, vWR = 128, 192
vA2U, vA2T, vA2L = 1, 3, 38
vOO, vRW, vRR, vRSA = 5, 7, 8, 9
vFV = 13
vRS2, vRES = 14, 16
vS0 = 24
vC0 = 32
vEC = 34
def areg(j): return vAB + 8 * j if j < 8 else ([40, 48, 56, 248][j - 8] if j < 12 else vAB + 8 * (j - 12))
def wreg(j): return vWR + 8 * (j if j < 7 else (j - 7) % 7)
def p2_addrs():
    return lines(f"""v_add_u32 v{vA2U+1}, {X2}, v{vA2B}
    v_add_u32 v{vA2T+1}, {RT}, v{vA2B}
    v_xor_b32 v{vA2U}, 64, v{vA2U+1}
    v_xor_b32 v{vA2T}, 64, v{vA2T+1}""")
def p2_addrL(): return [f"v_xor_b32 v{vA2L}, 64, v{vA2B}"]
def w_read(j):
    s = slot(j)
    ad, off = (vA2T, s - RT) if s >= RT else ((vA2U, s - X2) if s >= X2 else (vA2L, s))
    L = [wt(vm=f"w{j}")]
    for b in range(2):
        L.append(dsw(f"ds_read_b64_tr_b16 {v(wreg(j)+4*b,2)}, v{ad+1-b} offset:{off}", f"r{j}"))
        L.append(dsw(f"ds_read_b64_tr_b16 {v(wreg(j)+4*b+2,2)}, v{ad+1-b} offset:{off+1024}", f"r{j}"))
    return L
def w_refill(j):
    return [wt(lg=f"r{j-9}"), w_item(j)]
def wo_switch(): return [f"v_add_u32 v{vW2O+i}, s{sWDL}, v{vW2O+i}" for i in range(2)]
def a_load(j, tag=None, st=(0, 1)):
    def p():
        if j < 8: a(f"s_xor_b32 s{sT1}, s{sRA}, {j << 11}")
        elif j < 12: a(f"s_movk_i32 s{sT1}, {j << 11}")
        else: a(f"s_add_u32 s{sT1}, s{sAO}, {(j - 12) << 11}")
        for s in st:
            a.vmem(f"buffer_load_dwordx4 {v(areg(j)+4*s,4)}, v{vACT}, {srd(sWS)}, s{sT1} offen offset:{1024*s} sc1", tag or f"a{j}")
    return fn(p, 6)
def p6(body): skip_if(f"s_cmp_lt_u32 s{sW}, 3", body, "L_p6")
def poll(tag="fl"): return vm(f"buffer_load_dword v{vFV}, v{vFL}, {srd(sWS)}, 0 offen sc1", tag)
def poll_check():
    a.wait(vm="fl")
    checked([f"v_cmp_ne_u32 vcc, s{sTAG}, v{vFV}", f"s_and_b64 vcc, vcc, {sp(sFM)}"], poll("x"), "L_fl")
def selectors(tmp):
    L = lines(f"""v_and_b32 v{tmp}, 1, v{vL}
    v_mov_b32 v{tmp+1}, 0x3f80
    v_lshlrev_b32 v{tmp}, 4, v{tmp}
    v_lshlrev_b32 v{tmp+1}, v{tmp}, v{tmp+1}
    v_bfe_u32 v{tmp}, v{vL}, 1, 3""")
    for r in range(0, 8, 2):
        L += [f"v_cmp_eq_u32 vcc, {r}, v{tmp}", f"v_cmp_eq_u32 {sp(sU)}, {r+1}, v{tmp}",
              f"v_cndmask_b32 v{vS0+r}, 0, v{tmp+1}, vcc", f"v_cndmask_b32 v{vS0+r+1}, 0, v{tmp+1}, {sp(sU)}"]
    return L
def tail_addrs():
    x = vC0
    L = lines(f"""v_and_b32 v{x}, 15, v{vL}
    v_lshrrev_b32 v{x+1}, 5, v{vL}
    v_lshl_add_u32 v{x+1}, v{x+1}, 4, v{x}
    v_lshlrev_b32 v{vRSA}, 4, v{x+1}
    v_and_b32 v{vOO}, 16, v{vL}
    v_lshl_add_u32 v{vOO}, v{x+1}, 10, v{vOO}
    s_add_u32 s{sT2}, s{sM0R}, {X3}
    v_add_u32 v{vRW}, s{sT2}, v{vL16}
    s_lshr_b32 s{sT2}, s{sW}, 1
    s_mov_b32 s{sRED}, {REDR[0]}""")
    for i in range(1, 4): L += [f"s_cmp_eq_u32 s{sT2}, {i}", f"s_cselect_b32 s{sRED}, {REDR[i]}, s{sRED}"]
    L += lines(f"""s_and_b32 s{sT2}, s{sW}, 1
    s_lshl_b32 s{sT2}, s{sT2}, 10
    s_add_u32 s{sRED}, s{sRED}, s{sT2}
    v_lshl_add_u32 v{x}, v{x}, 4, s{sRED}
    v_lshrrev_b32 v{x+1}, 4, v{vL}
    v_lshl_add_u32 v{vRR}, v{x+1}, 11, v{x}""")
    return L
def rs_load(tag="rs"): return vm(f"buffer_load_dwordx2 {P2(vRS2)}, v{vRSA}, {srd(sWS)}, s{sR2} offen offset:8 sc1", tag)
def res_load(): return vm(f"buffer_load_dwordx4 {v(vRES,4)}, v{vOO}, {srd(sX)}, s{sOB} offen", "res")
def ep_loads():
    a(f"v_lshlrev_b32 v10, 5, v{vL}")
    for i in range(4):
        a(f"s_mov_b32 s{sT2}, {FLG + i*2048}")
        a(f"buffer_load_dword v{vEC+i}, v10, {srd(sWS)}, s{sT2} offen sc1")
def if_first(body):
    a(f"s_or_b32 s{sT2}, s2, s{sW}")
    skip_if(f"s_cmp_eq_u32 s{sT2}, 0", body, "L_ep")
def sentinel(js, st, reload):
    regs = [areg(j) + 4 * s for j in js for s in st]
    assert len(regs) == 4
    checked([f"v_max3_u32 v{vC0}, v{regs[0]}, v{regs[1]}, v{regs[2]}", f"v_max_u32 v{vC0}, v{vC0}, v{regs[3]}",
             f"v_cmp_eq_u32 vcc, -1, v{vC0}"], reload, "L_s")
def step_mfma(j, st, first=False, gaps=()):
    gaps = list(gaps)
    for s in st:
        for b in range(2):
            acc = vACC + 32 * s + 16 * b
            a(f"{MF} {v(acc,16)}, {v(wreg(j)+4*b,4)}, {v(areg(j)+4*s,4)}, {'0' if first else v(acc,16)}")
            if gaps: emits(gaps.pop(0))
    for g in gaps: emits(g)
def split(L, n):
    tot = sum(cost(x) for x in L); G = [[] for _ in range(n)]; acc = 0
    for x in L:
        G[min(n - 1, int(acc * n / max(tot, 1)))].append(x); acc += cost(x)
    return G

CPOS, OPOS = opt("cpos", 2), opt("opos", 8)
def phase2(six, first_wg, side):
    def add(j, L): side[j] = side.get(j, []) + L
    add(CPOS, [a_load(8), a_load(9)])
    if six: add(CPOS, [fn(lambda: p6(lambda: (a_load(10)(), a_load(11)())), 6)])
    o_loads = [a_load(j, "o0", (0,)) for j in range(12, 16)] + [a_load(j, "o1", (1,)) for j in range(12, 16)]
    add(OPOS, o_loads)
    for j, k in ((7, 1), (8, 2), (9, 3), (12, 6), (13, 7), (14, 8), (15, 9)): add(k, w_read(j))
    if six:
        add(5, [wt(vm="w12"), fn(lambda: p6(lambda: emits(w_read(10) + w_read(11))), 8)])
    for j in range(10):
        if j == 8:
            a.wait(vm="a9")
            sentinel((8, 9), (0, 1), lambda: (a_load(8, "x")(), a_load(9, "x")()))
        a.wait(vm=f"a{j}", lg=f"r{j}")
        if j == 0: stamp(7)
        step_mfma(j, (0, 1), j == 0, split(side.get(j, []), 4))
    if six:
        def body():
            a("s_waitcnt vmcnt(8)" if OPOS > CPOS else "s_waitcnt vmcnt(0)")
            sentinel((10, 11), (0, 1), lambda: (a_load(10, "x")(), a_load(11, "x")()))
            for j in (10, 11): step_mfma(j, (0, 1))
        assert a.vm[-8:] == ["o0"] * 4 + ["o1"] * 4
        p6(body)
    stamp(8)
    a.wait(vm="o0", lg="all")
    sentinel(range(12, 16), (0,), lambda: emits([a_load(j, "x") for j in range(12, 16)]))
    checked([f"v_cmp_ne_u32 vcc, s{sTAG}, v{vRS2+1}"], rs_load("x"), "L_rs")
    U = []
    for j in range(4): U += [f"v_lshlrev_b32 v{40+2*j}, 16, v{vRES+j}", f"v_and_b32 v{41+2*j}, s{sMASK}, v{vRES+j}"]
    G = split(U, 8)
    for j in range(12, 16): step_mfma(j, (0,), False, G[2*(j-12):2*(j-12)+2])
    a.wait(vm="o1")
    sentinel(range(12, 16), (1,), lambda: emits([a_load(j, "x", (1,)) for j in range(12, 16)]))
    def pack(k):
        acc = vACC + 16 * k; L = []
        for hf in range(2):
            L += [f"v_cvt_pk_bf16_f32 v{acc+4*hf+i}, v{acc+8*hf+2*i}, v{acc+8*hf+2*i+1}" for i in range(4)]
            L += [dsw(f"ds_write_b128 v{vRW}, {v(acc+4*hf,4)} offset:{REDR[k]-X3+1024*hf}")]
        return L
    G = [[]] + split(pack(0) + pack(1), 7)
    for j in range(12, 16): step_mfma(j, (1,), False, G[2*(j-12):2*(j-12)+2])
    if first_wg:
        def ep():
            checked([f"v_xor_b32 v{vEC+i}, s{sTAG}, v{vEC+i}" for i in range(4)] +
                    [f"v_or3_b32 v{vEC}, v{vEC}, v{vEC+1}, v{vEC+2}", f"v_or_b32 v{vEC}, v{vEC}, v{vEC+3}", f"v_cmp_ne_u32 vcc, 0, v{vEC}"],
                    ep_loads, "L_epc")
            a(f"""v_mov_b32 v{vEC}, s{sTAG}
            s_mov_b64 exec, 1
            buffer_store_dword v{vEC}, off, {srd(sWS)}, 0 sc1
            s_mov_b64 exec, -1""")
        if_first(ep)
    emits(pack(2) + pack(3))
    a.wait(lg="all")
    a("s_barrier")
    for p in range(4):
        for k in range(2):
            a.ds(f"ds_read_b128 {v(vAB+8*p+4*k,4)}, v{vRR} offset:{8192*k+256*p}", f"t{p}{k}")
    D = vWR
    for p in (0, 2, 1, 3):
        for k in range(2):
            a.wait(lg=f"t{p}{k}")
            d = D + 4 * (p >> 1)
            a(f"{MF16} {v(d,4)}, {v(vS0+4*(p&1),4)}, {v(vAB+8*p+4*k,4)}, {'0' if (p & 1) == 0 and k == 0 else v(d,4)}")
    for j in range(0, 8, 2): a(f"v_pk_fma_f32 {P2(D+j)}, {P2(D+j)}, {P2(vRS2)}, {P2(40+j)} op_sel_hi:[1,0,1]")
    for j in range(4): a(f"v_cvt_pk_bf16_f32 v{D+8+j}, v{D+2*j}, v{D+2*j+1}")
    a(f"buffer_store_dwordx4 {v(D+8,4)}, v{vOO}, {srd(sOUT)}, s{sOB} offen")
    stamp(9)
    a("s_branch L_fin")
def refills(six, js):
    L = []
    for j in js:
        if j == 12: L += wo_switch()
        if j == 10:
            if six: L += [wt(lg="r2"), fn(lambda: p6(lambda: (w_item(10)(), w_item(11)())), 8)]
        elif j != 11: L += w_refill(j)
    return L

st1 = a.save()
a(f"""s_cmp_eq_u32 s{sTYPE}, 0
s_cbranch_scc0 L_B
s_cmp_eq_u32 s{sH}, 0
s_cbranch_scc0 L_A1""")
PKA = opt("pka", 0)
R0_, X0_ = phi_frags(56, 2); R1_, X1_ = phi_frags(248, 2, 1024)
emits(R0_ + corr([(vT, vA0), (vCS, vA1)], False))
emits(R1_ + p2_addrs() + [wt(lg="ph")] + X0_ + X1_)
kb = 40
PH = [56, 60, 248, 252]; PP = [64, 80, 96, 112]
for tl, acc in enumerate((vA0, vA1)):
    for j in range(8): a(f"v_cvt_pk_bf16_f32 v{kb+8*tl+j}, v{acc+2*j}, v{acc+2*j+1}")
    if tl == 0:
        for hd in range(2): a(f"{MF} {v(PP[hd],16)}, {v(PH[hd],4)}, {v(kb+4*hd,4)}, 0")
for hd in range(2, 4): a(f"{MF} {v(PP[hd],16)}, {v(PH[hd],4)}, {v(kb+4*hd,4)}, 0")
def ksoft(hd):
    P = PP[hd]
    return softmax(P, P, PKA, vT) + [dsw(f"ds_write_b128 v{vPW0}, {v(P,4)} offset:{hd*8192}"),
                                     dsw(f"ds_write_b128 v{vPW1}, {v(P+4,4)} offset:{hd*8192}")]
pt("q0")
emits(ksoft(0) + ksoft(1))
pt("m0")
a.wait(vm="c9")
pt("m1")
a("s_barrier")
pt("m2")
stamp(4)
emits(merge(ksoft(2) + ksoft(3), [w_item(2), w_item(3)], 0, 60))
a.wait(lg="all")
a("s_barrier")
stamp(5)
KB = [vA1, vA1 + 8, 40]
def kv_reads(t):
    b = KB[t % 3]
    a.ds(f"ds_read_b64_tr_b16 {v(b,2)}, v{vKA0} offset:{t*1024}", f"kv{t}")
    a.ds(f"ds_read_b64_tr_b16 {v(b+2,2)}, v{vKA1} offset:{t*1024+256}", f"kv{t}")
    a.ds(f"ds_read_b64_tr_b16 {v(b+4,2)}, v{vKB} offset:{t*2304}", f"kv{t}")
    a.ds(f"ds_read_b64_tr_b16 {v(b+6,2)}, v{vKB} offset:{t*2304+576}", f"kv{t}")
for t in range(3): kv_reads(t)
for t in range(8):
    a.wait(lg=f"kv{t}")
    b = KB[t % 3]
    a(f"{MF} {v(vA0,16)}, {v(b,4)}, {v(b+4,4)}, {'0' if t == 0 else v(vA0,16)}")
    if t >= 1 and t + 2 < 8: kv_reads(t + 2)
emits(p2_addrL() + [poll()])
for i in range(8): a(f"v_cvt_pk_bf16_f32 v{vA1+i}, v{vA0+2*i}, v{vA0+2*i+1}")
for i in range(4): a(f"v_permlane16_swap_b32 v{vA1+i}, v{vA1+4+i}")
a.vmem(f"buffer_store_dwordx4 {v(vA1,4)}, v{vL16}, {srd(sWS)}, s{sC0} offen sc1", "st")
a("""s_mov_b32 exec_lo, 0x00010001
s_mov_b32 exec_hi, 0x00010001""")
a.vmem(f"buffer_store_dwordx4 {v(vA1+4,4)}, v{vL}, {srd(sWS)}, s{sC1} offen sc1", "st")
a("s_mov_b64 exec, -1")
emits(sum([w_read(j) for j in range(4)], []) + refills(True, (9, 10, 11)) + tail_addrs())
a("s_barrier")
stamp(6)
emits([w_item(j) for j in range(4, 9)])
poll_check()
emits(merge(selectors(vC0), [a_load(j) for j in range(8)]))
emits([rs_load(), res_load()] + refills(True, (12,)) + sum([w_read(j) for j in range(4, 7)], []))
phase2(True, True, {0: refills(True, (13, 14, 15)), 1: [fn(lambda: if_first(ep_loads), 4)]})

a.label("L_A1")
a.restore(st1)
emits([f"v_xor_b32 v{vP2X+i}, 64, v{vP2A+i}" for i in range(4)] + corr([(vT, vA0), (vCS, vA1)], False))
for t in range(3): emits(p2_reads(t, True))
a(f"""v_mov_b32 v{vT}, 0x3f803f80
v_mov_b32 v{vT+1}, 0x3f803f80""")
a.ds(f"ds_write_b64 v{vVP}, {v(vT,2)} offset:128", "w")
emits(p2_addrs() + p2_addrL())
for tl, acc in enumerate((vA0, vA1)):
    for i in range(0, 16, 2): a(f"v_pk_mul_f32 {P2(acc+i)}, {P2(acc+i)}, {P2(vC1)} op_sel:[0,1] op_sel_hi:[1,1]")
    for hf in range(2):
        d = [40, vT + 4, 60, vT][2 * tl + hf]
        for i in range(4): a(f"v_cvt_pk_bf16_f32 v{d+i}, v{acc+8*hf+2*i}, v{acc+8*hf+2*i+1}")
        a.ds(f"ds_write_b128 v{vVW}, {v(d,4)} offset:{64*tl+32*hf}", "w")
SPOS = opt("spos", 24)
pass2([vA0, vA1], {13: [fn(lambda: stamp(4), 0), w_item(2)], 15: [w_item(3)], SPOS: ["s_barrier", fn(lambda: stamp(5), 0)], 29: [poll()]})
a.wait(lg="all")
a("s_barrier")
stamp(6)
a.ds(f"ds_read_b128 {v(vT,4)}, v{vCAR}", "cw")
a.ds(f"ds_read_b128 {v(vCS,4)}, v{vCAR} offset:1024", "cw")
emits([w_item(4)] + corr([(vT, vA0), (vCS, vA1)], True) + [w_item(5)] + sum([w_read(j) for j in range(4)], []))
a(f"s_add_u32 s{sT3}, s{sC0}, 4096")
emits(merge(mish_store(vA0, True, sC0, vT), [w_item(j) for j in range(6, 9)] + refills(False, (9,))))
poll_check()
skip_if(f"s_cmp_eq_u32 s{sSKIP}, 0", lambda: emits(mish_store(vA1, True, sT3, vT)), "L_skc")
emits(merge(tail_addrs() + selectors(vC0), [a_load(j) for j in range(8)]))
emits([rs_load(), res_load()] + refills(False, (12,)) + sum([w_read(j) for j in range(4, 7)], []))
phase2(False, False, {0: refills(False, (13, 14, 15))})

a.label("L_B")
a.restore(st1)
emits(corr([(vT, vA0), (vCS, vA1)], True) + [w_item(6), f"s_add_u32 s{sT3}, s{sSB0}, 4096"] + p2_addrs())
MB = merge(mish_store(vA0, True, sSB0, 40) + mish_store(vA1, True, sT3, 40), [w_item(7), w_item(8)], 0, 60)
emits(merge(MB, sum([p2_reads(t, False) for t in range(3)], []), len(MB) - 20))
stamp(4)
vPHB = 40
RB_, XB_ = phi_frags(vPHB, 2)
FPOS = opt("fpos", 10)
pass2([vA2], {FPOS: [wt(vm="st"), flag_store], 13: [w_item(2)], 15: [w_item(3)], 18: RB_, 22: XB_[:4], 23: XB_[4:]})
stamp(5)
a.wait(lg="all")
a("s_barrier")
stamp(6)
a.ds(f"ds_read_b128 {v(vT,4)}, v{vCAR}", "cw")
emits([poll(), w_item(4)] + corr([(vT, vA2)], False) + [w_item(5)] + w_read(0) + w_read(1) + w_read(6))
for j in range(8): a(f"v_cvt_pk_bf16_f32 v{vT+j}, v{vA2+2*j}, v{vA2+2*j+1}")
a(f"{MF} {v(vA2,16)}, {v(vPHB,4)}, {v(vT,4)}, 0")
a(f"{MF} {v(vA1,16)}, {v(vPHB+4,4)}, {v(vT+4,4)}, 0")
vA2L = 7
a(f"""v_mov_b32 v{vA2L+1}, v{vA2B}
v_xor_b32 v{vA2L}, 64, v{vA2B}""")
emits(w_read(2) + w_read(3) + refills(True, (9,)))
poll_check()
vTL, vZL = 40, 72
def t_load(i, tag=None):
    def p():
        a(f"s_movk_i32 s{sT1}, {(i>>1)*4*1152}")
        a.vmem(f"buffer_load_dwordx4 {v(vTL+4*i,4)}, v{vGA}, {srd(sWS)}, s{sT1} offen offset:{(i&1)*256} sc1", tag or "t")
    return fn(p, 4)
def z_load(tag=None): return vm(f"buffer_load_dwordx4 {v(vZL,4)}, v{vGZ}, {srd(sWS)}, 0 offen offset:1024 sc1", tag or "t")
GPOS = opt("gpos", 4)
AL = [a_load(j) for j in range(8)]
side2 = AL[:GPOS] + [z_load()] + [t_load(i) for i in range(8)] + AL[GPOS:] + refills(True, (10, 11, 12, 15))
vPQ = [vA2, vA1]
emits(merge(softmax(vA2, vA2, True, 96) + softmax(vA1, vA1, True, 96) + selectors(96), side2))
emits(w_read(4) + w_read(5))
a.wait(vm="t")
def t_reload():
    z_load("x")()
    for i in range(8): t_load(i, "x")()
vD, vDZ = 96, 100
checked([f"v_max3_u32 v{vD}, v{vTL}, v{vTL+4}, v{vTL+8}", f"v_max3_u32 v{vD+1}, v{vTL+12}, v{vTL+16}, v{vTL+20}",
         f"v_max3_u32 v{vD}, v{vD}, v{vTL+24}, v{vTL+28}", f"v_max3_u32 v{vD}, v{vD}, v{vD+1}, v{vZL}",
         f"v_cmp_eq_u32 vcc, -1, v{vD}"], t_reload, "L_t")
a(f"{MF16} {v(vDZ,4)}, {v(vS0,4)}, {v(vZL,4)}, 0")
for i in range(8):
    a(f"{MF16} {v(vD,4)}, {v(vS0+4*(i&1),4)}, {v(vTL+4*i,4)}, {'0' if i == 0 else v(vD,4)}")
for sh in (2, 4):
    for j in range(4): a(f"v_add_f32_dpp v{vDZ+j}, v{vDZ+j}, v{vDZ+j} row_ror:{sh} row_mask:0xf bank_mask:0xf")
a(f"""v_cvt_pk_bf16_f32 v{vDZ}, v{vDZ}, v{vDZ+1}
v_cvt_pk_bf16_f32 v{vDZ+1}, v{vDZ+2}, v{vDZ+3}
s_mov_b64 exec, 0x30003
ds_write_b64 v{vZW}, {v(vDZ,2)} offset:256
s_mov_b64 exec, -1
v_cvt_pk_bf16_f32 v{vD}, v{vD}, v{vD+1}
v_cvt_pk_bf16_f32 v{vD+1}, v{vD+2}, v{vD+3}
ds_write_b64 v{vKW}, {v(vD,2)}""")
a.wait(lg="all")
a("s_barrier")
vKF = 96
for hh in range(2):
    for j in range(2):
        a.ds(f"ds_read_b128 {v(vKF+8*hh+4*j,4)}, v{vKR} offset:{hh*1088+j*272}", f"kf{hh}")
emits(refills(True, (13,)))
for hh, D in ((0, vTL), (1, vTL + 16)):
    a.wait(lg=f"kf{hh}")
    a(f"{MF} {v(D,16)}, {v(vKF+8*hh,4)}, {v(vPQ[hh],4)}, 0")
    a(f"{MF} {v(D,16)}, {v(vKF+8*hh+4,4)}, {v(vPQ[hh]+4,4)}, {v(D,16)}")
emits(refills(True, (14,)))
vA2L = 38
emits(p2_addrL())
for hh, D in ((0, vTL), (1, vTL + 16)):
    a(f"v_add_f32 v{D+8}, 0x358637bd, v{D+8}")
    a(f"v_rcp_f32 v{D+8}, v{D+8}")
    a(f"v_mul_f32 v{D+8}, v{D+8}, v{vSD}")
    for i in range(0, 8, 2): a(f"v_pk_mul_f32 {P2(D+i)}, {P2(D+i)}, {P2(D+8)} op_sel_hi:[1,0]")
    for i in range(4): a(f"v_cvt_pk_bf16_f32 v{248+4*hh+i}, v{D+2*i}, v{D+2*i+1}")
    frag_store(248 + 4 * hh, sC0, hh)()
phase2(True, False, {0: tail_addrs() + [rs_load(), res_load()]})

for blk in retries: blk()
a.label("L_fin")
if STAMP >= 0:
    n = nst[0]
    a(f"""s_cmp_eq_u32 s{sW}, {STAMP}
    s_cbranch_scc0 L_end
    s_waitcnt lgkmcnt(0)
    s_sub_u32 s{sT0}, {SPIN}, s{sCNT}
    s_mul_i32 s{sT0}, s{sT0}, 100
    s_add_u32 s{sST0+2}, s{sST0}, s{sT0}
    s_addc_u32 s{sST0+3}, s{sST0+1}, 0
    s_mul_i32 s{sT0}, s2, {n*8}
    s_add_u32 s{sT0}, s{sT0}, {STAMP_OFF}
    s_mov_b64 exec, 1""")
    for i in range(n):
        if FINE == 2 and i > 2:
            a(f"v_mov_b32 v{64+2*i}, v{200+2*i}")
            a(f"v_mov_b32 v{65+2*i}, v{201+2*i}")
        else:
            a(f"v_mov_b32 v{64+2*i}, s{sST0+2*i}")
            a(f"v_mov_b32 v{65+2*i}, s{sST0+2*i+1}")
        a(f"buffer_store_dwordx2 {v(64+2*i,2)}, off, {srd(sWS)}, s{sT0} offset:{i*8}")
a.label("L_end")
a.pad()
open(out_path, "w").write(header(256, 512, LDS_SIZE) + a.text() + footer(vgpr=256))
print("instructions:", sum(1 for x in a.L if x.states), "nops:", sum(1 for x in a.L if x.kind == "nop"), "stamps", nst[0])
```

```python
import sys
from asmdsl import Asm
from gen_common import header, footer

OPT = dict(a.split("=") for a in sys.argv[2:])
def opt(k, d): return type(d)(OPT.get(k, d))
STAMP = opt("stamp", -1)
CYC = opt("cyc", 0)
FINE = 3 if "pts" in OPT else opt("fine", 0)
X_STOP = opt("stop", 0)
ROTM = opt("rotm", 7)
ROT2 = opt("rot2", 7)
out_path = sys.argv[1]

W0, W1, X0, X1, X2, X3, W2S, W3S = 0, 17408, 34816, 51200, 67584, 83968, 100352, 117760
XS = [X0, X1, X2, X3]; WSL = [W0, W1, W2S, W3S]
RT = 136192
MISC = RT + 16384
CW, WPHI, KVL = MISC, MISC + 2048, MISC + 4096
PHI, VIMG = X2, W3S
P2B = [W0, X0, W1, X1]
SL = [RT, W2S, W0, X0, W1, X1, X2, X3, W3S]
REDR = [X3, W3S, RT, W2S]
LDS_SIZE = 163840
REC1 = 0x1000
FLG = 0x9000
KVD = 0x20000
ACT = 0x140000
STAMP_OFF = 128 << 20
SPIN = opt("spin", 200000)

sW, sSIG, sH, sTYPE, sT0 = 3, 4, 5, 6, 7
sX, sWD, sWE, sW2, sWO, sOUT, sWS = 8, 12, 16, 20, 24, 28, 32
sPH, sB1, sPC = 36, 40, 44
sHALF, sISQ, sLOm, sFM, sEX = 36, 38, 40, 42, 44
sU, sWOF, sWEF = 48, 52, 56
sM0R, sM0W, sTAG, sCNT = 60, 61, 62, 63
sMASK, sT1, sT2, sT3 = 64, 65, 66, 67
sSKIP, sP6, sC0, sC1, sSB0, sFL, sOB, sRA, sRW, sAO, sWDL, sR2, sRED = range(68, 81)
sST0 = 82
sRB, sG, sRB2, sCB, sSTART, sSTR, sSTE, sRHO, sREC, sGAM, sST2 = range(88, 99)
sLO = f"s[{sLOm}:{sLOm+1}]"
def srd(n): return f"s[{n}:{n+3}]"
def sp(n): return f"s[{n}:{n+1}]"

vL = 0
vXO0, vXO1, vWO0, vWO1, vWE0, vL16, vBA, vWE1 = 1, 2, 3, 4, 5, 6, 7, 9
vBC, vSD, vC1, vRSTD = 10, 11, 12, 13
vCAW, vCAR, vP2A, vW2O, vFL, vACT = 14, 15, 16, 20, 22, 23
vT = 24
vRA1, vTG = 28, 29
vK = 32
vPHA, vSGN = 32, 33
vPW0, vPW1, vKA0, vKA1, vKB = 34, 35, 36, 37, 38
vVW, vVP = 34, 35
vGA, vGZ, vKW, vZW, vKR = 34, 35, 36, 37, 38
vA2B = 39
vXA, vWA, vSEL, vCS, vWB = 40, 44, 48, 52, 60
vWF = 64
vA2, vA0, vA1 = 80, 96, 112
vX = 128
def v(n, k=1): return f"v{n}" if k == 1 else f"v[{n}:{n+k-1}]"
def P2(n): return v(n, 2)

a = Asm()
nst = [0]
pend = []
def stamp(i, fine=0):
    if FINE != fine and i > 2: return
    if STAMP >= 0 and fine == 2:
        if i > 4:
            a("s_waitcnt lgkmcnt(0)")
            for j, r in pend: a(f"v_mov_b32 v{200+2*j}, s{r}\nv_mov_b32 v{201+2*j}, s{r+1}")
            pend.clear()
        if i == 10: return
        r = 86 if i == 3 else 100
        a(f"s_memtime s[{r}:{r+1}]"); pend.append((i, r))
        nst[0] = max(nst[0], i + 1)
        return
    if STAMP >= 0:
        assert i < 10
        a(f"{'s_memtime' if CYC else 's_memrealtime'} s[{sST0+2*i}:{sST0+2*i+1}]")
        nst[0] = max(nst[0], i + 1)

PTS = [p for p in opt("pts", "").split(",") if p]
def pt(name):
    if name in PTS and STAMP >= 0: stamp(3 + PTS.index(name), FINE)
def ptf(name): return fn(lambda: pt(name), 0)
MF = "v_mfma_f32_32x32x16_bf16"
MF16 = "v_mfma_f32_16x16x32_bf16"
MF32 = "v_mfma_f32_32x32x2_f32"
LOG2E = "0x3fb8aa3b"

def lines(txt): return [l.strip() for l in txt.strip().split("\n") if l.strip()]
def cost(x):
    if callable(x): return getattr(x, "cost", 1)
    return 2 if ("v_exp" in x or "v_rcp" in x) else 1
def emit(x):
    if callable(x): x()
    else: a(x)
def emits(L):
    for x in L: emit(x)
def fn(f, c=1):
    f.cost = c; return f
def merge(main, side, start=0, end=None):
    end = len(main) if end is None else min(end, len(main))
    tot = sum(cost(x) for x in main[start:end]); out = list(main[:start]); acc = 0; k = 0
    for x in main[start:end]:
        while k < len(side) and acc >= k * tot / len(side): out.append(side[k]); k += 1
        out.append(x); acc += cost(x)
    return out + side[k:] + list(main[end:])
def vm(txt, tag): return fn(lambda: a.vmem(txt, tag), 3)
def dsw(txt, tag="w"): return fn(lambda: a.ds(txt, tag), 2)
def wt(**kw): return fn(lambda: a.wait(**kw), 0)

retries = []
def checked(cmp_lines, reload, name):
    lab = a.newlabel(name)
    a.label(lab + "_c")
    for l in cmp_lines: a(l)
    a(f"s_cbranch_vccnz {lab}_r")
    a.label(lab + "_k")
    def blk():
        a.label(lab + "_r")
        a(f"""s_cmp_eq_u32 s{sCNT}, 0
        s_cbranch_scc1 {lab}_k
        s_sub_u32 s{sCNT}, s{sCNT}, 1""")
        reload()
        a(f"""s_waitcnt vmcnt(0)
        s_branch {lab}_c""")
    retries.append(blk)
def skip_if(cmp_line, body, name):
    lab = a.newlabel(name)
    a(cmp_line); a(f"s_cbranch_scc0 {lab}")
    st = a.save()
    body()
    a.label(lab)
    a.restore(st)

t0, t1, t2, t3 = vT, vT + 1, vT + 2, vT + 3
a(f"""s_cmp_ge_u32 s2, 256
s_cbranch_scc1 L_end""")
stamp(0)
a(f"""s_load_dwordx2 {sp(sX)}, s[0:1], 0
s_lshr_b32 s{sTYPE}, s2, 7
s_lshl_b32 s{sT0}, s{sTYPE}, 5
s_add_u32 s{sT1}, s{sT0}, 8
s_sub_u32 s{sT2}, 40, s{sT0}
s_load_dwordx2 {sp(sWD)}, s[0:1], s{sT1}
s_load_dwordx2 {sp(sWS)}, s[0:1], 80
s_getpc_b64 {sp(sPC)}
L_pc:
v_lshrrev_b32 v{t0}, 6, v0
v_lshlrev_b32 v{t1}, 6, v0
s_mov_b32 s{sPC+2}, L_end-L_pc
s_mov_b32 s{sPC+3}, 0x00020000
v_readfirstlane_b32 s{sW}, v{t0}
v_and_b32 v{vL}, 63, v0
buffer_load_dword v{vT+7}, v{t1}, {srd(sPC)}, 0 offen
s_load_dwordx2 {sp(sWE)}, s[0:1], s{sT2}
s_load_dwordx2 {sp(sPH)}, s[0:1], 16
s_load_dwordx2 {sp(sB1)}, s[0:1], 48
s_load_dwordx2 {sp(sW2)}, s[0:1], 56
s_load_dwordx2 {sp(sWO)}, s[0:1], 24
s_load_dwordx2 {sp(sOUT)}, s[0:1], 64
s_bfe_u32 s{sT0}, s2, 0x30003
s_and_b32 s{sT1}, s2, 1
s_lshl3_add_u32 s{sRB}, s{sT1}, s{sT0}       ; rb
s_bfe_u32 s{sT1}, s2, 0x10006
s_and_b32 s{sG}, s2, 6
s_or_b32 s{sG}, s{sG}, s{sT1}                ; g
s_lshr_b32 s{sT1}, s2, 6
s_lshl1_add_u32 s{sRHO}, s{sT1}, s{sT0}
s_and_b32 s{sRHO}, s{sRHO}, {ROTM}
s_lshl_b32 s{sRHO}, s{sRHO}, 7
s_mul_i32 s{sSTART}, s{sG}, 11
s_add_u32 s{sSTART}, s{sSTART}, 1
s_lshr_b32 s{sSTART}, s{sSTART}, 1
s_min_u32 s{sSTART}, s{sSTART}, 38
s_lshl_b32 s{sT2}, s{sG}, 7
s_lshl_b32 s{sT3}, s{sSTART}, 6
s_add_u32 s{sT0}, s{sT2}, 1024
s_add_u32 s{sREC}, s{sT3}, 256
s_movk_i32 s{sSTR}, 2752
s_movk_i32 s{sT1}, 128
s_cmp_eq_u32 s{sTYPE}, 0
s_cselect_b32 s{sSTR}, 3072, s{sSTR}
s_cselect_b32 s{sT1}, 1024, s{sT1}
s_cselect_b32 s{sT3}, s{sT0}, s{sT3}
s_cselect_b32 s{sCB}, s{sREC}, s{sT2}
v_lshrrev_b32 v{t0}, 3, v{vL}                ; l>>3
v_and_b32 v{t1}, 7, v{vL}                    ; l&7
v_lshrrev_b32 v{t2}, 4, v{vL}                ; l>>4
s_lshl_b32 s{sT0}, s{sRB}, 3
s_add_u32 s{sT2}, s{sT0}, s{sW}
s_lshl_b32 s{sT2}, s{sT2}, 14
v_xor_b32 v{t3}, v{t1}, v{t2}
v_lshl_or_b32 v{t3}, v{t3}, 4, s{sT2}
v_lshl_add_u32 v{vXO0}, v{t0}, 10, v{t3}
s_lshr_b32 s{sT2}, s{sW}, 1
s_and_b32 s{sM0W}, s{sW}, 1
s_lshl3_add_u32 s{sT2}, s{sT2}, s{sM0W}
s_lshl_b32 s{sT2}, s{sT2}, 1
v_xor_b32 v{vXO1}, 64, v{vXO0}
v_add_u32 v{vXO1}, {8192-1024}, v{vXO1}
v_lshl_add_u32 v{t3}, v{t2}, 2, s{sT2}
v_mul_u32_u24 v{vWO0}, s{sSTR}, v{t3}
v_and_b32 v{t3}, 1, v{t0}
v_mad_u32_u24 v{vWO0}, v{t3}, s{sT1}, v{vWO0}
v_lshl_add_u32 v{t3}, v{t1}, 4, s{sT3}
v_add_u32 v{vWO0}, v{vWO0}, v{t3}
s_sub_u32 s{sT1}, s{sSTR}, 1088
v_add_u32 v{vWO1}, s{sT1}, v{vWO0}
v_lshlrev_b32 v{vL16}, 4, v{vL}
s_lshl_b32 s{sM0R}, s{sW}, 11
s_mul_i32 s{sM0W}, s{sW}, 2176
s_lshr_b32 s{sST2}, s{sSTR}, 1
s_lshl1_add_u32 s{sT0}, s{sRB}, s{sTYPE}
s_lshl3_add_u32 s{sT0}, s{sT0}, s{sG}
s_lshl3_add_u32 s{sREC}, s{sT0}, s{sW}
s_lshl_b32 s{sT3}, s{sREC}, 10
s_mov_b32 s{sX+2}, {2048*1024}
s_mov_b32 s{sX+3}, 0x00020000
s_lshl_b32 s{sWD+2}, s{sSTR}, 9
s_mov_b32 s{sWD+3}, 0x00020000
s_mov_b32 s{sWS+2}, {256<<20}
s_mov_b32 s{sWS+3}, 0x00020000
s_mul_i32 s{sT1}, s{sRHO}, s{sST2}
s_add_u32 m0, s{sM0R}, {XS[0]}""")
stamp(3, 2)
a("s_waitcnt lgkmcnt(0)")
stamp(4, 2)
vXR = vA0
vEP = vT + 6
def x_pair(c, su):
    return [vm(f"buffer_load_dwordx4 v{vXO0}, {srd(sX)}, s{su} offen lds", f"c{c}"),
            vm(f"buffer_load_dwordx4 v{vXO1}, {srd(sX)}, s{su} offen offset:1024 lds", f"c{c}")]
def w_pair(c, sw):
    return [vm(f"buffer_load_dwordx4 v{vWO0}, {srd(sWD)}, s{sw} offen lds", f"c{c}"),
            vm(f"buffer_load_dwordx4 v{vWO1}, {srd(sWD)}, s{sw} offen offset:1088 lds", f"c{c}")]
def m0x(c): return f"s_add_u32 m0, s{sM0R}, {XS[c & 3]}"
def m0w(c): return f"s_add_u32 m0, s{sM0W}, {WSL[c & 3]}"
def uoff(c, su, sw):
    return lines(f"""s_add_u32 s{su}, s{sRHO}, {128*c}
    s_and_b32 s{su}, s{su}, 0x380
    s_mul_i32 s{sw}, s{su}, s{sST2}""")
emits(x_pair(0, sRHO) + [m0w(0)])
a.vmem(f"buffer_load_dwordx4 {v(vXR,4)}, v{vL16}, {srd(sX)}, s{sT3} offen", "xr")
emits(w_pair(0, sT1))
a.vmem(f"buffer_load_dword v{vEP}, off, {srd(sWS)}, 0 sc1", "xr")
def chunk_pro(c, su, sw):
    u = uoff(c, su, sw); X = x_pair(c, su); W = w_pair(c, sw)
    return [[m0x(c)] + u[:2] + X[:1], X[1:], [m0w(c), u[2]] + W[:1], W[1:]]
def grp(L): return fn(lambda: emits(L), 3)
for L in chunk_pro(1, sU, sWOF): emits(L)
stamp(1)
stamp(5, 2)

u0, u1, u2, u3 = vA1, vA1 + 1, vA1 + 2, vA1 + 3
B2 = lines(f"""s_mov_b32 s{sPH+2}, 16384
s_mov_b32 s{sPH+3}, 0x00020000
s_movk_i32 s{sB1+2}, 2752
s_mov_b32 s{sB1+3}, 0x00020000
s_and_b32 s{sSIG}, s{sW}, 3
s_lshr_b32 s{sH}, s{sW}, 2
s_and_b32 s{sT0}, s{sW}, 1
s_lshl_b32 s{sT0}, s{sT0}, 10
s_add_u32 m0, s{sT0}, {WPHI}
s_lshl_b32 s{sT1}, s{sG}, 11
s_add_u32 s{sT1}, s{sT1}, s{sT0}
v_and_b32 v{u0}, 31, v{vL}""") + [vm(f"buffer_load_dwordx4 v{vL16}, {srd(sPH)}, s{sT1} offen lds", "misc")] + lines(f"""
s_lshl_b32 s{sT0}, s{sH}, 1
s_cmp_eq_u32 s{sTYPE}, 0
s_cselect_b32 s{sT0}, 4, s{sT0}
s_add_u32 s{sGAM}, s{sT0}, s{sSTART}         ; first w1 tile of this wave
s_lshl_b32 s{sT0}, s{sGAM}, 6
v_lshlrev_b32 v{u1}, 1, v{u0}""") + [
    vm(f"buffer_load_ushort v{vBA+i}, v{u1}, {srd(sB1)}, s{sT0} offen offset:{64*i}", "misc") for i in range(2)]
emits(B2)
B3 = lines(f"""s_sub_u32 s{sSTE}, {2752+3072}, s{sSTR}
s_lshl_b32 s{sWE+2}, s{sSTE}, 9
s_mov_b32 s{sWE+3}, 0x00020000
v_and_b32 v{t3}, 1, v{t2}
v_lshlrev_b32 v{t3}, 2, v{t3}
v_xor_b32 v{t3}, v{t3}, v{t1}
v_lshlrev_b32 v{t3}, 4, v{t3}
s_lshl_b32 s{sT0}, s{sSIG}, 4
v_add_u32 v{u1}, s{sT0}, v{t0}
v_mul_u32_u24 v{vWE0}, s{sSTE}, v{u1}
v_add3_u32 v{vWE0}, v{vWE0}, v{t3}, s{sCB}
s_lshl_b32 s{sT0}, s{sSTE}, 3
s_sub_u32 s{sT0}, s{sT0}, 1024
v_add_u32 v{vWE1}, s{sT0}, v{vWE0}
v_lshl_add_u32 v{vW2O}, v{t0}, 10, v{t3}
s_xor_b32 s{sT3}, s{sSIG}, s{sH}
v_lshrrev_b32 v{u1}, 5, v{vL}
v_bfe_u32 v{u2}, v{vL}, 1, 3
v_xor_b32 v{u2}, v{u1}, v{u2}
v_lshlrev_b32 v{u2}, 4, v{u2}
v_lshl_add_u32 v{u2}, v{u0}, 7, v{u2}
s_lshl_b32 s{sT0}, s{sSIG}, 12
s_lshl_b32 s{sT1}, s{sT3}, 5
s_add_u32 s{sT0}, s{sT0}, s{sT1}
s_add_u32 s{sT0}, s{sT0}, {X0}
v_xor_b32 v{vXA}, s{sT0}, v{u2}
v_xor_b32 v{vXA+1}, 32, v{vXA}
v_xor_b32 v{vXA+2}, 64, v{vXA}
v_xor_b32 v{vXA+3}, 96, v{vXA}
v_bfe_u32 v{t0}, v{vL}, 2, 2
v_bfe_u32 v{t1}, v{vL}, 4, 1
v_and_b32 v{t2}, 3, v{vL}
v_lshlrev_b32 v{t2}, 3, v{t2}
v_lshl_add_u32 v{t2}, v{t1}, 5, v{t2}
v_lshl_add_u32 v{t3}, v{u1}, 9, v{t2}
v_mul_u32_u24 v{u2}, 1088, v{t0}
s_lshl_b32 s{sT0}, s{sH}, 7
v_add3_u32 v{u2}, v{u2}, v{t3}, s{sT0}""")
assert X0 % 128 == 0
B3 = [l.replace(f"v_xor_b32 v{vXA}, s{sT0}, v{u2}", f"v_xad_u32 v{vXA}, v{u2}, s{sT1}, v{u3}") for l in B3]
i = B3.index(f"s_add_u32 s{sT0}, s{sT0}, s{sT1}")
B3[i:i+2] = [f"s_add_u32 s{sT0}, s{sT0}, {X0}", f"v_mov_b32 v{u3}, s{sT0}"]
for ks in range(4):
    B3 += lines(f"""s_xor_b32 s{sT1}, s{sT3}, {ks}
    s_mul_i32 s{sT1}, s{sT1}, 4352
    v_add_u32 v{vWA+ks}, s{sT1}, v{u2}
    v_add_u32 v{vWB+ks}, {W2S}, v{vWA+ks}""")
B3 += lines(f"""v_lshrrev_b32 v{u2}, 1, v{t0}
v_lshlrev_b32 v{u2}, 6, v{u2}
v_lshl_add_u32 v{u2}, v{t0}, 7, v{u2}
v_add3_u32 v{vA2B}, v{u2}, v{t3}, s{sM0R}
v_add_u32 v{u2}, v{u2}, v{t2}
v_lshl_add_u32 v{u2}, v{u1}, 10, v{u2}
s_lshl_b32 s{sT0}, s{sT3}, 5
s_add_u32 s{sT0}, s{sT0}, s{sH}
s_lshl_b32 s{sT0}, s{sT0}, 6
v_xor_b32 v{vP2A}, s{sT0}, v{u2}
v_xor_b32 v{vP2A+1}, 2048, v{vP2A}
v_xor_b32 v{vP2A+2}, 4096, v{vP2A}
v_xor_b32 v{vP2A+3}, 6144, v{vP2A}
v_xor_b32 v{u2}, v{t0}, v{t1}
v_and_b32 v{u2}, 1, v{u2}
v_cmp_eq_u32 vcc, 0, v{u2}
v_mov_b32 v{u2}, 0x3f803f80
s_mov_b32 s{sMASK}, 0xffff0000
s_mov_b32 s{sCNT}, {SPIN}""")
B3 += [f"v_cndmask_b32 v{vSEL+i}, 0, v{u2}, vcc" for i in range(4)]
emits(merge(B3, [grp(L) for L in chunk_pro(2, sU, sWOF)]))
stamp(6, 2)

e = vXR + 4
r0, r1 = vXR + 12, vXR + 13
vRC = vA2
def allsum(r):
    L = [f"v_add_f32_dpp v{r}, v{r}, v{r} row_ror:{s} row_mask:0xf bank_mask:0xf" for s in (8, 4, 2, 1)]
    L += [f"v_mov_b32 v{r1}, v{r}", f"v_permlane16_swap_b32 v{r}, v{r1}", f"v_add_f32 v{r}, v{r}, v{r1}",
          f"v_mov_b32 v{r1}, v{r}", f"v_permlane32_swap_b32 v{r}, v{r1}", f"v_add_f32 v{r}, v{r}, v{r1}"]
    return L
S = []
for j in range(4):
    S += [f"v_lshlrev_b32 v{e+2*j}, 16, v{vXR+j}", f"v_and_b32 v{e+2*j+1}, s{sMASK}, v{vXR+j}"]
S += [f"v_add_f32 v{vXR+j}, v{e+2*j}, v{e+2*j+1}" for j in range(4)]
S += [f"v_add_f32 v{vXR}, v{vXR}, v{vXR+1}", f"v_add_f32 v{vXR+2}, v{vXR+2}, v{vXR+3}", f"v_add_f32 v{r0}, v{vXR}, v{vXR+2}"]
S += allsum(r0)
S += [f"v_mul_f32 v{vRC}, 0xbb000000, v{r0}"]
S += [f"v_add_f32 v{e+j}, v{e+j}, v{vRC}" for j in range(8)]
S += [f"v_mul_f32 v{vXR+j}, v{e+j}, v{e+j}" for j in range(4)]
S += [f"v_fmac_f32 v{vXR+j}, v{e+4+j}, v{e+4+j}" for j in range(4)]
S += [f"v_add_f32 v{vXR}, v{vXR}, v{vXR+1}", f"v_add_f32 v{vXR+2}, v{vXR+2}, v{vXR+3}", f"v_add_f32 v{r0}, v{vXR}, v{vXR+2}"]
S += allsum(r0)
S += [f"v_mov_b32 v{r1}, 0x3727c5ac", f"v_fmac_f32 v{r1}, 0x3b000000, v{r0}", f"v_rsq_f32 v{vRC+2}, v{r1}",
      f"v_add_u32 v{vRC+3}, 1, v{vEP}", f"v_mul_f32 v{vRC+1}, v{r1}, v{vRC+2}", f"v_readfirstlane_b32 s{sTAG}, v{vRC+3}",
      f"v_mov_b32 v{vTG}, v{vRC+3}"]
SC = lines(f"""s_mov_b32 s{sW2+2}, {1376*1024}
s_mov_b32 s{sW2+3}, 0x00020000
s_mov_b32 s{sWO+2}, {512*1024}
s_mov_b32 s{sWO+3}, 0x00020000
s_mov_b32 s{sOUT+2}, {2048*1024}
s_mov_b32 s{sOUT+3}, 0x00020000
s_mov_b32 s{sHALF}, -0.5
s_mov_b32 s{sHALF+1}, -0.5
s_mov_b32 s{sISQ}, 0x3f3504f3
s_mov_b32 s{sISQ+1}, 0x3f3504f3
s_mov_b32 s{sLOm}, -1
s_mov_b32 s{sLOm+1}, 0
s_lshl_b32 s{sREC}, s{sREC}, 4
s_add_u32 s{sREC}, s{sREC}, {REC1}""")
for c in range(4, 8): SC += uoff(c, sU + c - 4, sWOF + c - 4)
SC += lines(f"""s_lshr_b32 s{sST2}, s{sSTE}, 1
s_lshl_b32 s{sT0}, s{sH}, 7
s_add_u32 s{sRHO}, s{sRHO}, s{sT0}""")
for i in range(4): SC += uoff(2 * i, sT0, sWEF + i)

C1 = lines(f"""s_and_b32 s{sT0}, s2, 7
s_bfe_u32 s{sT1}, s2, 0x20003
s_lshl2_add_u32 s{sRB2}, s{sT0}, s{sT1}      ; rb2
s_lshr_b32 s{sCB}, s2, 5                     ; cb
s_lshl_b32 s{sT1}, s{sT1}, 1
s_xor_b32 s{sT1}, s{sT1}, s{sCB}
s_and_b32 s{sT1}, s{sT1}, {ROT2}
s_lshl_b32 s{sRA}, s{sT1}, 11
s_lshl_b32 s{sRW}, s{sT1}, 14
s_lshl_b32 s{sT0}, s{sH}, 9
s_add_u32 s{sT0}, s{sT0}, {CW}
v_lshl_add_u32 v{vCAR}, v{u0}, 4, s{sT0}
s_lshl_b32 s{sT0}, s{sSIG}, 2
v_add_u32 v{vCAW}, s{sT0}, v{vCAR}
s_lshl2_add_u32 s{sT0}, s{sRB}, s{sSIG}
s_lshl_b32 s{sT0}, s{sT0}, 9
s_add_u32 s{sT0}, s{sT0}, {REC1}
v_lshl_add_u32 v{vRA1}, v{u0}, 4, s{sT0}
s_lshr_b32 s{sT0}, s{sSIG}, 1
s_lshl1_add_u32 s{sT0}, s{sRB}, s{sT0}
s_mul_i32 s{sT0}, s{sT0}, 236
s_and_b32 s{sT1}, s{sSIG}, 1
s_add_u32 s{sT0}, s{sT0}, s{sT1}
s_lshl2_add_u32 s{sT1}, s{sGAM}, s{sT0}
s_lshl_b32 s{sT1}, s{sT1}, 10
s_add_u32 s{sSB0}, s{sT1}, {ACT}
s_lshl1_add_u32 s{sT1}, s{sG}, s{sH}
s_lshl2_add_u32 s{sT1}, s{sT1}, s{sT0}
s_lshl_b32 s{sT1}, s{sT1}, 10
s_add_u32 s{sC0}, s{sT1}, {ACT + 172*1024}
s_lshl3_add_u32 s{sT0}, s{sRB}, s{sG}
s_lshl1_add_u32 s{sT0}, s{sT0}, s{sTYPE}
s_lshl3_add_u32 s{sT0}, s{sT0}, s{sW}
s_lshl2_add_u32 s{sFL}, s{sT0}, {FLG}
s_and_b32 s{sSKIP}, s{sG}, 1
s_cmp_ge_u32 s{sG}, 6
s_cselect_b32 s{sSKIP}, 1, s{sSKIP}
s_lshl1_add_u32 s{sGAM}, s{sSIG}, s{sH}
s_mul_i32 s{sT3}, s{sGAM}, 11
s_add_u32 s{sT3}, s{sT3}, 1
s_lshr_b32 s{sT3}, s{sT3}, 1
s_min_u32 s{sT3}, s{sT3}, 38
s_mul_i32 s{sT0}, s{sRB2}, 59
s_add_u32 s{sT0}, s{sT0}, s{sT3}
s_lshl_b32 s{sT0}, s{sT0}, 12
s_add_u32 s{sT0}, s{sT0}, {ACT}
v_add_u32 v{vACT}, s{sT0}, v{vL16}
s_lshl_b32 s{sT1}, s{sGAM}, 1
s_sub_u32 s{sT1}, s{sT1}, s{sT3}
s_lshl_b32 s{sWDL}, s{sT1}, 15               ; wo rows - w2 rows (bytes, signed)
s_add_u32 s{sT1}, s{sT1}, 43
s_lshl_b32 s{sAO}, s{sT1}, 12
s_lshl_b32 s{sT0}, s{sT3}, 8
s_add_u32 s{sT0}, s{sT0}, s{sCB}
s_lshl_b32 s{sT0}, s{sT0}, 7
v_add_u32 v{vW2O}, s{sT0}, v{vW2O}
v_add_u32 v{vW2O+1}, {8192-1024}, v{vW2O}
s_lshr_b32 s{sT0}, s{sRB2}, 1
s_lshl3_add_u32 s{sT0}, s{sT0}, s{sGAM}
s_lshl_b32 s{sT0}, s{sT0}, 6
s_add_u32 s{sT0}, s{sT0}, {FLG}
v_and_b32 v{u2}, 15, v{vL}
v_lshl_add_u32 v{vFL}, v{u2}, 2, s{sT0}
s_and_b32 s{sT0}, s{sRB2}, 1
s_lshl_b32 s{sT0}, s{sT0}, 1
s_lshl_b32 s{sFM}, 0x3330, s{sT0}
s_mov_b32 s{sFM+1}, 0
s_lshl1_add_u32 s{sT0}, s{sRB2}, s{sH}
s_lshl_b32 s{sR2}, s{sT0}, 9
s_add_u32 s{sR2}, s{sR2}, {REC1}
s_lshl_b32 s{sT0}, s{sT0}, 10
s_lshl2_add_u32 s{sT1}, s{sCB}, s{sSIG}
s_add_u32 s{sT0}, s{sT0}, s{sT1}
s_lshl_b32 s{sOB}, s{sT0}, 5
v_lshl_add_u32 v{u3}, v{u1}, 2, v{t0}
v_lshlrev_b32 v{u3}, 5, v{u3}
v_lshl_add_u32 v{u3}, v{t1}, 4, v{u3}
v_bfe_u32 v{t3}, v{vL}, 1, 1
v_lshl_add_u32 v{u3}, v{t3}, 3, v{u3}
s_lshl_b32 s{sT0}, s{sH}, 10
s_add_u32 s{sT0}, s{sT0}, {WPHI}
v_add_u32 v{vPHA}, s{sT0}, v{u3}
v_bfe_i32 v{vSGN}, v{vL}, 2, 1
v_and_b32 v{vSGN}, 0x80008000, v{vSGN}
s_mov_b64 {sp(sEX)}, -1
s_lshl2_add_u32 s{sT3}, s{sG}, s{sSIG}
s_lshl_b32 s{sT2}, s{sSIG}, 5""")
emits(merge(C1, [grp(L) for L in chunk_pro(3, sU, sWOF)]))
stamp(7, 2)
a(f"""s_cmp_eq_u32 s{sTYPE}, 0
s_cbranch_scc0 L_pcB
v_add_u32 v{u0}, s{sT2}, v{u0}
s_mov_b32 s{sC0}, s{sSB0}
s_cmp_eq_u32 s{sH}, 0
s_cbranch_scc0 L_pcA1
s_lshl4_add_u32 s{sT0}, s{sT3}, s{sRB}
s_mul_i32 s{sT0}, s{sT0}, 1152
s_add_u32 s{sC0}, s{sT0}, {KVD}
s_add_u32 s{sC1}, s{sT0}, {KVD+1024}
s_mov_b64 {sp(sEX)}, 15
v_bfe_u32 v{u2}, v{vL}, 1, 2
v_lshlrev_b32 v{u3}, 1, v{u1}
v_xor_b32 v{u2}, v{u2}, v{u3}
v_lshlrev_b32 v{u2}, 4, v{u2}
v_lshl_add_u32 v{vPW0}, v{u0}, 6, v{u2}
v_add_u32 v{vPW0}, {PHI}, v{vPW0}
v_xor_b32 v{vPW1}, 16, v{vPW0}
v_lshl_add_u32 v{u1}, v{u1}, 3, v{t0}
v_and_b32 v{u2}, 1, v{vL}
v_lshl_add_u32 v{u2}, v{u2}, 1, v{t1}
v_lshrrev_b32 v{u3}, 1, v{t0}
v_xor_b32 v{u2}, v{u2}, v{u3}
v_lshlrev_b32 v{u2}, 4, v{u2}
v_lshl_add_u32 v{u2}, v{u1}, 6, v{u2}
v_lshl_add_u32 v{u2}, v{t3}, 3, v{u2}
s_lshl_b32 s{sT0}, s{sSIG}, 13
s_add_u32 s{sT0}, s{sT0}, {PHI}
v_add_u32 v{vKA0}, s{sT0}, v{u2}
v_xor_b32 v{vKA1}, 32, v{vKA0}
v_mul_u32_u24 v{u1}, 144, v{u1}
v_add_u32 v{u2}, s{sT2}, v{t2}
v_cmp_eq_u32 vcc, 1, v{t1}
v_mov_b32 v{u3}, 128
v_add_u32 v{u1}, {VIMG}, v{u1}
v_cndmask_b32 v{u2}, v{u2}, v{u3}, vcc
v_add_u32 v{vKB}, v{u1}, v{u2}
s_branch L_pcE
L_pcA1:
v_mul_u32_u24 v{vVP}, 144, v{u0}
v_add_u32 v{vVP}, {VIMG}, v{vVP}
v_lshl_add_u32 v{vVW}, v{u1}, 4, v{vVP}
s_branch L_pcD
L_pcB:
s_mul_i32 s{sT0}, s{sT3}, {16*1152}
s_add_u32 s{sT0}, s{sT0}, {KVD}
v_lshrrev_b32 v{u3}, 4, v{vL}
v_mul_u32_u24 v{u3}, 1152, v{u3}
v_add_u32 v{u3}, s{sT0}, v{u3}
s_lshl_b32 s{sT1}, s{sH}, 9
v_lshlrev_b32 v{t2}, 4, v{u2}
v_add3_u32 v{vGA}, v{u3}, v{t2}, s{sT1}
v_bfe_u32 v{vGZ}, v{vL}, 1, 2
v_mul_u32_u24 v{vGZ}, {4*1152}, v{vGZ}
v_and_b32 v{t3}, 1, v{vL}
v_lshl_add_u32 v{u3}, v{t3}, 4, v{u3}
s_lshl_b32 s{sT1}, s{sH}, 5
v_add3_u32 v{vGZ}, v{vGZ}, v{u3}, s{sT1}
s_lshl_b32 s{sT0}, s{sG}, 6
s_lshl2_add_u32 s{sT0}, s{sSIG}, s{sT0}
s_add_u32 s{sT0}, s{sT0}, {FLG}
v_lshl_add_u32 v{u3}, v{u2}, 9, s{sT0}
v_cmp_eq_u32 vcc, 1, v{t1}
s_or_b32 s{sFM}, s{sFM}, s{sMASK}
s_mul_i32 s{sT0}, s{sGAM}, 544
s_add_u32 s{sT0}, s{sT0}, {KVL}
v_cndmask_b32 v{vFL}, v{vFL}, v{u3}, vcc
v_lshl_add_u32 v{u3}, v{t1}, 3, s{sT0}
v_mul_u32_u24 v{vKW}, 272, v{u1}
v_add3_u32 v{vKW}, v{vKW}, v{u3}, v{t2}
v_mul_u32_u24 v{vZW}, 272, v{t3}
v_add_u32 v{vZW}, v{vZW}, v{u3}
v_and_b32 v{u3}, 3, v{vL}
v_bfe_u32 v{t3}, v{vL}, 2, 1
v_lshl_add_u32 v{u3}, v{t3}, 3, v{u3}
v_bfe_u32 v{t3}, v{vL}, 3, 1
v_lshl_add_u32 v{u3}, v{t3}, 2, v{u3}
v_cndmask_b32 v{u3}, v{u3}, 16, vcc
v_lshlrev_b32 v{u3}, 4, v{u3}
v_mul_u32_u24 v{u1}, 544, v{u1}
s_mul_i32 s{sT1}, s{sH}, 2176
s_add_u32 s{sT1}, s{sT1}, {KVL}
v_add3_u32 v{vKR}, v{u3}, v{u1}, s{sT1}
L_pcD:
s_add_u32 s{sC1}, s{sC0}, 2048
L_pcE:""")
stamp(8, 2)
a.wait(vm="xr")
emits(merge(S, SC))
stamp(9, 2)
a("s_mov_b64 exec, 1")
a.vmem(f"buffer_store_dwordx4 {v(vRC,4)}, off, {srd(sWS)}, s{sREC} sc1", "rec")
a("s_mov_b64 exec, -1")
for i in range(4): a(f"v_mov_b32 v{vT+i}, -1")

def p1_reads(t):
    c, ks = t >> 2, t & 3
    tg = f"k{t}"
    wa = (vWB if c & 2 else vWA) + ks
    po = (c & 1) * 17408
    L = [dsw(f"ds_read_b128 {v(vX+4*t,4)}, v{vXA+ks} offset:{(c&3)*16384}", tg)]
    for tile in range(2):
        b = vWF + 8 * ks + 4 * tile
        L.append(dsw(f"ds_read_b64_tr_b16 {v(b,2)}, v{wa} offset:{po+tile*64}", tg))
        L.append(dsw(f"ds_read_b64_tr_b16 {v(b+2,2)}, v{wa} offset:{po+tile*64+256}", tg))
    return L

def slot(j): return SL[j if j < 9 else j - 9]
def w_dma(j):
    so = (f"s_xor_b32 s{sT0}, s{sRW}, {j << 14}" if j < 8 else f"s_mov_b32 s{sT0}, {(j if j < 12 else j - 12) << 14}")
    d = srd(sW2 if j < 12 else sWO)
    return [[f"s_add_u32 m0, s{sM0R}, {slot(j)}", so],
            vm(f"buffer_load_dwordx4 v{vW2O}, {d}, s{sT0} offen lds", f"w{j}"),
            vm(f"buffer_load_dwordx4 v{vW2O+1}, {d}, s{sT0} offen offset:1024 lds", f"w{j}")]
def w_item(j):
    s, l0, l1 = w_dma(j)
    return fn(lambda: emits(s + [l0, l1]), 6)
def chunk_q(c):
    if c < 8:
        X = x_pair(c, sU + c - 4); W = w_pair(c, sWOF + c - 4)
        return [([m0x(c)], X[0]), ([], X[1]), ([m0w(c)], W[0]), ([], W[1])]
    if c < 10:
        Q = []
        for i in (2 * (c - 8), 2 * (c - 8) + 1):
            Q.append(([f"s_add_u32 m0, s{sM0R}, {P2B[i]}"],
                      vm(f"buffer_load_dwordx4 v{vWE0}, {srd(sWE)}, s{sWEF+i} offen lds", f"c{c}")))
            Q.append(([], vm(f"buffer_load_dwordx4 v{vWE1}, {srd(sWE)}, s{sWEF+i} offen offset:1024 lds", f"c{c}")))
        return Q
    Q = []
    for j in (0, 1):
        s, l0, l1 = w_dma(j)
        Q += [(s, l0), ([], l1)]
    return Q
def clr(sb, off=0): return f"buffer_store_dwordx4 {v(vT,4)}, v{vL16}, {srd(sWS)}, s{sb} offen offset:{off} sc1"
def clears():
    a.vmem(clr(sC0), "clr")
    a(f"s_mov_b64 exec, {sp(sEX)}")
    a.vmem(clr(sC1), "clr")
    a("s_mov_b64 exec, -1")
def clears2():
    a(f"""s_lshl1_add_u32 s{sT1}, s{sTYPE}, s{sSKIP}
    s_add_u32 s{sT2}, s{sC0}, 4096""")
    skip_if(f"s_cmp_lt_u32 s{sT1}, s{sH}", lambda: (a(clr(sT2)), a(clr(sT2, 2048))), "L_clr")
def flag_store():
    a(f"""s_mov_b64 exec, 1
    buffer_store_dword v{vTG}, off, {srd(sWS)}, s{sFL} sc1
    s_mov_b64 exec, -1""")
def rec1_load(tag="rec1"):
    a.vmem(f"buffer_load_dwordx4 {v(vBC,4)}, v{vRA1}, {srd(sWS)}, 0 offen sc1", tag)
EXTRA = {1: clears, 2: clears2, 18: lambda: skip_if(f"s_cmp_eq_u32 s{sTYPE}, 0", flag_store, "L_f0"), 22: rec1_load}

stamp(10, 2)
a.wait(vm="c0")
a("s_barrier")
stamp(2)
if FINE == 2: a("s_branch L_fin")
PRIO = opt("prio", 0)
if PRIO:
    skip_if(f"s_cmp_eq_u32 s{sH}, 1", lambda: a("s_setprio 1"), "L_prio")
LA = 2
SPL = opt("spl", 3)
for t in range(LA): emits(p1_reads(t))
DQ = []
for t in range(32):
    c, ks = t >> 2, t & 3
    if ks == 0 and c > 0: stamp(2 + c, 1)
    if t == 31:
        pt("e0")
        a.wait(vm="rec1")
        checked([f"v_cmp_ne_u32 vcc, s{sTAG}, v{vRSTD}"], lambda: rec1_load("x"), "L_rec1")
        a(f"""v_cndmask_b32 v{vBC}, v{vSD}, v{vBC}, {sLO}
        v_mov_b32 v{vRSTD}, v{vC1}
        v_mul_f32 v{vC1}, {LOG2E}, v{vC1}""")
        pt("e1")
        a.wait(vm="c8", lg="all")
        pt("e2")
        a("s_barrier")
        pt("e3")
        a.ds(f"ds_read_b128 {v(vT,4)}, v{vCAR}", "cw")
        a.ds(f"ds_read_b128 {v(vCS,4)}, v{vCAR} offset:1024", "cw")
    R = p1_reads(t + LA) if t + LA < 32 else []
    d = DQ.pop(0) if DQ else ([], None)
    a.wait(lg=f"k{t}")
    b = vWF + 8 * ks
    a(f"{MF} {v(vA0,16)}, {v(b,4)}, {v(vX+4*t,4)}, {'0' if t == 0 else v(vA0,16)}")
    emits(d[0] + R[:SPL])
    a(f"{MF} {v(vA1,16)}, {v(b+4,4)}, {v(vX+4*t,4)}, {'0' if t == 0 else v(vA1,16)}")
    emits(R[SPL:])
    if d[1]: d[1]()
    if ks == 0:
        for tile in range(2):
            a(f"{MF16} {v(vCS+4*tile,4)}, {v(vSEL,4)}, {v(b+4*tile,4)}, {'0' if c == 0 else v(vCS+4*tile,4)}")
    if t in EXTRA: EXTRA[t]()
    if ks == 1:
        if c < 7: a.wait(vm=f"c{c+1}")
        a("s_barrier")
        if c > 0: DQ += chunk_q(c + 3)
    if t == 29:
        a.ds(f"ds_write_b32 v{vCAW}, v{vCS}", "cw")
        a.ds(f"ds_write_b32 v{vCAW}, v{vCS+4} offset:1024", "cw")
for s, l in DQ:
    emits(s); l()
stamp(3)
pt("p1")
if X_STOP: a("s_branch L_fin")

def mish(acc, pk, tmp=vT):
    L = []
    for g in (0, 8):
        r = [acc + g + i for i in range(8)]; u = [tmp + i for i in range(8)]
        if pk:
            L += [f"v_pk_fma_f32 {P2(u[i])}, {P2(r[i])}, {P2(vC1)}, {sp(sHALF)} op_sel_hi:[1,0,1]" for i in range(0, 8, 2)]
            L += [f"v_exp_f32 v{u[i]}, v{u[i]}" for i in range(8)]
            L += [f"v_pk_add_f32 {P2(u[i])}, {P2(u[i])}, {sp(sISQ)}" for i in range(0, 8, 2)]
            L += [f"v_pk_fma_f32 {P2(u[i])}, {P2(u[i])}, {P2(u[i])}, {sp(sHALF)} neg_lo:[1,0,0] neg_hi:[1,0,0]" for i in range(0, 8, 2)]
            L += [f"v_rcp_f32 v{u[i]}, v{u[i]}" for i in range(8)]
            L += [f"v_pk_fma_f32 {P2(r[i])}, {P2(r[i])}, {P2(u[i])}, {P2(r[i])}" for i in range(0, 8, 2)]
        else:
            L += [f"v_fma_f32 v{u[i]}, v{r[i]}, v{vC1}, -0.5" for i in range(8)]
            L += [f"v_exp_f32 v{u[i]}, v{u[i]}" for i in range(8)]
            L += [f"v_add_f32 v{u[i]}, s{sISQ}, v{u[i]}" for i in range(8)]
            L += [f"v_fma_f32 v{u[i]}, -v{u[i]}, v{u[i]}, -0.5" for i in range(8)]
            L += [f"v_rcp_f32 v{u[i]}, v{u[i]}" for i in range(8)]
            L += [f"v_fmac_f32 v{r[i]}, v{r[i]}, v{u[i]}" for i in range(8)]
        L += [f"v_cvt_pk_bf16_f32 v{acc+g//2+i}, v{r[2*i]}, v{r[2*i+1]}" for i in range(4)]
        L.append(("half", g // 8))
    return L
def frag_store(reg, sb, half):
    return vm(f"buffer_store_dwordx4 {v(reg,4)}, v{vL16}, {srd(sWS)}, s{sb} offen offset:{half*2048} sc1", "st")
def mish_store(acc, pk, sb, tmp):
    return [frag_store(acc + 4 * x[1], sb, x[1]) if isinstance(x, tuple) else x for x in mish(acc, pk, tmp)]

def softmax(P, out, pk, m):
    L = [f"v_max3_f32 v{m}, v{P}, v{P+1}, v{P+2}", f"v_max3_f32 v{m+1}, v{P+3}, v{P+4}, v{P+5}"]
    for i in range(6, 14, 4):
        L += [f"v_max3_f32 v{m}, v{m}, v{P+i}, v{P+i+1}", f"v_max3_f32 v{m+1}, v{m+1}, v{P+i+2}, v{P+i+3}"]
    L += [f"v_max3_f32 v{m}, v{m}, v{P+14}, v{P+15}", f"v_max_f32 v{m}, v{m}, v{m+1}", f"v_mul_f32 v{m}, v{m}, v{vC1}"]
    if pk:
        L += [f"v_pk_fma_f32 {P2(P+i)}, {P2(P+i)}, {P2(vC1)}, {P2(m)} op_sel_hi:[1,0,0] neg_lo:[0,0,1] neg_hi:[0,0,1]" for i in range(0, 16, 2)]
        L += [f"v_exp_f32 v{P+i}, v{P+i}" for i in range(16)]
        L += [f"v_pk_add_f32 {P2(m)}, {P2(P)}, {P2(P+2)}", f"v_pk_add_f32 {P2(m+2)}, {P2(P+4)}, {P2(P+6)}"]
        L += [f"v_pk_add_f32 {P2(m+(i&2))}, {P2(m+(i&2))}, {P2(P+i)}" for i in range(8, 16, 2)]
        L += [f"v_pk_add_f32 {P2(m)}, {P2(m)}, {P2(m+2)}", f"v_add_f32 v{m}, v{m}, v{m+1}", f"v_rcp_f32 v{m}, v{m}"]
        L += [f"v_pk_mul_f32 {P2(P+i)}, {P2(P+i)}, {P2(m)} op_sel_hi:[1,0]" for i in range(0, 16, 2)]
    else:
        L += [f"v_fma_f32 v{P+i}, v{P+i}, v{vC1}, -v{m}" for i in range(16)]
        L += [f"v_exp_f32 v{P+i}, v{P+i}" for i in range(16)]
        L += [f"v_add_f32 v{m+i}, v{P+2*i}, v{P+2*i+1}" for i in range(4)]
        L += [f"v_add_f32 v{m+(i&3)}, v{m+(i&3)}, v{P+i}" for i in range(8, 16)]
        L += [f"v_add_f32 v{m}, v{m}, v{m+1}", f"v_add_f32 v{m+2}, v{m+2}, v{m+3}", f"v_add_f32 v{m}, v{m}, v{m+2}", f"v_rcp_f32 v{m}, v{m}"]
        L += [f"v_mul_f32 v{P+i}, v{P+i}, v{m}" for i in range(16)]
    L += [f"v_cvt_pk_bf16_f32 v{out+i}, v{P+2*i}, v{P+2*i+1}" for i in range(8)]
    return L

def corr(pairs, bias):
    L = [wt(lg="cw")]
    if bias: L = [f"v_lshlrev_b32 v{vBA+i}, 16, v{vBA+i}" for i in range(len(pairs))] + L
    for q, _ in pairs: L += [f"v_add_f32 v{q}, v{q}, v{q+1}", f"v_add_f32 v{q+2}, v{q+2}, v{q+3}"]
    for q, _ in pairs: L += [f"v_add_f32 v{q}, v{q}, v{q+2}"]
    for i, (q, _) in enumerate(pairs): L += [f"v_cndmask_b32 v{q}, {v(vBA+i) if bias else 0}, v{q}, {sLO}"]
    for q, acc in pairs: L += [f"{MF32} {v(acc,16)}, v{q}, v{vBC}, {v(acc,16)}"]
    return L
def phi_frags(dst, n, off=0):
    R = [dsw(f"ds_read_b64_tr_b16 {v(dst+2*i,2)}, v{vPHA} offset:{off+256*i}", "ph") for i in range(2 * n)]
    return R, [f"v_xor_b32 v{dst+i}, v{vSGN}, v{dst+i}" for i in range(4 * n)]

vP2X = 44
def p2_reads(t, two):
    off = P2B[t >> 3] + ((t >> 2) & 1) * 8192
    L = []
    for k in range(2 if two else 1):
        b = vWF + (8 * (t & 3) + 4 * k if two else 4 * (t & 3))
        ad = ((vP2X if k == 0 else vP2A) if two else vP2A) + (t & 3)
        L.append(dsw(f"ds_read_b64_tr_b16 {v(b,2)}, v{ad} offset:{off}", f"p{t}"))
        L.append(dsw(f"ds_read_b64_tr_b16 {v(b+2,2)}, v{ad} offset:{off+512}", f"p{t}"))
    return L
def pass2(accs, side):
    two = len(accs) == 2
    for t in range(32):
        if t == 0: pt("q0")
        if t == 13:
            pt("m0")
            a.wait(vm="c9", lg="all")
            pt("m1")
            a("s_barrier")
            pt("m2")
        a.wait(lg=f"p{t}")
        R = p2_reads(t + 3, two) if t + 3 < 32 else []
        for k, acc in enumerate(accs):
            b = vWF + (8 * (t & 3) + 4 * k if two else 4 * (t & 3))
            a(f"{MF} {v(acc,16)}, {v(b,4)}, {v(vX+4*t,4)}, {'0' if t == 0 else v(acc,16)}")
            emits(R[2*k:2*k+2])
        if (t & 3) == 1:
            for k in range(len(accs)):
                b = vWF + (8 * (t & 3) + 4 * k if two else 4 * (t & 3))
                a(f"{MF16} {v(vCS+4*k,4)}, {v(vSEL,4)}, {v(b,4)}, {'0' if t == 1 else v(vCS+4*k,4)}")
        if t == 30:
            for k in range(len(accs)): a.ds(f"ds_write_b32 v{vCAW}, v{vCS+4*k} offset:{1024*k}", "cw")
        emits(side.get(t, []))

vACC = 64
vAB, vWR = 128, 192
vA2U, vA2T, vA2L = 1, 3, 38
vOO, vRW, vRR, vRSA = 5, 7, 8, 9
vFV = 13
vRS2, vRES = 14, 16
vS0 = 24
vC0 = 32
vEC = 34
def areg(j): return vAB + 8 * j if j < 8 else ([40, 48, 56, 248][j - 8] if j < 12 else vAB + 8 * (j - 12))
def wreg(j): return vWR + 8 * (j if j < 7 else (j - 7) % 7)
def p2_addrs():
    return lines(f"""v_add_u32 v{vA2U+1}, {X2}, v{vA2B}
    v_add_u32 v{vA2T+1}, {RT}, v{vA2B}
    v_xor_b32 v{vA2U}, 64, v{vA2U+1}
    v_xor_b32 v{vA2T}, 64, v{vA2T+1}""")
def p2_addrL(): return [f"v_xor_b32 v{vA2L}, 64, v{vA2B}"]
def w_read(j):
    s = slot(j)
    ad, off = (vA2T, s - RT) if s >= RT else ((vA2U, s - X2) if s >= X2 else (vA2L, s))
    L = [wt(vm=f"w{j}")]
    for b in range(2):
        L.append(dsw(f"ds_read_b64_tr_b16 {v(wreg(j)+4*b,2)}, v{ad+1-b} offset:{off}", f"r{j}"))
        L.append(dsw(f"ds_read_b64_tr_b16 {v(wreg(j)+4*b+2,2)}, v{ad+1-b} offset:{off+1024}", f"r{j}"))
    return L
def w_refill(j):
    return [wt(lg=f"r{j-9}"), w_item(j)]
def wo_switch(): return [f"v_add_u32 v{vW2O+i}, s{sWDL}, v{vW2O+i}" for i in range(2)]
def a_load(j, tag=None, st=(0, 1)):
    def p():
        if j < 8: a(f"s_xor_b32 s{sT1}, s{sRA}, {j << 11}")
        elif j < 12: a(f"s_movk_i32 s{sT1}, {j << 11}")
        else: a(f"s_add_u32 s{sT1}, s{sAO}, {(j - 12) << 11}")
        for s in st:
            a.vmem(f"buffer_load_dwordx4 {v(areg(j)+4*s,4)}, v{vACT}, {srd(sWS)}, s{sT1} offen offset:{1024*s} sc1", tag or f"a{j}")
    return fn(p, 6)
def p6(body): skip_if(f"s_cmp_lt_u32 s{sW}, 3", body, "L_p6")
def poll(tag="fl"): return vm(f"buffer_load_dword v{vFV}, v{vFL}, {srd(sWS)}, 0 offen sc1", tag)
def poll_check():
    a.wait(vm="fl")
    checked([f"v_cmp_ne_u32 vcc, s{sTAG}, v{vFV}", f"s_and_b64 vcc, vcc, {sp(sFM)}"], poll("x"), "L_fl")
def selectors(tmp):
    L = lines(f"""v_and_b32 v{tmp}, 1, v{vL}
    v_mov_b32 v{tmp+1}, 0x3f80
    v_lshlrev_b32 v{tmp}, 4, v{tmp}
    v_lshlrev_b32 v{tmp+1}, v{tmp}, v{tmp+1}
    v_bfe_u32 v{tmp}, v{vL}, 1, 3""")
    for r in range(0, 8, 2):
        L += [f"v_cmp_eq_u32 vcc, {r}, v{tmp}", f"v_cmp_eq_u32 {sp(sU)}, {r+1}, v{tmp}",
              f"v_cndmask_b32 v{vS0+r}, 0, v{tmp+1}, vcc", f"v_cndmask_b32 v{vS0+r+1}, 0, v{tmp+1}, {sp(sU)}"]
    return L
def tail_addrs():
    x = vC0
    L = lines(f"""v_and_b32 v{x}, 15, v{vL}
    v_lshrrev_b32 v{x+1}, 5, v{vL}
    v_lshl_add_u32 v{x+1}, v{x+1}, 4, v{x}
    v_lshlrev_b32 v{vRSA}, 4, v{x+1}
    v_and_b32 v{vOO}, 16, v{vL}
    v_lshl_add_u32 v{vOO}, v{x+1}, 10, v{vOO}
    s_add_u32 s{sT2}, s{sM0R}, {X3}
    v_add_u32 v{vRW}, s{sT2}, v{vL16}
    s_lshr_b32 s{sT2}, s{sW}, 1
    s_mov_b32 s{sRED}, {REDR[0]}""")
    for i in range(1, 4): L += [f"s_cmp_eq_u32 s{sT2}, {i}", f"s_cselect_b32 s{sRED}, {REDR[i]}, s{sRED}"]
    L += lines(f"""s_and_b32 s{sT2}, s{sW}, 1
    s_lshl_b32 s{sT2}, s{sT2}, 10
    s_add_u32 s{sRED}, s{sRED}, s{sT2}
    v_lshl_add_u32 v{x}, v{x}, 4, s{sRED}
    v_lshrrev_b32 v{x+1}, 4, v{vL}
    v_lshl_add_u32 v{vRR}, v{x+1}, 11, v{x}""")
    return L
def rs_load(tag="rs"): return vm(f"buffer_load_dwordx2 {P2(vRS2)}, v{vRSA}, {srd(sWS)}, s{sR2} offen offset:8 sc1", tag)
def res_load(): return vm(f"buffer_load_dwordx4 {v(vRES,4)}, v{vOO}, {srd(sX)}, s{sOB} offen", "res")
def ep_loads():
    a(f"v_lshlrev_b32 v10, 5, v{vL}")
    for i in range(4):
        a(f"s_mov_b32 s{sT2}, {FLG + i*2048}")
        a(f"buffer_load_dword v{vEC+i}, v10, {srd(sWS)}, s{sT2} offen sc1")
def if_first(body):
    a(f"s_or_b32 s{sT2}, s2, s{sW}")
    skip_if(f"s_cmp_eq_u32 s{sT2}, 0", body, "L_ep")
def sentinel(js, st, reload):
    regs = [areg(j) + 4 * s for j in js for s in st]
    assert len(regs) == 4
    checked([f"v_max3_u32 v{vC0}, v{regs[0]}, v{regs[1]}, v{regs[2]}", f"v_max_u32 v{vC0}, v{vC0}, v{regs[3]}",
             f"v_cmp_eq_u32 vcc, -1, v{vC0}"], reload, "L_s")
def step_mfma(j, st, first=False, gaps=()):
    gaps = list(gaps)
    for s in st:
        for b in range(2):
            acc = vACC + 32 * s + 16 * b
            a(f"{MF} {v(acc,16)}, {v(wreg(j)+4*b,4)}, {v(areg(j)+4*s,4)}, {'0' if first else v(acc,16)}")
            if gaps: emits(gaps.pop(0))
    for g in gaps: emits(g)
def split(L, n):
    tot = sum(cost(x) for x in L); G = [[] for _ in range(n)]; acc = 0
    for x in L:
        G[min(n - 1, int(acc * n / max(tot, 1)))].append(x); acc += cost(x)
    return G

CPOS, OPOS = opt("cpos", 2), opt("opos", 8)
def phase2(six, first_wg, side):
    def add(j, L): side[j] = side.get(j, []) + L
    add(CPOS, [a_load(8), a_load(9)])
    if six: add(CPOS, [fn(lambda: p6(lambda: (a_load(10)(), a_load(11)())), 6)])
    o_loads = [a_load(j, "o0", (0,)) for j in range(12, 16)] + [a_load(j, "o1", (1,)) for j in range(12, 16)]
    add(OPOS, o_loads)
    for j, k in ((7, 1), (8, 2), (9, 3), (12, 6), (13, 7), (14, 8), (15, 9)): add(k, w_read(j))
    if six:
        add(5, [wt(vm="w12"), fn(lambda: p6(lambda: emits(w_read(10) + w_read(11))), 8)])
    for j in range(10):
        if j == 8:
            a.wait(vm="a9")
            sentinel((8, 9), (0, 1), lambda: (a_load(8, "x")(), a_load(9, "x")()))
        a.wait(vm=f"a{j}", lg=f"r{j}")
        if j == 0: stamp(7)
        step_mfma(j, (0, 1), j == 0, split(side.get(j, []), 4))
    if six:
        def body():
            a("s_waitcnt vmcnt(8)" if OPOS > CPOS else "s_waitcnt vmcnt(0)")
            sentinel((10, 11), (0, 1), lambda: (a_load(10, "x")(), a_load(11, "x")()))
            for j in (10, 11): step_mfma(j, (0, 1))
        assert a.vm[-8:] == ["o0"] * 4 + ["o1"] * 4
        p6(body)
    stamp(8)
    a.wait(vm="o0", lg="all")
    sentinel(range(12, 16), (0,), lambda: emits([a_load(j, "x") for j in range(12, 16)]))
    checked([f"v_cmp_ne_u32 vcc, s{sTAG}, v{vRS2+1}"], rs_load("x"), "L_rs")
    U = []
    for j in range(4): U += [f"v_lshlrev_b32 v{40+2*j}, 16, v{vRES+j}", f"v_and_b32 v{41+2*j}, s{sMASK}, v{vRES+j}"]
    G = split(U, 8)
    for j in range(12, 16): step_mfma(j, (0,), False, G[2*(j-12):2*(j-12)+2])
    a.wait(vm="o1")
    sentinel(range(12, 16), (1,), lambda: emits([a_load(j, "x", (1,)) for j in range(12, 16)]))
    def pack(k):
        acc = vACC + 16 * k; L = []
        for hf in range(2):
            L += [f"v_cvt_pk_bf16_f32 v{acc+4*hf+i}, v{acc+8*hf+2*i}, v{acc+8*hf+2*i+1}" for i in range(4)]
            L += [dsw(f"ds_write_b128 v{vRW}, {v(acc+4*hf,4)} offset:{REDR[k]-X3+1024*hf}")]
        return L
    G = [[]] + split(pack(0) + pack(1), 7)
    for j in range(12, 16): step_mfma(j, (1,), False, G[2*(j-12):2*(j-12)+2])
    if first_wg:
        def ep():
            checked([f"v_xor_b32 v{vEC+i}, s{sTAG}, v{vEC+i}" for i in range(4)] +
                    [f"v_or3_b32 v{vEC}, v{vEC}, v{vEC+1}, v{vEC+2}", f"v_or_b32 v{vEC}, v{vEC}, v{vEC+3}", f"v_cmp_ne_u32 vcc, 0, v{vEC}"],
                    ep_loads, "L_epc")
            a(f"""v_mov_b32 v{vEC}, s{sTAG}
            s_mov_b64 exec, 1
            buffer_store_dword v{vEC}, off, {srd(sWS)}, 0 sc1
            s_mov_b64 exec, -1""")
        if_first(ep)
    emits(pack(2) + pack(3))
    a.wait(lg="all")
    a("s_barrier")
    for p in range(4):
        for k in range(2):
            a.ds(f"ds_read_b128 {v(vAB+8*p+4*k,4)}, v{vRR} offset:{8192*k+256*p}", f"t{p}{k}")
    D = vWR
    for p in (0, 2, 1, 3):
        for k in range(2):
            a.wait(lg=f"t{p}{k}")
            d = D + 4 * (p >> 1)
            a(f"{MF16} {v(d,4)}, {v(vS0+4*(p&1),4)}, {v(vAB+8*p+4*k,4)}, {'0' if (p & 1) == 0 and k == 0 else v(d,4)}")
    for j in range(0, 8, 2): a(f"v_pk_fma_f32 {P2(D+j)}, {P2(D+j)}, {P2(vRS2)}, {P2(40+j)} op_sel_hi:[1,0,1]")
    for j in range(4): a(f"v_cvt_pk_bf16_f32 v{D+8+j}, v{D+2*j}, v{D+2*j+1}")
    a(f"buffer_store_dwordx4 {v(D+8,4)}, v{vOO}, {srd(sOUT)}, s{sOB} offen")
    stamp(9)
    a("s_branch L_fin")
def refills(six, js):
    L = []
    for j in js:
        if j == 12: L += wo_switch()
        if j == 10:
            if six: L += [wt(lg="r2"), fn(lambda: p6(lambda: (w_item(10)(), w_item(11)())), 8)]
        elif j != 11: L += w_refill(j)
    return L

st1 = a.save()
a(f"""s_cmp_eq_u32 s{sTYPE}, 0
s_cbranch_scc0 L_B
s_cmp_eq_u32 s{sH}, 0
s_cbranch_scc0 L_A1""")
PKA = opt("pka", 0)
R0_, X0_ = phi_frags(56, 2); R1_, X1_ = phi_frags(248, 2, 1024)
emits(R0_ + corr([(vT, vA0), (vCS, vA1)], False))
emits(R1_ + p2_addrs() + [wt(lg="ph")] + X0_ + X1_)
kb = 40
PH = [56, 60, 248, 252]; PP = [64, 80, 96, 112]
for tl, acc in enumerate((vA0, vA1)):
    for j in range(8): a(f"v_cvt_pk_bf16_f32 v{kb+8*tl+j}, v{acc+2*j}, v{acc+2*j+1}")
    if tl == 0:
        for hd in range(2): a(f"{MF} {v(PP[hd],16)}, {v(PH[hd],4)}, {v(kb+4*hd,4)}, 0")
for hd in range(2, 4): a(f"{MF} {v(PP[hd],16)}, {v(PH[hd],4)}, {v(kb+4*hd,4)}, 0")
def ksoft(hd):
    P = PP[hd]
    return softmax(P, P, PKA, vT) + [dsw(f"ds_write_b128 v{vPW0}, {v(P,4)} offset:{hd*8192}"),
                                     dsw(f"ds_write_b128 v{vPW1}, {v(P+4,4)} offset:{hd*8192}")]
pt("q0")
emits(ksoft(0) + ksoft(1))
pt("m0")
a.wait(vm="c9")
pt("m1")
a("s_barrier")
pt("m2")
stamp(4)
emits(merge(ksoft(2) + ksoft(3), [w_item(2), w_item(3)], 0, 60))
a.wait(lg="all")
a("s_barrier")
stamp(5)
KB = [vA1, vA1 + 8, 40]
def kv_reads(t):
    b = KB[t % 3]
    a.ds(f"ds_read_b64_tr_b16 {v(b,2)}, v{vKA0} offset:{t*1024}", f"kv{t}")
    a.ds(f"ds_read_b64_tr_b16 {v(b+2,2)}, v{vKA1} offset:{t*1024+256}", f"kv{t}")
    a.ds(f"ds_read_b64_tr_b16 {v(b+4,2)}, v{vKB} offset:{t*2304}", f"kv{t}")
    a.ds(f"ds_read_b64_tr_b16 {v(b+6,2)}, v{vKB} offset:{t*2304+576}", f"kv{t}")
for t in range(3): kv_reads(t)
for t in range(8):
    a.wait(lg=f"kv{t}")
    b = KB[t % 3]
    a(f"{MF} {v(vA0,16)}, {v(b,4)}, {v(b+4,4)}, {'0' if t == 0 else v(vA0,16)}")
    if t >= 1 and t + 2 < 8: kv_reads(t + 2)
emits(p2_addrL() + [poll()])
for i in range(8): a(f"v_cvt_pk_bf16_f32 v{vA1+i}, v{vA0+2*i}, v{vA0+2*i+1}")
for i in range(4): a(f"v_permlane16_swap_b32 v{vA1+i}, v{vA1+4+i}")
a.vmem(f"buffer_store_dwordx4 {v(vA1,4)}, v{vL16}, {srd(sWS)}, s{sC0} offen sc1", "st")
a("""s_mov_b32 exec_lo, 0x00010001
s_mov_b32 exec_hi, 0x00010001""")
a.vmem(f"buffer_store_dwordx4 {v(vA1+4,4)}, v{vL}, {srd(sWS)}, s{sC1} offen sc1", "st")
a("s_mov_b64 exec, -1")
emits(sum([w_read(j) for j in range(4)], []) + refills(True, (9, 10, 11)) + tail_addrs())
a("s_barrier")
stamp(6)
emits([w_item(j) for j in range(4, 9)])
poll_check()
emits(merge(selectors(vC0), [a_load(j) for j in range(8)]))
emits([rs_load(), res_load()] + refills(True, (12,)) + sum([w_read(j) for j in range(4, 7)], []))
phase2(True, True, {0: refills(True, (13, 14, 15)), 1: [fn(lambda: if_first(ep_loads), 4)]})

a.label("L_A1")
a.restore(st1)
emits([f"v_xor_b32 v{vP2X+i}, 64, v{vP2A+i}" for i in range(4)] + corr([(vT, vA0), (vCS, vA1)], False))
for t in range(3): emits(p2_reads(t, True))
a(f"""v_mov_b32 v{vT}, 0x3f803f80
v_mov_b32 v{vT+1}, 0x3f803f80""")
a.ds(f"ds_write_b64 v{vVP}, {v(vT,2)} offset:128", "w")
emits(p2_addrs() + p2_addrL())
for tl, acc in enumerate((vA0, vA1)):
    for i in range(0, 16, 2): a(f"v_pk_mul_f32 {P2(acc+i)}, {P2(acc+i)}, {P2(vC1)} op_sel:[0,1] op_sel_hi:[1,1]")
    for hf in range(2):
        d = [40, vT + 4, 60, vT][2 * tl + hf]
        for i in range(4): a(f"v_cvt_pk_bf16_f32 v{d+i}, v{acc+8*hf+2*i}, v{acc+8*hf+2*i+1}")
        a.ds(f"ds_write_b128 v{vVW}, {v(d,4)} offset:{64*tl+32*hf}", "w")
SPOS = opt("spos", 24)
pass2([vA0, vA1], {13: [fn(lambda: stamp(4), 0), w_item(2)], 15: [w_item(3)], SPOS: ["s_barrier", fn(lambda: stamp(5), 0)], 29: [poll()]})
a.wait(lg="all")
a("s_barrier")
stamp(6)
a.ds(f"ds_read_b128 {v(vT,4)}, v{vCAR}", "cw")
a.ds(f"ds_read_b128 {v(vCS,4)}, v{vCAR} offset:1024", "cw")
emits([w_item(4)] + corr([(vT, vA0), (vCS, vA1)], True) + [w_item(5)] + sum([w_read(j) for j in range(4)], []))
a(f"s_add_u32 s{sT3}, s{sC0}, 4096")
emits(merge(mish_store(vA0, True, sC0, vT), [w_item(j) for j in range(6, 9)] + refills(False, (9,))))
poll_check()
skip_if(f"s_cmp_eq_u32 s{sSKIP}, 0", lambda: emits(mish_store(vA1, True, sT3, vT)), "L_skc")
emits(merge(tail_addrs() + selectors(vC0), [a_load(j) for j in range(8)]))
emits([rs_load(), res_load()] + refills(False, (12,)) + sum([w_read(j) for j in range(4, 7)], []))
phase2(False, False, {0: refills(False, (13, 14, 15))})

a.label("L_B")
a.restore(st1)
emits(corr([(vT, vA0), (vCS, vA1)], True) + [w_item(6), f"s_add_u32 s{sT3}, s{sSB0}, 4096"] + p2_addrs())
MB = merge(mish_store(vA0, True, sSB0, 40) + mish_store(vA1, True, sT3, 40), [w_item(7), w_item(8)], 0, 60)
emits(merge(MB, sum([p2_reads(t, False) for t in range(3)], []), len(MB) - 20))
stamp(4)
vPHB = 40
RB_, XB_ = phi_frags(vPHB, 2)
FPOS = opt("fpos", 10)
pass2([vA2], {FPOS: [wt(vm="st"), flag_store], 13: [w_item(2)], 15: [w_item(3)], 18: RB_, 22: XB_[:4], 23: XB_[4:]})
stamp(5)
a.wait(lg="all")
a("s_barrier")
stamp(6)
a.ds(f"ds_read_b128 {v(vT,4)}, v{vCAR}", "cw")
emits([poll(), w_item(4)] + corr([(vT, vA2)], False) + [w_item(5)] + w_read(0) + w_read(1) + w_read(6))
for j in range(8): a(f"v_cvt_pk_bf16_f32 v{vT+j}, v{vA2+2*j}, v{vA2+2*j+1}")
a(f"{MF} {v(vA2,16)}, {v(vPHB,4)}, {v(vT,4)}, 0")
a(f"{MF} {v(vA1,16)}, {v(vPHB+4,4)}, {v(vT+4,4)}, 0")
vA2L = 7
a(f"""v_mov_b32 v{vA2L+1}, v{vA2B}
v_xor_b32 v{vA2L}, 64, v{vA2B}""")
emits(w_read(2) + w_read(3) + refills(True, (9,)))
poll_check()
vTL, vZL = 40, 72
def t_load(i, tag=None):
    def p():
        a(f"s_movk_i32 s{sT1}, {(i>>1)*4*1152}")
        a.vmem(f"buffer_load_dwordx4 {v(vTL+4*i,4)}, v{vGA}, {srd(sWS)}, s{sT1} offen offset:{(i&1)*256} sc1", tag or "t")
    return fn(p, 4)
def z_load(tag=None): return vm(f"buffer_load_dwordx4 {v(vZL,4)}, v{vGZ}, {srd(sWS)}, 0 offen offset:1024 sc1", tag or "t")
GPOS = opt("gpos", 4)
AL = [a_load(j) for j in range(8)]
side2 = AL[:GPOS] + [z_load()] + [t_load(i) for i in range(8)] + AL[GPOS:] + refills(True, (10, 11, 12, 15))
vPQ = [vA2, vA1]
emits(merge(softmax(vA2, vA2, True, 96) + softmax(vA1, vA1, True, 96) + selectors(96), side2))
emits(w_read(4) + w_read(5))
a.wait(vm="t")
def t_reload():
    z_load("x")()
    for i in range(8): t_load(i, "x")()
vD, vDZ = 96, 100
checked([f"v_max3_u32 v{vD}, v{vTL}, v{vTL+4}, v{vTL+8}", f"v_max3_u32 v{vD+1}, v{vTL+12}, v{vTL+16}, v{vTL+20}",
         f"v_max3_u32 v{vD}, v{vD}, v{vTL+24}, v{vTL+28}", f"v_max3_u32 v{vD}, v{vD}, v{vD+1}, v{vZL}",
         f"v_cmp_eq_u32 vcc, -1, v{vD}"], t_reload, "L_t")
a(f"{MF16} {v(vDZ,4)}, {v(vS0,4)}, {v(vZL,4)}, 0")
for i in range(8):
    a(f"{MF16} {v(vD,4)}, {v(vS0+4*(i&1),4)}, {v(vTL+4*i,4)}, {'0' if i == 0 else v(vD,4)}")
for sh in (2, 4):
    for j in range(4): a(f"v_add_f32_dpp v{vDZ+j}, v{vDZ+j}, v{vDZ+j} row_ror:{sh} row_mask:0xf bank_mask:0xf")
a(f"""v_cvt_pk_bf16_f32 v{vDZ}, v{vDZ}, v{vDZ+1}
v_cvt_pk_bf16_f32 v{vDZ+1}, v{vDZ+2}, v{vDZ+3}
s_mov_b64 exec, 0x30003
ds_write_b64 v{vZW}, {v(vDZ,2)} offset:256
s_mov_b64 exec, -1
v_cvt_pk_bf16_f32 v{vD}, v{vD}, v{vD+1}
v_cvt_pk_bf16_f32 v{vD+1}, v{vD+2}, v{vD+3}
ds_write_b64 v{vKW}, {v(vD,2)}""")
a.wait(lg="all")
a("s_barrier")
vKF = 96
for hh in range(2):
    for j in range(2):
        a.ds(f"ds_read_b128 {v(vKF+8*hh+4*j,4)}, v{vKR} offset:{hh*1088+j*272}", f"kf{hh}")
emits(refills(True, (13,)))
for hh, D in ((0, vTL), (1, vTL + 16)):
    a.wait(lg=f"kf{hh}")
    a(f"{MF} {v(D,16)}, {v(vKF+8*hh,4)}, {v(vPQ[hh],4)}, 0")
    a(f"{MF} {v(D,16)}, {v(vKF+8*hh+4,4)}, {v(vPQ[hh]+4,4)}, {v(D,16)}")
emits(refills(True, (14,)))
vA2L = 38
emits(p2_addrL())
for hh, D in ((0, vTL), (1, vTL + 16)):
    a(f"v_add_f32 v{D+8}, 0x358637bd, v{D+8}")
    a(f"v_rcp_f32 v{D+8}, v{D+8}")
    a(f"v_mul_f32 v{D+8}, v{D+8}, v{vSD}")
    for i in range(0, 8, 2): a(f"v_pk_mul_f32 {P2(D+i)}, {P2(D+i)}, {P2(D+8)} op_sel_hi:[1,0]")
    for i in range(4): a(f"v_cvt_pk_bf16_f32 v{248+4*hh+i}, v{D+2*i}, v{D+2*i+1}")
    frag_store(248 + 4 * hh, sC0, hh)()
phase2(True, False, {0: tail_addrs() + [rs_load(), res_load()]})

for blk in retries: blk()
a.label("L_fin")
if STAMP >= 0:
    n = nst[0]
    a(f"""s_cmp_eq_u32 s{sW}, {STAMP}
    s_cbranch_scc0 L_end
    s_waitcnt lgkmcnt(0)
    s_sub_u32 s{sT0}, {SPIN}, s{sCNT}
    s_mul_i32 s{sT0}, s{sT0}, 100
    s_add_u32 s{sST0+2}, s{sST0}, s{sT0}
    s_addc_u32 s{sST0+3}, s{sST0+1}, 0
    s_mul_i32 s{sT0}, s2, {n*8}
    s_add_u32 s{sT0}, s{sT0}, {STAMP_OFF}
    s_mov_b64 exec, 1""")
    for i in range(n):
        if FINE == 2 and i > 2:
            a(f"v_mov_b32 v{64+2*i}, v{200+2*i}")
            a(f"v_mov_b32 v{65+2*i}, v{201+2*i}")
        else:
            a(f"v_mov_b32 v{64+2*i}, s{sST0+2*i}")
            a(f"v_mov_b32 v{65+2*i}, s{sST0+2*i+1}")
        a(f"buffer_store_dwordx2 {v(64+2*i,2)}, off, {srd(sWS)}, s{sT0} offset:{i*8}")
    if opt("dbg", -1) >= 0:
        a(f"""s_and_b32 s{sT0}, s2, 127
        s_cmp_eq_u32 s{sT0}, {opt("dbg", -1)}
        s_cbranch_scc0 L_end
        s_load_dwordx2 s[44:45], s[0:1], 72
        s_mov_b32 s46, 256
        s_mov_b32 s47, 0x00020000
        s_lshr_b32 s{sT0}, s2, 7
        s_lshl_b32 s{sT0}, s{sT0}, 5
        s_waitcnt lgkmcnt(0)""")
        for i in range(2, 10):
            a(f"""s_sub_u32 s{sT1}, s{sST0+2*i}, s{sST0}
            v_mov_b32 v64, s{sT1}
            buffer_store_dword v64, off, s[44:47], s{sT0} offset:{(i-2)*4}""")
a.label("L_end")
a.pad()
open(out_path, "w").write(header(256, 512, LDS_SIZE) + a.text() + footer(vgpr=256))
print("instructions:", sum(1 for x in a.L if x.states), "nops:", sum(1 for x in a.L if x.kind == "nop"), "stamps", nst[0])
```

```python
import sys
from asmdsl import Asm
from gen_common import header, footer

OPT = dict(a.split("=") for a in sys.argv[2:])
def opt(k, d): return type(d)(OPT.get(k, d))
STAMP = opt("stamp", -1)
CYC = opt("cyc", 0)
PTS = [p.split("|") for p in opt("pts", "p0,p1,Y,S|g,kv|o,f0,f2,end").split(",") if p]
ROTM = opt("rotm", 7)
ROT2 = opt("rot2", 7)
SPIN = opt("spin", 200000)
out_path = sys.argv[1]

SZ = 16384
KVL, WPHI, CW, BNC = 9 * SZ, 9 * SZ + 2048, 9 * SZ + 4096, 9 * SZ + 8192
PHI, VIMG = 2 * SZ, 8 * SZ
LDS_SIZE = 163840
REC1 = 0x1000
KVD = 0x20000
FLG = 0xc0000
ACT = 0x140000
DUM = 0x1000000
STAMP_OFF = 128 << 20

sW, sSIG, sH, sT0, sT1 = 3, 4, 5, 6, 7
sX, sWD, sWE, sW2, sWO, sOUT, sWS = 8, 12, 16, 20, 24, 28, 32
sPH, sB1, sPC = 36, 40, 44
sHALF, sISQ, sLOm, sFM, sMASK, sCM = 36, 38, 40, 42, 44, 46
sFMB, sTILE, sFL, sFB, sRA2, sRW2 = 48, 50, 51, 52, 53, 54
(sM0R, sTAG, sCNT, sT2, sT3, sRHO, sRB, sG, sSTART, sT4, sC0, sC1, sSB0, sOB, sRA, sRW, sAO, sR2,
 sRB2, sCB, sGAM, sREC, sSTR, sKB) = range(56, 80)
sST0 = 82
sLO = f"s[{sLOm}:{sLOm+1}]"
def srd(n): return f"s[{n}:{n+3}]"
def sp(n): return f"s[{n}:{n+1}]"

vL = 0
vXO, vWA, vWC, vL16, vBA = 1, 3, 5, 7, 8
vA2L, vA2M, vA2T = 1, 3, 5
vBC, vSD, vC1, vRSTD = 10, 11, 12, 13
vCAW, vCAR, vPL, vPM = 14, 15, 16, 20
vT = 24
vW2O, vWOO, vFL, vACT, vA2B, vFV = 32, 34, 36, 37, 38, 39
vXA, vSEL, vCS = 40, 44, 48
vPHA, vSGN = 56, 57
vPW0, vPW1, vKA0, vKA1, vKB, vVW = 58, 59, 60, 61, 62, 63
vGA, vGZ, vKW, vZW, vKR = 58, 59, 60, 61, 62
vWF = 64
K2, K0, K1 = 80, 96, 112
vX = 128
def v(n, k=1): return f"v{n}" if k == 1 else f"v[{n}:{n+k-1}]"
def P2(n): return v(n, 2)

a = Asm()
nst = [2]
def stamp(i):
    if STAMP >= 0:
        assert i < 10
        a(f"{'s_memtime' if CYC else 's_memrealtime'} s[{sST0+2*i}:{sST0+2*i+1}]")
        nst[0] = max(nst[0], i + 1)
def pt(name):
    for i, p in enumerate(PTS):
        if name in p: stamp(2 + i)

MF = "v_mfma_f32_32x32x16_bf16"
MF16 = "v_mfma_f32_16x16x32_bf16"
MF32 = "v_mfma_f32_32x32x2_f32"
LOG2E = "0x3fb8aa3b"

def lines(txt): return [l.strip() for l in txt.strip().split("\n") if l.strip()]
def cost(x):
    if callable(x): return getattr(x, "cost", 1)
    return 2 if ("v_exp" in x or "v_rcp" in x or "v_mfma" in x) else 1
def emit(x):
    if callable(x): x()
    else: a(x)
def emits(L):
    for x in L: emit(x)
def fn(f, c=1):
    f.cost = c; return f
def ptf(name): return fn(lambda: pt(name), 0)
def grp(L): return fn(lambda: emits(L), sum(cost(x) for x in L))
def merge(main, side, start=0, end=None):
    end = len(main) if end is None else min(end, len(main))
    tot = sum(cost(x) for x in main[start:end]); out = list(main[:start]); acc = 0; k = 0
    for x in main[start:end]:
        while k < len(side) and acc >= k * tot / len(side): out.append(side[k]); k += 1
        out.append(x); acc += cost(x)
    return out + side[k:] + list(main[end:])
def split(L, n):
    tot = sum(cost(x) for x in L); G = [[] for _ in range(n)]; acc = 0
    for x in L:
        G[min(n - 1, int(acc * n / max(tot, 1)))].append(x); acc += cost(x)
    return G
def vm(txt, tag):
    if opt("now2", 0) and tag[0] == "w": return fn(lambda: None, 3)
    return fn(lambda: a.vmem(txt, tag), 3)
def dsw(txt, tag="w"): return fn(lambda: a.ds(txt, tag), 2)
def wt(**kw): return fn(lambda: a.wait(**kw), 0)

retries = []
def checked(cmp_lines, reload, name):
    lab = a.newlabel(name)
    a.label(lab + "_c")
    for l in cmp_lines: a(l)
    a(f"s_cbranch_vccnz {lab}_r")
    a.label(lab + "_k")
    def blk():
        a.label(lab + "_r")
        a(f"""s_cmp_eq_u32 s{sCNT}, 0
        s_cbranch_scc1 {lab}_k
        s_sub_u32 s{sCNT}, s{sCNT}, 1""")
        reload()
        a(f"""s_waitcnt vmcnt(0)
        s_branch {lab}_c""")
    retries.append(blk)
def skip_if(cmp_line, body, name):
    lab = a.newlabel(name)
    a(cmp_line); a(f"s_cbranch_scc0 {lab}")
    st = a.save()
    body()
    a.label(lab)
    a.restore(st)

t0, t1, t2, t3, u0, u1, u2, u3 = range(vT, vT + 8)
LT = vX + 96
vXR, vRC, vCL = LT, LT + 16, LT + 20
vRW_, vSW_, vEP, vRA1 = LT + 24, LT + 25, LT + 26, 6
TYPE = [0]
RS = [0, 4, 1, 5]
def rot(c, d): return [f"s_add_u32 s{d}, s{sRHO}, {128*c}", f"s_and_b32 s{d}, s{d}, 0x380"]
def x_item(c):
    s = [f"s_add_u32 m0, s{sM0R}, {(c & 3) * SZ}"] + rot(c, sT0)
    return [s + [vm(f"buffer_load_dwordx4 v{vXO}, {srd(sX)}, s{sT0} offen lds", f"x{c}")],
            [vm(f"buffer_load_dwordx4 v{vXO+1}, {srd(sX)}, s{sT0} offen offset:1024 lds", f"x{c}")]]
def w_item1(c):
    b = (4 + (c & 3)) * SZ
    return [[f"s_add_u32 m0, s{sM0R}, {b}", f"s_mul_i32 s{sT0}, s{sT0}, s{sSTR}",
             vm(f"buffer_load_dwordx4 v{vWA}, {srd(sWD)}, s{sT0} offen lds", f"x{c}")],
            [f"s_add_u32 m0, s{sM0R}, {b+1024}", vm(f"buffer_load_dwordx4 v{vWA+1}, {srd(sWD)}, s{sT0} offen lds", f"x{c}")]]
def r_item(i):
    return [[f"s_add_u32 m0, s{sM0R}, {RS[i]*SZ + 1024*k}"] + rot(2 * i + k, sT0) +
            [f"s_mul_i32 s{sT0}, s{sT0}, {(1376, 1536)[TYPE[0]]}", vm(f"buffer_load_dwordx4 v{vWC}, {srd(sWE)}, s{sT0} offen lds", f"b{i}")]
            for k in range(2)]
def item(n):
    i = int(n[1:])
    return x_item(i) + w_item1(i) if n[0] == "x" else r_item(i)

PRIO = opt("prio", 1)
a(f"""s_cmp_ge_u32 s2, 256
s_cbranch_scc1 L_end""")
stamp(0)
a(f"""s_getpc_b64 {sp(sPC)}
L_pc:
s_load_dwordx2 {sp(sX)}, s[0:1], 0
s_lshr_b32 s{sT1}, s2, 2
s_and_b32 s{sT1}, s{sT1}, 32
s_add_u32 s{sT3}, s{sT1}, 8
s_load_dwordx2 {sp(sWD)}, s[0:1], s{sT3}
s_bfe_u32 s{sT0}, s2, 0x30003
v_lshrrev_b32 v{t0}, 6, v0
s_mov_b32 s{sPC+2}, L_end-L_pc
v_lshl_add_u32 v{t1}, v0, 3, s{sT0}
s_mov_b32 s{sPC+3}, 0x00020000
v_lshlrev_b32 v{t1}, 7, v{t1}
v_readfirstlane_b32 s{sW}, v{t0}
buffer_load_dword v{LT+27}, v{t1}, {srd(sPC)}, 0 offen""")
if PRIO: a("s_setprio 3")
a(f"""s_load_dwordx2 {sp(sWS)}, s[0:1], 80
v_lshrrev_b32 v{vRW_}, 3, v0
s_sub_u32 s{sT4}, 40, s{sT1}
s_and_b32 s{sT1}, s2, 1
v_and_b32 v{t1}, 56, v{vRW_}
s_lshl3_add_u32 s{sRB}, s{sT1}, s{sT0}       ; rb
v_add_u32 v{t0}, v{vRW_}, v{t1}
s_lshr_b32 s{sT1}, s2, 6
v_bfe_u32 v{t2}, v0, 4, 2
s_lshl1_add_u32 s{sRHO}, s{sT1}, s{sT0}
v_bitop3_b32 v{t2}, v0, v{t2}, 7 bitop3:0x28
s_lshl_b32 s{sT2}, s{sRB}, 17
v_lshl_add_u32 v{t2}, v{t2}, 4, s{sT2}
s_and_b32 s{sRHO}, s{sRHO}, {ROTM}
v_lshl_add_u32 v{vXO}, v{t0}, 10, v{t2}
s_lshl_b32 s{sRHO}, s{sRHO}, 7
v_xor_b32 v{vXO+1}, 64, v{vXO}
s_lshl_b32 s{sM0R}, s{sW}, 11
v_add_u32 v{vXO+1}, {8192-1024}, v{vXO+1}
s_mov_b32 s{sX+2}, {2048*1024}
v_bfe_u32 v{t3}, v0, 4, 1
s_mov_b32 s{sX+3}, 0x00020000
v_lshlrev_b32 v{t3}, 2, v{t3}
s_mov_b32 m0, s{sM0R}
v_bitop3_b32 v{t3}, v0, v{t3}, 7 bitop3:0x28
s_bfe_u32 s{sT1}, s2, 0x10006
v_lshlrev_b32 v{vSW_}, 4, v{t3}
s_and_b32 s{sG}, s2, 6
s_or_b32 s{sG}, s{sG}, s{sT1}                ; g
s_mul_i32 s{sSTART}, s{sG}, 11
s_waitcnt lgkmcnt(0)""")
a.vmem(f"buffer_load_dwordx4 v{vXO}, {srd(sX)}, s{sRHO} offen lds", "x0")
a(f"""s_add_u32 s{sSTART}, s{sSTART}, 1
s_lshr_b32 s{sSTART}, s{sSTART}, 1
s_min_u32 s{sSTART}, s{sSTART}, 38
s_lshl1_add_u32 s{sT1}, s{sG}, 16""")
a.vmem(f"buffer_load_dwordx4 v{vXO+1}, {srd(sX)}, s{sRHO} offen offset:1024 lds", "x0")
a(f"""s_movk_i32 s{sSTR}, 1536
s_movk_i32 s{sT2}, 1024
s_bitcmp1_b32 s2, 7
s_cselect_b32 s{sSTR}, 1376, s{sSTR}
s_cselect_b32 s{sT1}, s{sSTART}, s{sT1}
s_cselect_b32 s{sT2}, 128, s{sT2}
v_mul_u32_u24 v{vWA}, s{sSTR}, v{vRW_}
s_lshl_b32 s{sT1}, s{sT1}, 6
s_lshl_b32 s{sWD+2}, s{sSTR}, 10
v_lshl_add_u32 v{vWA}, v{vWA}, 1, v{vSW_}
s_mov_b32 s{sWD+3}, 0x00020000
s_mov_b32 s{sT0}, s{sRHO}
v_add_u32 v{vWA}, s{sT1}, v{vWA}
s_load_dwordx2 {sp(sWE)}, s[0:1], s{sT4}
v_add_u32 v{vWA+1}, s{sT2}, v{vWA}""")
for L in w_item1(0): emits(L)
pt("i0")
a(f"""v_and_b32 v{vL}, 63, v0
s_lshr_b32 s{sT1}, s2, 7
s_lshl1_add_u32 s{sT1}, s{sRB}, s{sT1}
v_lshlrev_b32 v{vL16}, 4, v{vL}
s_lshl3_add_u32 s{sT1}, s{sT1}, s{sG}
s_lshl3_add_u32 s{sREC}, s{sT1}, s{sW}
s_lshl_b32 s{sT1}, s{sREC}, 10
s_mov_b32 s{sWS+2}, {256<<20}
s_mov_b32 s{sWS+3}, 0x00020000
s_lshr_b32 s{sH}, s{sW}, 2""")
a.vmem(f"buffer_load_dwordx4 {v(vXR,4)}, v{vL16}, {srd(sX)}, s{sT1} offen", "xr")
a.vmem(f"buffer_load_dword v{vEP}, off, {srd(sWS)}, 0 sc1", "xr")
if PRIO: a("s_setprio 0")
B3 = lines(f"""s_load_dwordx2 {sp(sPH)}, s[0:1], 16
s_load_dwordx2 {sp(sB1)}, s[0:1], 48
s_load_dwordx2 {sp(sW2)}, s[0:1], 56
s_load_dwordx2 {sp(sWO)}, s[0:1], 24
s_load_dwordx2 {sp(sOUT)}, s[0:1], 64
s_and_b32 s{sSIG}, s{sW}, 3
v_and_b32 v{u0}, 31, v{vL}
s_xor_b32 s{sT3}, s{sSIG}, s{sH}
v_lshrrev_b32 v{u1}, 5, v{vL}
v_bfe_u32 v{u2}, v{vL}, 1, 3
s_lshl_b32 s{sT2}, s{sSIG}, 7
v_xor_b32 v{u2}, v{u1}, v{u2}
s_add_u32 s{sT2}, s{sT2}, s{sT3}
v_lshlrev_b32 v{u2}, 4, v{u2}
s_lshl_b32 s{sT2}, s{sT2}, 5
v_lshl_add_u32 v{u2}, v{u0}, 7, v{u2}
v_bfe_u32 v{t0}, v{vL}, 2, 2
v_xor_b32 v{vXA}, s{sT2}, v{u2}
v_bfe_u32 v{t1}, v{vL}, 4, 1
v_xor_b32 v{vXA+1}, 32, v{vXA}
v_and_b32 v{t2}, 3, v{vL}
v_xor_b32 v{vXA+2}, 64, v{vXA}
v_lshlrev_b32 v{t2}, 3, v{t2}
v_xor_b32 v{vXA+3}, 96, v{vXA}
v_lshl_add_u32 v{t2}, v{t1}, 5, v{t2}
v_lshrrev_b32 v{u2}, 1, v{t0}
s_lshl_b32 s{sT2}, s{sT3}, 6
v_lshl_add_u32 v{u2}, v{u2}, 6, v{t2}
s_add_u32 s{sT2}, s{sT2}, s{sH}
v_lshl_add_u32 v{t3}, v{t0}, 7, v{u2}
s_lshl_b32 s{sT2}, s{sT2}, 6
v_lshl_add_u32 v{u2}, v{u1}, 11, v{t3}
s_or_b32 s{sT2}, s{sT2}, 0x10000
v_xor_b32 v{u3}, v{t0}, v{t1}
v_xor_b32 v{vPM}, s{sT2}, v{u2}
v_and_b32 v{u3}, 1, v{u3}
v_xor_b32 v{vPM+1}, 4096, v{vPM}
v_cmp_eq_u32 vcc, 0, v{u3}
v_xor_b32 v{vPM+2}, 8192, v{vPM}
v_mov_b32 v{u3}, 0x3f803f80
v_xor_b32 v{vPM+3}, 12288, v{vPM}""")
B3 += [f"v_cndmask_b32 v{vSEL+i}, 0, v{u3}, vcc" for i in range(4)]
PRO = opt("pro", "x1").split(",")
emits(merge(B3, [grp(L) for n in PRO for L in item(n)]))


def mish(acc, pk, tmp):
    L = []
    for g in (0, 8):
        r = [acc + g + i for i in range(8)]; u = [tmp + i for i in range(8)]
        if pk:
            L += [f"v_pk_fma_f32 {P2(u[i])}, {P2(r[i])}, {P2(vC1)}, {sp(sHALF)} op_sel_hi:[1,0,1]" for i in range(0, 8, 2)]
            L += [f"v_exp_f32 v{u[i]}, v{u[i]}" for i in range(8)]
            L += [f"v_pk_add_f32 {P2(u[i])}, {P2(u[i])}, {sp(sISQ)}" for i in range(0, 8, 2)]
            L += [f"v_pk_fma_f32 {P2(u[i])}, {P2(u[i])}, {P2(u[i])}, {sp(sHALF)} neg_lo:[1,0,0] neg_hi:[1,0,0]" for i in range(0, 8, 2)]
            L += [f"v_rcp_f32 v{u[i]}, v{u[i]}" for i in range(8)]
            L += [f"v_pk_fma_f32 {P2(r[i])}, {P2(r[i])}, {P2(u[i])}, {P2(r[i])}" for i in range(0, 8, 2)]
        else:
            L += [f"v_fma_f32 v{u[i]}, v{r[i]}, v{vC1}, -0.5" for i in range(8)]
            L += [f"v_exp_f32 v{u[i]}, v{u[i]}" for i in range(8)]
            L += [f"v_add_f32 v{u[i]}, s{sISQ}, v{u[i]}" for i in range(8)]
            L += [f"v_fma_f32 v{u[i]}, -v{u[i]}, v{u[i]}, -0.5" for i in range(8)]
            L += [f"v_rcp_f32 v{u[i]}, v{u[i]}" for i in range(8)]
            L += [f"v_fmac_f32 v{r[i]}, v{r[i]}, v{u[i]}" for i in range(8)]
        L += [f"v_cvt_pk_bf16_f32 v{acc+g//2+i}, v{r[2*i]}, v{r[2*i+1]}" for i in range(4)]
        L.append(("half", g // 8))
    return L
def frag_store(reg, sb, half, tag="st"):
    return vm(f"buffer_store_dwordx4 {v(reg,4)}, v{vL16}, {srd(sWS)}, s{sb} offen offset:{half*2048} sc1", tag)
def mish_store(acc, pk, sb, tmp, tag="st"):
    return [frag_store(acc + 4 * x[1], sb, x[1], tag) if isinstance(x, tuple) else x for x in mish(acc, pk, tmp)]
def softmax(P, out, pk, m):
    L = [f"v_max3_f32 v{m}, v{P}, v{P+1}, v{P+2}", f"v_max3_f32 v{m+1}, v{P+3}, v{P+4}, v{P+5}"]
    for i in range(6, 14, 4):
        L += [f"v_max3_f32 v{m}, v{m}, v{P+i}, v{P+i+1}", f"v_max3_f32 v{m+1}, v{m+1}, v{P+i+2}, v{P+i+3}"]
    L += [f"v_max3_f32 v{m}, v{m}, v{P+14}, v{P+15}", f"v_max_f32 v{m}, v{m}, v{m+1}", f"v_mul_f32 v{m}, v{m}, v{vC1}"]
    if pk:
        L += [f"v_pk_fma_f32 {P2(P+i)}, {P2(P+i)}, {P2(vC1)}, {P2(m)} op_sel_hi:[1,0,0] neg_lo:[0,0,1] neg_hi:[0,0,1]" for i in range(0, 16, 2)]
        L += [f"v_exp_f32 v{P+i}, v{P+i}" for i in range(16)]
        L += [f"v_pk_add_f32 {P2(m)}, {P2(P)}, {P2(P+2)}", f"v_pk_add_f32 {P2(m+2)}, {P2(P+4)}, {P2(P+6)}"]
        L += [f"v_pk_add_f32 {P2(m+(i&2))}, {P2(m+(i&2))}, {P2(P+i)}" for i in range(8, 16, 2)]
        L += [f"v_pk_add_f32 {P2(m)}, {P2(m)}, {P2(m+2)}", f"v_add_f32 v{m}, v{m}, v{m+1}", f"v_rcp_f32 v{m}, v{m}"]
        L += [f"v_pk_mul_f32 {P2(P+i)}, {P2(P+i)}, {P2(m)} op_sel_hi:[1,0]" for i in range(0, 16, 2)]
    else:
        L += [f"v_fma_f32 v{P+i}, v{P+i}, v{vC1}, -v{m}" for i in range(16)]
        L += [f"v_exp_f32 v{P+i}, v{P+i}" for i in range(16)]
        L += [f"v_add_f32 v{m+i}, v{P+2*i}, v{P+2*i+1}" for i in range(4)]
        L += [f"v_add_f32 v{m+(i&3)}, v{m+(i&3)}, v{P+i}" for i in range(8, 16)]
        L += [f"v_add_f32 v{m}, v{m}, v{m+1}", f"v_add_f32 v{m+2}, v{m+2}, v{m+3}", f"v_add_f32 v{m}, v{m}, v{m+2}", f"v_rcp_f32 v{m}, v{m}"]
        L += [f"v_mul_f32 v{P+i}, v{P+i}, v{m}" for i in range(16)]
    L += [f"v_cvt_pk_bf16_f32 v{out+i}, v{P+2*i}, v{P+2*i+1}" for i in range(8)]
    return L

def one_lane(x): return grp(["s_mov_b64 exec, 1", x, "s_mov_b64 exec, -1"])
def rec_store(): return one_lane(vm(f"buffer_store_dwordx4 {v(vRC,4)}, off, {srd(sWS)}, s{sREC} sc1", "rec"))
def rec1_load(tag="rec1"): return vm(f"buffer_load_dwordx4 {v(vBC,4)}, v{vRA1}, {srd(sWS)}, 0 offen sc1", tag)
FOFF = [12, 0, 128, 4]
OSENT = 1
def pmask(k): return sp((sMASK, sFM)[k])
def poll(k, tag=None):
    return grp([f"s_mov_b64 exec, {pmask(k)}",
                vm(f"buffer_load_dword v{vFV}, v{vFL}, {srd(sWS)}, {f's{sFB}' if k else 0} offen offset:{FOFF[k]} sc1", tag or f"fl{k}"), "s_mov_b64 exec, -1"])
def poll_check(k):
    def p():
        a.wait(vm=f"fl{k}")
        checked([f"v_cmp_ne_u32 vcc, s{sTAG}, v{vFV}", f"s_and_b64 vcc, vcc, {pmask(k)}"], poll(k, "x"), "L_fl")
        pt(f"fl{k}")
    return fn(p, 3)
vTG = 63
def flag_store(k, tag):
    return [f"v_mov_b32 v{vTG}, s{sTAG}", wt(vm=tag), one_lane(vm(f"buffer_store_dword v{vTG}, off, {srd(sWS)}, s{sFL} offset:{FOFF[k]} sc1", "fs")), ptf(f"fs{k}")]
def clr2(sb, off, T):
    if opt("noclr", 0): return "s_nop 0"
    assert T > 27
    return vm(f"buffer_store_dwordx4 {v(vA2B if T > 30 else vT,4)}, v{vL16}, {srd(sWS)}, s{sb} offen offset:{off} sc1", "clr")

def stats():
    e = vXR + 4; r0, r1 = vXR + 12, vXR + 13
    def allsum(r):
        L = [f"v_add_f32_dpp v{r}, v{r}, v{r} row_ror:{s} row_mask:0xf bank_mask:0xf" for s in (8, 4, 2, 1)]
        L += [f"v_mov_b32 v{r1}, v{r}", f"v_permlane16_swap_b32 v{r}, v{r1}", f"v_add_f32 v{r}, v{r}, v{r1}",
              f"v_mov_b32 v{r1}, v{r}", f"v_permlane32_swap_b32 v{r}, v{r1}", f"v_add_f32 v{r}, v{r}, v{r1}"]
        return L
    S = [wt(vm="xr"), f"v_add_u32 v{vRC+3}, 1, v{vEP}"]
    for j in range(4):
        S += [f"v_lshlrev_b32 v{e+2*j}, 16, v{vXR+j}", f"v_and_b32 v{e+2*j+1}, 0xffff0000, v{vXR+j}"]
    S += [f"v_readfirstlane_b32 s{sTAG}, v{vRC+3}"]
    S += [f"v_add_f32 v{vXR+j}, v{e+2*j}, v{e+2*j+1}" for j in range(4)]
    S += [f"v_add_f32 v{vXR}, v{vXR}, v{vXR+1}", f"v_add_f32 v{vXR+2}, v{vXR+2}, v{vXR+3}", f"v_add_f32 v{r0}, v{vXR}, v{vXR+2}"]
    S += allsum(r0)
    S += [f"v_mul_f32 v{vRC}, 0xbb000000, v{r0}"]
    S += [f"v_add_f32 v{e+j}, v{e+j}, v{vRC}" for j in range(8)]
    S += [f"v_mul_f32 v{vXR+j}, v{e+j}, v{e+j}" for j in range(4)]
    S += [f"v_fmac_f32 v{vXR+j}, v{e+4+j}, v{e+4+j}" for j in range(4)]
    S += [f"v_add_f32 v{vXR}, v{vXR}, v{vXR+1}", f"v_add_f32 v{vXR+2}, v{vXR+2}, v{vXR+3}", f"v_add_f32 v{r0}, v{vXR}, v{vXR+2}"]
    S += allsum(r0)
    S += [f"v_mov_b32 v{r1}, 0x3727c5ac", f"v_fmac_f32 v{r1}, 0x3b000000, v{r0}", f"v_rsq_f32 v{vRC+2}, v{r1}",
          f"s_lshl4_add_u32 s{sREC}, s{sREC}, {REC1}", f"v_mul_f32 v{vRC+1}, v{r1}, v{vRC+2}"]
    return S

def consts0(ty):
    if ty: return []
    def clr(off): return vm(f"buffer_store_dwordx4 {v(vCL,4)}, v{vL16}, {srd(sWS)}, s{sC0} offen offset:{off} sc1", "clr")
    L = lines(f"""s_lshl2_add_u32 s{sT2}, s{sG}, s{sSIG}
    v_mov_b32 v{vCL}, -1
    s_lshl4_add_u32 s{sT2}, s{sT2}, s{sRB}
    s_mul_i32 s{sT2}, s{sT2}, 1152
    s_add_u32 s{sC0}, s{sT2}, {KVD}""")
    if not opt("noclr", 0): L += [clr(0), "s_mov_b64 exec, 15", clr(1024), "s_mov_b64 exec, -1"]
    return [fn(lambda: skip_if(f"s_cmp_eq_u32 s{sH}, 0", lambda: emits(L), "L_c0"))]
def bases(ty):
    L = lines(f"""s_lshr_b32 s{sT4}, s{sSIG}, 1
    s_lshl1_add_u32 s{sT4}, s{sRB}, s{sT4}
    s_mul_i32 s{sKB}, s{sT4}, 236
    s_and_b32 s{sT4}, s{sSIG}, 1
    s_add_u32 s{sKB}, s{sKB}, s{sT4}
    s_lshl2_add_u32 s{sT2}, s{sTILE}, s{sKB}
    s_lshl_b32 s{sT2}, s{sT2}, 10
    s_add_u32 s{sSB0}, s{sT2}, {ACT}
    s_mov_b32 s{sFB}, {FLG - 8 * REC1}
    s_lshl3_add_u32 s{sFL}, s{sREC}, s{sFB}""")
    if ty == 0:
        return L + lines(f"""s_lshr_b32 s{sT2}, 0xea, s{sG}
        s_and_b32 s{sT2}, s{sT2}, s{sH}
        s_mul_i32 s{sT2}, s{sT2}, {DUM}
        s_add_u32 s{sSB0}, s{sSB0}, s{sT2}""")
    return L + lines(f"""s_add_u32 s{sC1}, s{sSB0}, 8192
    s_lshl1_add_u32 s{sT2}, s{sG}, s{sH}
    s_lshl2_add_u32 s{sT2}, s{sT2}, s{sKB}
    s_lshl_b32 s{sT2}, s{sT2}, 10
    s_add_u32 s{sC0}, s{sT2}, {ACT + 172*1024}""")
def consts1(ty):
    L = [f"s_add_u32 s{sSTART}, s{sSTART}, 4"] * (1 - ty) + lines(f"""s_add_u32 s{sTILE}, s{sSTART}, s{sH}
    s_and_b32 s{sT2}, s2, 7
    s_bfe_u32 s{sT3}, s2, 0x20003
    s_lshl2_add_u32 s{sRB2}, s{sT2}, s{sT3}
    s_lshr_b32 s{sCB}, s2, 5
    s_mov_b32 s{sW2+2}, {1376*1024}
    s_mov_b32 s{sW2+3}, 0x00020000
    s_mov_b32 s{sWO+2}, {512*1024}
    s_mov_b32 s{sWO+3}, 0x00020000""")
    if opt("mt", 1):
        L += lines(f"""s_lshl3_add_u32 s{sT2}, s2, s{sW}
        s_lshl_b32 s{sT2}, s{sT2}, 10
        v_lshl_add_u32 v{vTCH}, v{vL}, 7, s{sT2}
        v_add_u32 v{vTCH+1}, {(1 << 32) - 1376 * 1024:#x}, v{vTCH}""") + [touch(0, 8)]
    if TOUCH:
        L += lines(f"""s_lshl3_add_u32 s{sT2}, s{sT3}, s{sW}
        s_lshl_b32 s{sT2}, s{sT2}, 9
        s_add_u32 s{sT2}, s{sT2}, s{sCB}
        s_lshl_b32 s{sT2}, s{sT2}, 7
        v_lshl_add_u32 v{vTCH}, v{vL}, 10, s{sT2}
        v_add_u32 v{vTCH+1}, {(1 << 32) - 24 * 65536:#x}, v{vTCH}""")
    L += [f"s_lshl_b32 s{sT3}, s{sT3}, 1"] * (ROT2 == 7) + lines(f"""s_xor_b32 s{sT3}, s{sT3}, s{sCB}
    s_and_b32 s{sT3}, s{sT3}, {ROT2}
    s_lshl_b32 s{sRA}, s{sT3}, 11
    s_lshl_b32 s{sRW}, s{sT3}, 14
    s_lshr_b32 s{sT3}, s{sT3}, {(ROT2 == 7) * 1}
    s_lshl_b32 s{sRA2}, s{sT3}, 11
    s_lshl_b32 s{sRW2}, s{sT3}, 14
    s_lshl1_add_u32 s{sGAM}, s{sSIG}, s{sH}
    s_mul_i32 s{sT4}, s{sGAM}, 11
    s_add_u32 s{sT4}, s{sT4}, 1
    s_lshr_b32 s{sT4}, s{sT4}, 1
    s_min_u32 s{sT4}, s{sT4}, 38
    v_and_b32 v{u3}, 7, v{vRW_}
    v_lshl_add_u32 v{u3}, v{u3}, 10, v{vSW_}
    s_lshl_b32 s{sT2}, s{sT4}, 8
    s_add_u32 s{sT2}, s{sT2}, s{sCB}
    s_lshl_b32 s{sT2}, s{sT2}, 7
    v_add_u32 v{vW2O}, s{sT2}, v{u3}
    v_add_u32 v{vW2O+1}, {8192-1024}, v{vW2O}
    s_lshl_b32 s{sT2}, s{sGAM}, 9
    s_add_u32 s{sT2}, s{sT2}, s{sCB}
    s_lshl_b32 s{sT2}, s{sT2}, 7
    v_add_u32 v{vWOO}, s{sT2}, v{u3}
    v_add_u32 v{vWOO+1}, {8192-1024}, v{vWOO}
    s_mul_i32 s{sT2}, s{sRB2}, 59
    s_add_u32 s{sT2}, s{sT2}, s{sT4}
    s_lshl_b32 s{sT2}, s{sT2}, 12
    s_add_u32 s{sT2}, s{sT2}, {ACT}
    v_add_u32 v{vACT}, s{sT2}, v{vL16}
    s_lshl1_add_u32 s{sT3}, s{sGAM}, 43
    s_sub_u32 s{sT3}, s{sT3}, s{sT4}
    s_lshl_b32 s{sAO}, s{sT3}, 12
    s_mov_b32 s{sWE+2}, {512*(2752, 3072)[ty]}
    s_mov_b32 s{sWE+3}, 0x00020000
    s_lshl_b32 s{sT2}, s{(sSTART, sG)[ty]}, {(6, 7)[ty]}
    v_mul_u32_u24 v{vWC}, {(2752, 3072)[ty]}, v{vRW_}
    v_add3_u32 v{vWC}, v{vWC}, v{vSW_}, s{sT2}
    s_movk_i32 s{sB1+2}, 2752
    s_mov_b32 s{sB1+3}, 0x00020000
    s_lshl_b32 s{sT4}, s{sTILE}, 6
    v_lshlrev_b32 v{u2}, 1, v{u0}""")
    L += [vm(f"buffer_load_ushort v{vBA+i}, v{u2}, {srd(sB1)}, s{sT4} offen offset:{128*i}", "misc") for i in range(1 + ty)]
    L += lines(f"""s_mov_b32 s{sPH+2}, 16384
    s_mov_b32 s{sPH+3}, 0x00020000
    s_and_b32 s{sT2}, s{sW}, 1
    s_lshl_b32 s{sT2}, s{sT2}, 10
    s_lshl_b32 s{sT3}, s{sG}, 11
    s_add_u32 s{sT3}, s{sT3}, s{sT2}""")
    return L
TOUCH = [x for x in opt("touch", "").split(",") if x]
vTCH = LT + 28
def touch(l0, n):
    m = ((1 << n) - 1) << l0
    return grp([f"s_mov_b32 exec_lo, {m & 0xffffffff:#x}", f"s_mov_b32 exec_hi, {m >> 32:#x}",
                vm(f"buffer_load_dword v{vFV}, v{vTCH}, {srd(sW2)}, 0 offen", "tch"),
                vm(f"buffer_load_dword v{vFV}, v{vTCH+1}, {srd(sWO)}, 0 offen", "tch"), "s_mov_b64 exec, -1"])
def wphi_dma():
    return grp([f"s_add_u32 m0, s{sT2}, {WPHI}", f"s_mov_b32 s{sCNT}, {SPIN}",
                vm(f"buffer_load_dwordx4 v{vL16}, {srd(sPH)}, s{sT3} offen lds", "misc")])

def consts2(ty):
    L = lines(f"""s_lshl2_add_u32 s{sT2}, s{sRB}, s{sSIG}
    s_lshl_b32 s{sT2}, s{sT2}, 9
    s_add_u32 s{sT2}, s{sT2}, {REC1}
    v_lshl_add_u32 v{vRA1}, v{u0}, 4, s{sT2}
    s_lshl_b32 s{sT2}, s{sH}, 9
    s_add_u32 s{sT2}, s{sT2}, {CW}
    v_lshl_add_u32 v{vCAR}, v{u0}, 4, s{sT2}
    s_lshl_b32 s{sT2}, s{sSIG}, 2
    v_add_u32 v{vCAW}, s{sT2}, v{vCAR}
    v_lshl_add_u32 v{t3}, v{u1}, 9, v{t3}
    v_add_u32 v{vA2B}, s{sM0R}, v{t3}
    s_mov_b32 s{sHALF}, -0.5
    s_mov_b32 s{sHALF+1}, -0.5
    s_mov_b32 s{sISQ}, 0x3f3504f3
    s_mov_b32 s{sISQ+1}, 0x3f3504f3
    s_mov_b32 s{sLOm}, -1
    s_mov_b32 s{sLOm+1}, 0
    s_mov_b32 s{sMASK}, 0xffff0000
    s_mov_b32 s{sMASK+1}, 0
    v_lshl_add_u32 v{u3}, v{u1}, 2, v{t0}
    v_lshlrev_b32 v{u3}, 5, v{u3}
    v_lshl_add_u32 v{u3}, v{t1}, 4, v{u3}
    v_bfe_u32 v{t3}, v{vL}, 1, 1
    v_lshl_add_u32 v{u3}, v{t3}, 3, v{u3}
    s_lshl_b32 s{sT2}, s{sH}, 10
    s_add_u32 s{sT2}, s{sT2}, {WPHI}
    v_add_u32 v{vPHA}, s{sT2}, v{u3}
    v_bfe_i32 v{vSGN}, v{vL}, 2, 1
    v_and_b32 v{vSGN}, 0x80008000, v{vSGN}""")
    L += [f"v_and_b32 v{vPL+i}, 0xffff, v{vPM+i}" for i in range(4)]
    L += lines(f"""s_lshr_b32 s{sT2}, s{sRB2}, 1
    s_lshl4_add_u32 s{sT2}, s{sT2}, s{sGAM}
    s_lshl_b32 s{sT2}, s{sT2}, 7
    s_add_u32 s{sT2}, s{sT2}, {REC1}
    v_and_b32 v{u3}, 8, v{vL}
    v_mul_u32_u24 v{u3}, 0x70, v{u3}
    v_and_b32 v{u2}, 15, v{vL}
    v_lshl_add_u32 v{u3}, v{u2}, 4, v{u3}
    v_add_u32 v{vFL}, s{sT2}, v{u3}""")
    if ty == 0:
        L += lines(f"""s_lshl_b32 s{sT4}, s{sSIG}, 5
        v_add_u32 v{u0}, s{sT4}, v{u0}
        v_bfe_u32 v{u2}, v{vL}, 1, 2
        v_lshlrev_b32 v{u3}, 1, v{u1}
        v_xor_b32 v{u2}, v{u2}, v{u3}
        s_lshl_b32 s{sT2}, s{sH}, 14
        s_add_u32 s{sT2}, s{sT2}, {PHI}
        v_lshl_add_u32 v{u2}, v{u2}, 4, s{sT2}
        v_lshl_add_u32 v{vPW0}, v{u0}, 6, v{u2}
        v_xor_b32 v{vPW1}, 16, v{vPW0}
        v_mul_u32_u24 v{u0}, 144, v{u0}
        v_add_u32 v{u0}, {VIMG}, v{u0}
        v_mov_b32 v{vTCH+2}, 0x3f803f80
        v_mov_b32 v{vTCH+3}, 0x3f803f80""") + [dsw(f"ds_write_b64 v{u0}, {v(vTCH+2,2)} offset:128")] + lines(f"""
        s_lshl_b32 s{sT2}, s{sH}, 6
        v_lshl_add_u32 v{vVW}, v{u1}, 4, s{sT2}
        v_add_u32 v{vVW}, v{vVW}, v{u0}
        v_lshl_add_u32 v{u1}, v{u1}, 3, v{t0}
        v_and_b32 v{u2}, 1, v{vL}
        v_lshl_add_u32 v{u2}, v{u2}, 1, v{t1}
        v_lshrrev_b32 v{u3}, 1, v{t0}
        v_xor_b32 v{u2}, v{u2}, v{u3}
        v_lshlrev_b32 v{u2}, 4, v{u2}
        v_lshl_add_u32 v{u2}, v{u1}, 6, v{u2}
        v_lshl_add_u32 v{u2}, v{t3}, 3, v{u2}
        s_lshl_b32 s{sT2}, s{sSIG}, 13
        s_add_u32 s{sT2}, s{sT2}, {PHI}
        v_add_u32 v{vKA0}, s{sT2}, v{u2}
        v_xor_b32 v{vKA1}, 32, v{vKA0}
        v_mul_u32_u24 v{u1}, 144, v{u1}
        v_add_u32 v{u2}, s{sT4}, v{t2}
        v_cmp_eq_u32 vcc, 1, v{t1}
        v_mov_b32 v{u3}, 128
        v_add_u32 v{u1}, {VIMG}, v{u1}
        v_cndmask_b32 v{u2}, v{u2}, v{u3}, vcc
        v_add_u32 v{vKB}, v{u1}, v{u2}""")
    else:
        L += lines(f"""s_lshl2_add_u32 s{sT2}, s{sG}, s{sSIG}
        s_mul_i32 s{sT2}, s{sT2}, {16*1152}
        s_add_u32 s{sT2}, s{sT2}, {KVD}
        v_lshrrev_b32 v{u3}, 4, v{vL}
        v_mul_u32_u24 v{u3}, 1152, v{u3}
        v_add_u32 v{u3}, s{sT2}, v{u3}
        s_lshl_b32 s{sT3}, s{sH}, 9
        v_lshlrev_b32 v{t2}, 4, v{u2}
        v_add3_u32 v{vGA}, v{u3}, v{t2}, s{sT3}
        v_bfe_u32 v{vGZ}, v{vL}, 1, 2
        v_mul_u32_u24 v{vGZ}, {4*1152}, v{vGZ}
        v_and_b32 v{t3}, 1, v{vL}
        v_lshl_add_u32 v{u3}, v{t3}, 4, v{u3}
        s_lshl_b32 s{sT3}, s{sH}, 5
        v_add3_u32 v{vGZ}, v{vGZ}, v{u3}, s{sT3}
        s_lshl3_add_u32 s{sT2}, s{sG}, s{sSIG}
        s_lshl4_add_u32 s{sT2}, s{sT2}, {REC1}
        v_lshl_add_u32 v{u3}, v{u2}, 11, s{sT2}
        v_cmp_eq_u32 vcc, 1, v{t1}
        s_mul_i32 s{sT2}, s{sGAM}, 544
        s_add_u32 s{sT2}, s{sT2}, {KVL}
        v_cndmask_b32 v{vFL}, v{vFL}, v{u3}, vcc
        v_lshl_add_u32 v{u3}, v{t1}, 3, s{sT2}
        v_mul_u32_u24 v{vKW}, 272, v{u1}
        v_add3_u32 v{vKW}, v{vKW}, v{u3}, v{t2}
        v_mul_u32_u24 v{vZW}, 272, v{t3}
        v_add_u32 v{vZW}, v{vZW}, v{u3}
        v_and_b32 v{u3}, 3, v{vL}
        v_bfe_u32 v{t3}, v{vL}, 2, 1
        v_lshl_add_u32 v{u3}, v{t3}, 3, v{u3}
        v_bfe_u32 v{t3}, v{vL}, 3, 1
        v_lshl_add_u32 v{u3}, v{t3}, 2, v{u3}
        v_cndmask_b32 v{u3}, v{u3}, 16, vcc
        v_lshlrev_b32 v{u3}, 4, v{u3}
        v_mul_u32_u24 v{u1}, 544, v{u1}
        s_mul_i32 s{sT3}, s{sH}, 2176
        s_add_u32 s{sT3}, s{sT3}, {KVL}
        v_add3_u32 v{vKR}, v{u3}, v{u1}, s{sT3}""")
    return L
def consts3(ty):
    return lines(f"""s_mov_b32 s{sOUT+2}, {2048*1024}
    s_mov_b32 s{sOUT+3}, 0x00020000
    s_and_b32 s{sT2}, s{sRB2}, 1
    s_lshl_b32 s{sT2}, s{sT2}, 1
    s_lshl_b32 s{sFM}, 0x3333, s{sT2}
    s_mov_b32 s{sFM+1}, 0
    s_lshl1_add_u32 s{sT2}, s{sRB2}, s{sH}
    s_lshl_b32 s{sR2}, s{sT2}, 9
    s_add_u32 s{sR2}, s{sR2}, {REC1}
    s_lshl_b32 s{sT2}, s{sT2}, 10
    s_lshl2_add_u32 s{sT3}, s{sCB}, s{sSIG}
    s_add_u32 s{sT2}, s{sT2}, s{sT3}
    s_lshl_b32 s{sOB}, s{sT2}, 5""")

vACC, vWR = 64, 128
vOO, vRSA, vEC, vRS2, vRES, vRW, vRR, vC0, vS0 = 8, 9, 10, 14, 16, 20, 21, 22, 24
vMT = 16
def areg(j): return 184 + 8 * ((j + 1) & 3) if j % 12 < 4 else (184 + 8 * j if j < 9 else 40 + 8 * (j - 9))
def wreg(j): return vWR + 8 * (j % 7)
WS_ = {}
def w_item(j, s):
    WS_[j] = s
    so = (f"s_mov_b32 s{sT0}, {j << 14}" if 8 <= j < 12 else f"s_xor_b32 s{sT0}, s{sRW if j < 8 else sRW2}, {(j % 12) << 14}")
    d, ad = (srd(sW2), vW2O) if j < 12 else (srd(sWO), vWOO)
    return grp([f"s_add_u32 m0, s{sM0R}, {s * SZ}", so,
                vm(f"buffer_load_dwordx4 v{ad}, {d}, s{sT0} offen lds", f"w{j}"),
                vm(f"buffer_load_dwordx4 v{ad+1}, {d}, s{sT0} offen offset:1024 lds", f"w{j}")])
def w_read(j):
    s = WS_[j]
    ad = [vA2L, vA2M, vA2T][s >> 2]; off = (s & 3) * SZ
    L = [wt(vm=f"w{j}")]
    for b in range(2):
        L.append(dsw(f"ds_read_b64_tr_b16 {v(wreg(j)+4*b,2)}, v{ad+b} offset:{off}", f"r{j}"))
        L.append(dsw(f"ds_read_b64_tr_b16 {v(wreg(j)+4*b+2,2)}, v{ad+b} offset:{off+1024}", f"r{j}"))
    return L
vBW, vBR = 38, 56
def w_raw(j):
    WS_[j] = -1
    return [grp([f"s_xor_b32 s{sT0}, s{sRW}, {j << 14}", vm(f"buffer_load_dwordx4 {v(wreg(j)+4,4)}, v{vW2O}, {srd(sW2)}, s{sT0} offen", f"w{j}")]),
            grp([f"s_xor_b32 s{sT0}, s{sRW}, {j << 14}", vm(f"buffer_load_dwordx4 {v(wreg(j)+8,4)}, v{vW2O+1}, {srd(sW2)}, s{sT0} offen offset:1024", f"w{j}")])]
def bnc_addrs():
    return lines(f"""s_lshr_b32 s{sT2}, s{sM0R}, 1
    s_sub_u32 s{sT3}, {BNC}, s{sT2}
    s_add_u32 s{sT2}, s{sT2}, {BNC}
    v_add_u32 v{vBW}, s{sT2}, v{vL16}
    v_add_u32 v{vBR}, s{sT3}, v{vA2L}
    v_add_u32 v{vBR+1}, s{sT3}, v{vA2L+1}""")
def w_conv(j):
    L = [wt(vm=f"w{j}")]
    for hf in range(2):
        L.append(dsw(f"ds_write_b128 v{vBW}, {v(wreg(j)+4+4*hf,4)}", f"r{j}"))
        L += [dsw(f"ds_read_b64_tr_b16 {v(wreg(j)+4*b+2*hf,2)}, v{vBR+b}", f"r{j}") for b in range(2)]
    return L
def w_refill(j, q):
    return [wt(lg=f"r{q}"), w_item(j, WS_[q])]
def p2_addrs():
    return lines(f"""v_mov_b32 v{vA2L}, v{vA2B}
    v_xor_b32 v{vA2L+1}, 64, v{vA2B}
    v_add_u32 v{vA2M}, {4*SZ}, v{vA2L}
    v_add_u32 v{vA2M+1}, {4*SZ}, v{vA2L+1}
    v_add_u32 v{vA2T}, {8*SZ}, v{vA2L}
    v_add_u32 v{vA2T+1}, {8*SZ}, v{vA2L+1}""")
def a_load(j, tag=None, st=(0, 1)):
    def p():
        if j < 8: a(f"s_xor_b32 s{sT1}, s{sRA}, {j << 11}")
        elif j < 12: a(f"s_movk_i32 s{sT1}, {j << 11}")
        else: a(f"s_xor_b32 s{sT1}, s{sRA2}, {(j - 12) << 11}\ns_add_u32 s{sT1}, s{sAO}, s{sT1}")
        for s in st:
            if not opt("noact", 0): a.vmem(f"buffer_load_dwordx4 {v(areg(j)+4*s,4)}, v{vACT}, {srd(sWS)}, s{sT1} offen offset:{1024*s} sc1", tag or f"a{j}")
    return fn(p, 3 * len(st) + 1)
def p6(body): skip_if(f"s_cmp_lt_u32 s{sW}, 3", body, "L_p6")
def p6f(L): return fn(lambda: p6(lambda: emits(L)), 6)
def selectors(tmp):
    L = lines(f"""v_and_b32 v{tmp}, 1, v{vL}
    v_mov_b32 v{tmp+1}, 0x3f80
    v_lshlrev_b32 v{tmp}, 4, v{tmp}
    v_lshlrev_b32 v{tmp+1}, v{tmp}, v{tmp+1}
    v_bfe_u32 v{tmp}, v{vL}, 1, 3""")
    for r in range(0, 8, 2):
        L += [grp([f"v_cmp_eq_u32 vcc, {r}, v{tmp}", f"v_cmp_eq_u32 {sp(sCM)}, {r+1}, v{tmp}",
                   f"v_cndmask_b32 v{vS0+r}, 0, v{tmp+1}, vcc", f"v_cndmask_b32 v{vS0+r+1}, 0, v{tmp+1}, {sp(sCM)}"])]
    return L
def tail_addrs():
    x = vC0
    return lines(f"""v_and_b32 v{x}, 15, v{vL}
    v_lshrrev_b32 v{x+1}, 5, v{vL}
    v_lshl_add_u32 v{x+1}, v{x+1}, 4, v{x}
    v_lshlrev_b32 v{vRSA}, 4, v{x+1}
    v_and_b32 v{vOO}, 16, v{vL}
    v_lshl_add_u32 v{vOO}, v{x+1}, 10, v{vOO}
    v_add_u32 v{vRW}, s{sM0R}, v{vL16}
    s_lshr_b32 s{sT2}, s{sW}, 1
    s_and_b32 s{sT3}, s{sW}, 1
    s_lshl4_add_u32 s{sT2}, s{sT2}, s{sT3}
    s_lshl_b32 s{sT2}, s{sT2}, 10
    v_lshl_add_u32 v{x}, v{x}, 4, s{sT2}
    v_lshrrev_b32 v{x+1}, 4, v{vL}
    v_lshl_add_u32 v{vRR}, v{x+1}, 11, v{x}""")
def rs_load(tag="rs"): return vm(f"buffer_load_dwordx2 {P2(vRS2)}, v{vRSA}, {srd(sWS)}, s{sR2} offen offset:8 sc1", tag)
def res_load(): return vm(f"buffer_load_dwordx4 {v(vRES,4)}, v{vOO}, {srd(sX)}, s{sOB} offen", "res")
def ep_loads():
    a(f"v_lshlrev_b32 v{vBW}, 7, v{vL}")
    for i in range(4):
        a(f"s_mov_b32 s{sT2}, {REC1 + i*8192}")
        a(f"buffer_load_dword v{vEC+i}, v{vBW}, {srd(sWS)}, s{sT2} offen offset:12 sc1")
def if_first(body):
    a(f"s_or_b32 s{sT2}, s2, s{sW}")
    skip_if(f"s_cmp_eq_u32 s{sT2}, 0", body, "L_ep")
def maxchain(regs, d):
    L = []; regs = list(regs); first = True
    while regs:
        if first: x = regs[:3]; regs = regs[3:]; first = False
        else: x = [d] + regs[:2]; regs = regs[2:]
        L.append(f"v_max3_u32 v{d}, v{x[0]}, v{x[1]}, v{x[2]}" if len(x) == 3 else f"v_max_u32 v{d}, v{x[0]}, v{x[1]}")
    return L + [f"v_cmp_eq_u32 vcc, -1, v{d}"]
def sentinel(js, st):
    checked(maxchain([areg(j) + 4 * s for j in js for s in st], vC0), lambda: emits([a_load(j, "x", st) for j in js]), "L_s")
def step_mfma(j, st, first=False, gaps=()):
    gaps = list(gaps)
    for s in st:
        for b in range(2):
            acc = vACC + 32 * s + 16 * b
            a(f"{MF} {v(acc,16)}, {v(wreg(j)+4*b,4)}, {v(areg(j)+4*s,4)}, {'0' if first else v(acc,16)}")
            if gaps: emits(gaps.pop(0))
    for g in gaps: emits(g)

def c_loads(): return [p6f([a_load(10), a_load(11)]), a_load(8), a_load(9)]
def o_loads(): return [a_load(j, "o0", (0,)) for j in range(12, 16)] + [a_load(j, "o1", (1,)) for j in range(12, 16)]
def phase2(ty, side, GR, spec):
    def add(p, L): side[p] = side.get(p, []) + L
    assert sorted(WS_) == list(range(16))
    for x in spec.split(","):
        n, p = x.split("@")
        assert n != "o" or int(p) >= 4
        add(int(p), GR.pop(n))
    assert not set(GR) - set("hl"), GR
    add(5, [p6f(w_read(10) + w_read(11))])
    for j, k in ((7, 1), (8, 2), (9, 3), (12, 6), (13, 7), (14, 8), (15, 9)): add(k, w_read(j))
    for j in range(10):
        if j == 8:
            a.wait(vm="a9")
            sentinel((8, 9), (0, 1))
        a.wait(vm=f"a{j}", lg=f"r{j}")
        pt(f"s{j}")
        if j == 0: pt("f0")
        step_mfma(j, (0, 1), j == 0, split(side.get(j, []), 4))
    a.wait(lg="r12")
    def body():
        sentinel((10, 11), (0, 1))
        for j in (10, 11): step_mfma(j, (0, 1))
    p6(body)
    emits(side.get(10, []))
    pt("f1")
    a.wait(vm="o0", lg="all")
    if OSENT: sentinel(range(12, 16), (0,))
    pt("f2")
    checked([f"v_cmp_ne_u32 vcc, s{sTAG}, v{vRS2+1}"], rs_load("x"), "L_rs")
    vU = 216
    U = []
    for j in range(4): U += [f"v_lshlrev_b32 v{vU+2*j}, 16, v{vRES+j}", f"v_and_b32 v{vU+1+2*j}, s{sMASK}, v{vRES+j}"]
    G = split(U, 8)
    for j in range(12, 16): step_mfma(j, (0,), False, G[2*(j-12):2*(j-12)+2])
    a.wait(vm="o1")
    if OSENT: sentinel(range(12, 16), (1,))
    def pack(k):
        acc = vACC + 16 * k; L = []
        for hf in range(2):
            L += [f"v_cvt_pk_bf16_f32 v{acc+4*hf+i}, v{acc+8*hf+2*i}, v{acc+8*hf+2*i+1}" for i in range(4)]
            L += [dsw(f"ds_write_b128 v{vRW}, {v(acc+4*hf,4)} offset:{k*SZ+1024*hf}")]
        return L
    G = [[]] + split(pack(0) + pack(1), 7)
    for j in range(12, 16): step_mfma(j, (1,), False, G[2*(j-12):2*(j-12)+2])
    pt("f3")
    if ty == 0:
        def ep():
            checked([f"v_xor_b32 v{vEC+i}, s{sTAG}, v{vEC+i}" for i in range(4)] +
                    [f"v_or3_b32 v{vEC}, v{vEC}, v{vEC+1}, v{vEC+2}", f"v_or_b32 v{vEC}, v{vEC}, v{vEC+3}", f"v_cmp_ne_u32 vcc, 0, v{vEC}"],
                    ep_loads, "L_epc")
            a(f"""v_mov_b32 v{vEC}, s{sTAG}
            s_mov_b64 exec, 1
            buffer_store_dword v{vEC}, off, {srd(sWS)}, 0 sc1
            s_mov_b64 exec, -1""")
        if_first(ep)
    emits(pack(2) + pack(3))
    a.wait(lg="all")
    a("s_barrier")
    R = 224
    for p in range(4):
        for k in range(2):
            a.ds(f"ds_read_b128 {v(R+8*p+4*k,4)}, v{vRR} offset:{8192*k+256*p}", f"t{p}{k}")
    D = vWR
    for p in (0, 2, 1, 3):
        for k in range(2):
            a.wait(lg=f"t{p}{k}")
            d = D + 4 * (p >> 1)
            a(f"{MF16} {v(d,4)}, {v(vS0+4*(p&1),4)}, {v(R+8*p+4*k,4)}, {'0' if (p & 1) == 0 and k == 0 else v(d,4)}")
    for j in range(0, 8, 2): a(f"v_pk_fma_f32 {P2(D+j)}, {P2(D+j)}, {P2(vRS2)}, {P2(vU+j)} op_sel_hi:[1,0,1]")
    for j in range(4): a(f"v_cvt_pk_bf16_f32 v{D+8+j}, v{D+2*j}, v{D+2*j+1}")
    a(f"buffer_store_dwordx4 {v(D+8,4)}, v{vOO}, {srd(sOUT)}, s{sOB} offen")
    pt("end")
    a("s_branch L_fin")

def reads(T):
    tg = f"k{T}"; ks = T & 3
    if T < 32:
        off = ((T >> 2) & 3) * SZ; b = vWF + 8 * ks
        return [dsw(f"ds_read_b128 {v(vX+4*T,4)}, v{vXA+ks} offset:{off}", tg)] + [
                dsw(f"ds_read_b64_tr_b16 {v(b+2*i,2)}, v{vPM+ks} offset:{off+512*i}", tg) for i in range(4)]
    t = T - 32; s = RS[t >> 3]; ad = (vPL if s < 4 else vPM) + ks; off = (s & 3) * SZ + ((t >> 2) & 1) * 1024
    return [dsw(f"ds_read_b64_tr_b16 {v(vWF+4*ks+2*i,2)}, v{ad} offset:{off+512*i}", tg) for i in range(2)]
def bar(vmt=None, lg=None, name=None):
    def p():
        for x in ([vmt] if isinstance(vmt, str) else (vmt or [])): a.wait(vm=x)
        if lg: a.wait(lg=lg)
        if name: pt(name + "w")
        a("s_barrier")
        if name: pt(name)
    return fn(p, 1)
def put(S, T, L): S[T] = S.get(T, []) + list(L)
def spread(S, L, T0, T1):
    for i, G in enumerate(split(L, T1 - T0 + 1)): put(S, T0 + i, G)
def corr(quads, biases):
    L = [f"v_lshlrev_b32 v{b}, 16, v{b}" for b in biases if b] + [wt(lg="cw")]
    for q in quads: L += [f"v_add_f32 v{q}, v{q}, v{q+1}", f"v_add_f32 v{q+2}, v{q+2}, v{q+3}"]
    L += [f"v_add_f32 v{q}, v{q}, v{q+2}" for q in quads]
    return L + [f"v_cndmask_b32 v{q}, {v(b) if b else 0}, v{q}, {sLO}" for q, b in zip(quads, biases)]
SEQ = opt("seq", "x3/x4/x5/x6/x7/b0,b1/b2,b3").split("/")
DSP = opt("dsp", 2)
SPL = opt("spl", 3)
vQ2 = 44
def stream(ty, S, E):
    DQ = [L for n in opt("pre", "x2").split(",") if n for L in item(n)]
    for c in range(7): E[4 * c + 1] = [bar(f"x{c+1}", None, f"c{c}")] + E.get(4 * c + 1, [])
    S[29] = [dsw(f"ds_write_b32 v{vCAW}, v{vCS+4*i} offset:{1024*i}", "cw") for i in range(2)] + S.get(29, [])
    S[30] = [dsw(f"ds_read_b128 {v(vT+4*i,4)}, v{vCAR} offset:{1024*i}", "cw") for i in range(2)] + S.get(30, [])
    put(S, 31, corr((vT, vT + 4), (vBA, vBA + 1) if ty else (None, None)))
    S[32] = [f"{MF32} {v(K,16)}, v{q}, v{vBC}, {v(K,16)}" for K, q in ((K0, vT), (K1, vT + 4))] + S.get(32, [])
    S[61] = [dsw(f"ds_write_b32 v{vCAW}, v{vCS} offset:1024", "cw")] + S.get(61, [])
    S[62] = [dsw(f"ds_read_b128 {v(vQ2,4)}, v{vCAR} offset:1024", "cw")] + S.get(62, [])
    put(S, 63, corr((vQ2,), (None if ty else vBA,)) + [f"{MF32} {v(K2,16)}, v{vQ2}, v{vBC}, {v(K2,16)}"])
    emits(reads(0) + reads(1))
    for T in range(64):
        t = T & 31; ks = T & 3
        R = reads(T + 2) if T < 30 else (reads(32) + reads(33) if T == 30 else (reads(T + 3) if T + 3 < 64 else []))
        pt(f"T{T}")
        a.wait(lg=f"k{T}")
        F = S.get(T, [])
        if T < 32:
            b = vWF + 8 * ks
            G = split(F, 2)
            a(f"{MF} {v(K0,16)}, {v(b,4)}, {v(vX+4*t,4)}, {'0' if t == 0 else v(K0,16)}")
            emits(R[:SPL])
            if DQ and (DSP > 1 or T < 2): emits(DQ.pop(0))
            emits(G[0])
            a(f"{MF} {v(K1,16)}, {v(b+4,4)}, {v(vX+4*t,4)}, {'0' if t == 0 else v(K1,16)}")
            emits(R[SPL:])
            if DQ: emits(DQ.pop(0))
            if ks == 0:
                for i in range(2): a(f"{MF16} {v(vCS+4*i,4)}, {v(vSEL,4)}, {v(b+4*i,4)}, {'0' if t == 0 else v(vCS+4*i,4)}")
            emits(G[1])
        else:
            b = vWF + 4 * ks
            if ks == 0: a(f"{MF16} {v(vCS,4)}, {v(vSEL,4)}, {v(b,4)}, {'0' if t == 0 else v(vCS,4)}")
            a(f"{MF} {v(K2,16)}, {v(b,4)}, {v(vX+4*t,4)}, {'0' if t == 0 else v(K2,16)}")
            emits(R + F)
        if ks == 1: assert not DQ
        emits(E.get(T, []))
        if T < 28 and ks == 1:
            for n in SEQ[T >> 2].split(","):
                if n: DQ += item(n)
        if t == 31: pt(f"p{1 + (T >> 5)}")
    assert not DQ
PH = [vXA, vCS + 4]
def ph_reads(): return [dsw(f"ds_read_b64_tr_b16 {v(PH[i>>1]+2*(i&1),2)}, v{vPHA} offset:{256*i}", "ph") for i in range(4)]
def ph_signs(): return [wt(lg="ph")] + [f"v_xor_b32 v{PH[i>>2]+(i&3)}, v{vSGN}, v{PH[i>>2]+(i&3)}" for i in range(8)]
def start(ty, S, E):
    emits(consts0(ty))
    pt("i1")
    a("s_waitcnt lgkmcnt(0)")
    a.wait(vm="x0")
    a("s_barrier")
    pt("p0")
    F0, F1, F2 = opt("f0", 6), opt("f1", 13), opt("f2", 26)
    RECP = opt("recp", 7)
    assert RECP >= max(F0, 5) and F1 % 4 == 1 and F2 <= 26
    spread(S, stats(), 0, F0)
    put(E, RECP, [rec_store()])
    spread(S, consts1(ty), F0 + 1, F1)
    put(E, F1, [wphi_dma()])
    l0 = 0
    for x in TOUCH:
        T, n = map(int, x.split(":")); assert F0 + 3 <= T <= 28
        put(E, T, [touch(l0, n)]); l0 += n
    spread(S, consts2(ty) + bases(ty), F1 + 1, F2)
    spread(S, consts3(ty), 27, 28)
    put(E, opt("rpos", 24), [rec1_load()])
    def rec():
        a.wait(vm="rec1")
        checked([f"v_cmp_ne_u32 vcc, s{sTAG}, v{vRSTD}"], rec1_load("x"), "L_rec1")
    put(S, 29, [fn(rec), f"v_cndmask_b32 v{vBC}, v{vSD}, v{vBC}, {sLO}", f"v_mov_b32 v{vRSTD}, v{vC1}", f"v_mul_f32 v{vC1}, {LOG2E}, v{vC1}"])
    put(E, 29, [bar("b1", "all", "e1")] + [poll(0)] * ty)
    put(S, 27, [f"v_mov_b32 v{vT}, -1"])
    put(S, 30, p2_addrs() + [f"v_mov_b32 v{vA2B}, -1"])
    put(E, 44, [poll_check(0)] * ty + [bar("b3", "all", "m2"), f"v_lshlrev_b32 v{vFL}, 3, v{vFL}"])
def rest():
    fs = [x for x in range(9) if x not in WS_.values()]
    return [w_item(j, fs.pop(0)) for j in range(16) if j not in WS_]
def place(M, spec, GR, nm="M"):
    ins = {}
    for x in [y for y in spec.split(",") if y]:
        n, r = x.split("@"); r = [int(y) for y in r.split("-")]; L = GR.pop(n)
        for i, y in enumerate(L): ins.setdefault(r[0] + (r[-1] - r[0]) * i // len(L), []).append(y)
    for i in range(300):
        pt(f"{nm}{i}")
        emits(ins.get(i, []))
        if i < len(M): emit(M[i])
def sched(S, spec, free):
    for x in spec.split(","):
        n, T = x.split("@"); T = int(T)
        if n[0] == "r":
            j = int(n[1:]); assert T >= 34 + 2 * j
            for i, g in enumerate(w_raw(j)): put(S, T + i, [g])
        elif n[0] == "c": assert T != 30; put(S, T, [clr2(*CLR[int(n[1:])], T)])
        else:
            j, sl = map(int, n.split(":")); assert T > free[sl], x
            put(S, T, [w_item(j, sl)])

st1 = a.save()
a(f"""s_bitcmp1_b32 s2, 7
s_cbranch_scc1 L_B""")
TYPE[0] = 0
S, E = {}, {}
start(0, S, E)
put(S, 30, ph_reads())
put(S, 32, ph_signs())
V = []
for hf in range(2):
    V += [f"v_mul_f32 v{K1+8*hf+i}, v{K1+8*hf+i}, v{vRSTD}" for i in range(8)]
    V += [f"v_cvt_pk_bf16_f32 v{K1+8*hf+i}, v{K1+8*hf+2*i}, v{K1+8*hf+2*i+1}" for i in range(4)]
    V += [dsw(f"ds_write_b128 v{vVW}, {v(K1+8*hf,4)} offset:{32*hf}")]
L = [f"v_cvt_pk_bf16_f32 v{vT+j}, v{K0+2*j}, v{K0+2*j+1}" for j in range(8)]
L += [ptf("L1")] + V[:2] + [f"{MF} {v(K0,16)}, {v(PH[0],4)}, {v(vT,4)}, 0"] + V[2:] + [f"{MF} {v(K1,16)}, {v(PH[1],4)}, {v(vT+4,4)}, 0"]
PKA = opt("pka", 1)
for hd, P in enumerate((K0, K1)):
    L += [ptf(f"L{2+hd}")] + softmax(P, P, PKA, vT)
    L += [dsw(f"ds_write_b128 v{vPW0}, {v(P,4)} offset:{hd*8192}"), dsw(f"ds_write_b128 v{vPW1}, {v(P+4,4)} offset:{hd*8192}")]
SPOS = opt("spos", 36)
spread(S, L, opt("ka", 33), SPOS)
FS = 44 if SPOS < 44 else 61
CLR = [(sSB0, 0), (sSB0, 2048)]
put(S, opt("fpa", 48), flag_store(1, "clr"))
sched(S, opt("sa", "c0@28,c1@28,7:6@31,r0@41,r1@44,r2@47,r3@50,r4@53,r5@56,r6@59"),
      {6: 29, 7: 29, 0: 44, 4: 44, 1: 61, 5: 61, 2: FS, 3: FS, 8: FS})
def kv():
    KB = [K1, K1 + 8, vT]
    def kv_reads(t):
        b = KB[t % 3]
        a.ds(f"ds_read_b64_tr_b16 {v(b,2)}, v{vKA0} offset:{t*1024}", f"kv{t}")
        a.ds(f"ds_read_b64_tr_b16 {v(b+2,2)}, v{vKA1} offset:{t*1024+256}", f"kv{t}")
        a.ds(f"ds_read_b64_tr_b16 {v(b+4,2)}, v{vKB} offset:{t*2304}", f"kv{t}")
        a.ds(f"ds_read_b64_tr_b16 {v(b+6,2)}, v{vKB} offset:{t*2304+576}", f"kv{t}")
    if opt("kprio", 1): a("s_setprio 2")
    for t in range(3): kv_reads(t)
    for t in range(8):
        a.wait(lg=f"kv{t}")
        b = KB[t % 3]
        a(f"{MF} {v(K0,16)}, {v(b,4)}, {v(b+4,4)}, {'0' if t == 0 else v(K0,16)}")
        if t >= 1 and t + 2 < 8: kv_reads(t + 2)
    for i in range(8): a(f"v_cvt_pk_bf16_f32 v{K1+i}, v{K0+2*i}, v{K0+2*i+1}")
    for i in range(4): a(f"v_permlane16_swap_b32 v{K1+i}, v{K1+4+i}")
    a(f"""buffer_store_dwordx4 {v(K1,4)}, v{vL16}, {srd(sWS)}, s{sC0} offen sc1
    s_mov_b32 exec_lo, 0x00010001
    s_mov_b32 exec_hi, 0x00010001
    buffer_store_dwordx4 {v(K1+4,4)}, v{vL}, {srd(sWS)}, s{sC0} offen offset:1024 sc1
    s_mov_b64 exec, -1""")
    if opt("kprio", 1): a("s_setprio 0")
    pt("kv")
put(E, SPOS, [bar(None, "all", "S"), fn(lambda: skip_if(f"s_cmp_eq_u32 s{sH}, 0", kv, "L_kv"))])
spread(S, selectors(K1), max(SPOS + 2, 50), 61)
CPR = opt("cpr", 1)
put(E, 61, [bar(None, "all", "Y"), p6f([w_item(10, 1), w_item(11, 5)])] + ["s_setprio 3"] * CPR)
stream(0, S, E)
def groups():
    G = {"a": [a_load(j) for j in range(4)], "b": [a_load(j) for j in range(4, 8)], "c": c_loads(), "o": o_loads(),
         "w": bnc_addrs() + sum([w_conv(j) for j in range(7)], []), "s": rest(), "r": [rs_load(), res_load()]}
    for k in (1,): G[f"p{k}"] = [poll(k)]; G[f"k{k}"] = [poll_check(k)]
    return G
GR = groups()
place(mish_store(K2, True, sSB0, vMT) + ["s_setprio 0"] * CPR + [ptf("ms")] + tail_addrs(), opt("ao", "p1@0,w@0-30,k1@31,a@31-36,b@78,s@79-95,r@96"), GR)
phase2(0, {1: [fn(lambda: if_first(ep_loads), 4)]}, GR, opt("ap", "c@3,o@7"))

a.label("L_B")
a.restore(st1)
TYPE[0] = 1
WS_.clear()
S, E = {}, {}
start(1, S, E)
J0 = opt("j0", 17)
assert J0 % 4 == 1
put(E, J0, [w_item(7, 8)])
CLR = [(sC0, 0), (sC0, 2048)]
sched(S, opt("sb", "c0@28,c1@28," * OSENT + "8:2@31,r0@37,r1@40,r2@43,r3@46,r4@49,r5@52,r6@55"),
      {2: 29, 3: 29, 6: 29, 7: 29, 0: 44, 4: 44})
PKB = opt("pkb", 1)
spread(S, mish_store(K0, PKB, sSB0, vT) + mish_store(K1, PKB, sC1, vT) + selectors(K0 + 8), 33, opt("ma", 35))
FPB = opt("fpb", 58)
if FPB: put(S, FPB, flag_store(1, "st"))
put(S, 56, ph_reads()); put(S, 62, ph_signs())
put(E, 61, [bar(None, "all", "Y"), p6f([w_item(10, 1), w_item(11, 5)])] + ["s_setprio 3"] * CPR)
stream(1, S, E)
vTL = [216 + 4 * i for i in range(8)]; vZL = 16
def t_load(i, tag=None):
    def p():
        a(f"s_movk_i32 s{sT1}, {(i>>1)*4*1152}")
        a.vmem(f"buffer_load_dwordx4 {v(vTL[i],4)}, v{vGA}, {srd(sWS)}, s{sT1} offen offset:{(i&1)*256} sc1", tag or "t")
    return fn(p, 4)
def z_load(tag=None): return vm(f"buffer_load_dwordx4 {v(vZL,4)}, v{vGZ}, {srd(sWS)}, 0 offen offset:1024 sc1", tag or "t")
for j in range(8): a(f"v_cvt_pk_bf16_f32 v{K2+j}, v{K2+2*j}, v{K2+2*j+1}")
a(f"{MF} {v(K0,16)}, {v(PH[0],4)}, {v(K2,4)}, 0")
a(f"{MF} {v(K1,16)}, {v(PH[1],4)}, {v(K2+4,4)}, 0")
M = softmax(K0, K0, True, 20) + softmax(K1, K0 + 8, True, 20)
print("B list", len(M))
GR = groups()
GR.update({"g": [z_load()] + [t_load(i) for i in range(8)], "h": ["s_setprio 3"], "l": ["s_setprio 0"]})
if not FPB: GR["f"] = flag_store(1, "st")
place(M, opt("bo", "g@0-20,p1@21,w@30-110,k1@120,a@120"), GR)
pt("sm")
vD, vDZ = K2, K2 + 4
a.wait(vm="t")
checked(maxchain(vTL + [vZL], vD), lambda: emits([z_load("x")] + [t_load(i, "x") for i in range(8)]), "L_t")
pt("g")
a(f"{MF16} {v(vDZ,4)}, {v(vS0,4)}, {v(vZL,4)}, 0")
for i in range(8):
    a(f"{MF16} {v(vD,4)}, {v(vS0+4*(i&1),4)}, {v(vTL[i],4)}, {'0' if i == 0 else v(vD,4)}")
for sh in (2, 4):
    for j in range(4): a(f"v_add_f32_dpp v{vDZ+j}, v{vDZ+j}, v{vDZ+j} row_ror:{sh} row_mask:0xf bank_mask:0xf")
a(f"""v_cvt_pk_bf16_f32 v{vDZ}, v{vDZ}, v{vDZ+1}
v_cvt_pk_bf16_f32 v{vDZ+1}, v{vDZ+2}, v{vDZ+3}
s_mov_b64 exec, 0x30003
ds_write_b64 v{vZW}, {v(vDZ,2)} offset:256
s_mov_b64 exec, -1
v_cvt_pk_bf16_f32 v{vD}, v{vD}, v{vD+1}
v_cvt_pk_bf16_f32 v{vD+1}, v{vD+2}, v{vD+3}
ds_write_b64 v{vKW}, {v(vD,2)}""")
a.wait(lg="all")
a("s_barrier")
pt("K")
vKF = 64
for hh in range(2):
    for j in range(2):
        a.ds(f"ds_read_b128 {v(vKF+8*hh+4*j,4)}, v{vKR} offset:{hh*1088+j*272}", f"kf{hh}")
X = split(tail_addrs(), 3)
emits(X[0])
OD = [K2, K1]
for hh in range(2):
    a.wait(lg=f"kf{hh}")
    a(f"{MF} {v(OD[hh],16)}, {v(vKF+8*hh,4)}, {v(K0+8*hh,4)}, 0")
    a(f"{MF} {v(OD[hh],16)}, {v(vKF+8*hh+4,4)}, {v(K0+8*hh+4,4)}, {v(OD[hh],16)}")
emits(X[1] + X[2])
for D in OD: a(f"v_add_f32 v{D+8}, 0x358637bd, v{D+8}")
for D in OD: a(f"v_rcp_f32 v{D+8}, v{D+8}")
for D in OD: a(f"v_mul_f32 v{D+8}, v{D+8}, v{vSD}")
for hh, D in enumerate(OD):
    for i in range(0, 8, 2): a(f"v_pk_mul_f32 {P2(D+i)}, {P2(D+i)}, {P2(D+8)} op_sel_hi:[1,0]")
    for i in range(4): a(f"v_cvt_pk_bf16_f32 v{D+12+i}, v{D+2*i}, v{D+2*i+1}")
    frag_store(D + 12, sC0, hh)()
if CPR: a("s_setprio 0")
pt("o")
W = GR.pop("w", [])
place(W, opt("bn", "b@0,s@0,r@0"), GR, "N")
phase2(1, {}, GR, opt("bp", "c@2,o@6"))

for blk in retries: blk()
a.label("L_fin")
if STAMP >= 0:
    n = nst[0]
    a(f"""s_cmp_eq_u32 s{sW}, {STAMP}
    s_cbranch_scc0 L_end
    s_waitcnt lgkmcnt(0)
    s_sub_u32 s{sT0}, {SPIN}, s{sCNT}
    s_mul_i32 s{sT0}, s{sT0}, 100
    s_add_u32 s{sST0+2}, s{sST0}, s{sT0}
    s_addc_u32 s{sST0+3}, s{sST0+1}, 0
    s_mul_i32 s{sT0}, s2, {n*8}
    s_add_u32 s{sT0}, s{sT0}, {STAMP_OFF}
    s_mov_b64 exec, 1""")
    for i in range(n):
        a(f"v_mov_b32 v{64+2*i}, s{sST0+2*i}")
        a(f"v_mov_b32 v{65+2*i}, s{sST0+2*i+1}")
        a(f"buffer_store_dwordx2 {v(64+2*i,2)}, off, {srd(sWS)}, s{sT0} offset:{i*8}")
a.label("L_end")
a.pad()
open(out_path, "w").write(header(256, 512, LDS_SIZE) + a.text() + footer(vgpr=256))
print("instructions:", sum(1 for x in a.L if x.states), "nops:", sum(1 for x in a.L if x.kind == "nop"), "stamps", nst[0])
```

```python
import sys
from asmdsl import Asm
from gen_common import header, footer

OPT = dict(a.split("=") for a in sys.argv[2:])
def opt(k, d): return type(d)(OPT.get(k, d))
STAMP = opt("stamp", -1)
CYC = opt("cyc", 0)
PTS = [p.split("|") for p in opt("pts", "p0,p1,Y,S|g,kv|o,f0,f2,end").split(",") if p]
ROTM = opt("rotm", 7)
ROT2 = opt("rot2", 7)
SPIN = opt("spin", 200000)
out_path = sys.argv[1]

SZ = 16384
KVL, WPHI, CW, BNC = 9 * SZ, 9 * SZ + 2048, 9 * SZ + 4096, 9 * SZ + 8192
PHI, VIMG = 2 * SZ, 8 * SZ
LDS_SIZE = 163840
REC1 = 0x1000
KVD = 0x20000
FLG = 0xc0000
ACT = 0x140000
DUM = 0x1000000
STAMP_OFF = 128 << 20

sW, sSIG, sH, sT0, sT1 = 3, 4, 5, 6, 7
sX, sWD, sWE, sW2, sWO, sOUT, sWS = 8, 12, 16, 20, 24, 28, 32
sPH, sB1, sPC = 36, 40, 44
sHALF, sISQ, sLOm, sFM, sMASK, sCM = 36, 38, 40, 42, 44, 46
sFMB, sTILE, sFL, sFB, sRA2, sRW2 = 48, 50, 51, 52, 53, 54
(sM0R, sTAG, sCNT, sT2, sT3, sRHO, sRB, sG, sSTART, sT4, sC0, sC1, sSB0, sOB, sRA, sRW, sAO, sR2,
 sRB2, sCB, sGAM, sREC, sSTR, sKB) = range(56, 80)
sST0 = 82
sLO = f"s[{sLOm}:{sLOm+1}]"
def srd(n): return f"s[{n}:{n+3}]"
def sp(n): return f"s[{n}:{n+1}]"

vL = 0
vXO, vWA, vWC, vL16, vBA = 1, 3, 5, 7, 8
vA2L, vA2M, vA2T = 1, 3, 5
vBC, vSD, vC1, vRSTD = 10, 11, 12, 13
vCAW, vCAR, vPL, vPM = 14, 15, 16, 20
vT = 24
vW2O, vWOO, vFL, vACT, vA2B, vFV = 32, 34, 36, 37, 38, 39
vXA, vSEL, vCS = 40, 44, 48
vPHA, vSGN = 56, 57
vPW0, vPW1, vKA0, vKA1, vKB, vVW = 58, 59, 60, 61, 62, 63
vGA, vGZ, vKW, vZW, vKR = 58, 59, 60, 61, 62
vWF = 64
K2, K0, K1 = 80, 96, 112
vX = 128
def v(n, k=1): return f"v{n}" if k == 1 else f"v[{n}:{n+k-1}]"
def P2(n): return v(n, 2)

a = Asm()
nst = [2]
def stamp(i):
    if STAMP >= 0:
        assert i < 10
        a(f"{'s_memtime' if CYC else 's_memrealtime'} s[{sST0+2*i}:{sST0+2*i+1}]")
        nst[0] = max(nst[0], i + 1)
def pt(name):
    for i, p in enumerate(PTS):
        if name in p: stamp(2 + i)

MF = "v_mfma_f32_32x32x16_bf16"
MF16 = "v_mfma_f32_16x16x32_bf16"
MF32 = "v_mfma_f32_32x32x2_f32"
LOG2E = "0x3fb8aa3b"

def lines(txt): return [l.strip() for l in txt.strip().split("\n") if l.strip()]
def cost(x):
    if callable(x): return getattr(x, "cost", 1)
    return 2 if ("v_exp" in x or "v_rcp" in x or "v_mfma" in x) else 1
def emit(x):
    if callable(x): x()
    else: a(x)
def emits(L):
    for x in L: emit(x)
def fn(f, c=1):
    f.cost = c; return f
def ptf(name): return fn(lambda: pt(name), 0)
def grp(L): return fn(lambda: emits(L), sum(cost(x) for x in L))
def merge(main, side, start=0, end=None):
    end = len(main) if end is None else min(end, len(main))
    tot = sum(cost(x) for x in main[start:end]); out = list(main[:start]); acc = 0; k = 0
    for x in main[start:end]:
        while k < len(side) and acc >= k * tot / len(side): out.append(side[k]); k += 1
        out.append(x); acc += cost(x)
    return out + side[k:] + list(main[end:])
def split(L, n):
    tot = sum(cost(x) for x in L); G = [[] for _ in range(n)]; acc = 0
    for x in L:
        G[min(n - 1, int(acc * n / max(tot, 1)))].append(x); acc += cost(x)
    return G
def vm(txt, tag):
    if opt("now2", 0) and tag[0] == "w": return fn(lambda: None, 3)
    return fn(lambda: a.vmem(txt, tag), 3)
def dsw(txt, tag="w"): return fn(lambda: a.ds(txt, tag), 2)
def wt(**kw): return fn(lambda: a.wait(**kw), 0)

retries = []
def checked(cmp_lines, reload, name):
    lab = a.newlabel(name)
    a.label(lab + "_c")
    for l in cmp_lines: a(l)
    a(f"s_cbranch_vccnz {lab}_r")
    a.label(lab + "_k")
    def blk():
        a.label(lab + "_r")
        a(f"""s_cmp_eq_u32 s{sCNT}, 0
        s_cbranch_scc1 {lab}_k
        s_sub_u32 s{sCNT}, s{sCNT}, 1""")
        reload()
        a(f"""s_waitcnt vmcnt(0)
        s_branch {lab}_c""")
    retries.append(blk)
def skip_if(cmp_line, body, name):
    lab = a.newlabel(name)
    a(cmp_line); a(f"s_cbranch_scc0 {lab}")
    st = a.save()
    body()
    a.label(lab)
    a.restore(st)

t0, t1, t2, t3, u0, u1, u2, u3 = range(vT, vT + 8)
LT = vX + 96
vXR, vRC, vCL = LT, LT + 16, LT + 20
vRW_, vSW_, vEP, vRA1 = LT + 24, LT + 25, LT + 26, 6
TYPE = [0]
RS = [0, 4, 1, 5]
def rot(c, d): return [f"s_add_u32 s{d}, s{sRHO}, {128*c}", f"s_and_b32 s{d}, s{d}, 0x380"]
def x_item(c):
    s = [f"s_add_u32 m0, s{sM0R}, {(c & 3) * SZ}"] + rot(c, sT0)
    return [s + [vm(f"buffer_load_dwordx4 v{vXO}, {srd(sX)}, s{sT0} offen lds", f"x{c}")],
            [vm(f"buffer_load_dwordx4 v{vXO+1}, {srd(sX)}, s{sT0} offen offset:1024 lds", f"x{c}")]]
def w_item1(c):
    b = (4 + (c & 3)) * SZ
    return [[f"s_add_u32 m0, s{sM0R}, {b}", f"s_mul_i32 s{sT0}, s{sT0}, s{sSTR}",
             vm(f"buffer_load_dwordx4 v{vWA}, {srd(sWD)}, s{sT0} offen lds", f"x{c}")],
            [f"s_add_u32 m0, s{sM0R}, {b+1024}", vm(f"buffer_load_dwordx4 v{vWA+1}, {srd(sWD)}, s{sT0} offen lds", f"x{c}")]]
def r_item(i):
    return [[f"s_add_u32 m0, s{sM0R}, {RS[i]*SZ + 1024*k}"] + rot(2 * i + k, sT0) +
            [f"s_mul_i32 s{sT0}, s{sT0}, {(1376, 1536)[TYPE[0]]}", vm(f"buffer_load_dwordx4 v{vWC}, {srd(sWE)}, s{sT0} offen lds", f"b{i}")]
            for k in range(2)]
def item(n):
    i = int(n[1:])
    return x_item(i) + w_item1(i) if n[0] == "x" else r_item(i)

PRIO = opt("prio", 1)
a(f"""s_cmp_ge_u32 s2, 256
s_cbranch_scc1 L_end""")
stamp(0)
a(f"""s_getpc_b64 {sp(sPC)}
L_pc:
s_load_dwordx2 {sp(sX)}, s[0:1], 0
s_lshr_b32 s{sT1}, s2, 2
s_and_b32 s{sT1}, s{sT1}, 32
s_add_u32 s{sT3}, s{sT1}, 8
s_load_dwordx2 {sp(sWD)}, s[0:1], s{sT3}
s_bfe_u32 s{sT0}, s2, 0x30003
v_lshrrev_b32 v{t0}, 6, v0
s_mov_b32 s{sPC+2}, L_end-L_pc
v_lshl_add_u32 v{t1}, v0, 3, s{sT0}
s_mov_b32 s{sPC+3}, 0x00020000
v_lshlrev_b32 v{t1}, 7, v{t1}
v_readfirstlane_b32 s{sW}, v{t0}
buffer_load_dword v{LT+27}, v{t1}, {srd(sPC)}, 0 offen""")
if PRIO: a("s_setprio 3")
a(f"""s_load_dwordx2 {sp(sWS)}, s[0:1], 80
v_lshrrev_b32 v{vRW_}, 3, v0
s_sub_u32 s{sT4}, 40, s{sT1}
s_and_b32 s{sT1}, s2, 1
v_and_b32 v{t1}, 56, v{vRW_}
s_lshl3_add_u32 s{sRB}, s{sT1}, s{sT0}       ; rb
v_add_u32 v{t0}, v{vRW_}, v{t1}
s_lshr_b32 s{sT1}, s2, 6
v_bfe_u32 v{t2}, v0, 4, 2
s_lshl1_add_u32 s{sRHO}, s{sT1}, s{sT0}
v_bitop3_b32 v{t2}, v0, v{t2}, 7 bitop3:0x28
s_lshl_b32 s{sT2}, s{sRB}, 17
v_lshl_add_u32 v{t2}, v{t2}, 4, s{sT2}
s_and_b32 s{sRHO}, s{sRHO}, {ROTM}
v_lshl_add_u32 v{vXO}, v{t0}, 10, v{t2}
s_lshl_b32 s{sRHO}, s{sRHO}, 7
v_xor_b32 v{vXO+1}, 64, v{vXO}
s_lshl_b32 s{sM0R}, s{sW}, 11
v_add_u32 v{vXO+1}, {8192-1024}, v{vXO+1}
s_mov_b32 s{sX+2}, {2048*1024}
v_bfe_u32 v{t3}, v0, 4, 1
s_mov_b32 s{sX+3}, 0x00020000
v_lshlrev_b32 v{t3}, 2, v{t3}
s_mov_b32 m0, s{sM0R}
v_bitop3_b32 v{t3}, v0, v{t3}, 7 bitop3:0x28
s_bfe_u32 s{sT1}, s2, 0x10006
v_lshlrev_b32 v{vSW_}, 4, v{t3}
s_and_b32 s{sG}, s2, 6
s_or_b32 s{sG}, s{sG}, s{sT1}                ; g
s_mul_i32 s{sSTART}, s{sG}, 11
s_waitcnt lgkmcnt(0)""")
a.vmem(f"buffer_load_dwordx4 v{vXO}, {srd(sX)}, s{sRHO} offen lds", "x0")
a(f"""s_add_u32 s{sSTART}, s{sSTART}, 1
s_lshr_b32 s{sSTART}, s{sSTART}, 1
s_min_u32 s{sSTART}, s{sSTART}, 38
s_lshl1_add_u32 s{sT1}, s{sG}, 16""")
a.vmem(f"buffer_load_dwordx4 v{vXO+1}, {srd(sX)}, s{sRHO} offen offset:1024 lds", "x0")
a(f"""s_movk_i32 s{sSTR}, 1536
s_movk_i32 s{sT2}, 1024
s_bitcmp1_b32 s2, 7
s_cselect_b32 s{sSTR}, 1376, s{sSTR}
s_cselect_b32 s{sT1}, s{sSTART}, s{sT1}
s_cselect_b32 s{sT2}, 128, s{sT2}
v_mul_u32_u24 v{vWA}, s{sSTR}, v{vRW_}
s_lshl_b32 s{sT1}, s{sT1}, 6
s_lshl_b32 s{sWD+2}, s{sSTR}, 10
v_lshl_add_u32 v{vWA}, v{vWA}, 1, v{vSW_}
s_mov_b32 s{sWD+3}, 0x00020000
s_mov_b32 s{sT0}, s{sRHO}
v_add_u32 v{vWA}, s{sT1}, v{vWA}
s_load_dwordx2 {sp(sWE)}, s[0:1], s{sT4}
v_add_u32 v{vWA+1}, s{sT2}, v{vWA}""")
for L in w_item1(0): emits(L)
pt("i0")
a(f"""v_and_b32 v{vL}, 63, v0
s_lshr_b32 s{sT1}, s2, 7
s_lshl1_add_u32 s{sT1}, s{sRB}, s{sT1}
v_lshlrev_b32 v{vL16}, 4, v{vL}
s_lshl3_add_u32 s{sT1}, s{sT1}, s{sG}
s_lshl3_add_u32 s{sREC}, s{sT1}, s{sW}
s_lshl_b32 s{sT1}, s{sREC}, 10
s_mov_b32 s{sWS+2}, {256<<20}
s_mov_b32 s{sWS+3}, 0x00020000
s_lshr_b32 s{sH}, s{sW}, 2""")
a.vmem(f"buffer_load_dwordx4 {v(vXR,4)}, v{vL16}, {srd(sX)}, s{sT1} offen", "xr")
a.vmem(f"buffer_load_dword v{vEP}, off, {srd(sWS)}, 0 sc1", "xr")
if PRIO: a("s_setprio 0")
B3 = lines(f"""s_load_dwordx2 {sp(sPH)}, s[0:1], 16
s_load_dwordx2 {sp(sB1)}, s[0:1], 48
s_load_dwordx2 {sp(sW2)}, s[0:1], 56
s_load_dwordx2 {sp(sWO)}, s[0:1], 24
s_load_dwordx2 {sp(sOUT)}, s[0:1], 64
s_and_b32 s{sSIG}, s{sW}, 3
v_and_b32 v{u0}, 31, v{vL}
s_xor_b32 s{sT3}, s{sSIG}, s{sH}
v_lshrrev_b32 v{u1}, 5, v{vL}
v_bfe_u32 v{u2}, v{vL}, 1, 3
s_lshl_b32 s{sT2}, s{sSIG}, 7
v_xor_b32 v{u2}, v{u1}, v{u2}
s_add_u32 s{sT2}, s{sT2}, s{sT3}
v_lshlrev_b32 v{u2}, 4, v{u2}
s_lshl_b32 s{sT2}, s{sT2}, 5
v_lshl_add_u32 v{u2}, v{u0}, 7, v{u2}
v_bfe_u32 v{t0}, v{vL}, 2, 2
v_xor_b32 v{vXA}, s{sT2}, v{u2}
v_bfe_u32 v{t1}, v{vL}, 4, 1
v_xor_b32 v{vXA+1}, 32, v{vXA}
v_and_b32 v{t2}, 3, v{vL}
v_xor_b32 v{vXA+2}, 64, v{vXA}
v_lshlrev_b32 v{t2}, 3, v{t2}
v_xor_b32 v{vXA+3}, 96, v{vXA}
v_lshl_add_u32 v{t2}, v{t1}, 5, v{t2}
v_lshrrev_b32 v{u2}, 1, v{t0}
s_lshl_b32 s{sT2}, s{sT3}, 6
v_lshl_add_u32 v{u2}, v{u2}, 6, v{t2}
s_add_u32 s{sT2}, s{sT2}, s{sH}
v_lshl_add_u32 v{t3}, v{t0}, 7, v{u2}
s_lshl_b32 s{sT2}, s{sT2}, 6
v_lshl_add_u32 v{u2}, v{u1}, 11, v{t3}
s_or_b32 s{sT2}, s{sT2}, 0x10000
v_xor_b32 v{u3}, v{t0}, v{t1}
v_xor_b32 v{vPM}, s{sT2}, v{u2}
v_and_b32 v{u3}, 1, v{u3}
v_xor_b32 v{vPM+1}, 4096, v{vPM}
v_cmp_eq_u32 vcc, 0, v{u3}
v_xor_b32 v{vPM+2}, 8192, v{vPM}
v_mov_b32 v{u3}, 0x3f803f80
v_xor_b32 v{vPM+3}, 12288, v{vPM}""")
B3 += [f"v_cndmask_b32 v{vSEL+i}, 0, v{u3}, vcc" for i in range(4)]
PRO = opt("pro", "x1").split(",")
PRE2 = opt("pre2", 0)
B3N = opt("b3n", 0)
if PRE2 & 8: emits(B3[:B3N])
else: emits(merge(B3, [grp(L) for n in PRO for L in item(n)]))


def mish(acc, pk, tmp):
    L = []
    for g in (0, 8):
        r = [acc + g + i for i in range(8)]; u = [tmp + i for i in range(8)]
        if pk:
            L += [f"v_pk_fma_f32 {P2(u[i])}, {P2(r[i])}, {P2(vC1)}, {sp(sHALF)} op_sel_hi:[1,0,1]" for i in range(0, 8, 2)]
            L += [f"v_exp_f32 v{u[i]}, v{u[i]}" for i in range(8)]
            L += [f"v_pk_add_f32 {P2(u[i])}, {P2(u[i])}, {sp(sISQ)}" for i in range(0, 8, 2)]
            L += [f"v_pk_fma_f32 {P2(u[i])}, {P2(u[i])}, {P2(u[i])}, {sp(sHALF)} neg_lo:[1,0,0] neg_hi:[1,0,0]" for i in range(0, 8, 2)]
            L += [f"v_rcp_f32 v{u[i]}, v{u[i]}" for i in range(8)]
            L += [f"v_pk_fma_f32 {P2(r[i])}, {P2(r[i])}, {P2(u[i])}, {P2(r[i])}" for i in range(0, 8, 2)]
        else:
            L += [f"v_fma_f32 v{u[i]}, v{r[i]}, v{vC1}, -0.5" for i in range(8)]
            L += [f"v_exp_f32 v{u[i]}, v{u[i]}" for i in range(8)]
            L += [f"v_add_f32 v{u[i]}, s{sISQ}, v{u[i]}" for i in range(8)]
            L += [f"v_fma_f32 v{u[i]}, -v{u[i]}, v{u[i]}, -0.5" for i in range(8)]
            L += [f"v_rcp_f32 v{u[i]}, v{u[i]}" for i in range(8)]
            L += [f"v_fmac_f32 v{r[i]}, v{r[i]}, v{u[i]}" for i in range(8)]
        L += [f"v_cvt_pk_bf16_f32 v{acc+g//2+i}, v{r[2*i]}, v{r[2*i+1]}" for i in range(4)]
        L.append(("half", g // 8))
    return L
def frag_store(reg, sb, half, tag="st"):
    return vm(f"buffer_store_dwordx4 {v(reg,4)}, v{vL16}, {srd(sWS)}, s{sb} offen offset:{half*2048} sc1", tag)
def mish_store(acc, pk, sb, tmp, tag="st"):
    return [frag_store(acc + 4 * x[1], sb, x[1], tag) if isinstance(x, tuple) else x for x in mish(acc, pk, tmp)]
def softmax(P, out, pk, m):
    L = [f"v_max3_f32 v{m}, v{P}, v{P+1}, v{P+2}", f"v_max3_f32 v{m+1}, v{P+3}, v{P+4}, v{P+5}"]
    for i in range(6, 14, 4):
        L += [f"v_max3_f32 v{m}, v{m}, v{P+i}, v{P+i+1}", f"v_max3_f32 v{m+1}, v{m+1}, v{P+i+2}, v{P+i+3}"]
    L += [f"v_max3_f32 v{m}, v{m}, v{P+14}, v{P+15}", f"v_max_f32 v{m}, v{m}, v{m+1}", f"v_mul_f32 v{m}, v{m}, v{vC1}"]
    if pk:
        L += [f"v_pk_fma_f32 {P2(P+i)}, {P2(P+i)}, {P2(vC1)}, {P2(m)} op_sel_hi:[1,0,0] neg_lo:[0,0,1] neg_hi:[0,0,1]" for i in range(0, 16, 2)]
        L += [f"v_exp_f32 v{P+i}, v{P+i}" for i in range(16)]
        L += [f"v_pk_add_f32 {P2(m)}, {P2(P)}, {P2(P+2)}", f"v_pk_add_f32 {P2(m+2)}, {P2(P+4)}, {P2(P+6)}"]
        L += [f"v_pk_add_f32 {P2(m+(i&2))}, {P2(m+(i&2))}, {P2(P+i)}" for i in range(8, 16, 2)]
        L += [f"v_pk_add_f32 {P2(m)}, {P2(m)}, {P2(m+2)}", f"v_add_f32 v{m}, v{m}, v{m+1}", f"v_rcp_f32 v{m}, v{m}"]
        L += [f"v_pk_mul_f32 {P2(P+i)}, {P2(P+i)}, {P2(m)} op_sel_hi:[1,0]" for i in range(0, 16, 2)]
    else:
        L += [f"v_fma_f32 v{P+i}, v{P+i}, v{vC1}, -v{m}" for i in range(16)]
        L += [f"v_exp_f32 v{P+i}, v{P+i}" for i in range(16)]
        L += [f"v_add_f32 v{m+i}, v{P+2*i}, v{P+2*i+1}" for i in range(4)]
        L += [f"v_add_f32 v{m+(i&3)}, v{m+(i&3)}, v{P+i}" for i in range(8, 16)]
        L += [f"v_add_f32 v{m}, v{m}, v{m+1}", f"v_add_f32 v{m+2}, v{m+2}, v{m+3}", f"v_add_f32 v{m}, v{m}, v{m+2}", f"v_rcp_f32 v{m}, v{m}"]
        L += [f"v_mul_f32 v{P+i}, v{P+i}, v{m}" for i in range(16)]
    L += [f"v_cvt_pk_bf16_f32 v{out+i}, v{P+2*i}, v{P+2*i+1}" for i in range(8)]
    return L

def one_lane(x): return grp(["s_mov_b64 exec, 1", x, "s_mov_b64 exec, -1"])
def rec_store(): return one_lane(vm(f"buffer_store_dwordx4 {v(vRC,4)}, off, {srd(sWS)}, s{sREC} sc1", "rec"))
def rec1_load(tag="rec1"): return vm(f"buffer_load_dwordx4 {v(vBC,4)}, v{vRA1}, {srd(sWS)}, 0 offen sc1", tag)
FOFF = [12, 0, 128, 4]
OSENT = 1
def pmask(k): return sp((sMASK, sFM)[k])
def poll(k, tag=None):
    return grp([f"s_mov_b64 exec, {pmask(k)}",
                vm(f"buffer_load_dword v{vFV}, v{vFL}, {srd(sWS)}, {f's{sFB}' if k else 0} offen offset:{FOFF[k]} sc1", tag or f"fl{k}"), "s_mov_b64 exec, -1"])
def poll_check(k):
    def p():
        a.wait(vm=f"fl{k}")
        checked([f"v_cmp_ne_u32 vcc, s{sTAG}, v{vFV}", f"s_and_b64 vcc, vcc, {pmask(k)}"], poll(k, "x"), "L_fl")
        pt(f"fl{k}")
    return fn(p, 3)
vTG = 63
def flag_store(k, tag):
    return [f"v_mov_b32 v{vTG}, s{sTAG}", wt(vm=tag), one_lane(vm(f"buffer_store_dword v{vTG}, off, {srd(sWS)}, s{sFL} offset:{FOFF[k]} sc1", "fs")), ptf(f"fs{k}")]
def clr2(sb, off, T):
    if opt("noclr", 0): return "s_nop 0"
    assert T > 27
    return vm(f"buffer_store_dwordx4 {v(vA2B if T > 30 else vT,4)}, v{vL16}, {srd(sWS)}, s{sb} offen offset:{off} sc1", "clr")

def stats():
    e = vXR + 4; r0, r1 = vXR + 12, vXR + 13
    def allsum(r):
        L = [f"v_add_f32_dpp v{r}, v{r}, v{r} row_ror:{s} row_mask:0xf bank_mask:0xf" for s in (8, 4, 2, 1)]
        L += [f"v_mov_b32 v{r1}, v{r}", f"v_permlane16_swap_b32 v{r}, v{r1}", f"v_add_f32 v{r}, v{r}, v{r1}",
              f"v_mov_b32 v{r1}, v{r}", f"v_permlane32_swap_b32 v{r}, v{r1}", f"v_add_f32 v{r}, v{r}, v{r1}"]
        return L
    S = [wt(vm="xr"), f"v_add_u32 v{vRC+3}, 1, v{vEP}"]
    for j in range(4):
        S += [f"v_lshlrev_b32 v{e+2*j}, 16, v{vXR+j}", f"v_and_b32 v{e+2*j+1}, 0xffff0000, v{vXR+j}"]
    S += [f"v_readfirstlane_b32 s{sTAG}, v{vRC+3}"]
    S += [f"v_add_f32 v{vXR+j}, v{e+2*j}, v{e+2*j+1}" for j in range(4)]
    S += [f"v_add_f32 v{vXR}, v{vXR}, v{vXR+1}", f"v_add_f32 v{vXR+2}, v{vXR+2}, v{vXR+3}", f"v_add_f32 v{r0}, v{vXR}, v{vXR+2}"]
    S += allsum(r0)
    S += [f"v_mul_f32 v{vRC}, 0xbb000000, v{r0}"]
    S += [f"v_add_f32 v{e+j}, v{e+j}, v{vRC}" for j in range(8)]
    S += [f"v_mul_f32 v{vXR+j}, v{e+j}, v{e+j}" for j in range(4)]
    S += [f"v_fmac_f32 v{vXR+j}, v{e+4+j}, v{e+4+j}" for j in range(4)]
    S += [f"v_add_f32 v{vXR}, v{vXR}, v{vXR+1}", f"v_add_f32 v{vXR+2}, v{vXR+2}, v{vXR+3}", f"v_add_f32 v{r0}, v{vXR}, v{vXR+2}"]
    S += allsum(r0)
    S += [f"v_mov_b32 v{r1}, 0x3727c5ac", f"v_fmac_f32 v{r1}, 0x3b000000, v{r0}", f"v_rsq_f32 v{vRC+2}, v{r1}",
          f"s_lshl4_add_u32 s{sREC}, s{sREC}, {REC1}" if not PRE2 & 10 else "s_nop 0", f"v_mul_f32 v{vRC+1}, v{r1}, v{vRC+2}"]
    return S

def consts0(ty):
    if ty: return []
    def clr(off): return vm(f"buffer_store_dwordx4 {v(vCL,4)}, v{vL16}, {srd(sWS)}, s{sC0} offen offset:{off} sc1", "clr")
    L = lines(f"""s_lshl2_add_u32 s{sT2}, s{sG}, s{sSIG}
    v_mov_b32 v{vCL}, -1
    s_lshl4_add_u32 s{sT2}, s{sT2}, s{sRB}
    s_mul_i32 s{sT2}, s{sT2}, 1152
    s_add_u32 s{sC0}, s{sT2}, {KVD}""")
    if not opt("noclr", 0): L += [clr(0), "s_mov_b64 exec, 15", clr(1024), "s_mov_b64 exec, -1"]
    return [fn(lambda: skip_if(f"s_cmp_eq_u32 s{sH}, 0", lambda: emits(L), "L_c0"))]
def bases(ty):
    L = lines(f"""s_lshr_b32 s{sT4}, s{sSIG}, 1
    s_lshl1_add_u32 s{sT4}, s{sRB}, s{sT4}
    s_mul_i32 s{sKB}, s{sT4}, 236
    s_and_b32 s{sT4}, s{sSIG}, 1
    s_add_u32 s{sKB}, s{sKB}, s{sT4}
    s_lshl2_add_u32 s{sT2}, s{sTILE}, s{sKB}
    s_lshl_b32 s{sT2}, s{sT2}, 10
    s_add_u32 s{sSB0}, s{sT2}, {ACT}
    s_mov_b32 s{sFB}, {FLG - 8 * REC1}
    s_lshl3_add_u32 s{sFL}, s{sREC}, s{sFB}""")
    if ty == 0:
        return L + lines(f"""s_lshr_b32 s{sT2}, 0xea, s{sG}
        s_and_b32 s{sT2}, s{sT2}, s{sH}
        s_mul_i32 s{sT2}, s{sT2}, {DUM}
        s_add_u32 s{sSB0}, s{sSB0}, s{sT2}""")
    return L + lines(f"""s_add_u32 s{sC1}, s{sSB0}, 8192
    s_lshl1_add_u32 s{sT2}, s{sG}, s{sH}
    s_lshl2_add_u32 s{sT2}, s{sT2}, s{sKB}
    s_lshl_b32 s{sT2}, s{sT2}, 10
    s_add_u32 s{sC0}, s{sT2}, {ACT + 172*1024}""")
def consts1(ty):
    L = [f"s_add_u32 s{sSTART}, s{sSTART}, 4"] * (1 - ty) + lines(f"""s_add_u32 s{sTILE}, s{sSTART}, s{sH}
    s_and_b32 s{sT2}, s2, 7
    s_bfe_u32 s{sT3}, s2, 0x20003
    s_lshl2_add_u32 s{sRB2}, s{sT2}, s{sT3}
    s_lshr_b32 s{sCB}, s2, 5
    s_mov_b32 s{sW2+2}, {1376*1024}
    s_mov_b32 s{sW2+3}, 0x00020000
    s_mov_b32 s{sWO+2}, {512*1024}
    s_mov_b32 s{sWO+3}, 0x00020000""")
    if opt("mt", 1):
        L += lines(f"""s_lshl3_add_u32 s{sT2}, s2, s{sW}
        s_lshl_b32 s{sT2}, s{sT2}, 10
        v_lshl_add_u32 v{vTCH}, v{vL}, 7, s{sT2}
        v_add_u32 v{vTCH+1}, {(1 << 32) - 1376 * 1024:#x}, v{vTCH}""") + [touch(0, 8)]
    if TOUCH:
        L += lines(f"""s_lshl3_add_u32 s{sT2}, s{sT3}, s{sW}
        s_lshl_b32 s{sT2}, s{sT2}, 9
        s_add_u32 s{sT2}, s{sT2}, s{sCB}
        s_lshl_b32 s{sT2}, s{sT2}, 7
        v_lshl_add_u32 v{vTCH}, v{vL}, 10, s{sT2}
        v_add_u32 v{vTCH+1}, {(1 << 32) - 24 * 65536:#x}, v{vTCH}""")
    L += [f"s_lshl_b32 s{sT3}, s{sT3}, 1"] * (ROT2 == 7) + lines(f"""s_xor_b32 s{sT3}, s{sT3}, s{sCB}
    s_and_b32 s{sT3}, s{sT3}, {ROT2}
    s_lshl_b32 s{sRA}, s{sT3}, 11
    s_lshl_b32 s{sRW}, s{sT3}, 14
    s_lshr_b32 s{sT3}, s{sT3}, {(ROT2 == 7) * 1}
    s_lshl_b32 s{sRA2}, s{sT3}, 11
    s_lshl_b32 s{sRW2}, s{sT3}, 14
    s_lshl1_add_u32 s{sGAM}, s{sSIG}, s{sH}
    s_mul_i32 s{sT4}, s{sGAM}, 11
    s_add_u32 s{sT4}, s{sT4}, 1
    s_lshr_b32 s{sT4}, s{sT4}, 1
    s_min_u32 s{sT4}, s{sT4}, 38
    v_and_b32 v{u3}, 7, v{vRW_}
    v_lshl_add_u32 v{u3}, v{u3}, 10, v{vSW_}
    s_lshl_b32 s{sT2}, s{sT4}, 8
    s_add_u32 s{sT2}, s{sT2}, s{sCB}
    s_lshl_b32 s{sT2}, s{sT2}, 7
    v_add_u32 v{vW2O}, s{sT2}, v{u3}
    v_add_u32 v{vW2O+1}, {8192-1024}, v{vW2O}
    s_lshl_b32 s{sT2}, s{sGAM}, 9
    s_add_u32 s{sT2}, s{sT2}, s{sCB}
    s_lshl_b32 s{sT2}, s{sT2}, 7
    v_add_u32 v{vWOO}, s{sT2}, v{u3}
    v_add_u32 v{vWOO+1}, {8192-1024}, v{vWOO}
    s_mul_i32 s{sT2}, s{sRB2}, 59
    s_add_u32 s{sT2}, s{sT2}, s{sT4}
    s_lshl_b32 s{sT2}, s{sT2}, 12
    s_add_u32 s{sT2}, s{sT2}, {ACT}
    v_add_u32 v{vACT}, s{sT2}, v{vL16}
    s_lshl1_add_u32 s{sT3}, s{sGAM}, 43
    s_sub_u32 s{sT3}, s{sT3}, s{sT4}
    s_lshl_b32 s{sAO}, s{sT3}, 12
    s_mov_b32 s{sWE+2}, {512*(2752, 3072)[ty]}
    s_mov_b32 s{sWE+3}, 0x00020000
    s_lshl_b32 s{sT2}, s{(sSTART, sG)[ty]}, {(6, 7)[ty]}
    v_mul_u32_u24 v{vWC}, {(2752, 3072)[ty]}, v{vRW_}
    v_add3_u32 v{vWC}, v{vWC}, v{vSW_}, s{sT2}
    v_lshlrev_b32 v{vBA}, 1, v{u0}
    s_movk_i32 s{sB1+2}, 2752
    s_mov_b32 s{sB1+3}, 0x00020000
    s_lshl_b32 s{sT4}, s{sTILE}, 6""")
    L += [vm(f"buffer_load_ushort v{vBA+i}, v{vBA}, {srd(sB1)}, s{sT4} offen offset:{128*i}", "misc") for i in reversed(range(1 + ty))]
    L += lines(f"""s_mov_b32 s{sPH+2}, 16384
    s_mov_b32 s{sPH+3}, 0x00020000
    s_and_b32 s{sT2}, s{sW}, 1
    s_lshl_b32 s{sT2}, s{sT2}, 10
    s_lshl_b32 s{sT3}, s{sG}, 11
    s_add_u32 s{sT3}, s{sT3}, s{sT2}""")
    return L
TOUCH = [x for x in opt("touch", "").split(",") if x]
vTCH = LT + 28
def touch(l0, n):
    m = ((1 << n) - 1) << l0
    return grp([f"s_mov_b32 exec_lo, {m & 0xffffffff:#x}", f"s_mov_b32 exec_hi, {m >> 32:#x}",
                vm(f"buffer_load_dword v{vFV}, v{vTCH}, {srd(sW2)}, 0 offen", "tch"),
                vm(f"buffer_load_dword v{vFV}, v{vTCH+1}, {srd(sWO)}, 0 offen", "tch"), "s_mov_b64 exec, -1"])
def wphi_dma():
    return grp([f"s_add_u32 m0, s{sT2}, {WPHI}", f"s_mov_b32 s{sCNT}, {SPIN}",
                vm(f"buffer_load_dwordx4 v{vL16}, {srd(sPH)}, s{sT3} offen lds", "misc")])

def consts2(ty):
    L = lines(f"""s_lshl2_add_u32 s{sT2}, s{sRB}, s{sSIG}
    s_lshl_b32 s{sT2}, s{sT2}, 9
    s_add_u32 s{sT2}, s{sT2}, {REC1}
    v_lshl_add_u32 v{vRA1}, v{u0}, 4, s{sT2}
    s_lshl_b32 s{sT2}, s{sH}, 9
    s_add_u32 s{sT2}, s{sT2}, {CW}
    v_lshl_add_u32 v{vCAR}, v{u0}, 4, s{sT2}
    s_lshl_b32 s{sT2}, s{sSIG}, 2
    v_add_u32 v{vCAW}, s{sT2}, v{vCAR}
    v_lshl_add_u32 v{t3}, v{u1}, 9, v{t3}
    v_add_u32 v{vA2B}, s{sM0R}, v{t3}
    s_mov_b32 s{sHALF}, -0.5
    s_mov_b32 s{sHALF+1}, -0.5
    s_mov_b32 s{sISQ}, 0x3f3504f3
    s_mov_b32 s{sISQ+1}, 0x3f3504f3
    s_mov_b32 s{sLOm}, -1
    s_mov_b32 s{sLOm+1}, 0
    s_mov_b32 s{sMASK}, 0xffff0000
    s_mov_b32 s{sMASK+1}, 0
    v_lshl_add_u32 v{u3}, v{u1}, 2, v{t0}
    v_lshlrev_b32 v{u3}, 5, v{u3}
    v_lshl_add_u32 v{u3}, v{t1}, 4, v{u3}
    v_bfe_u32 v{t3}, v{vL}, 1, 1
    v_lshl_add_u32 v{u3}, v{t3}, 3, v{u3}
    s_lshl_b32 s{sT2}, s{sH}, 10
    s_add_u32 s{sT2}, s{sT2}, {WPHI}
    v_add_u32 v{vPHA}, s{sT2}, v{u3}
    v_bfe_i32 v{vSGN}, v{vL}, 2, 1
    v_and_b32 v{vSGN}, 0x80008000, v{vSGN}""")
    L += [f"v_and_b32 v{vPL+i}, 0xffff, v{vPM+i}" for i in range(4)]
    L += lines(f"""s_lshr_b32 s{sT2}, s{sRB2}, 1
    s_lshl4_add_u32 s{sT2}, s{sT2}, s{sGAM}
    s_lshl_b32 s{sT2}, s{sT2}, 7
    s_add_u32 s{sT2}, s{sT2}, {REC1}
    v_and_b32 v{u3}, 8, v{vL}
    v_mul_u32_u24 v{u3}, 0x70, v{u3}
    v_and_b32 v{u2}, 15, v{vL}
    v_lshl_add_u32 v{u3}, v{u2}, 4, v{u3}
    v_add_u32 v{vFL}, s{sT2}, v{u3}""")
    if ty == 0:
        L += lines(f"""s_lshl_b32 s{sT4}, s{sSIG}, 5
        v_add_u32 v{u0}, s{sT4}, v{u0}
        v_bfe_u32 v{u2}, v{vL}, 1, 2
        v_lshlrev_b32 v{u3}, 1, v{u1}
        v_xor_b32 v{u2}, v{u2}, v{u3}
        s_lshl_b32 s{sT2}, s{sH}, 14
        s_add_u32 s{sT2}, s{sT2}, {PHI}
        v_lshl_add_u32 v{u2}, v{u2}, 4, s{sT2}
        v_lshl_add_u32 v{vPW0}, v{u0}, 6, v{u2}
        v_xor_b32 v{vPW1}, 16, v{vPW0}
        v_mul_u32_u24 v{u0}, 144, v{u0}
        v_add_u32 v{u0}, {VIMG}, v{u0}
        v_mov_b32 v{vTCH+2}, 0x3f803f80
        v_mov_b32 v{vTCH+3}, 0x3f803f80""") + [dsw(f"ds_write_b64 v{u0}, {v(vTCH+2,2)} offset:128")] + lines(f"""
        s_lshl_b32 s{sT2}, s{sH}, 6
        v_lshl_add_u32 v{vVW}, v{u1}, 4, s{sT2}
        v_add_u32 v{vVW}, v{vVW}, v{u0}
        v_lshl_add_u32 v{u1}, v{u1}, 3, v{t0}
        v_and_b32 v{u2}, 1, v{vL}
        v_lshl_add_u32 v{u2}, v{u2}, 1, v{t1}
        v_lshrrev_b32 v{u3}, 1, v{t0}
        v_xor_b32 v{u2}, v{u2}, v{u3}
        v_lshlrev_b32 v{u2}, 4, v{u2}
        v_lshl_add_u32 v{u2}, v{u1}, 6, v{u2}
        v_lshl_add_u32 v{u2}, v{t3}, 3, v{u2}
        s_lshl_b32 s{sT2}, s{sSIG}, 13
        s_add_u32 s{sT2}, s{sT2}, {PHI}
        v_add_u32 v{vKA0}, s{sT2}, v{u2}
        v_xor_b32 v{vKA1}, 32, v{vKA0}
        v_mul_u32_u24 v{u1}, 144, v{u1}
        v_add_u32 v{u2}, s{sT4}, v{t2}
        v_cmp_eq_u32 vcc, 1, v{t1}
        v_mov_b32 v{u3}, 128
        v_add_u32 v{u1}, {VIMG}, v{u1}
        v_cndmask_b32 v{u2}, v{u2}, v{u3}, vcc
        v_add_u32 v{vKB}, v{u1}, v{u2}""")
    else:
        L += lines(f"""s_lshl2_add_u32 s{sT2}, s{sG}, s{sSIG}
        s_mul_i32 s{sT2}, s{sT2}, {16*1152}
        s_add_u32 s{sT2}, s{sT2}, {KVD}
        v_lshrrev_b32 v{u3}, 4, v{vL}
        v_mul_u32_u24 v{u3}, 1152, v{u3}
        v_add_u32 v{u3}, s{sT2}, v{u3}
        s_lshl_b32 s{sT3}, s{sH}, 9
        v_lshlrev_b32 v{t2}, 4, v{u2}
        v_add3_u32 v{vGA}, v{u3}, v{t2}, s{sT3}
        v_bfe_u32 v{vGZ}, v{vL}, 1, 2
        v_mul_u32_u24 v{vGZ}, {4*1152}, v{vGZ}
        v_and_b32 v{t3}, 1, v{vL}
        v_lshl_add_u32 v{u3}, v{t3}, 4, v{u3}
        s_lshl_b32 s{sT3}, s{sH}, 5
        v_add3_u32 v{vGZ}, v{vGZ}, v{u3}, s{sT3}
        s_lshl3_add_u32 s{sT2}, s{sG}, s{sSIG}
        s_lshl4_add_u32 s{sT2}, s{sT2}, {REC1}
        v_lshl_add_u32 v{u3}, v{u2}, 11, s{sT2}
        v_cmp_eq_u32 vcc, 1, v{t1}
        s_mul_i32 s{sT2}, s{sGAM}, 544
        s_add_u32 s{sT2}, s{sT2}, {KVL}
        v_cndmask_b32 v{vFL}, v{vFL}, v{u3}, vcc
        v_lshl_add_u32 v{u3}, v{t1}, 3, s{sT2}
        v_mul_u32_u24 v{vKW}, 272, v{u1}
        v_add3_u32 v{vKW}, v{vKW}, v{u3}, v{t2}
        v_mul_u32_u24 v{vZW}, 272, v{t3}
        v_add_u32 v{vZW}, v{vZW}, v{u3}
        v_and_b32 v{u3}, 3, v{vL}
        v_bfe_u32 v{t3}, v{vL}, 2, 1
        v_lshl_add_u32 v{u3}, v{t3}, 3, v{u3}
        v_bfe_u32 v{t3}, v{vL}, 3, 1
        v_lshl_add_u32 v{u3}, v{t3}, 2, v{u3}
        v_cndmask_b32 v{u3}, v{u3}, 16, vcc
        v_lshlrev_b32 v{u3}, 4, v{u3}
        v_mul_u32_u24 v{u1}, 544, v{u1}
        s_mul_i32 s{sT3}, s{sH}, 2176
        s_add_u32 s{sT3}, s{sT3}, {KVL}
        v_add3_u32 v{vKR}, v{u3}, v{u1}, s{sT3}""")
    return L
def consts3(ty):
    return lines(f"""s_mov_b32 s{sOUT+2}, {2048*1024}
    s_mov_b32 s{sOUT+3}, 0x00020000
    s_and_b32 s{sT2}, s{sRB2}, 1
    s_lshl_b32 s{sT2}, s{sT2}, 1
    s_lshl_b32 s{sFM}, 0x3333, s{sT2}
    s_mov_b32 s{sFM+1}, 0
    s_lshl1_add_u32 s{sT2}, s{sRB2}, s{sH}
    s_lshl_b32 s{sR2}, s{sT2}, 9
    s_add_u32 s{sR2}, s{sR2}, {REC1}
    s_lshl_b32 s{sT2}, s{sT2}, 10
    s_lshl2_add_u32 s{sT3}, s{sCB}, s{sSIG}
    s_add_u32 s{sT2}, s{sT2}, s{sT3}
    s_lshl_b32 s{sOB}, s{sT2}, 5""")

vACC, vWR = 64, 128
vOO, vRSA, vEC, vRS2, vRES, vRW, vRR, vC0, vS0 = 8, 9, 10, 14, 16, 20, 21, 22, 24
vMT = 16
def areg(j): return [192, 200, 208, 248][j % 12] if j % 12 < 4 else (184 + 8 * (j % 8) if j < 9 else 40 + 8 * (j - 9))
def wreg(j): return vWR + 8 * (j % 7)
WS_ = {}
def w_item(j, s):
    WS_[j] = s
    so = (f"s_mov_b32 s{sT0}, {j << 14}" if 8 <= j < 12 else f"s_xor_b32 s{sT0}, s{sRW if j < 8 else sRW2}, {(j % 12) << 14}")
    d, ad = (srd(sW2), vW2O) if j < 12 else (srd(sWO), vWOO)
    return grp([f"s_add_u32 m0, s{sM0R}, {s * SZ}", so,
                vm(f"buffer_load_dwordx4 v{ad}, {d}, s{sT0} offen lds", f"w{j}"),
                vm(f"buffer_load_dwordx4 v{ad+1}, {d}, s{sT0} offen offset:1024 lds", f"w{j}")])
def w_read(j):
    s = WS_[j]
    ad = [vA2L, vA2M, vA2T][s >> 2]; off = (s & 3) * SZ
    L = [wt(vm=f"w{j}")]
    for b in range(2):
        L.append(dsw(f"ds_read_b64_tr_b16 {v(wreg(j)+4*b,2)}, v{ad+b} offset:{off}", f"r{j}"))
        L.append(dsw(f"ds_read_b64_tr_b16 {v(wreg(j)+4*b+2,2)}, v{ad+b} offset:{off+1024}", f"r{j}"))
    return L
vBW, vBR = 38, 56
def w_raw(j):
    WS_[j] = -1
    return [grp([f"s_xor_b32 s{sT0}, s{sRW}, {j << 14}", vm(f"buffer_load_dwordx4 {v(wreg(j)+4,4)}, v{vW2O}, {srd(sW2)}, s{sT0} offen", f"w{j}")]),
            grp([f"s_xor_b32 s{sT0}, s{sRW}, {j << 14}", vm(f"buffer_load_dwordx4 {v(wreg(j)+8,4)}, v{vW2O+1}, {srd(sW2)}, s{sT0} offen offset:1024", f"w{j}")])]
def bnc_addrs():
    return lines(f"""s_lshr_b32 s{sT2}, s{sM0R}, 1
    s_sub_u32 s{sT3}, {BNC}, s{sT2}
    s_add_u32 s{sT2}, s{sT2}, {BNC}
    v_add_u32 v{vBW}, s{sT2}, v{vL16}
    v_add_u32 v{vBR}, s{sT3}, v{vA2L}
    v_add_u32 v{vBR+1}, s{sT3}, v{vA2L+1}""")
def w_conv(j):
    L = [wt(vm=f"w{j}")]
    for hf in range(2):
        L.append(dsw(f"ds_write_b128 v{vBW}, {v(wreg(j)+4+4*hf,4)}", f"r{j}"))
        L += [dsw(f"ds_read_b64_tr_b16 {v(wreg(j)+4*b+2*hf,2)}, v{vBR+b}", f"r{j}") for b in range(2)]
    return L
def w_refill(j, q):
    return [wt(lg=f"r{q}"), w_item(j, WS_[q])]
def p2_addrs():
    return lines(f"""v_mov_b32 v{vA2L}, v{vA2B}
    v_xor_b32 v{vA2L+1}, 64, v{vA2B}
    v_add_u32 v{vA2M}, {4*SZ}, v{vA2L}
    v_add_u32 v{vA2M+1}, {4*SZ}, v{vA2L+1}
    v_add_u32 v{vA2T}, {8*SZ}, v{vA2L}
    v_add_u32 v{vA2T+1}, {8*SZ}, v{vA2L+1}""")
def a_load(j, tag=None, st=(0, 1)):
    def p():
        if j < 8: a(f"s_xor_b32 s{sT1}, s{sRA}, {j << 11}")
        elif j < 12: a(f"s_movk_i32 s{sT1}, {j << 11}")
        else: a(f"s_xor_b32 s{sT1}, s{sRA2}, {(j - 12) << 11}\ns_add_u32 s{sT1}, s{sAO}, s{sT1}")
        for s in st:
            if not opt("noact", 0): a.vmem(f"buffer_load_dwordx4 {v(areg(j)+4*s,4)}, v{vACT}, {srd(sWS)}, s{sT1} offen offset:{1024*s} {'sc1' if j >= opt('asc', 0) else opt('asf', '')}", tag or f"a{j}")
    return fn(p, 3 * len(st) + 1)
def p6(body): skip_if(f"s_cmp_lt_u32 s{sW}, 3", body, "L_p6")
def p6f(L): return fn(lambda: p6(lambda: emits(L)), 6)
def selectors(tmp):
    L = lines(f"""v_and_b32 v{tmp}, 1, v{vL}
    v_mov_b32 v{tmp+1}, 0x3f80
    v_lshlrev_b32 v{tmp}, 4, v{tmp}
    v_lshlrev_b32 v{tmp+1}, v{tmp}, v{tmp+1}
    v_bfe_u32 v{tmp}, v{vL}, 1, 3""")
    for r in range(0, 8, 2):
        L += [grp([f"v_cmp_eq_u32 vcc, {r}, v{tmp}", f"v_cmp_eq_u32 {sp(sCM)}, {r+1}, v{tmp}",
                   f"v_cndmask_b32 v{vS0+r}, 0, v{tmp+1}, vcc", f"v_cndmask_b32 v{vS0+r+1}, 0, v{tmp+1}, {sp(sCM)}"])]
    return L
def tail_addrs():
    x = vC0
    return lines(f"""v_and_b32 v{x}, 15, v{vL}
    v_lshrrev_b32 v{x+1}, 5, v{vL}
    v_lshl_add_u32 v{x+1}, v{x+1}, 4, v{x}
    v_lshlrev_b32 v{vRSA}, 4, v{x+1}
    v_and_b32 v{vOO}, 16, v{vL}
    v_lshl_add_u32 v{vOO}, v{x+1}, 10, v{vOO}
    v_add_u32 v{vRW}, s{sM0R}, v{vL16}
    s_lshr_b32 s{sT2}, s{sW}, 1
    s_and_b32 s{sT3}, s{sW}, 1
    s_lshl4_add_u32 s{sT2}, s{sT2}, s{sT3}
    s_lshl_b32 s{sT2}, s{sT2}, 10
    v_lshl_add_u32 v{x}, v{x}, 4, s{sT2}
    v_lshrrev_b32 v{x+1}, 4, v{vL}
    v_lshl_add_u32 v{vRR}, v{x+1}, 11, v{x}""")
def rs_load(tag="rs"): return vm(f"buffer_load_dwordx2 {P2(vRS2)}, v{vRSA}, {srd(sWS)}, s{sR2} offen offset:8 sc1", tag)
def res_load(): return vm(f"buffer_load_dwordx4 {v(vRES,4)}, v{vOO}, {srd(sX)}, s{sOB} offen", "res")
def ep_loads():
    a(f"v_lshlrev_b32 v{vBW}, 7, v{vL}")
    for i in range(4):
        a(f"s_mov_b32 s{sT2}, {REC1 + i*8192}")
        a(f"buffer_load_dword v{vEC+i}, v{vBW}, {srd(sWS)}, s{sT2} offen offset:12 sc1")
def if_first(body):
    a(f"s_or_b32 s{sT2}, s2, s{sW}")
    skip_if(f"s_cmp_eq_u32 s{sT2}, 0", body, "L_ep")
def maxchain(regs, d):
    L = []; regs = list(regs); first = True
    while regs:
        if first: x = regs[:3]; regs = regs[3:]; first = False
        else: x = [d] + regs[:2]; regs = regs[2:]
        L.append(f"v_max3_u32 v{d}, v{x[0]}, v{x[1]}, v{x[2]}" if len(x) == 3 else f"v_max_u32 v{d}, v{x[0]}, v{x[1]}")
    return L + [f"v_cmp_eq_u32 vcc, -1, v{d}"]
def sentinel(js, st):
    checked(maxchain([areg(j) + 4 * s for j in js for s in st], vC0), lambda: emits([a_load(j, "x", st) for j in js]), "L_s")
def step_mfma(j, st, first=False, gaps=()):
    gaps = list(gaps)
    for s in st:
        for b in range(2):
            acc = vACC + 32 * s + 16 * b
            a(f"{MF} {v(acc,16)}, {v(wreg(j)+4*b,4)}, {v(areg(j)+4*s,4)}, {'0' if first else v(acc,16)}")
            if gaps: emits(gaps.pop(0))
    for g in gaps: emits(g)

def c_loads(): return [p6f([a_load(10), a_load(11)]), a_load(8), a_load(9)]
def o_loads(): return [a_load(j, "o0", (0,)) for j in range(12, 16)] + [a_load(j, "o1", (1,)) for j in range(12, 16)]
def phase2(ty, side, GR, spec):
    def add(p, L): side[p] = side.get(p, []) + L
    assert sorted(WS_) == list(range(16))
    for x in spec.split(","):
        n, p = x.split("@")
        assert n != "o" or int(p) >= 4
        add(int(p), GR.pop(n))
    assert not set(GR) - set("hl"), GR
    add(5, [p6f(w_read(10) + w_read(11))])
    for j, k in ((7, 1), (8, 2), (9, 3), (12, 6), (13, 7), (14, 8), (15, 9)): add(k, w_read(j))
    for j in range(10):
        if j == 8:
            a.wait(vm="a9")
            sentinel((8, 9), (0, 1))
        a.wait(vm=f"a{j}", lg=f"r{j}")
        pt(f"s{j}")
        if j == 0: pt("f0")
        step_mfma(j, (0, 1), j == 0, split(side.get(j, []), 4))
    a.wait(lg="r12")
    def body():
        sentinel((10, 11), (0, 1))
        for j in (10, 11): step_mfma(j, (0, 1))
    p6(body)
    emits(side.get(10, []))
    pt("f1")
    a.wait(vm="o0", lg="all")
    if OSENT: sentinel(range(12, 16), (0,))
    pt("f2")
    checked([f"v_cmp_ne_u32 vcc, s{sTAG}, v{vRS2+1}"], rs_load("x"), "L_rs")
    vU = 216
    U = []
    for j in range(4): U += [f"v_lshlrev_b32 v{vU+2*j}, 16, v{vRES+j}", f"v_and_b32 v{vU+1+2*j}, s{sMASK}, v{vRES+j}"]
    G = split(U, 8)
    for j in range(12, 16): step_mfma(j, (0,), False, G[2*(j-12):2*(j-12)+2])
    a.wait(vm="o1")
    if OSENT: sentinel(range(12, 16), (1,))
    def pack(k):
        acc = vACC + 16 * k; L = []
        for hf in range(2):
            L += [f"v_cvt_pk_bf16_f32 v{acc+4*hf+i}, v{acc+8*hf+2*i}, v{acc+8*hf+2*i+1}" for i in range(4)]
            L += [dsw(f"ds_write_b128 v{vRW}, {v(acc+4*hf,4)} offset:{k*SZ+1024*hf}")]
        return L
    G = [[]] + split(pack(0) + pack(1), 7)
    for j in range(12, 16): step_mfma(j, (1,), False, G[2*(j-12):2*(j-12)+2])
    pt("f3")
    if ty == 0:
        def ep():
            checked([f"v_xor_b32 v{vEC+i}, s{sTAG}, v{vEC+i}" for i in range(4)] +
                    [f"v_or3_b32 v{vEC}, v{vEC}, v{vEC+1}, v{vEC+2}", f"v_or_b32 v{vEC}, v{vEC}, v{vEC+3}", f"v_cmp_ne_u32 vcc, 0, v{vEC}"],
                    ep_loads, "L_epc")
            a(f"""v_mov_b32 v{vEC}, s{sTAG}
            s_mov_b64 exec, 1
            buffer_store_dword v{vEC}, off, {srd(sWS)}, 0 sc1
            s_mov_b64 exec, -1""")
        if_first(ep)
    emits(pack(2) + pack(3))
    a.wait(lg="all")
    a("s_barrier")
    R = 224
    for p in range(4):
        for k in range(2):
            a.ds(f"ds_read_b128 {v(R+8*p+4*k,4)}, v{vRR} offset:{8192*k+256*p}", f"t{p}{k}")
    D = vWR
    for p in (0, 2, 1, 3):
        for k in range(2):
            a.wait(lg=f"t{p}{k}")
            d = D + 4 * (p >> 1)
            a(f"{MF16} {v(d,4)}, {v(vS0+4*(p&1),4)}, {v(R+8*p+4*k,4)}, {'0' if (p & 1) == 0 and k == 0 else v(d,4)}")
    for j in range(0, 8, 2): a(f"v_pk_fma_f32 {P2(D+j)}, {P2(D+j)}, {P2(vRS2)}, {P2(vU+j)} op_sel_hi:[1,0,1]")
    for j in range(4): a(f"v_cvt_pk_bf16_f32 v{D+8+j}, v{D+2*j}, v{D+2*j+1}")
    a(f"buffer_store_dwordx4 {v(D+8,4)}, v{vOO}, {srd(sOUT)}, s{sOB} offen")
    pt("end")
    a("s_branch L_fin")

def reads(T):
    tg = f"k{T}"; ks = T & 3
    if T < 32:
        off = ((T >> 2) & 3) * SZ; b = vWF + 8 * ks
        return [dsw(f"ds_read_b128 {v(vX+4*T,4)}, v{vXA+ks} offset:{off}", tg)] + [
                dsw(f"ds_read_b64_tr_b16 {v(b+2*i,2)}, v{vPM+ks} offset:{off+512*i}", tg) for i in range(4)]
    t = T - 32; s = RS[t >> 3]; ad = (vPL if s < 4 else vPM) + ks; off = (s & 3) * SZ + ((t >> 2) & 1) * 1024
    return [dsw(f"ds_read_b64_tr_b16 {v(vWF+4*ks+2*i,2)}, v{ad} offset:{off+512*i}", tg) for i in range(2)]
def bar(vmt=None, lg=None, name=None):
    def p():
        for x in ([vmt] if isinstance(vmt, str) else (vmt or [])): a.wait(vm=x)
        if lg: a.wait(lg=lg)
        if name: pt(name + "w")
        a("s_barrier")
        if name: pt(name)
    return fn(p, 1)
def put(S, T, L): S[T] = S.get(T, []) + list(L)
def spread(S, L, T0, T1):
    for i, G in enumerate(split(L, T1 - T0 + 1)): put(S, T0 + i, G)
def corr(quads, biases):
    L = [f"v_lshlrev_b32 v{b}, 16, v{b}" for b in biases if b] + [wt(lg="cw")]
    for q in quads: L += [f"v_add_f32 v{q}, v{q}, v{q+1}", f"v_add_f32 v{q+2}, v{q+2}, v{q+3}"]
    L += [f"v_add_f32 v{q}, v{q}, v{q+2}" for q in quads]
    return L + [f"v_cndmask_b32 v{q}, {v(b) if b else 0}, v{q}, {sLO}" for q, b in zip(quads, biases)]
SEQ = opt("seq", "x3/x4/x5/x6/x7/b0,b1/b2,b3").split("/")
DSP = opt("dsp", 2)
SPL = opt("spl", 3)
vQ2 = 44
def stream(ty, S, E):
    DQ = [L for n in opt("pre", "x2").split(",") if n for L in item(n)]
    for c in range(7): E[4 * c + 1] = [bar(f"x{c+1}", None, f"c{c}")] + E.get(4 * c + 1, [])
    S[29] = [dsw(f"ds_write_b32 v{vCAW}, v{vCS+4*i} offset:{1024*i}", "cw") for i in range(2)] + S.get(29, [])
    S[30] = [dsw(f"ds_read_b128 {v(vT+4*i,4)}, v{vCAR} offset:{1024*i}", "cw") for i in range(2)] + S.get(30, [])
    put(S, 31, corr((vT, vT + 4), (vBA, vBA + 1) if ty else (None, None)))
    S[32] = [f"{MF32} {v(K,16)}, v{q}, v{vBC}, {v(K,16)}" for K, q in ((K0, vT), (K1, vT + 4))] + S.get(32, [])
    S[61] = [dsw(f"ds_write_b32 v{vCAW}, v{vCS} offset:1024", "cw")] + S.get(61, [])
    S[62] = [dsw(f"ds_read_b128 {v(vQ2,4)}, v{vCAR} offset:1024", "cw")] + S.get(62, [])
    put(S, 63, corr((vQ2,), (None if ty else vBA,)) + [f"{MF32} {v(K2,16)}, v{vQ2}, v{vBC}, {v(K2,16)}"])
    emits(reads(0) + reads(1))
    for T in range(64):
        t = T & 31; ks = T & 3
        R = reads(T + 2) if T < 30 else (reads(32) + reads(33) if T == 30 else (reads(T + 3) if T + 3 < 64 else []))
        pt(f"T{T}")
        a.wait(lg=f"k{T}")
        F = S.get(T, [])
        if T < 32:
            b = vWF + 8 * ks
            G = split(F, 2)
            a(f"{MF} {v(K0,16)}, {v(b,4)}, {v(vX+4*t,4)}, {'0' if t == 0 else v(K0,16)}")
            emits(R[:SPL])
            if DQ and (DSP > 1 or T < 2): emits(DQ.pop(0))
            emits(G[0])
            a(f"{MF} {v(K1,16)}, {v(b+4,4)}, {v(vX+4*t,4)}, {'0' if t == 0 else v(K1,16)}")
            emits(R[SPL:])
            if DQ: emits(DQ.pop(0))
            if ks == 0:
                for i in range(2): a(f"{MF16} {v(vCS+4*i,4)}, {v(vSEL,4)}, {v(b+4*i,4)}, {'0' if t == 0 else v(vCS+4*i,4)}")
            emits(G[1])
        else:
            b = vWF + 4 * ks
            if ks == 0: a(f"{MF16} {v(vCS,4)}, {v(vSEL,4)}, {v(b,4)}, {'0' if t == 0 else v(vCS,4)}")
            a(f"{MF} {v(K2,16)}, {v(b,4)}, {v(vX+4*t,4)}, {'0' if t == 0 else v(K2,16)}")
            emits(R + F)
        if ks == 1: assert not DQ
        emits(E.get(T, []))
        if T < 28 and ks == 1:
            for n in SEQ[T >> 2].split(","):
                if n: DQ += item(n)
        if t == 31: pt(f"p{1 + (T >> 5)}")
    assert not DQ
PH = [vXA, vCS + 4]
def ph_reads(): return [dsw(f"ds_read_b64_tr_b16 {v(PH[i>>1]+2*(i&1),2)}, v{vPHA} offset:{256*i}", "ph") for i in range(4)]
def ph_signs(): return [wt(lg="ph")] + [f"v_xor_b32 v{PH[i>>2]+(i&3)}, v{vSGN}, v{PH[i>>2]+(i&3)}" for i in range(8)]
def start(ty, S, E):
    LATE = []
    if PRE2 & 8:
        C1 = consts1(ty); k = C1.index(f"s_movk_i32 s{sB1+2}, 2752")
        tch = [x for x in C1[:k] if callable(x)]
        C2 = consts2(ty) + bases(ty) + consts3(ty)
        def low(x): return isinstance(x, str) and x[:2] == "s_" and 36 <= int(x.split()[1].strip("s,")) < 48
        i = C2.index(f"s_lshl_b32 s{sFM}, 0x3333, s{sT2}")
        LATE = [tch + C1[k:], C2[i-2:i] + [x for x in C2 if low(x)]]
        L = B3[B3N:] + consts0(ty) + [x for x in C1[:k] if not callable(x)] + [f"s_lshl4_add_u32 s{sREC}, s{sREC}, {REC1}"] + [x for x in C2 if not low(x)]
        emits(merge(L, [grp(G) for n in PRO for G in item(n)], opt("x1a", 0), opt("x1b", 300)))
    else: emits(consts0(ty))
    pt("i1")
    a("s_waitcnt lgkmcnt(0)")
    if PRE2 & 1: emits(consts1(ty) + [wphi_dma()])
    if PRE2 & 2: emits([f"s_lshl4_add_u32 s{sREC}, s{sREC}, {REC1}"] + consts2(ty) + bases(ty))
    if PRE2 & 4: emits(consts3(ty))
    pt("i2")
    a.wait(vm="x0")
    a("s_barrier")
    pt("p0")
    F0, F1, F2 = opt("f0", 6), opt("f1", 13), opt("f2", 26)
    RECP = opt("recp", 7)
    assert RECP >= max(F0, 5) and F1 % 4 == 1 and F2 <= 26
    spread(S, stats(), 0, F0)
    put(E, RECP, [rec_store()])
    if PRE2 & 8: spread(S, LATE[0], F0 + 1, F1); put(E, F1, [wphi_dma()]); spread(S, LATE[1], F1 + 1, F1 + 6)
    elif not PRE2 & 1:
        spread(S, consts1(ty), F0 + 1, F1)
        put(E, F1, [wphi_dma()])
    l0 = 0
    for x in TOUCH:
        T, n = map(int, x.split(":")); assert F0 + 3 <= T <= 28
        put(E, T, [touch(l0, n)]); l0 += n
    if not PRE2 & 10: spread(S, consts2(ty) + bases(ty), (F0 if PRE2 & 1 else F1) + 1, F2)
    if not PRE2 & 12: spread(S, consts3(ty), 27, 28)
    put(E, opt("rpos", 24), [rec1_load()])
    def rec():
        a.wait(vm="rec1")
        checked([f"v_cmp_ne_u32 vcc, s{sTAG}, v{vRSTD}"], rec1_load("x"), "L_rec1")
    put(S, 29, [fn(rec), f"v_cndmask_b32 v{vBC}, v{vSD}, v{vBC}, {sLO}", f"v_mov_b32 v{vRSTD}, v{vC1}", f"v_mul_f32 v{vC1}, {LOG2E}, v{vC1}"])
    put(E, 29, [bar("b1", "all", "e1")] + [poll(0)] * ty)
    put(S, 27, [f"v_mov_b32 v{vT}, -1"])
    put(S, 30, p2_addrs() + [f"v_mov_b32 v{vA2B}, -1"])
    put(E, 44, [poll_check(0)] * ty + [bar("b3", "all", "m2"), f"v_lshlrev_b32 v{vFL}, 3, v{vFL}"])
def rest():
    fs = [x for x in range(9) if x not in WS_.values()]
    return [w_item(j, fs.pop(0)) for j in range(16) if j not in WS_]
def place(M, spec, GR, nm="M"):
    ins = {}
    for x in [y for y in spec.split(",") if y]:
        n, r = x.split("@"); r = [int(y) for y in r.split("-")]; L = GR.pop(n)
        for i, y in enumerate(L): ins.setdefault(r[0] + (r[-1] - r[0]) * i // len(L), []).append(y)
    for i in range(300):
        pt(f"{nm}{i}")
        emits(ins.get(i, []))
        if i < len(M): emit(M[i])
def sched(S, spec, free):
    for x in spec.split(","):
        n, T = x.split("@"); T = int(T)
        if n[0] == "r":
            j = int(n[1:]); assert T >= 34 + 2 * j
            for i, g in enumerate(w_raw(j)): put(S, T + i, [g])
        elif n[0] == "c": assert T != 30; put(S, T, [clr2(*CLR[int(n[1:])], T)])
        else:
            j, sl = map(int, n.split(":")); assert T > free[sl], x
            put(S, T, [w_item(j, sl)])

def witems(spec):
    L = []
    for x in [y for y in spec.split(",") if y]:
        j, sl = map(int, x.split(":")); L.append(w_item(j, sl))
    return L
st1 = a.save()
a(f"""s_bitcmp1_b32 s2, 7
s_cbranch_scc1 L_B""")
TYPE[0] = 0
S, E = {}, {}
start(0, S, E)
put(S, 30, ph_reads())
put(S, 32, ph_signs())
V = []
for hf in range(2):
    V += [f"v_mul_f32 v{K1+8*hf+i}, v{K1+8*hf+i}, v{vRSTD}" for i in range(8)]
    V += [f"v_cvt_pk_bf16_f32 v{K1+8*hf+i}, v{K1+8*hf+2*i}, v{K1+8*hf+2*i+1}" for i in range(4)]
    V += [dsw(f"ds_write_b128 v{vVW}, {v(K1+8*hf,4)} offset:{32*hf}")]
L = [f"v_cvt_pk_bf16_f32 v{vT+j}, v{K0+2*j}, v{K0+2*j+1}" for j in range(8)]
L += [ptf("L1")] + V[:2] + [f"{MF} {v(K0,16)}, {v(PH[0],4)}, {v(vT,4)}, 0"] + V[2:] + [f"{MF} {v(K1,16)}, {v(PH[1],4)}, {v(vT+4,4)}, 0"]
PKA = opt("pka", 1)
for hd, P in enumerate((K0, K1)):
    L += [ptf(f"L{2+hd}")] + softmax(P, P, PKA, vT)
    L += [dsw(f"ds_write_b128 v{vPW0}, {v(P,4)} offset:{hd*8192}"), dsw(f"ds_write_b128 v{vPW1}, {v(P+4,4)} offset:{hd*8192}")]
SPOS = opt("spos", 36)
KI = witems(opt("ki", ""))
if KI: L = merge(L, KI, opt("ki0", 20))
spread(S, L, opt("ka", 33), SPOS)
FS = 44 if SPOS < 44 else 61
CLR = [(sSB0, 0), (sSB0, 2048)]
put(S, opt("fpa", 48), flag_store(1, "clr"))
sched(S, opt("sa", "c0@28,c1@28,7:6@31,r0@41,r1@44,r2@47,r3@50,r4@53,r5@56,r6@59"),
      {6: 29, 7: 29, 0: 44, 4: 44, 1: 61, 5: 61, 2: FS, 3: FS, 8: FS})
def kv():
    KB = [K1, K1 + 8, vT]
    def kv_reads(t):
        b = KB[t % 3]
        a.ds(f"ds_read_b64_tr_b16 {v(b,2)}, v{vKA0} offset:{t*1024}", f"kv{t}")
        a.ds(f"ds_read_b64_tr_b16 {v(b+2,2)}, v{vKA1} offset:{t*1024+256}", f"kv{t}")
        a.ds(f"ds_read_b64_tr_b16 {v(b+4,2)}, v{vKB} offset:{t*2304}", f"kv{t}")
        a.ds(f"ds_read_b64_tr_b16 {v(b+6,2)}, v{vKB} offset:{t*2304+576}", f"kv{t}")
    if opt("kprio", 1): a("s_setprio 2")
    for t in range(3): kv_reads(t)
    for t in range(8):
        a.wait(lg=f"kv{t}")
        b = KB[t % 3]
        a(f"{MF} {v(K0,16)}, {v(b,4)}, {v(b+4,4)}, {'0' if t == 0 else v(K0,16)}")
        if t >= 1 and t + 2 < 8: kv_reads(t + 2)
    for i in range(8): a(f"v_cvt_pk_bf16_f32 v{K1+i}, v{K0+2*i}, v{K0+2*i+1}")
    for i in range(4): a(f"v_permlane16_swap_b32 v{K1+i}, v{K1+4+i}")
    a(f"""buffer_store_dwordx4 {v(K1,4)}, v{vL16}, {srd(sWS)}, s{sC0} offen sc1
    s_mov_b32 exec_lo, 0x00010001
    s_mov_b32 exec_hi, 0x00010001
    buffer_store_dwordx4 {v(K1+4,4)}, v{vL}, {srd(sWS)}, s{sC0} offen offset:1024 sc1
    s_mov_b64 exec, -1""")
    if opt("kprio", 1): a("s_setprio 0")
    pt("kv")
put(E, SPOS, [bar(None, "all", "S"), fn(lambda: skip_if(f"s_cmp_eq_u32 s{sH}, 0", kv, "L_kv"))])
spread(S, selectors(K1), max(SPOS + 2, 50), 61)
CPR = opt("cpr", 1)
put(E, 61, [bar(None, "all", "Y"), p6f([w_item(10, 1), w_item(11, 5)])] + ["s_setprio 3"] * CPR)
stream(0, S, E)
def groups():
    G = {"a": [a_load(j) for j in range(4)], "b": [a_load(j) for j in range(4, 8)], "c": c_loads(), "o": o_loads(),
         "w": bnc_addrs() + sum([w_conv(j) for j in range(7)], []), "s": rest(), "r": [rs_load(), res_load()]}
    for k in (1,): G[f"p{k}"] = [poll(k)]; G[f"k{k}"] = [poll_check(k)]
    return G
GR = groups()
place(mish_store(K2, True, sSB0, vMT) + ["s_setprio 0"] * CPR + [ptf("ms")] + tail_addrs(), opt("ao", "p1@0,w@0-30,k1@31,a@31-36,b@78,s@79-95,r@96"), GR)
phase2(0, {1: [fn(lambda: if_first(ep_loads), 4)]}, GR, opt("ap", "c@3,o@7"))

a.label("L_B")
a.restore(st1)
TYPE[0] = 1
WS_.clear()
S, E = {}, {}
start(1, S, E)
J0 = opt("j0", 17)
assert J0 % 4 == 1
put(E, J0, [w_item(7, 8)])
CLR = [(sC0, 0), (sC0, 2048)]
sched(S, opt("sb", "c0@28,c1@28," * OSENT + "8:2@31,r0@37,r1@40,r2@43,r3@46,r4@49,r5@52,r6@55"),
      {2: 29, 3: 29, 6: 29, 7: 29, 0: 44, 4: 44})
PKB = opt("pkb", 1)
MB = mish_store(K0, PKB, sSB0, vT) + mish_store(K1, PKB, sC1, vT) + selectors(K0 + 8)
MI = witems(opt("mi", ""))
if MI: MB = merge(MB, MI, opt("mi0", 20))
spread(S, MB, 33, opt("ma", 35))
FPB = opt("fpb", 58)
if FPB: put(S, FPB, flag_store(1, "st"))
put(S, 56, ph_reads()); put(S, 62, ph_signs())
put(E, 61, [bar(None, "all", "Y"), p6f([w_item(10, 1), w_item(11, 5)])] + ["s_setprio 3"] * CPR)
vTL = [K0 + 4 * i for i in range(8)]; vZL = 128
Q0, Q1 = 216, 232
def t_load(i, tag=None):
    def p():
        a(f"s_movk_i32 s{sT1}, {(i>>1)*4*1152}")
        a.vmem(f"buffer_load_dwordx4 {v(vTL[i],4)}, v{vGA}, {srd(sWS)}, s{sT1} offen offset:{(i&1)*256} sc1", tag or "t")
    return fn(p, 4)
def z_load(tag=None): return vm(f"buffer_load_dwordx4 {v(vZL,4)}, v{vGZ}, {srd(sWS)}, 0 offen offset:1024 sc1", tag or "t")
GL = [z_load()] + [t_load(i) for i in range(8)]
GPOS = opt("gpos", 0)
if GPOS:
    assert GPOS > 44
    spread(S, [ptf("g0")] + GL, GPOS, opt("gend", 61))
PP = opt("pp", 0)
if PP: put(S, PP, [poll(1)])
stream(1, S, E)
for j in range(8): a(f"v_cvt_pk_bf16_f32 v{K2+j}, v{K2+2*j}, v{K2+2*j+1}")
a(f"{MF} {v(Q0,16)}, {v(PH[0],4)}, {v(K2,4)}, 0")
a(f"{MF} {v(Q1,16)}, {v(PH[1],4)}, {v(K2+4,4)}, 0")
M = softmax(Q0, Q0, True, 20) + softmax(Q1, Q0 + 8, True, 20)
print("B list", len(M))
GR = groups()
GR.update({"h": ["s_setprio 3"], "l": ["s_setprio 0"]})
if not GPOS: GR["g"] = GL
if PP: GR.pop("p1")
if not FPB: GR["f"] = flag_store(1, "st")
vD, vDZ = K2 + 8, K2 + 12
vKF = 64
def got():
    pt("sm")
    a.wait(vm="t")
    checked(maxchain(vTL + [vZL], vD), lambda: emits([z_load("x")] + [t_load(i, "x") for i in range(8)]), "L_t")
    pt("g")
D = [fn(got), f"{MF16} {v(vDZ,4)}, {v(vS0,4)}, {v(vZL,4)}, 0"]
D += [f"{MF16} {v(vD,4)}, {v(vS0+4*(i&1),4)}, {v(vTL[i],4)}, {'0' if i == 0 else v(vD,4)}" for i in range(8)]
for sh in (2, 4):
    D += [f"v_add_f32_dpp v{vDZ+j}, v{vDZ+j}, v{vDZ+j} row_ror:{sh} row_mask:0xf bank_mask:0xf" for j in range(4)]
D += [f"v_cvt_pk_bf16_f32 v{vDZ}, v{vDZ}, v{vDZ+1}", f"v_cvt_pk_bf16_f32 v{vDZ+1}, v{vDZ+2}, v{vDZ+3}",
      grp(["s_mov_b64 exec, 0x30003", dsw(f"ds_write_b64 v{vZW}, {v(vDZ,2)} offset:256"), "s_mov_b64 exec, -1"]),
      f"v_cvt_pk_bf16_f32 v{vD}, v{vD}, v{vD+1}", f"v_cvt_pk_bf16_f32 v{vD+1}, v{vD+2}, v{vD+3}", dsw(f"ds_write_b64 v{vKW}, {v(vD,2)}")]
GR["d"] = D
GR["e"] = [bar(None, "all", "K")] + [dsw(f"ds_read_b128 {v(vKF+8*hh+4*j,4)}, v{vKR} offset:{hh*1088+j*272}", f"kf{hh}") for hh in range(2) for j in range(2)]
place(M, opt("bo", "g@0-20,p1@21,k1@120,a@120,d@121,e@122"), GR)
X = split(tail_addrs(), 3)
emits(X[0])
OD = [K2, K1]
for hh in range(2):
    a.wait(lg=f"kf{hh}")
    a(f"{MF} {v(OD[hh],16)}, {v(vKF+8*hh,4)}, {v(Q0+8*hh,4)}, 0")
    a(f"{MF} {v(OD[hh],16)}, {v(vKF+8*hh+4,4)}, {v(Q0+8*hh+4,4)}, {v(OD[hh],16)}")
emits(X[1] + X[2])
for D in OD: a(f"v_add_f32 v{D+8}, 0x358637bd, v{D+8}")
for D in OD: a(f"v_rcp_f32 v{D+8}, v{D+8}")
for D in OD: a(f"v_mul_f32 v{D+8}, v{D+8}, v{vSD}")
for hh, D in enumerate(OD):
    for i in range(0, 8, 2): a(f"v_pk_mul_f32 {P2(D+i)}, {P2(D+i)}, {P2(D+8)} op_sel_hi:[1,0]")
    for i in range(4): a(f"v_cvt_pk_bf16_f32 v{D+12+i}, v{D+2*i}, v{D+2*i+1}")
    frag_store(D + 12, sC0, hh)()
if CPR: a("s_setprio 0")
pt("o")
W = GR.pop("w", [])
place(W, opt("bn", "b@0,s@0,r@0"), GR, "N")
phase2(1, {}, GR, opt("bp", "c@2,o@6"))

for blk in retries: blk()
a.label("L_fin")
if STAMP >= 0:
    n = nst[0]
    a(f"""s_cmp_eq_u32 s{sW}, {STAMP}
    s_cbranch_scc0 L_end
    s_waitcnt lgkmcnt(0)
    s_sub_u32 s{sT0}, {SPIN}, s{sCNT}
    s_mul_i32 s{sT0}, s{sT0}, 100
    s_add_u32 s{sST0+2}, s{sST0}, s{sT0}
    s_addc_u32 s{sST0+3}, s{sST0+1}, 0
    s_mul_i32 s{sT0}, s2, {n*8}
    s_add_u32 s{sT0}, s{sT0}, {STAMP_OFF}
    s_mov_b64 exec, 1""")
    for i in range(n):
        a(f"v_mov_b32 v{64+2*i}, s{sST0+2*i}")
        a(f"v_mov_b32 v{65+2*i}, s{sST0+2*i+1}")
        a(f"buffer_store_dwordx2 {v(64+2*i,2)}, off, {srd(sWS)}, s{sT0} offset:{i*8}")
a.label("L_end")
a.pad()
open(out_path, "w").write(header(256, 512, LDS_SIZE) + a.text() + footer(vgpr=256))
print("instructions:", sum(1 for x in a.L if x.states), "nops:", sum(1 for x in a.L if x.kind == "nop"), "stamps", nst[0])
```

```python
import sys
from asmdsl import Asm
from gen_common import header, footer

OPT = dict(a.split("=") for a in sys.argv[2:])
def opt(k, d): return type(d)(OPT.get(k, d))
STAMP = opt("stamp", -1)
CYC = opt("cyc", 0)
PTS = [p.split("|") for p in opt("pts", "p0,p1,Y,S|g,kv|o,f0,f2,end").split(",") if p]
ROTM = opt("rotm", 7)
ROT2 = opt("rot2", 7)
SPIN = opt("spin", 200000)
out_path = sys.argv[1]

SZ = 16384
KVL, WPHI, CW, BNC = 9 * SZ, 9 * SZ + 2048, 9 * SZ + 4096, 9 * SZ + 8192
PHI, VIMG = 2 * SZ, 8 * SZ
LDS_SIZE = 163840
REC1 = 0x1000
KVD = 0x20000
FLG = 0xc0000
ACT = 0x140000
DUM = 0x1000000
STAMP_OFF = 128 << 20

sW, sSIG, sH, sT0, sT1 = 3, 4, 5, 6, 7
sX, sWD, sWE, sW2, sWO, sOUT, sWS = 8, 12, 16, 20, 24, 28, 32
sPH, sB1, sPC = 36, 40, 44
sHALF, sISQ, sLOm, sFM, sMASK, sCM = 36, 38, 40, 42, 44, 46
sFMB, sTILE, sFL, sFB, sRA2, sRW2 = 48, 50, 51, 52, 53, 54
(sM0R, sTAG, sCNT, sT2, sT3, sRHO, sRB, sG, sSTART, sT4, sC0, sC1, sSB0, sOB, sRA, sRW, sAO, sR2,
 sRB2, sCB, sGAM, sREC, sSTR, sKB) = range(56, 80)
sST0 = 82
sLO = f"s[{sLOm}:{sLOm+1}]"
def srd(n): return f"s[{n}:{n+3}]"
def sp(n): return f"s[{n}:{n+1}]"

vL = 0
vXO, vWA, vWC, vL16, vBA = 1, 3, 5, 7, 8
vA2L, vA2M, vA2T = 1, 3, 5
vBC, vSD, vC1, vRSTD = 10, 11, 12, 13
vCAW, vCAR, vPL, vPM = 14, 15, 16, 20
vT = 24
vW2O, vWOO, vFL, vACT, vA2B, vFV = 32, 34, 36, 37, 38, 39
vXA, vSEL, vCS = 40, 44, 48
vPHA, vSGN = 56, 57
vPW0, vPW1, vKA0, vKA1, vKB, vVW = 58, 59, 60, 61, 62, 63
vGA, vGZ, vKW, vZW, vKR = 58, 59, 60, 61, 62
vWF = 64
K2, K0, K1 = 80, 96, 112
vX = 128
def v(n, k=1): return f"v{n}" if k == 1 else f"v[{n}:{n+k-1}]"
def P2(n): return v(n, 2)

a = Asm()
nst = [2]
def stamp(i):
    if STAMP >= 0:
        assert i < 10
        a(f"{'s_memtime' if CYC else 's_memrealtime'} s[{sST0+2*i}:{sST0+2*i+1}]")
        nst[0] = max(nst[0], i + 1)
def pt(name):
    for i, p in enumerate(PTS):
        if name in p: stamp(2 + i)

MF = "v_mfma_f32_32x32x16_bf16"
MF16 = "v_mfma_f32_16x16x32_bf16"
MF32 = "v_mfma_f32_32x32x2_f32"
LOG2E = "0x3fb8aa3b"

def lines(txt): return [l.strip() for l in txt.strip().split("\n") if l.strip()]
def cost(x):
    if callable(x): return getattr(x, "cost", 1)
    return 2 if ("v_exp" in x or "v_rcp" in x or "v_mfma" in x) else 1
def emit(x):
    if callable(x): x()
    else: a(x)
def emits(L):
    for x in L: emit(x)
def fn(f, c=1):
    f.cost = c; return f
def ptf(name): return fn(lambda: pt(name), 0)
def grp(L): return fn(lambda: emits(L), sum(cost(x) for x in L))
def merge(main, side, start=0, end=None):
    end = len(main) if end is None else min(end, len(main))
    tot = sum(cost(x) for x in main[start:end]); out = list(main[:start]); acc = 0; k = 0
    for x in main[start:end]:
        while k < len(side) and acc >= k * tot / len(side): out.append(side[k]); k += 1
        out.append(x); acc += cost(x)
    return out + side[k:] + list(main[end:])
def split(L, n):
    tot = sum(cost(x) for x in L); G = [[] for _ in range(n)]; acc = 0
    for x in L:
        G[min(n - 1, int(acc * n / max(tot, 1)))].append(x); acc += cost(x)
    return G
def vm(txt, tag):
    if opt("now2", 0) and tag[0] == "w": return fn(lambda: None, 3)
    return fn(lambda: a.vmem(txt, tag), 3)
def dsw(txt, tag="w"): return fn(lambda: a.ds(txt, tag), 2)
def wt(**kw): return fn(lambda: a.wait(**kw), 0)

retries = []
def checked(cmp_lines, reload, name):
    lab = a.newlabel(name)
    a.label(lab + "_c")
    for l in cmp_lines: a(l)
    a(f"s_cbranch_vccnz {lab}_r")
    a.label(lab + "_k")
    def blk():
        a.label(lab + "_r")
        a(f"""s_cmp_eq_u32 s{sCNT}, 0
        s_cbranch_scc1 {lab}_k
        s_sub_u32 s{sCNT}, s{sCNT}, 1""")
        reload()
        a(f"""s_waitcnt vmcnt(0)
        s_branch {lab}_c""")
    retries.append(blk)
def skip_if(cmp_line, body, name):
    lab = a.newlabel(name)
    a(cmp_line); a(f"s_cbranch_scc0 {lab}")
    st = a.save()
    body()
    a.label(lab)
    a.restore(st)

t0, t1, t2, t3, u0, u1, u2, u3 = range(vT, vT + 8)
LT = vX + 96
vXR, vRC, vCL = LT, LT + 16, LT + 20
vRW_, vSW_, vEP, vRA1 = LT + 24, LT + 25, LT + 26, 6
TYPE = [0]
RS = [0, 4, 1, 5]
def rot(c, d): return [f"s_add_u32 s{d}, s{sRHO}, {128*c}", f"s_and_b32 s{d}, s{d}, 0x380"]
def x_item(c):
    s = [f"s_add_u32 m0, s{sM0R}, {(c & 3) * SZ}"] + rot(c, sT0)
    return [s + [vm(f"buffer_load_dwordx4 v{vXO}, {srd(sX)}, s{sT0} offen lds", f"x{c}")],
            [vm(f"buffer_load_dwordx4 v{vXO+1}, {srd(sX)}, s{sT0} offen offset:1024 lds", f"x{c}")]]
def w_item1(c):
    b = (4 + (c & 3)) * SZ
    return [[f"s_add_u32 m0, s{sM0R}, {b}", f"s_mul_i32 s{sT0}, s{sT0}, s{sSTR}",
             vm(f"buffer_load_dwordx4 v{vWA}, {srd(sWD)}, s{sT0} offen lds", f"x{c}")],
            [f"s_add_u32 m0, s{sM0R}, {b+1024}", vm(f"buffer_load_dwordx4 v{vWA+1}, {srd(sWD)}, s{sT0} offen lds", f"x{c}")]]
def r_item(i):
    return [[f"s_add_u32 m0, s{sM0R}, {RS[i]*SZ + 1024*k}"] + rot(2 * i + k, sT0) +
            [f"s_mul_i32 s{sT0}, s{sT0}, {(1376, 1536)[TYPE[0]]}", vm(f"buffer_load_dwordx4 v{vWC}, {srd(sWE)}, s{sT0} offen lds", f"b{i}")]
            for k in range(2)]
def item(n):
    i = int(n[1:])
    return x_item(i) + w_item1(i) if n[0] == "x" else r_item(i)

PRIO = opt("prio", 1)
a(f"""s_cmp_ge_u32 s2, 256
s_cbranch_scc1 L_end""")
stamp(0)
a(f"""s_getpc_b64 {sp(sPC)}
L_pc:
s_load_dwordx2 {sp(sX)}, s[0:1], 0
s_lshr_b32 s{sT1}, s2, 2
s_and_b32 s{sT1}, s{sT1}, 32
s_add_u32 s{sT3}, s{sT1}, 8
s_load_dwordx2 {sp(sWD)}, s[0:1], s{sT3}
s_bfe_u32 s{sT0}, s2, 0x30003
v_lshrrev_b32 v{t0}, 6, v0
s_mov_b32 s{sPC+2}, L_end-L_pc
v_lshl_add_u32 v{t1}, v0, 3, s{sT0}
s_mov_b32 s{sPC+3}, 0x00020000
v_lshlrev_b32 v{t1}, 7, v{t1}
v_readfirstlane_b32 s{sW}, v{t0}
buffer_load_dword v{LT+27}, v{t1}, {srd(sPC)}, 0 offen""")
if PRIO: a("s_setprio 3")
if opt("sw2", 0): a(f"""s_load_dwordx2 {sp(sW2)}, s[0:1], 56
s_load_dwordx2 {sp(sWO)}, s[0:1], 24""")
a(f"""s_load_dwordx2 {sp(sWS)}, s[0:1], 80
v_lshrrev_b32 v{vRW_}, 3, v0
s_sub_u32 s{sT4}, 40, s{sT1}
s_and_b32 s{sT1}, s2, 1
v_and_b32 v{t1}, 56, v{vRW_}
s_lshl3_add_u32 s{sRB}, s{sT1}, s{sT0}       ; rb
v_add_u32 v{t0}, v{vRW_}, v{t1}
s_lshr_b32 s{sT1}, s2, 6
v_bfe_u32 v{t2}, v0, 4, 2
s_lshl1_add_u32 s{sRHO}, s{sT1}, s{sT0}
v_bitop3_b32 v{t2}, v0, v{t2}, 7 bitop3:0x28
s_lshl_b32 s{sT2}, s{sRB}, 17
v_lshl_add_u32 v{t2}, v{t2}, 4, s{sT2}
s_and_b32 s{sRHO}, s{sRHO}, {ROTM}
v_lshl_add_u32 v{vXO}, v{t0}, 10, v{t2}
s_lshl_b32 s{sRHO}, s{sRHO}, 7
v_xor_b32 v{vXO+1}, 64, v{vXO}
s_lshl_b32 s{sM0R}, s{sW}, 11
v_add_u32 v{vXO+1}, {8192-1024}, v{vXO+1}
s_mov_b32 s{sX+2}, {2048*1024}
v_bfe_u32 v{t3}, v0, 4, 1
s_mov_b32 s{sX+3}, 0x00020000
v_lshlrev_b32 v{t3}, 2, v{t3}
s_mov_b32 m0, s{sM0R}
v_bitop3_b32 v{t3}, v0, v{t3}, 7 bitop3:0x28
s_bfe_u32 s{sT1}, s2, 0x10006
v_lshlrev_b32 v{vSW_}, 4, v{t3}
s_and_b32 s{sG}, s2, 6
s_or_b32 s{sG}, s{sG}, s{sT1}                ; g
s_mul_i32 s{sSTART}, s{sG}, 11
s_waitcnt lgkmcnt(0)""")
a.vmem(f"buffer_load_dwordx4 v{vXO}, {srd(sX)}, s{sRHO} offen lds", "x0")
a(f"""s_add_u32 s{sSTART}, s{sSTART}, 1
s_lshr_b32 s{sSTART}, s{sSTART}, 1
s_min_u32 s{sSTART}, s{sSTART}, 38
s_lshl1_add_u32 s{sT1}, s{sG}, 16""")
a.vmem(f"buffer_load_dwordx4 v{vXO+1}, {srd(sX)}, s{sRHO} offen offset:1024 lds", "x0")
a(f"""s_movk_i32 s{sSTR}, 1536
s_movk_i32 s{sT2}, 1024
s_bitcmp1_b32 s2, 7
s_cselect_b32 s{sSTR}, 1376, s{sSTR}
s_cselect_b32 s{sT1}, s{sSTART}, s{sT1}
s_cselect_b32 s{sT2}, 128, s{sT2}
v_mul_u32_u24 v{vWA}, s{sSTR}, v{vRW_}
s_lshl_b32 s{sT1}, s{sT1}, 6
s_lshl_b32 s{sWD+2}, s{sSTR}, 10
v_lshl_add_u32 v{vWA}, v{vWA}, 1, v{vSW_}
s_mov_b32 s{sWD+3}, 0x00020000
s_mov_b32 s{sT0}, s{sRHO}
v_add_u32 v{vWA}, s{sT1}, v{vWA}
s_load_dwordx2 {sp(sWE)}, s[0:1], s{sT4}
v_add_u32 v{vWA+1}, s{sT2}, v{vWA}""")
for L in w_item1(0): emits(L)
pt("i0")
a(f"""v_and_b32 v{vL}, 63, v0
s_lshr_b32 s{sT1}, s2, 7
s_lshl1_add_u32 s{sT1}, s{sRB}, s{sT1}
v_lshlrev_b32 v{vL16}, 4, v{vL}
s_lshl3_add_u32 s{sT1}, s{sT1}, s{sG}
s_lshl3_add_u32 s{sREC}, s{sT1}, s{sW}
s_lshl_b32 s{sT1}, s{sREC}, 10
s_mov_b32 s{sWS+2}, {256<<20}
s_mov_b32 s{sWS+3}, 0x00020000
s_lshr_b32 s{sH}, s{sW}, 2""")
TA = opt("ta", 0)
def wtouch():
    if TA & 1 and TYPE[0]: return
    a(f"""s_and_b32 s{sT2}, s2, 127
    v_lshlrev_b32 v{t0}, 7, v{vL}
    s_lshl3_add_u32 s{sT2}, s{sT2}, s{sW}
    s_mul_i32 s{sT2}, s{sT2}, {12*128}
    s_mov_b64 exec, 0xfff
    v_add_u32 v{t0}, s{sT2}, v{t0}""")
    a.vmem(f"buffer_load_dword v{LT+27}, v{t0}, {srd(sWD)}, 0 offen", "tch")
    if TA & 1: a.vmem(f"buffer_load_dword v{LT+27}, v{t0}, {srd(sWE)}, 0 offen", "tch")
    a("s_mov_b64 exec, -1")
MW = opt("mw", 0)
SW = opt("sw", 0)
def stouch():
    a(f"""s_and_b32 s{sT2}, s2, 127
    s_lshl3_add_u32 s{sT2}, s{sT2}, s{sW}
    s_mul_i32 s{sT2}, s{sT2}, {12*128}""")
    for o in range(0, 12 * 128, SW): a(f"s_buffer_load_dword s80, {srd(sWD)}, s{sT2} offset:{o}")
    if opt("sw2", 0):
        a(f"""s_lshl3_add_u32 s{sT2}, s2, s{sW}
        s_mov_b32 s{sW2+2}, {1376*1024}
        s_mov_b32 s{sW2+3}, 0x00020000
        s_mov_b32 s{sWO+2}, {512*1024}
        s_mov_b32 s{sWO+3}, 0x00020000
        s_mul_i32 s{sT3}, s{sT2}, {6*128}
        s_lshl_b32 s{sT2}, s{sT2}, 8""")
        for o in range(0, 6 * 128, SW): a(f"s_buffer_load_dword s80, {srd(sW2)}, s{sT3} offset:{o}")
        for o in range(0, 2 * 128, SW): a(f"s_buffer_load_dword s80, {srd(sWO)}, s{sT2} offset:{o}")
if MW == 1: wtouch()
a.vmem(f"buffer_load_dwordx4 {v(vXR,4)}, v{vL16}, {srd(sX)}, s{sT1} offen", "xr")
a.vmem(f"buffer_load_dword v{vEP}, off, {srd(sWS)}, 0 sc1", "xr")
if MW == 2: wtouch()
if SW: stouch()
if PRIO: a("s_setprio 0")
B3 = lines(f"""s_load_dwordx2 {sp(sPH)}, s[0:1], 16
s_load_dwordx2 {sp(sB1)}, s[0:1], 48
s_load_dwordx2 {sp(sW2)}, s[0:1], 56
s_load_dwordx2 {sp(sWO)}, s[0:1], 24
s_load_dwordx2 {sp(sOUT)}, s[0:1], 64
s_and_b32 s{sSIG}, s{sW}, 3
v_and_b32 v{u0}, 31, v{vL}
s_xor_b32 s{sT3}, s{sSIG}, s{sH}
v_lshrrev_b32 v{u1}, 5, v{vL}
v_bfe_u32 v{u2}, v{vL}, 1, 3
s_lshl_b32 s{sT2}, s{sSIG}, 7
v_xor_b32 v{u2}, v{u1}, v{u2}
s_add_u32 s{sT2}, s{sT2}, s{sT3}
v_lshlrev_b32 v{u2}, 4, v{u2}
s_lshl_b32 s{sT2}, s{sT2}, 5
v_lshl_add_u32 v{u2}, v{u0}, 7, v{u2}
v_bfe_u32 v{t0}, v{vL}, 2, 2
v_xor_b32 v{vXA}, s{sT2}, v{u2}
v_bfe_u32 v{t1}, v{vL}, 4, 1
v_xor_b32 v{vXA+1}, 32, v{vXA}
v_and_b32 v{t2}, 3, v{vL}
v_xor_b32 v{vXA+2}, 64, v{vXA}
v_lshlrev_b32 v{t2}, 3, v{t2}
v_xor_b32 v{vXA+3}, 96, v{vXA}
v_lshl_add_u32 v{t2}, v{t1}, 5, v{t2}
v_lshrrev_b32 v{u2}, 1, v{t0}
s_lshl_b32 s{sT2}, s{sT3}, 6
v_lshl_add_u32 v{u2}, v{u2}, 6, v{t2}
s_add_u32 s{sT2}, s{sT2}, s{sH}
v_lshl_add_u32 v{t3}, v{t0}, 7, v{u2}
s_lshl_b32 s{sT2}, s{sT2}, 6
v_lshl_add_u32 v{u2}, v{u1}, 11, v{t3}
s_or_b32 s{sT2}, s{sT2}, 0x10000
v_xor_b32 v{u3}, v{t0}, v{t1}
v_xor_b32 v{vPM}, s{sT2}, v{u2}
v_and_b32 v{u3}, 1, v{u3}
v_xor_b32 v{vPM+1}, 4096, v{vPM}
v_cmp_eq_u32 vcc, 0, v{u3}
v_xor_b32 v{vPM+2}, 8192, v{vPM}
v_mov_b32 v{u3}, 0x3f803f80
v_xor_b32 v{vPM+3}, 12288, v{vPM}""")
if opt("sw2", 0): B3 = B3[:2] + B3[4:]
B3 += [f"v_cndmask_b32 v{vSEL+i}, 0, v{u3}, vcc" for i in range(4)]
PRO = opt("pro", "x1").split(",")
PRE2 = opt("pre2", 8)
B3N = opt("b3n", 0)
if PRE2 & 8: emits(B3[:B3N])
else: emits(merge(B3, [grp(L) for n in PRO for L in item(n)]))


def mish(acc, pk, tmp):
    L = []
    for g in (0, 8):
        r = [acc + g + i for i in range(8)]; u = [tmp + i for i in range(8)]
        if pk:
            L += [f"v_pk_fma_f32 {P2(u[i])}, {P2(r[i])}, {P2(vC1)}, {sp(sHALF)} op_sel_hi:[1,0,1]" for i in range(0, 8, 2)]
            L += [f"v_exp_f32 v{u[i]}, v{u[i]}" for i in range(8)]
            L += [f"v_pk_add_f32 {P2(u[i])}, {P2(u[i])}, {sp(sISQ)}" for i in range(0, 8, 2)]
            L += [f"v_pk_fma_f32 {P2(u[i])}, {P2(u[i])}, {P2(u[i])}, {sp(sHALF)} neg_lo:[1,0,0] neg_hi:[1,0,0]" for i in range(0, 8, 2)]
            L += [f"v_rcp_f32 v{u[i]}, v{u[i]}" for i in range(8)]
            L += [f"v_pk_fma_f32 {P2(r[i])}, {P2(r[i])}, {P2(u[i])}, {P2(r[i])}" for i in range(0, 8, 2)]
        else:
            L += [f"v_fma_f32 v{u[i]}, v{r[i]}, v{vC1}, -0.5" for i in range(8)]
            L += [f"v_exp_f32 v{u[i]}, v{u[i]}" for i in range(8)]
            L += [f"v_add_f32 v{u[i]}, s{sISQ}, v{u[i]}" for i in range(8)]
            L += [f"v_fma_f32 v{u[i]}, -v{u[i]}, v{u[i]}, -0.5" for i in range(8)]
            L += [f"v_rcp_f32 v{u[i]}, v{u[i]}" for i in range(8)]
            L += [f"v_fmac_f32 v{r[i]}, v{r[i]}, v{u[i]}" for i in range(8)]
        L += [f"v_cvt_pk_bf16_f32 v{acc+g//2+i}, v{r[2*i]}, v{r[2*i+1]}" for i in range(4)]
        L.append(("half", g // 8))
    return L
def frag_store(reg, sb, half, tag="st"):
    return vm(f"buffer_store_dwordx4 {v(reg,4)}, v{vL16}, {srd(sWS)}, s{sb} offen offset:{half*2048} sc1", tag)
def mish_store(acc, pk, sb, tmp, tag="st"):
    return [frag_store(acc + 4 * x[1], sb, x[1], tag) if isinstance(x, tuple) else x for x in mish(acc, pk, tmp)]
def softmax(P, out, pk, m):
    L = [f"v_max3_f32 v{m}, v{P}, v{P+1}, v{P+2}", f"v_max3_f32 v{m+1}, v{P+3}, v{P+4}, v{P+5}"]
    for i in range(6, 14, 4):
        L += [f"v_max3_f32 v{m}, v{m}, v{P+i}, v{P+i+1}", f"v_max3_f32 v{m+1}, v{m+1}, v{P+i+2}, v{P+i+3}"]
    L += [f"v_max3_f32 v{m}, v{m}, v{P+14}, v{P+15}", f"v_max_f32 v{m}, v{m}, v{m+1}", f"v_mul_f32 v{m}, v{m}, v{vC1}"]
    if pk:
        L += [f"v_pk_fma_f32 {P2(P+i)}, {P2(P+i)}, {P2(vC1)}, {P2(m)} op_sel_hi:[1,0,0] neg_lo:[0,0,1] neg_hi:[0,0,1]" for i in range(0, 16, 2)]
        L += [f"v_exp_f32 v{P+i}, v{P+i}" for i in range(16)]
        L += [f"v_pk_add_f32 {P2(m)}, {P2(P)}, {P2(P+2)}", f"v_pk_add_f32 {P2(m+2)}, {P2(P+4)}, {P2(P+6)}"]
        L += [f"v_pk_add_f32 {P2(m+(i&2))}, {P2(m+(i&2))}, {P2(P+i)}" for i in range(8, 16, 2)]
        L += [f"v_pk_add_f32 {P2(m)}, {P2(m)}, {P2(m+2)}", f"v_add_f32 v{m}, v{m}, v{m+1}", f"v_rcp_f32 v{m}, v{m}"]
        L += [f"v_pk_mul_f32 {P2(P+i)}, {P2(P+i)}, {P2(m)} op_sel_hi:[1,0]" for i in range(0, 16, 2)]
    else:
        L += [f"v_fma_f32 v{P+i}, v{P+i}, v{vC1}, -v{m}" for i in range(16)]
        L += [f"v_exp_f32 v{P+i}, v{P+i}" for i in range(16)]
        L += [f"v_add_f32 v{m+i}, v{P+2*i}, v{P+2*i+1}" for i in range(4)]
        L += [f"v_add_f32 v{m+(i&3)}, v{m+(i&3)}, v{P+i}" for i in range(8, 16)]
        L += [f"v_add_f32 v{m}, v{m}, v{m+1}", f"v_add_f32 v{m+2}, v{m+2}, v{m+3}", f"v_add_f32 v{m}, v{m}, v{m+2}", f"v_rcp_f32 v{m}, v{m}"]
        L += [f"v_mul_f32 v{P+i}, v{P+i}, v{m}" for i in range(16)]
    L += [f"v_cvt_pk_bf16_f32 v{out+i}, v{P+2*i}, v{P+2*i+1}" for i in range(8)]
    return L

def one_lane(x): return grp(["s_mov_b64 exec, 1", x, "s_mov_b64 exec, -1"])
def rec_store(): return one_lane(vm(f"buffer_store_dwordx4 {v(vRC,4)}, off, {srd(sWS)}, s{sREC} sc1", "rec"))
def rec1_load(tag="rec1"): return vm(f"buffer_load_dwordx4 {v(vBC,4)}, v{vRA1}, {srd(sWS)}, 0 offen sc1", tag)
FOFF = [12, 0, 128, 4]
OSENT = 1
def pmask(k): return sp((sMASK, sFM)[k])
def poll(k, tag=None):
    return grp([f"s_mov_b64 exec, {pmask(k)}",
                vm(f"buffer_load_dword v{vFV}, v{vFL}, {srd(sWS)}, {f's{sFB}' if k else 0} offen offset:{FOFF[k]} sc1", tag or f"fl{k}"), "s_mov_b64 exec, -1"])
def poll_check(k):
    def p():
        a.wait(vm=f"fl{k}")
        checked([f"v_cmp_ne_u32 vcc, s{sTAG}, v{vFV}", f"s_and_b64 vcc, vcc, {pmask(k)}"], poll(k, "x"), "L_fl")
        pt(f"fl{k}")
    return fn(p, 3)
vTG = 63
def flag_store(k, tag):
    return [f"v_mov_b32 v{vTG}, s{sTAG}", wt(vm=tag), one_lane(vm(f"buffer_store_dword v{vTG}, off, {srd(sWS)}, s{sFL} offset:{FOFF[k]} sc1", "fs")), ptf(f"fs{k}")]
def clr2(sb, off, T):
    if opt("noclr", 0): return "s_nop 0"
    assert T > 27
    return vm(f"buffer_store_dwordx4 {v(vA2B if T > 30 else vT,4)}, v{vL16}, {srd(sWS)}, s{sb} offen offset:{off} sc1", "clr")

def stats():
    e = vXR + 4; r0, r1 = vXR + 12, vXR + 13
    def allsum(r):
        L = [f"v_add_f32_dpp v{r}, v{r}, v{r} row_ror:{s} row_mask:0xf bank_mask:0xf" for s in (8, 4, 2, 1)]
        L += [f"v_mov_b32 v{r1}, v{r}", f"v_permlane16_swap_b32 v{r}, v{r1}", f"v_add_f32 v{r}, v{r}, v{r1}",
              f"v_mov_b32 v{r1}, v{r}", f"v_permlane32_swap_b32 v{r}, v{r1}", f"v_add_f32 v{r}, v{r}, v{r1}"]
        return L
    S = [wt(vm="xr"), f"v_add_u32 v{vRC+3}, 1, v{vEP}"]
    for j in range(4):
        S += [f"v_lshlrev_b32 v{e+2*j}, 16, v{vXR+j}", f"v_and_b32 v{e+2*j+1}, 0xffff0000, v{vXR+j}"]
    S += [f"v_readfirstlane_b32 s{sTAG}, v{vRC+3}"]
    S += [f"v_add_f32 v{vXR+j}, v{e+2*j}, v{e+2*j+1}" for j in range(4)]
    S += [f"v_add_f32 v{vXR}, v{vXR}, v{vXR+1}", f"v_add_f32 v{vXR+2}, v{vXR+2}, v{vXR+3}", f"v_add_f32 v{r0}, v{vXR}, v{vXR+2}"]
    S += allsum(r0)
    S += [f"v_mul_f32 v{vRC}, 0xbb000000, v{r0}"]
    S += [f"v_add_f32 v{e+j}, v{e+j}, v{vRC}" for j in range(8)]
    S += [f"v_mul_f32 v{vXR+j}, v{e+j}, v{e+j}" for j in range(4)]
    S += [f"v_fmac_f32 v{vXR+j}, v{e+4+j}, v{e+4+j}" for j in range(4)]
    S += [f"v_add_f32 v{vXR}, v{vXR}, v{vXR+1}", f"v_add_f32 v{vXR+2}, v{vXR+2}, v{vXR+3}", f"v_add_f32 v{r0}, v{vXR}, v{vXR+2}"]
    S += allsum(r0)
    S += [f"v_mov_b32 v{r1}, 0x3727c5ac", f"v_fmac_f32 v{r1}, 0x3b000000, v{r0}", f"v_rsq_f32 v{vRC+2}, v{r1}",
          f"s_lshl4_add_u32 s{sREC}, s{sREC}, {REC1}" if not PRE2 & 10 else "s_nop 0", f"v_mul_f32 v{vRC+1}, v{r1}, v{vRC+2}"]
    return S

def consts0(ty):
    if ty: return []
    def clr(off): return vm(f"buffer_store_dwordx4 {v(vCL,4)}, v{vL16}, {srd(sWS)}, s{sC0} offen offset:{off} sc1", "clr")
    L = lines(f"""s_lshl2_add_u32 s{sT2}, s{sG}, s{sSIG}
    v_mov_b32 v{vCL}, -1
    s_lshl4_add_u32 s{sT2}, s{sT2}, s{sRB}
    s_mul_i32 s{sT2}, s{sT2}, 1152
    s_add_u32 s{sC0}, s{sT2}, {KVD}""")
    if not opt("noclr", 0): L += [clr(0), "s_mov_b64 exec, 15", clr(1024), "s_mov_b64 exec, -1"]
    return [fn(lambda: skip_if(f"s_cmp_eq_u32 s{sH}, 0", lambda: emits(L), "L_c0"))]
def bases(ty):
    L = lines(f"""s_lshr_b32 s{sT4}, s{sSIG}, 1
    s_lshl1_add_u32 s{sT4}, s{sRB}, s{sT4}
    s_mul_i32 s{sKB}, s{sT4}, 236
    s_and_b32 s{sT4}, s{sSIG}, 1
    s_add_u32 s{sKB}, s{sKB}, s{sT4}
    s_lshl2_add_u32 s{sT2}, s{sTILE}, s{sKB}
    s_lshl_b32 s{sT2}, s{sT2}, 10
    s_add_u32 s{sSB0}, s{sT2}, {ACT}
    s_mov_b32 s{sFB}, {FLG - 8 * REC1}
    s_lshl3_add_u32 s{sFL}, s{sREC}, s{sFB}""")
    if ty == 0:
        return L + lines(f"""s_lshr_b32 s{sT2}, 0xea, s{sG}
        s_and_b32 s{sT2}, s{sT2}, s{sH}
        s_mul_i32 s{sT2}, s{sT2}, {DUM}
        s_add_u32 s{sSB0}, s{sSB0}, s{sT2}""")
    return L + lines(f"""s_add_u32 s{sC1}, s{sSB0}, 8192
    s_lshl1_add_u32 s{sT2}, s{sG}, s{sH}
    s_lshl2_add_u32 s{sT2}, s{sT2}, s{sKB}
    s_lshl_b32 s{sT2}, s{sT2}, 10
    s_add_u32 s{sC0}, s{sT2}, {ACT + 172*1024}""")
def consts1(ty):
    L = [f"s_add_u32 s{sSTART}, s{sSTART}, 4"] * (1 - ty) + lines(f"""s_add_u32 s{sTILE}, s{sSTART}, s{sH}
    s_and_b32 s{sT2}, s2, 7
    s_bfe_u32 s{sT3}, s2, 0x20003
    s_lshl2_add_u32 s{sRB2}, s{sT2}, s{sT3}
    s_lshr_b32 s{sCB}, s2, 5
    s_mov_b32 s{sW2+2}, {1376*1024}
    s_mov_b32 s{sW2+3}, 0x00020000
    s_mov_b32 s{sWO+2}, {512*1024}
    s_mov_b32 s{sWO+3}, 0x00020000""")
    if opt("mt", 1):
        L += lines(f"""s_lshl3_add_u32 s{sT2}, s2, s{sW}
        s_lshl_b32 s{sT2}, s{sT2}, {11 if TA & 2 else 10}
        v_lshl_add_u32 v{vTCH}, v{vL}, 7, s{sT2}
        v_add_u32 v{vTCH+1}, {(1 << 32) - 1376 * 1024:#x}, v{vTCH}""") + [fn(lambda: None) if TA & 2 and ty else touch(0, 16 if TA & 2 else 8)]
    if TOUCH:
        L += lines(f"""s_lshl3_add_u32 s{sT2}, s{sT3}, s{sW}
        s_lshl_b32 s{sT2}, s{sT2}, 9
        s_add_u32 s{sT2}, s{sT2}, s{sCB}
        s_lshl_b32 s{sT2}, s{sT2}, 7
        v_lshl_add_u32 v{vTCH}, v{vL}, 10, s{sT2}
        v_add_u32 v{vTCH+1}, {(1 << 32) - 24 * 65536:#x}, v{vTCH}""")
    L += [f"s_lshl_b32 s{sT3}, s{sT3}, 1"] * (ROT2 == 7) + lines(f"""s_xor_b32 s{sT3}, s{sT3}, s{sCB}
    s_and_b32 s{sT3}, s{sT3}, {ROT2}
    s_lshl_b32 s{sRA}, s{sT3}, 11
    s_lshl_b32 s{sRW}, s{sT3}, 14
    s_lshr_b32 s{sT3}, s{sT3}, {(ROT2 == 7) * 1}
    s_lshl_b32 s{sRA2}, s{sT3}, 11
    s_lshl_b32 s{sRW2}, s{sT3}, 14
    s_lshl1_add_u32 s{sGAM}, s{sSIG}, s{sH}
    s_mul_i32 s{sT4}, s{sGAM}, 11
    s_add_u32 s{sT4}, s{sT4}, 1
    s_lshr_b32 s{sT4}, s{sT4}, 1
    s_min_u32 s{sT4}, s{sT4}, 38
    v_and_b32 v{u3}, 7, v{vRW_}
    v_lshl_add_u32 v{u3}, v{u3}, 10, v{vSW_}
    s_lshl_b32 s{sT2}, s{sT4}, 8
    s_add_u32 s{sT2}, s{sT2}, s{sCB}
    s_lshl_b32 s{sT2}, s{sT2}, 7
    v_add_u32 v{vW2O}, s{sT2}, v{u3}
    v_add_u32 v{vW2O+1}, {8192-1024}, v{vW2O}
    s_lshl_b32 s{sT2}, s{sGAM}, 9
    s_add_u32 s{sT2}, s{sT2}, s{sCB}
    s_lshl_b32 s{sT2}, s{sT2}, 7
    v_add_u32 v{vWOO}, s{sT2}, v{u3}
    v_add_u32 v{vWOO+1}, {8192-1024}, v{vWOO}
    s_mul_i32 s{sT2}, s{sRB2}, 59
    s_add_u32 s{sT2}, s{sT2}, s{sT4}
    s_lshl_b32 s{sT2}, s{sT2}, 12
    s_add_u32 s{sT2}, s{sT2}, {ACT}
    v_add_u32 v{vACT}, s{sT2}, v{vL16}
    s_lshl1_add_u32 s{sT3}, s{sGAM}, 43
    s_sub_u32 s{sT3}, s{sT3}, s{sT4}
    s_lshl_b32 s{sAO}, s{sT3}, 12
    s_mov_b32 s{sWE+2}, {512*(2752, 3072)[ty]}
    s_mov_b32 s{sWE+3}, 0x00020000
    s_lshl_b32 s{sT2}, s{(sSTART, sG)[ty]}, {(6, 7)[ty]}
    v_mul_u32_u24 v{vWC}, {(2752, 3072)[ty]}, v{vRW_}
    v_add3_u32 v{vWC}, v{vWC}, v{vSW_}, s{sT2}
    v_lshlrev_b32 v{vBA}, 1, v{u0}
    s_movk_i32 s{sB1+2}, 2752
    s_mov_b32 s{sB1+3}, 0x00020000
    s_lshl_b32 s{sT4}, s{sTILE}, 6""")
    L += [vm(f"buffer_load_ushort v{vBA+i}, v{vBA}, {srd(sB1)}, s{sT4} offen offset:{128*i}", "misc") for i in reversed(range(1 + ty))]
    L += lines(f"""s_mov_b32 s{sPH+2}, 16384
    s_mov_b32 s{sPH+3}, 0x00020000
    s_and_b32 s{sT2}, s{sW}, 1
    s_lshl_b32 s{sT2}, s{sT2}, 10
    s_lshl_b32 s{sT3}, s{sG}, 11
    s_add_u32 s{sT3}, s{sT3}, s{sT2}""")
    return L
TOUCH = [x for x in opt("touch", "").split(",") if x]
vTCH = LT + 28
def touch(l0, n):
    m = ((1 << n) - 1) << l0
    return grp([f"s_mov_b32 exec_lo, {m & 0xffffffff:#x}", f"s_mov_b32 exec_hi, {m >> 32:#x}",
                vm(f"buffer_load_dword v{vFV}, v{vTCH}, {srd(sW2)}, 0 offen", "tch"),
                vm(f"buffer_load_dword v{vFV}, v{vTCH+1}, {srd(sWO)}, 0 offen", "tch"), "s_mov_b64 exec, -1"])
def wphi_dma():
    return grp([f"s_add_u32 m0, s{sT2}, {WPHI}", f"s_mov_b32 s{sCNT}, {SPIN}",
                vm(f"buffer_load_dwordx4 v{vL16}, {srd(sPH)}, s{sT3} offen lds", "misc")])

def consts2(ty):
    L = lines(f"""s_lshl2_add_u32 s{sT2}, s{sRB}, s{sSIG}
    s_lshl_b32 s{sT2}, s{sT2}, 9
    s_add_u32 s{sT2}, s{sT2}, {REC1}
    v_lshl_add_u32 v{vRA1}, v{u0}, 4, s{sT2}
    s_lshl_b32 s{sT2}, s{sH}, 9
    s_add_u32 s{sT2}, s{sT2}, {CW}
    v_lshl_add_u32 v{vCAR}, v{u0}, 4, s{sT2}
    s_lshl_b32 s{sT2}, s{sSIG}, 2
    v_add_u32 v{vCAW}, s{sT2}, v{vCAR}
    v_lshl_add_u32 v{t3}, v{u1}, 9, v{t3}
    v_add_u32 v{vA2B}, s{sM0R}, v{t3}
    s_mov_b32 s{sHALF}, -0.5
    s_mov_b32 s{sHALF+1}, -0.5
    s_mov_b32 s{sISQ}, 0x3f3504f3
    s_mov_b32 s{sISQ+1}, 0x3f3504f3
    s_mov_b32 s{sLOm}, -1
    s_mov_b32 s{sLOm+1}, 0
    s_mov_b32 s{sMASK}, 0xffff0000
    s_mov_b32 s{sMASK+1}, 0
    v_lshl_add_u32 v{u3}, v{u1}, 2, v{t0}
    v_lshlrev_b32 v{u3}, 5, v{u3}
    v_lshl_add_u32 v{u3}, v{t1}, 4, v{u3}
    v_bfe_u32 v{t3}, v{vL}, 1, 1
    v_lshl_add_u32 v{u3}, v{t3}, 3, v{u3}
    s_lshl_b32 s{sT2}, s{sH}, 10
    s_add_u32 s{sT2}, s{sT2}, {WPHI}
    v_add_u32 v{vPHA}, s{sT2}, v{u3}
    v_bfe_i32 v{vSGN}, v{vL}, 2, 1
    v_and_b32 v{vSGN}, 0x80008000, v{vSGN}""")
    L += [f"v_and_b32 v{vPL+i}, 0xffff, v{vPM+i}" for i in range(4)]
    L += lines(f"""s_lshr_b32 s{sT2}, s{sRB2}, 1
    s_lshl4_add_u32 s{sT2}, s{sT2}, s{sGAM}
    s_lshl_b32 s{sT2}, s{sT2}, 7
    s_add_u32 s{sT2}, s{sT2}, {REC1}
    v_and_b32 v{u3}, 8, v{vL}
    v_mul_u32_u24 v{u3}, 0x70, v{u3}
    v_and_b32 v{u2}, 15, v{vL}
    v_lshl_add_u32 v{u3}, v{u2}, 4, v{u3}
    v_add_u32 v{vFL}, s{sT2}, v{u3}""")
    if ty == 0:
        L += lines(f"""s_lshl_b32 s{sT4}, s{sSIG}, 5
        v_add_u32 v{u0}, s{sT4}, v{u0}
        v_bfe_u32 v{u2}, v{vL}, 1, 2
        v_lshlrev_b32 v{u3}, 1, v{u1}
        v_xor_b32 v{u2}, v{u2}, v{u3}
        s_lshl_b32 s{sT2}, s{sH}, 14
        s_add_u32 s{sT2}, s{sT2}, {PHI}
        v_lshl_add_u32 v{u2}, v{u2}, 4, s{sT2}
        v_lshl_add_u32 v{vPW0}, v{u0}, 6, v{u2}
        v_xor_b32 v{vPW1}, 16, v{vPW0}
        v_mul_u32_u24 v{u0}, 144, v{u0}
        v_add_u32 v{u0}, {VIMG}, v{u0}
        v_mov_b32 v{vTCH+2}, 0x3f803f80
        v_mov_b32 v{vTCH+3}, 0x3f803f80""") + [dsw(f"ds_write_b64 v{u0}, {v(vTCH+2,2)} offset:128")] + lines(f"""
        s_lshl_b32 s{sT2}, s{sH}, 6
        v_lshl_add_u32 v{vVW}, v{u1}, 4, s{sT2}
        v_add_u32 v{vVW}, v{vVW}, v{u0}
        v_lshl_add_u32 v{u1}, v{u1}, 3, v{t0}
        v_and_b32 v{u2}, 1, v{vL}
        v_lshl_add_u32 v{u2}, v{u2}, 1, v{t1}
        v_lshrrev_b32 v{u3}, 1, v{t0}
        v_xor_b32 v{u2}, v{u2}, v{u3}
        v_lshlrev_b32 v{u2}, 4, v{u2}
        v_lshl_add_u32 v{u2}, v{u1}, 6, v{u2}
        v_lshl_add_u32 v{u2}, v{t3}, 3, v{u2}
        s_lshl_b32 s{sT2}, s{sSIG}, 13
        s_add_u32 s{sT2}, s{sT2}, {PHI}
        v_add_u32 v{vKA0}, s{sT2}, v{u2}
        v_xor_b32 v{vKA1}, 32, v{vKA0}
        v_mul_u32_u24 v{u1}, 144, v{u1}
        v_add_u32 v{u2}, s{sT4}, v{t2}
        v_cmp_eq_u32 vcc, 1, v{t1}
        v_mov_b32 v{u3}, 128
        v_add_u32 v{u1}, {VIMG}, v{u1}
        v_cndmask_b32 v{u2}, v{u2}, v{u3}, vcc
        v_add_u32 v{vKB}, v{u1}, v{u2}""")
    else:
        L += lines(f"""s_lshl2_add_u32 s{sT2}, s{sG}, s{sSIG}
        s_mul_i32 s{sT2}, s{sT2}, {16*1152}
        s_add_u32 s{sT2}, s{sT2}, {KVD}
        v_lshrrev_b32 v{u3}, 4, v{vL}
        v_mul_u32_u24 v{u3}, 1152, v{u3}
        v_add_u32 v{u3}, s{sT2}, v{u3}
        s_lshl_b32 s{sT3}, s{sH}, 9
        v_lshlrev_b32 v{t2}, 4, v{u2}
        v_add3_u32 v{vGA}, v{u3}, v{t2}, s{sT3}
        v_bfe_u32 v{vGZ}, v{vL}, 1, 2
        v_mul_u32_u24 v{vGZ}, {4*1152}, v{vGZ}
        v_and_b32 v{t3}, 1, v{vL}
        v_lshl_add_u32 v{u3}, v{t3}, 4, v{u3}
        s_lshl_b32 s{sT3}, s{sH}, 5
        v_add3_u32 v{vGZ}, v{vGZ}, v{u3}, s{sT3}
        s_lshl3_add_u32 s{sT2}, s{sG}, s{sSIG}
        s_lshl4_add_u32 s{sT2}, s{sT2}, {REC1}
        v_lshl_add_u32 v{u3}, v{u2}, 11, s{sT2}
        v_cmp_eq_u32 vcc, 1, v{t1}
        s_mul_i32 s{sT2}, s{sGAM}, 544
        s_add_u32 s{sT2}, s{sT2}, {KVL}
        v_cndmask_b32 v{vFL}, v{vFL}, v{u3}, vcc
        v_lshl_add_u32 v{u3}, v{t1}, 3, s{sT2}
        v_mul_u32_u24 v{vKW}, 272, v{u1}
        v_add3_u32 v{vKW}, v{vKW}, v{u3}, v{t2}
        v_mul_u32_u24 v{vZW}, 272, v{t3}
        v_add_u32 v{vZW}, v{vZW}, v{u3}
        v_and_b32 v{u3}, 3, v{vL}
        v_bfe_u32 v{t3}, v{vL}, 2, 1
        v_lshl_add_u32 v{u3}, v{t3}, 3, v{u3}
        v_bfe_u32 v{t3}, v{vL}, 3, 1
        v_lshl_add_u32 v{u3}, v{t3}, 2, v{u3}
        v_cndmask_b32 v{u3}, v{u3}, 16, vcc
        v_lshlrev_b32 v{u3}, 4, v{u3}
        v_mul_u32_u24 v{u1}, 544, v{u1}
        s_mul_i32 s{sT3}, s{sH}, 2176
        s_add_u32 s{sT3}, s{sT3}, {KVL}
        v_add3_u32 v{vKR}, v{u3}, v{u1}, s{sT3}""")
    return L
def consts3(ty):
    return lines(f"""s_mov_b32 s{sOUT+2}, {2048*1024}
    s_mov_b32 s{sOUT+3}, 0x00020000
    s_and_b32 s{sT2}, s{sRB2}, 1
    s_lshl_b32 s{sT2}, s{sT2}, 1
    s_lshl_b32 s{sFM}, 0x3333, s{sT2}
    s_mov_b32 s{sFM+1}, 0
    s_lshl1_add_u32 s{sT2}, s{sRB2}, s{sH}
    s_lshl_b32 s{sR2}, s{sT2}, 9
    s_add_u32 s{sR2}, s{sR2}, {REC1}
    s_lshl_b32 s{sT2}, s{sT2}, 10
    s_lshl2_add_u32 s{sT3}, s{sCB}, s{sSIG}
    s_add_u32 s{sT2}, s{sT2}, s{sT3}
    s_lshl_b32 s{sOB}, s{sT2}, 5""")

vACC, vWR = 64, 128
vOO, vRSA, vEC, vRS2, vRES, vRW, vRR, vC0, vS0 = 8, 9, 10, 14, 16, 20, 21, 22, 24
vMT = 16
def areg(j): return [192, 200, 208, 248][j % 12] if j % 12 < 4 else (184 + 8 * (j % 8) if j < 9 else 40 + 8 * (j - 9))
def wreg(j): return vWR + 8 * (j % 7)
WS_ = {}
def w_item(j, s):
    WS_[j] = s
    so = (f"s_mov_b32 s{sT0}, {j << 14}" if 8 <= j < 12 else f"s_xor_b32 s{sT0}, s{sRW if j < 8 else sRW2}, {(j % 12) << 14}")
    d, ad = (srd(sW2), vW2O) if j < 12 else (srd(sWO), vWOO)
    return grp([f"s_add_u32 m0, s{sM0R}, {s * SZ}", so,
                vm(f"buffer_load_dwordx4 v{ad}, {d}, s{sT0} offen lds", f"w{j}"),
                vm(f"buffer_load_dwordx4 v{ad+1}, {d}, s{sT0} offen offset:1024 lds", f"w{j}")])
def w_read(j):
    s = WS_[j]
    ad = [vA2L, vA2M, vA2T][s >> 2]; off = (s & 3) * SZ
    L = [wt(vm=f"w{j}")]
    for b in range(2):
        L.append(dsw(f"ds_read_b64_tr_b16 {v(wreg(j)+4*b,2)}, v{ad+b} offset:{off}", f"r{j}"))
        L.append(dsw(f"ds_read_b64_tr_b16 {v(wreg(j)+4*b+2,2)}, v{ad+b} offset:{off+1024}", f"r{j}"))
    return L
vBW, vBR = 38, 56
def w_raw(j):
    WS_[j] = -1
    return [grp([f"s_xor_b32 s{sT0}, s{sRW}, {j << 14}", vm(f"buffer_load_dwordx4 {v(wreg(j)+4,4)}, v{vW2O}, {srd(sW2)}, s{sT0} offen", f"w{j}")]),
            grp([f"s_xor_b32 s{sT0}, s{sRW}, {j << 14}", vm(f"buffer_load_dwordx4 {v(wreg(j)+8,4)}, v{vW2O+1}, {srd(sW2)}, s{sT0} offen offset:1024", f"w{j}")])]
def bnc_addrs():
    return lines(f"""s_lshr_b32 s{sT2}, s{sM0R}, 1
    s_sub_u32 s{sT3}, {BNC}, s{sT2}
    s_add_u32 s{sT2}, s{sT2}, {BNC}
    v_add_u32 v{vBW}, s{sT2}, v{vL16}
    v_add_u32 v{vBR}, s{sT3}, v{vA2L}
    v_add_u32 v{vBR+1}, s{sT3}, v{vA2L+1}""")
def w_conv(j):
    L = [wt(vm=f"w{j}")]
    for hf in range(2):
        L.append(dsw(f"ds_write_b128 v{vBW}, {v(wreg(j)+4+4*hf,4)}", f"r{j}"))
        L += [dsw(f"ds_read_b64_tr_b16 {v(wreg(j)+4*b+2*hf,2)}, v{vBR+b}", f"r{j}") for b in range(2)]
    return L
def w_refill(j, q):
    return [wt(lg=f"r{q}"), w_item(j, WS_[q])]
def p2_addrs():
    return lines(f"""v_mov_b32 v{vA2L}, v{vA2B}
    v_xor_b32 v{vA2L+1}, 64, v{vA2B}
    v_add_u32 v{vA2M}, {4*SZ}, v{vA2L}
    v_add_u32 v{vA2M+1}, {4*SZ}, v{vA2L+1}
    v_add_u32 v{vA2T}, {8*SZ}, v{vA2L}
    v_add_u32 v{vA2T+1}, {8*SZ}, v{vA2L+1}""")
def a_load(j, tag=None, st=(0, 1)):
    def p():
        if j < 8: a(f"s_xor_b32 s{sT1}, s{sRA}, {j << 11}")
        elif j < 12: a(f"s_movk_i32 s{sT1}, {j << 11}")
        else: a(f"s_xor_b32 s{sT1}, s{sRA2}, {(j - 12) << 11}\ns_add_u32 s{sT1}, s{sAO}, s{sT1}")
        for s in st:
            if not opt("noact", 0): a.vmem(f"buffer_load_dwordx4 {v(areg(j)+4*s,4)}, v{vACT}, {srd(sWS)}, s{sT1} offen offset:{1024*s} {'sc1' if j >= opt('asc', 0) else opt('asf', '')}", tag or f"a{j}")
    return fn(p, 3 * len(st) + 1)
def p6(body): skip_if(f"s_cmp_lt_u32 s{sW}, 3", body, "L_p6")
def p6f(L): return fn(lambda: p6(lambda: emits(L)), 6)
def selectors(tmp):
    L = lines(f"""v_and_b32 v{tmp}, 1, v{vL}
    v_mov_b32 v{tmp+1}, 0x3f80
    v_lshlrev_b32 v{tmp}, 4, v{tmp}
    v_lshlrev_b32 v{tmp+1}, v{tmp}, v{tmp+1}
    v_bfe_u32 v{tmp}, v{vL}, 1, 3""")
    for r in range(0, 8, 2):
        L += [grp([f"v_cmp_eq_u32 vcc, {r}, v{tmp}", f"v_cmp_eq_u32 {sp(sCM)}, {r+1}, v{tmp}",
                   f"v_cndmask_b32 v{vS0+r}, 0, v{tmp+1}, vcc", f"v_cndmask_b32 v{vS0+r+1}, 0, v{tmp+1}, {sp(sCM)}"])]
    return L
def tail_addrs():
    x = vC0
    return lines(f"""v_and_b32 v{x}, 15, v{vL}
    v_lshrrev_b32 v{x+1}, 5, v{vL}
    v_lshl_add_u32 v{x+1}, v{x+1}, 4, v{x}
    v_lshlrev_b32 v{vRSA}, 4, v{x+1}
    v_and_b32 v{vOO}, 16, v{vL}
    v_lshl_add_u32 v{vOO}, v{x+1}, 10, v{vOO}
    v_add_u32 v{vRW}, s{sM0R}, v{vL16}
    s_lshr_b32 s{sT2}, s{sW}, 1
    s_and_b32 s{sT3}, s{sW}, 1
    s_lshl4_add_u32 s{sT2}, s{sT2}, s{sT3}
    s_lshl_b32 s{sT2}, s{sT2}, 10
    v_lshl_add_u32 v{x}, v{x}, 4, s{sT2}
    v_lshrrev_b32 v{x+1}, 4, v{vL}
    v_lshl_add_u32 v{vRR}, v{x+1}, 11, v{x}""")
def rs_load(tag="rs"): return vm(f"buffer_load_dwordx2 {P2(vRS2)}, v{vRSA}, {srd(sWS)}, s{sR2} offen offset:8 sc1", tag)
def res_load(): return vm(f"buffer_load_dwordx4 {v(vRES,4)}, v{vOO}, {srd(sX)}, s{sOB} offen", "res")
def ep_loads():
    a(f"v_lshlrev_b32 v{vBW}, 7, v{vL}")
    for i in range(4):
        a(f"s_mov_b32 s{sT2}, {REC1 + i*8192}")
        a(f"buffer_load_dword v{vEC+i}, v{vBW}, {srd(sWS)}, s{sT2} offen offset:12 sc1")
def if_first(body):
    a(f"s_or_b32 s{sT2}, s2, s{sW}")
    skip_if(f"s_cmp_eq_u32 s{sT2}, 0", body, "L_ep")
def maxchain(regs, d):
    L = []; regs = list(regs); first = True
    while regs:
        if first: x = regs[:3]; regs = regs[3:]; first = False
        else: x = [d] + regs[:2]; regs = regs[2:]
        L.append(f"v_max3_u32 v{d}, v{x[0]}, v{x[1]}, v{x[2]}" if len(x) == 3 else f"v_max_u32 v{d}, v{x[0]}, v{x[1]}")
    return L + [f"v_cmp_eq_u32 vcc, -1, v{d}"]
def sentinel(js, st):
    checked(maxchain([areg(j) + 4 * s for j in js for s in st], vC0), lambda: emits([a_load(j, "x", st) for j in js]), "L_s")
def step_mfma(j, st, first=False, gaps=()):
    gaps = list(gaps)
    for s in st:
        for b in range(2):
            acc = vACC + 32 * s + 16 * b
            a(f"{MF} {v(acc,16)}, {v(wreg(j)+4*b,4)}, {v(areg(j)+4*s,4)}, {'0' if first else v(acc,16)}")
            if gaps: emits(gaps.pop(0))
    for g in gaps: emits(g)

def c_loads(): return [p6f([a_load(10), a_load(11)]), a_load(8), a_load(9)]
def o_loads(): return [a_load(j, "o0", (0,)) for j in range(12, 16)] + [a_load(j, "o1", (1,)) for j in range(12, 16)]
WP = [[x for x in opt(k, "").split(",") if x] for k in ("awp", "bwp")]
def phase2(ty, side, GR, spec):
    def add(p, L): side[p] = side.get(p, []) + L
    assert sorted(WS_) == list(range(16))
    last = -1
    for x in WP[ty]:
        j, p = map(int, x.split("@")); assert p < j; last = p
        add(p, w_conv(j))
    for x in spec.split(","):
        n, p = x.split("@")
        assert n != "o" or int(p) >= 4
        assert n != "c" or int(p) >= last
        add(int(p), GR.pop(n))
    assert not set(GR) - set("hl"), GR
    add(5, [p6f(w_read(10) + w_read(11))])
    for j, k in ((7, 1), (8, 2), (9, 3), (12, 6), (13, 7), (14, 8), (15, 9)): add(k, w_read(j))
    for j in range(10):
        if j == 8:
            a.wait(vm="a9")
            sentinel((8, 9), (0, 1))
        a.wait(vm=f"a{j}", lg=f"r{j}")
        pt(f"s{j}")
        if j == 0: pt("f0")
        step_mfma(j, (0, 1), j == 0, split(side.get(j, []), 4))
    a.wait(lg="r12")
    def body():
        sentinel((10, 11), (0, 1))
        for j in (10, 11): step_mfma(j, (0, 1))
    p6(body)
    emits(side.get(10, []))
    pt("f1")
    a.wait(vm="o0", lg="all")
    if OSENT: sentinel(range(12, 16), (0,))
    pt("f2")
    checked([f"v_cmp_ne_u32 vcc, s{sTAG}, v{vRS2+1}"], rs_load("x"), "L_rs")
    vU = 216
    U = []
    for j in range(4): U += [f"v_lshlrev_b32 v{vU+2*j}, 16, v{vRES+j}", f"v_and_b32 v{vU+1+2*j}, s{sMASK}, v{vRES+j}"]
    G = split(U, 8)
    for j in range(12, 16): step_mfma(j, (0,), False, G[2*(j-12):2*(j-12)+2])
    a.wait(vm="o1")
    if OSENT: sentinel(range(12, 16), (1,))
    def pack(k):
        acc = vACC + 16 * k; L = []
        for hf in range(2):
            L += [f"v_cvt_pk_bf16_f32 v{acc+4*hf+i}, v{acc+8*hf+2*i}, v{acc+8*hf+2*i+1}" for i in range(4)]
            L += [dsw(f"ds_write_b128 v{vRW}, {v(acc+4*hf,4)} offset:{k*SZ+1024*hf}")]
        return L
    G = [[]] + split(pack(0) + pack(1), 7)
    for j in range(12, 16): step_mfma(j, (1,), False, G[2*(j-12):2*(j-12)+2])
    pt("f3")
    if ty == 0:
        def ep():
            checked([f"v_xor_b32 v{vEC+i}, s{sTAG}, v{vEC+i}" for i in range(4)] +
                    [f"v_or3_b32 v{vEC}, v{vEC}, v{vEC+1}, v{vEC+2}", f"v_or_b32 v{vEC}, v{vEC}, v{vEC+3}", f"v_cmp_ne_u32 vcc, 0, v{vEC}"],
                    ep_loads, "L_epc")
            a(f"""v_mov_b32 v{vEC}, s{sTAG}
            s_mov_b64 exec, 1
            buffer_store_dword v{vEC}, off, {srd(sWS)}, 0 sc1
            s_mov_b64 exec, -1""")
        if_first(ep)
    emits(pack(2) + pack(3))
    a.wait(lg="all")
    a("s_barrier")
    R = 224
    for p in range(4):
        for k in range(2):
            a.ds(f"ds_read_b128 {v(R+8*p+4*k,4)}, v{vRR} offset:{8192*k+256*p}", f"t{p}{k}")
    D = vWR
    for p in (0, 2, 1, 3):
        for k in range(2):
            a.wait(lg=f"t{p}{k}")
            d = D + 4 * (p >> 1)
            a(f"{MF16} {v(d,4)}, {v(vS0+4*(p&1),4)}, {v(R+8*p+4*k,4)}, {'0' if (p & 1) == 0 and k == 0 else v(d,4)}")
    for j in range(0, 8, 2): a(f"v_pk_fma_f32 {P2(D+j)}, {P2(D+j)}, {P2(vRS2)}, {P2(vU+j)} op_sel_hi:[1,0,1]")
    for j in range(4): a(f"v_cvt_pk_bf16_f32 v{D+8+j}, v{D+2*j}, v{D+2*j+1}")
    a(f"buffer_store_dwordx4 {v(D+8,4)}, v{vOO}, {srd(sOUT)}, s{sOB} offen")
    pt("end")
    a("s_branch L_fin")

def reads(T):
    tg = f"k{T}"; ks = T & 3
    if T < 32:
        off = ((T >> 2) & 3) * SZ; b = vWF + 8 * ks
        return [dsw(f"ds_read_b128 {v(vX+4*T,4)}, v{vXA+ks} offset:{off}", tg)] + [
                dsw(f"ds_read_b64_tr_b16 {v(b+2*i,2)}, v{vPM+ks} offset:{off+512*i}", tg) for i in range(4)]
    t = T - 32; s = RS[t >> 3]; ad = (vPL if s < 4 else vPM) + ks; off = (s & 3) * SZ + ((t >> 2) & 1) * 1024
    return [dsw(f"ds_read_b64_tr_b16 {v(vWF+4*ks+2*i,2)}, v{ad} offset:{off+512*i}", tg) for i in range(2)]
def bar(vmt=None, lg=None, name=None):
    def p():
        for x in ([vmt] if isinstance(vmt, str) else (vmt or [])): a.wait(vm=x)
        if lg: a.wait(lg=lg)
        if name: pt(name + "w")
        a("s_barrier")
        if name: pt(name)
    return fn(p, 1)
def put(S, T, L): S[T] = S.get(T, []) + list(L)
def spread(S, L, T0, T1):
    for i, G in enumerate(split(L, T1 - T0 + 1)): put(S, T0 + i, G)
def corr(quads, biases):
    L = [f"v_lshlrev_b32 v{b}, 16, v{b}" for b in biases if b] + [wt(lg="cw")]
    for q in quads: L += [f"v_add_f32 v{q}, v{q}, v{q+1}", f"v_add_f32 v{q+2}, v{q+2}, v{q+3}"]
    L += [f"v_add_f32 v{q}, v{q}, v{q+2}" for q in quads]
    return L + [f"v_cndmask_b32 v{q}, {v(b) if b else 0}, v{q}, {sLO}" for q, b in zip(quads, biases)]
SEQ = opt("seq", "x3/x4/x5/x6/x7/b0,b1/b2,b3").split("/")
DSP = opt("dsp", 1)
SPL = opt("spl", 3)
vQ2 = 44
def stream(ty, S, E):
    DQ = [L for n in opt("pre", "x2").split(",") if n for L in item(n)]
    for c in range(7): E[4 * c + 1] = [bar(f"x{c+1}", None, f"c{c}")] + E.get(4 * c + 1, [])
    S[29] = [dsw(f"ds_write_b32 v{vCAW}, v{vCS+4*i} offset:{1024*i}", "cw") for i in range(2)] + S.get(29, [])
    S[30] = [dsw(f"ds_read_b128 {v(vT+4*i,4)}, v{vCAR} offset:{1024*i}", "cw") for i in range(2)] + S.get(30, [])
    put(S, 31, corr((vT, vT + 4), (vBA, vBA + 1) if ty else (None, None)))
    S[32] = [f"{MF32} {v(K,16)}, v{q}, v{vBC}, {v(K,16)}" for K, q in ((K0, vT), (K1, vT + 4))] + S.get(32, [])
    S[61] = [dsw(f"ds_write_b32 v{vCAW}, v{vCS} offset:1024", "cw")] + S.get(61, [])
    S[62] = [dsw(f"ds_read_b128 {v(vQ2,4)}, v{vCAR} offset:1024", "cw")] + S.get(62, [])
    put(S, 63, corr((vQ2,), (None if ty else vBA,)) + [f"{MF32} {v(K2,16)}, v{vQ2}, v{vBC}, {v(K2,16)}"])
    emits(reads(0) + reads(1))
    for T in range(64):
        t = T & 31; ks = T & 3
        R = reads(T + 2) if T < 30 else (reads(32) + reads(33) if T == 30 else (reads(T + 3) if T + 3 < 64 else []))
        pt(f"T{T}")
        a.wait(lg=f"k{T}")
        F = S.get(T, [])
        if T < 32:
            b = vWF + 8 * ks
            G = split(F, 2)
            a(f"{MF} {v(K0,16)}, {v(b,4)}, {v(vX+4*t,4)}, {'0' if t == 0 else v(K0,16)}")
            emits(R[:SPL])
            if DQ and (DSP > 1 or T < 2): emits(DQ.pop(0))
            emits(G[0])
            a(f"{MF} {v(K1,16)}, {v(b+4,4)}, {v(vX+4*t,4)}, {'0' if t == 0 else v(K1,16)}")
            emits(R[SPL:])
            if DQ: emits(DQ.pop(0))
            if ks == 0:
                for i in range(2): a(f"{MF16} {v(vCS+4*i,4)}, {v(vSEL,4)}, {v(b+4*i,4)}, {'0' if t == 0 else v(vCS+4*i,4)}")
            emits(G[1])
        else:
            b = vWF + 4 * ks
            if ks == 0: a(f"{MF16} {v(vCS,4)}, {v(vSEL,4)}, {v(b,4)}, {'0' if t == 0 else v(vCS,4)}")
            a(f"{MF} {v(K2,16)}, {v(b,4)}, {v(vX+4*t,4)}, {'0' if t == 0 else v(K2,16)}")
            emits(R + F)
        if ks == 1: assert not DQ
        emits(E.get(T, []))
        if T < 28 and ks == 1:
            for n in SEQ[T >> 2].split(","):
                if n: DQ += item(n)
        if t == 31: pt(f"p{1 + (T >> 5)}")
    assert not DQ
PH = [vXA, vCS + 4]
def ph_reads(): return [dsw(f"ds_read_b64_tr_b16 {v(PH[i>>1]+2*(i&1),2)}, v{vPHA} offset:{256*i}", "ph") for i in range(4)]
def ph_signs(): return [wt(lg="ph")] + [f"v_xor_b32 v{PH[i>>2]+(i&3)}, v{vSGN}, v{PH[i>>2]+(i&3)}" for i in range(8)]
def start(ty, S, E):
    LATE = []
    if PRE2 & 8:
        C1 = consts1(ty); k = C1.index(f"s_movk_i32 s{sB1+2}, 2752")
        tch = [x for x in C1[:k] if callable(x)]
        C2 = consts2(ty) + bases(ty) + consts3(ty)
        def low(x): return isinstance(x, str) and x[:2] == "s_" and 36 <= int(x.split()[1].strip("s,")) < 48
        i = C2.index(f"s_lshl_b32 s{sFM}, 0x3333, s{sT2}")
        LATE = [tch + C1[k:], C2[i-2:i] + [x for x in C2 if low(x)]]
        L = B3[B3N:] + consts0(ty) + [x for x in C1[:k] if not callable(x)] + [f"s_lshl4_add_u32 s{sREC}, s{sREC}, {REC1}"] + [x for x in C2 if not low(x)]
        emits(merge(L, [grp(G) for n in PRO for G in item(n)], opt("x1a", 150), opt("x1b", 300)))
    else: emits(consts0(ty))
    pt("i1")
    a("s_waitcnt lgkmcnt(0)")
    if MW == 3: wtouch()
    if opt("mt", 1) == 2: emits(LATE[0][:1]); LATE[0] = LATE[0][1:]
    if PRE2 & 1: emits(consts1(ty) + [wphi_dma()])
    if PRE2 & 2: emits([f"s_lshl4_add_u32 s{sREC}, s{sREC}, {REC1}"] + consts2(ty) + bases(ty))
    if PRE2 & 4: emits(consts3(ty))
    pt("i2")
    a.wait(vm="x0")
    a("s_barrier")
    pt("p0")
    F0, F1, F2 = opt("f0", 6), opt("f1", 13), opt("f2", 26)
    RECP = opt("recp", 7)
    assert RECP >= max(F0, 5) and F1 % 4 == 1 and F2 <= 26
    spread(S, stats(), 0, F0)
    if MW >= 10: put(E, MW - 10, [fn(wtouch)])
    if opt("mt", 1) >= 10: put(E, opt("mt", 1) - 10, LATE[0][:1]); LATE[0] = LATE[0][1:]
    put(E, RECP, [rec_store()])
    if PRE2 & 8: spread(S, LATE[0], F0 + 1, F1); put(E, F1, [wphi_dma()]); spread(S, LATE[1], F1 + 1, F1 + 6)
    elif not PRE2 & 1:
        spread(S, consts1(ty), F0 + 1, F1)
        put(E, F1, [wphi_dma()])
    l0 = 0
    for x in TOUCH:
        T, n = map(int, x.split(":")); assert F0 + 3 <= T <= 28
        put(E, T, [touch(l0, n)]); l0 += n
    if not PRE2 & 10: spread(S, consts2(ty) + bases(ty), (F0 if PRE2 & 1 else F1) + 1, F2)
    if not PRE2 & 12: spread(S, consts3(ty), 27, 28)
    put(E, opt("rpos", 24), [rec1_load()])
    def rec():
        a.wait(vm="rec1")
        checked([f"v_cmp_ne_u32 vcc, s{sTAG}, v{vRSTD}"], rec1_load("x"), "L_rec1")
    put(S, 29, [fn(rec), f"v_cndmask_b32 v{vBC}, v{vSD}, v{vBC}, {sLO}", f"v_mov_b32 v{vRSTD}, v{vC1}", f"v_mul_f32 v{vC1}, {LOG2E}, v{vC1}"])
    put(E, 29, [bar("b1", "all", "e1")] + [poll(0)] * ty)
    put(S, 27, [f"v_mov_b32 v{vT}, -1"])
    put(S, 30, p2_addrs() + [f"v_mov_b32 v{vA2B}, -1"])
    put(E, 44, [poll_check(0)] * ty + [bar("b3", "all", "m2"), f"v_lshlrev_b32 v{vFL}, 3, v{vFL}"])
def rest():
    fs = [x for x in range(9) if x not in WS_.values()]
    return [w_item(j, fs.pop(0)) for j in range(16) if j not in WS_]
def place(M, spec, GR, nm="M"):
    ins = {}
    for x in [y for y in spec.split(",") if y]:
        n, r = x.split("@"); r = [int(y) for y in r.split("-")]; L = GR.pop(n)
        for i, y in enumerate(L): ins.setdefault(r[0] + (r[-1] - r[0]) * i // len(L), []).append(y)
    for i in range(300):
        pt(f"{nm}{i}")
        emits(ins.get(i, []))
        if i < len(M): emit(M[i])
def sched(S, spec, free):
    for x in spec.split(","):
        n, T = x.split("@"); T = int(T)
        if n[0] == "r":
            j = int(n[1:]); assert T >= 34 + 2 * j
            for i, g in enumerate(w_raw(j)): put(S, T + i, [g])
        elif n[0] == "c": assert T != 30; put(S, T, [clr2(*CLR[int(n[1:])], T)])
        else:
            j, sl = map(int, n.split(":")); assert T > free[sl], x
            put(S, T, [w_item(j, sl)])

def witems(spec):
    L = []
    for x in [y for y in spec.split(",") if y]:
        j, sl = map(int, x.split(":")); L.append(w_item(j, sl))
    return L
st1 = a.save()
a(f"""s_bitcmp1_b32 s2, 7
s_cbranch_scc1 L_B""")
TYPE[0] = 0
S, E = {}, {}
start(0, S, E)
put(S, 30, ph_reads())
put(S, 32, ph_signs())
V = []
for hf in range(2):
    V += [f"v_mul_f32 v{K1+8*hf+i}, v{K1+8*hf+i}, v{vRSTD}" for i in range(8)]
    V += [f"v_cvt_pk_bf16_f32 v{K1+8*hf+i}, v{K1+8*hf+2*i}, v{K1+8*hf+2*i+1}" for i in range(4)]
    V += [dsw(f"ds_write_b128 v{vVW}, {v(K1+8*hf,4)} offset:{32*hf}")]
L = [f"v_cvt_pk_bf16_f32 v{vT+j}, v{K0+2*j}, v{K0+2*j+1}" for j in range(8)]
L += [ptf("L1")] + V[:2] + [f"{MF} {v(K0,16)}, {v(PH[0],4)}, {v(vT,4)}, 0"] + V[2:] + [f"{MF} {v(K1,16)}, {v(PH[1],4)}, {v(vT+4,4)}, 0"]
PKA = opt("pka", 1)
for hd, P in enumerate((K0, K1)):
    L += [ptf(f"L{2+hd}")] + softmax(P, P, PKA, vT)
    L += [dsw(f"ds_write_b128 v{vPW0}, {v(P,4)} offset:{hd*8192}"), dsw(f"ds_write_b128 v{vPW1}, {v(P+4,4)} offset:{hd*8192}")]
SPOS = opt("spos", 36)
KI = witems(opt("ki", "8:7"))
if KI: L = merge(L, KI, opt("ki0", 60))
spread(S, L, opt("ka", 33), SPOS)
FS = 44 if SPOS < 44 else 61
CLR = [(sSB0, 0), (sSB0, 2048)]
put(S, opt("fpa", 48), flag_store(1, "clr"))
sched(S, opt("sa", "c0@28,c1@28,7:6@31,r0@41,r1@44,r2@47,r3@50,r4@53,r5@56,r6@59"),
      {6: 29, 7: 29, 0: 44, 4: 44, 1: 61, 5: 61, 2: FS, 3: FS, 8: FS})
def kv():
    KB = [K1, K1 + 8, vT]
    def kv_reads(t):
        b = KB[t % 3]
        a.ds(f"ds_read_b64_tr_b16 {v(b,2)}, v{vKA0} offset:{t*1024}", f"kv{t}")
        a.ds(f"ds_read_b64_tr_b16 {v(b+2,2)}, v{vKA1} offset:{t*1024+256}", f"kv{t}")
        a.ds(f"ds_read_b64_tr_b16 {v(b+4,2)}, v{vKB} offset:{t*2304}", f"kv{t}")
        a.ds(f"ds_read_b64_tr_b16 {v(b+6,2)}, v{vKB} offset:{t*2304+576}", f"kv{t}")
    if opt("kprio", 1): a("s_setprio 2")
    for t in range(3): kv_reads(t)
    for t in range(8):
        a.wait(lg=f"kv{t}")
        b = KB[t % 3]
        a(f"{MF} {v(K0,16)}, {v(b,4)}, {v(b+4,4)}, {'0' if t == 0 else v(K0,16)}")
        if t >= 1 and t + 2 < 8: kv_reads(t + 2)
    for i in range(8): a(f"v_cvt_pk_bf16_f32 v{K1+i}, v{K0+2*i}, v{K0+2*i+1}")
    for i in range(4): a(f"v_permlane16_swap_b32 v{K1+i}, v{K1+4+i}")
    a(f"""buffer_store_dwordx4 {v(K1,4)}, v{vL16}, {srd(sWS)}, s{sC0} offen sc1
    s_mov_b32 exec_lo, 0x00010001
    s_mov_b32 exec_hi, 0x00010001
    buffer_store_dwordx4 {v(K1+4,4)}, v{vL}, {srd(sWS)}, s{sC0} offen offset:1024 sc1
    s_mov_b64 exec, -1""")
    if opt("kprio", 1): a("s_setprio 0")
    pt("kv")
put(E, SPOS, [bar(None, "all", "S"), fn(lambda: skip_if(f"s_cmp_eq_u32 s{sH}, 0", kv, "L_kv"))])
spread(S, selectors(K1), max(SPOS + 2, 50), 61)
CPR = opt("cpr", 1)
put(E, 61, [bar(None, "all", "Y"), p6f([w_item(10, 1), w_item(11, 5)])] + ["s_setprio 3"] * CPR)
stream(0, S, E)
def groups():
    G = {"a": [a_load(j) for j in range(4)], "b": [a_load(j) for j in range(4, 8)], "c": c_loads(), "o": o_loads(),
         "w": bnc_addrs() + sum([w_conv(j) for j in range(7 - len(WP[TYPE[0]]))], []), "s": rest(), "r": [rs_load(), res_load()]}
    if opt("bsp", 0): G["q"] = G["b"][2:]; G["b"] = G["b"][:2]
    for k in (1,): G[f"p{k}"] = [poll(k)]; G[f"k{k}"] = [poll_check(k)]
    return G
GR = groups()
place(mish_store(K2, True, sSB0, vMT) + ["s_setprio 0"] * CPR + [ptf("ms")] + tail_addrs(), opt("ao", "p1@0,s@0-24,w@40-90,k1@25,a@25-40,b@78-90,r@96"), GR)
phase2(0, {1: [fn(lambda: if_first(ep_loads), 4)]}, GR, opt("ap", "c@3,o@7"))

a.label("L_B")
a.restore(st1)
TYPE[0] = 1
WS_.clear()
S, E = {}, {}
start(1, S, E)
J0 = opt("j0", 17)
assert J0 % 4 == 1
put(E, J0, [w_item(7, 8)])
CLR = [(sC0, 0), (sC0, 2048)]
sched(S, opt("sb", "c0@28,c1@28," * OSENT + "8:2@31,r0@37,r1@40,r2@43,r3@46,r4@49,r5@52,r6@55"),
      {2: 29, 3: 29, 6: 29, 7: 29, 0: 44, 4: 44})
PKB = opt("pkb", 1)
MB = mish_store(K0, PKB, sSB0, vT) + mish_store(K1, PKB, sC1, vT) + selectors(K0 + 8)
MI = witems(opt("mi", "9:3,12:6,13:7"))
if MI: MB = merge(MB, MI, opt("mi0", 20))
spread(S, MB, 33, opt("ma", 35))
FPB = opt("fpb", 58)
if FPB: put(S, FPB, flag_store(1, "st"))
put(S, 56, ph_reads()); put(S, 62, ph_signs())
put(E, 61, [bar(None, "all", "Y"), p6f([w_item(10, 1), w_item(11, 5)])] + ["s_setprio 3"] * CPR)
vTL = [K0 + 4 * i for i in range(8)]; vZL = 128 if opt("gpos", 0) else 64
Q0, Q1 = 216, 232
def t_load(i, tag=None):
    def p():
        a(f"s_movk_i32 s{sT1}, {(i>>1)*4*1152}")
        a.vmem(f"buffer_load_dwordx4 {v(vTL[i],4)}, v{vGA}, {srd(sWS)}, s{sT1} offen offset:{(i&1)*256} sc1", tag or "t")
    return fn(p, 4)
def z_load(tag=None): return vm(f"buffer_load_dwordx4 {v(vZL,4)}, v{vGZ}, {srd(sWS)}, 0 offen offset:1024 sc1", tag or "t")
GL = [z_load()] + [t_load(i) for i in range(8)]
GPOS = opt("gpos", 0)
if GPOS:
    assert GPOS > 44
    spread(S, [ptf("g0")] + GL, GPOS, opt("gend", 61))
PP = opt("pp", 0)
if PP: put(S, PP, [poll(1)])
stream(1, S, E)
for j in range(8): a(f"v_cvt_pk_bf16_f32 v{K2+j}, v{K2+2*j}, v{K2+2*j+1}")
a(f"{MF} {v(Q0,16)}, {v(PH[0],4)}, {v(K2,4)}, 0")
a(f"{MF} {v(Q1,16)}, {v(PH[1],4)}, {v(K2+4,4)}, 0")
M = softmax(Q0, Q0, True, 20) + softmax(Q1, Q0 + 8, True, 20)
print("B list", len(M))
GR = groups()
GR.update({"h": ["s_setprio 3"], "l": ["s_setprio 0"]})
if not GPOS: GR["g"] = GL
if PP: GR.pop("p1")
if not FPB: GR["f"] = flag_store(1, "st")
vD, vDZ = K2 + 8, K2 + 12
vKF = 64
def got():
    pt("sm")
    a.wait(vm="t")
    checked(maxchain(vTL + [vZL], vD), lambda: emits([z_load("x")] + [t_load(i, "x") for i in range(8)]), "L_t")
    pt("g")
D = [fn(got), f"{MF16} {v(vDZ,4)}, {v(vS0,4)}, {v(vZL,4)}, 0"]
D += [f"{MF16} {v(vD,4)}, {v(vS0+4*(i&1),4)}, {v(vTL[i],4)}, {'0' if i == 0 else v(vD,4)}" for i in range(8)]
for sh in (2, 4):
    D += [f"v_add_f32_dpp v{vDZ+j}, v{vDZ+j}, v{vDZ+j} row_ror:{sh} row_mask:0xf bank_mask:0xf" for j in range(4)]
D += [f"v_cvt_pk_bf16_f32 v{vDZ}, v{vDZ}, v{vDZ+1}", f"v_cvt_pk_bf16_f32 v{vDZ+1}, v{vDZ+2}, v{vDZ+3}",
      grp(["s_mov_b64 exec, 0x30003", dsw(f"ds_write_b64 v{vZW}, {v(vDZ,2)} offset:256"), "s_mov_b64 exec, -1"]),
      f"v_cvt_pk_bf16_f32 v{vD}, v{vD}, v{vD+1}", f"v_cvt_pk_bf16_f32 v{vD+1}, v{vD+2}, v{vD+3}", dsw(f"ds_write_b64 v{vKW}, {v(vD,2)}")]
GR["d"] = D
GR["e"] = [bar(None, "all", "K")] + [dsw(f"ds_read_b128 {v(vKF+8*hh+4*j,4)}, v{vKR} offset:{hh*1088+j*272}", f"kf{hh}") for hh in range(2) for j in range(2)]
place(M, opt("bo", "g@0-20,p1@21,s@30-60,d@100,k1@120,a@120,e@122"), GR)
X = split(tail_addrs(), 3)
emits(X[0])
OD = [K2, K1]
for hh in range(2):
    a.wait(lg=f"kf{hh}")
    a(f"{MF} {v(OD[hh],16)}, {v(vKF+8*hh,4)}, {v(Q0+8*hh,4)}, 0")
    a(f"{MF} {v(OD[hh],16)}, {v(vKF+8*hh+4,4)}, {v(Q0+8*hh+4,4)}, {v(OD[hh],16)}")
emits(X[1] + X[2])
for D in OD: a(f"v_add_f32 v{D+8}, 0x358637bd, v{D+8}")
for D in OD: a(f"v_rcp_f32 v{D+8}, v{D+8}")
for D in OD: a(f"v_mul_f32 v{D+8}, v{D+8}, v{vSD}")
for hh, D in enumerate(OD):
    for i in range(0, 8, 2): a(f"v_pk_mul_f32 {P2(D+i)}, {P2(D+i)}, {P2(D+8)} op_sel_hi:[1,0]")
    for i in range(4): a(f"v_cvt_pk_bf16_f32 v{D+12+i}, v{D+2*i}, v{D+2*i+1}")
    frag_store(D + 12, sC0, hh)()
if CPR: a("s_setprio 0")
pt("o")
W = GR.pop("w", [])
place(W, opt("bn", "b@0,r@10"), GR, "N")
phase2(1, {}, GR, opt("bp", "c@2,o@6"))

for blk in retries: blk()
a.label("L_fin")
if STAMP >= 0:
    n = nst[0]
    a(f"""s_cmp_eq_u32 s{sW}, {STAMP}
    s_cbranch_scc0 L_end
    s_waitcnt lgkmcnt(0)
    s_sub_u32 s{sT0}, {SPIN}, s{sCNT}
    s_mul_i32 s{sT0}, s{sT0}, 100
    s_add_u32 s{sST0+2}, s{sST0}, s{sT0}
    s_addc_u32 s{sST0+3}, s{sST0+1}, 0
    s_mul_i32 s{sT0}, s2, {n*8}
    s_add_u32 s{sT0}, s{sT0}, {STAMP_OFF}
    s_mov_b64 exec, 1""")
    for i in range(n):
        a(f"v_mov_b32 v{64+2*i}, s{sST0+2*i}")
        a(f"v_mov_b32 v{65+2*i}, s{sST0+2*i+1}")
        a(f"buffer_store_dwordx2 {v(64+2*i,2)}, off, {srd(sWS)}, s{sT0} offset:{i*8}")
a.label("L_end")
a.pad()
open(out_path, "w").write(header(256, 512, LDS_SIZE) + a.text() + footer(vgpr=256))
print("instructions:", sum(1 for x in a.L if x.states), "nops:", sum(1 for x in a.L if x.kind == "nop"), "stamps", nst[0])
```

```python
import sys
from asmdsl import Asm
from gen_common import header, footer

OPT = dict(a.split("=") for a in sys.argv[2:])
def opt(k, d): return type(d)(OPT.get(k, d))
STAMP = opt("stamp", -1)
CYC = opt("cyc", 0)
PTS = [p.split("|") for p in opt("pts", "p0,p1,Y,S|g,kv|o,f0,f2,end").split(",") if p]
ROTM = opt("rotm", 7)
ROT2 = opt("rot2", 7)
SPIN = opt("spin", 200000)
out_path = sys.argv[1]

SZ = 16384
KVL, WPHI, CW, BNC = 9 * SZ, 9 * SZ + 2048, 9 * SZ + 4096, 9 * SZ + 8192
PHI, VIMG = 2 * SZ, 8 * SZ
LDS_SIZE = 163840
REC1 = 0x1000
KVD = 0x20000
FLG = 0xc0000
ACT = 0x140000
DUM = 0x1000000
STAMP_OFF = 128 << 20

sW, sSIG, sH, sT0, sT1 = 3, 4, 5, 6, 7
sX, sWD, sWE, sW2, sWO, sOUT, sWS = 8, 12, 16, 20, 24, 28, 32
sPH, sB1, sPC = 36, 40, 44
sHALF, sISQ, sLOm, sFM, sMASK, sCM = 36, 38, 40, 42, 44, 46
sFMB, sTILE, sFL, sFB, sRA2, sRW2 = 48, 50, 51, 52, 53, 54
(sM0R, sTAG, sCNT, sT2, sT3, sRHO, sRB, sG, sSTART, sT4, sC0, sC1, sSB0, sOB, sRA, sRW, sAO, sR2,
 sRB2, sCB, sGAM, sREC, sSTR, sKB) = range(56, 80)
sST0 = 82
sLO = f"s[{sLOm}:{sLOm+1}]"
def srd(n): return f"s[{n}:{n+3}]"
def sp(n): return f"s[{n}:{n+1}]"

vL = 0
vXO, vWA, vWC, vL16, vBA = 1, 3, 5, 7, 8
vA2L, vA2M, vA2T = 1, 3, 5
vBC, vSD, vC1, vRSTD = 10, 11, 12, 13
vCAW, vCAR, vPL, vPM = 14, 15, 16, 20
vT = 24
vW2O, vWOO, vFL, vACT, vA2B, vFV = 32, 34, 36, 37, 38, 39
vXA, vSEL, vCS = 40, 44, 48
vPHA, vSGN = 56, 57
vPW0, vPW1, vKA0, vKA1, vKB, vVW = 58, 59, 60, 61, 62, 63
vGA, vGZ, vKW, vZW, vKR = 58, 59, 60, 61, 62
vWF = 64
K2, K0, K1 = 80, 96, 112
vX = 128
def v(n, k=1): return f"v{n}" if k == 1 else f"v[{n}:{n+k-1}]"
def P2(n): return v(n, 2)

a = Asm()
nst = [2]
def stamp(i):
    if STAMP >= 0:
        assert i < 10
        a(f"{'s_memtime' if CYC else 's_memrealtime'} s[{sST0+2*i}:{sST0+2*i+1}]")
        nst[0] = max(nst[0], i + 1)
def pt(name):
    for i, p in enumerate(PTS):
        if name in p: stamp(2 + i)

MF = "v_mfma_f32_32x32x16_bf16"
MF16 = "v_mfma_f32_16x16x32_bf16"
MF32 = "v_mfma_f32_32x32x2_f32"
LOG2E = "0x3fb8aa3b"

def lines(txt): return [l.strip() for l in txt.strip().split("\n") if l.strip()]
def cost(x):
    if callable(x): return getattr(x, "cost", 1)
    return 2 if ("v_exp" in x or "v_rcp" in x or "v_mfma" in x) else 1
def emit(x):
    if callable(x): x()
    else: a(x)
def emits(L):
    for x in L: emit(x)
def fn(f, c=1):
    f.cost = c; return f
def ptf(name): return fn(lambda: pt(name), 0)
def grp(L): return fn(lambda: emits(L), sum(cost(x) for x in L))
def merge(main, side, start=0, end=None):
    end = len(main) if end is None else min(end, len(main))
    tot = sum(cost(x) for x in main[start:end]); out = list(main[:start]); acc = 0; k = 0
    for x in main[start:end]:
        while k < len(side) and acc >= k * tot / len(side): out.append(side[k]); k += 1
        out.append(x); acc += cost(x)
    return out + side[k:] + list(main[end:])
def split(L, n):
    tot = sum(cost(x) for x in L); G = [[] for _ in range(n)]; acc = 0
    for x in L:
        G[min(n - 1, int(acc * n / max(tot, 1)))].append(x); acc += cost(x)
    return G
def vm(txt, tag):
    if opt("now2", 0) and tag[0] == "w": return fn(lambda: None, 3)
    return fn(lambda: a.vmem(txt, tag), 3)
def dsw(txt, tag="w"): return fn(lambda: a.ds(txt, tag), 2)
def wt(**kw): return fn(lambda: a.wait(**kw), 0)

retries = []
def checked(cmp_lines, reload, name):
    lab = a.newlabel(name)
    a.label(lab + "_c")
    for l in cmp_lines: a(l)
    a(f"s_cbranch_vccnz {lab}_r")
    a.label(lab + "_k")
    def blk():
        a.label(lab + "_r")
        a(f"""s_cmp_eq_u32 s{sCNT}, 0
        s_cbranch_scc1 {lab}_k
        s_sub_u32 s{sCNT}, s{sCNT}, 1""")
        reload()
        a(f"""s_waitcnt vmcnt(0)
        s_branch {lab}_c""")
    retries.append(blk)
def skip_if(cmp_line, body, name):
    lab = a.newlabel(name)
    a(cmp_line); a(f"s_cbranch_scc0 {lab}")
    st = a.save()
    body()
    a.label(lab)
    a.restore(st)

t0, t1, t2, t3, u0, u1, u2, u3 = range(vT, vT + 8)
LT = vX + 96
vXR, vRC, vCL = LT, LT + 16, LT + 20
vRW_, vSW_, vEP, vRA1 = LT + 24, LT + 25, LT + 26, 6
TYPE = [0]
RS = [0, 4, 1, 5]
def rot(c, d): return [f"s_add_u32 s{d}, s{sRHO}, {128*c}", f"s_and_b32 s{d}, s{d}, 0x380"]
def x_item(c):
    s = [f"s_add_u32 m0, s{sM0R}, {(c & 3) * SZ}"] + rot(c, sT0)
    return [s + [vm(f"buffer_load_dwordx4 v{vXO}, {srd(sX)}, s{sT0} offen lds", f"x{c}")],
            [vm(f"buffer_load_dwordx4 v{vXO+1}, {srd(sX)}, s{sT0} offen offset:1024 lds", f"x{c}")]]
def w_item1(c):
    b = (4 + (c & 3)) * SZ
    return [[f"s_add_u32 m0, s{sM0R}, {b}", f"s_mul_i32 s{sT0}, s{sT0}, s{sSTR}",
             vm(f"buffer_load_dwordx4 v{vWA}, {srd(sWD)}, s{sT0} offen lds", f"x{c}")],
            [f"s_add_u32 m0, s{sM0R}, {b+1024}", vm(f"buffer_load_dwordx4 v{vWA+1}, {srd(sWD)}, s{sT0} offen lds", f"x{c}")]]
def r_item(i):
    return [[f"s_add_u32 m0, s{sM0R}, {RS[i]*SZ + 1024*k}"] + rot(2 * i + k, sT0) +
            [f"s_mul_i32 s{sT0}, s{sT0}, {(1376, 1536)[TYPE[0]]}", vm(f"buffer_load_dwordx4 v{vWC}, {srd(sWE)}, s{sT0} offen lds", f"b{i}")]
            for k in range(2)]
def item(n):
    i = int(n[1:])
    return x_item(i) + w_item1(i) if n[0] == "x" else r_item(i)

PRIO = opt("prio", 1)
a(f"""s_cmp_ge_u32 s2, 256
s_cbranch_scc1 L_end""")
stamp(0)
a(f"""s_getpc_b64 {sp(sPC)}
L_pc:
s_load_dwordx2 {sp(sX)}, s[0:1], 0
s_lshr_b32 s{sT1}, s2, 2
s_and_b32 s{sT1}, s{sT1}, 32
s_add_u32 s{sT3}, s{sT1}, 8
s_load_dwordx2 {sp(sWD)}, s[0:1], s{sT3}
s_bfe_u32 s{sT0}, s2, 0x30003
v_lshrrev_b32 v{t0}, 6, v0
s_mov_b32 s{sPC+2}, L_end-L_pc
v_lshl_add_u32 v{t1}, v0, 3, s{sT0}
s_mov_b32 s{sPC+3}, 0x00020000
v_lshlrev_b32 v{t1}, 7, v{t1}
v_readfirstlane_b32 s{sW}, v{t0}
buffer_load_dword v{LT+27}, v{t1}, {srd(sPC)}, 0 offen""")
if PRIO: a("s_setprio 3")
if opt("sw2", 0): a(f"""s_load_dwordx2 {sp(sW2)}, s[0:1], 56
s_load_dwordx2 {sp(sWO)}, s[0:1], 24""")
a(f"""s_load_dwordx2 {sp(sWS)}, s[0:1], 80
v_lshrrev_b32 v{vRW_}, 3, v0
s_sub_u32 s{sT4}, 40, s{sT1}
s_and_b32 s{sT1}, s2, 1
v_and_b32 v{t1}, 56, v{vRW_}
s_lshl3_add_u32 s{sRB}, s{sT1}, s{sT0}       ; rb
v_add_u32 v{t0}, v{vRW_}, v{t1}
s_lshr_b32 s{sT1}, s2, 6
v_bfe_u32 v{t2}, v0, 4, 2
s_lshl1_add_u32 s{sRHO}, s{sT1}, s{sT0}
v_bitop3_b32 v{t2}, v0, v{t2}, 7 bitop3:0x28
s_lshl_b32 s{sT2}, s{sRB}, 17
v_lshl_add_u32 v{t2}, v{t2}, 4, s{sT2}
s_and_b32 s{sRHO}, s{sRHO}, {ROTM}
v_lshl_add_u32 v{vXO}, v{t0}, 10, v{t2}
s_lshl_b32 s{sRHO}, s{sRHO}, 7
v_xor_b32 v{vXO+1}, 64, v{vXO}
s_lshl_b32 s{sM0R}, s{sW}, 11
v_add_u32 v{vXO+1}, {8192-1024}, v{vXO+1}
s_mov_b32 s{sX+2}, {2048*1024}
v_bfe_u32 v{t3}, v0, 4, 1
s_mov_b32 s{sX+3}, 0x00020000
v_lshlrev_b32 v{t3}, 2, v{t3}
s_mov_b32 m0, s{sM0R}
v_bitop3_b32 v{t3}, v0, v{t3}, 7 bitop3:0x28
s_bfe_u32 s{sT1}, s2, 0x10006
v_lshlrev_b32 v{vSW_}, 4, v{t3}
s_and_b32 s{sG}, s2, 6
s_or_b32 s{sG}, s{sG}, s{sT1}                ; g
s_mul_i32 s{sSTART}, s{sG}, 11
s_waitcnt lgkmcnt(0)""")
a.vmem(f"buffer_load_dwordx4 v{vXO}, {srd(sX)}, s{sRHO} offen lds", "x0")
a(f"""s_add_u32 s{sSTART}, s{sSTART}, 1
s_lshr_b32 s{sSTART}, s{sSTART}, 1
s_min_u32 s{sSTART}, s{sSTART}, 38
s_lshl1_add_u32 s{sT1}, s{sG}, 16""")
a.vmem(f"buffer_load_dwordx4 v{vXO+1}, {srd(sX)}, s{sRHO} offen offset:1024 lds", "x0")
a(f"""s_movk_i32 s{sSTR}, 1536
s_movk_i32 s{sT2}, 1024
s_bitcmp1_b32 s2, 7
s_cselect_b32 s{sSTR}, 1376, s{sSTR}
s_cselect_b32 s{sT1}, s{sSTART}, s{sT1}
s_cselect_b32 s{sT2}, 128, s{sT2}
v_mul_u32_u24 v{vWA}, s{sSTR}, v{vRW_}
s_lshl_b32 s{sT1}, s{sT1}, 6
s_lshl_b32 s{sWD+2}, s{sSTR}, 10
v_lshl_add_u32 v{vWA}, v{vWA}, 1, v{vSW_}
s_mov_b32 s{sWD+3}, 0x00020000
s_mov_b32 s{sT0}, s{sRHO}
v_add_u32 v{vWA}, s{sT1}, v{vWA}
s_load_dwordx2 {sp(sWE)}, s[0:1], s{sT4}
v_add_u32 v{vWA+1}, s{sT2}, v{vWA}""")
for L in w_item1(0): emits(L)
pt("i0")
a(f"""v_and_b32 v{vL}, 63, v0
s_lshr_b32 s{sT1}, s2, 7
s_lshl1_add_u32 s{sT1}, s{sRB}, s{sT1}
v_lshlrev_b32 v{vL16}, 4, v{vL}
s_lshl3_add_u32 s{sT1}, s{sT1}, s{sG}
s_lshl3_add_u32 s{sREC}, s{sT1}, s{sW}
s_lshl_b32 s{sT1}, s{sREC}, 10
s_mov_b32 s{sWS+2}, {256<<20}
s_mov_b32 s{sWS+3}, 0x00020000
s_lshr_b32 s{sH}, s{sW}, 2""")
TA = opt("ta", 0)
def wtouch():
    if TA & 1 and TYPE[0]: return
    a(f"""s_and_b32 s{sT2}, s2, 127
    v_lshlrev_b32 v{t0}, 7, v{vL}
    s_lshl3_add_u32 s{sT2}, s{sT2}, s{sW}
    s_mul_i32 s{sT2}, s{sT2}, {12*128}
    s_mov_b64 exec, 0xfff
    v_add_u32 v{t0}, s{sT2}, v{t0}""")
    a.vmem(f"buffer_load_dword v{LT+27}, v{t0}, {srd(sWD)}, 0 offen", "tch")
    if TA & 1: a.vmem(f"buffer_load_dword v{LT+27}, v{t0}, {srd(sWE)}, 0 offen", "tch")
    a("s_mov_b64 exec, -1")
MW = opt("mw", 0)
SW = opt("sw", 0)
def stouch():
    a(f"""s_and_b32 s{sT2}, s2, 127
    s_lshl3_add_u32 s{sT2}, s{sT2}, s{sW}
    s_mul_i32 s{sT2}, s{sT2}, {12*128}""")
    for o in range(0, 12 * 128, SW): a(f"s_buffer_load_dword s80, {srd(sWD)}, s{sT2} offset:{o}")
    if opt("sw2", 0):
        a(f"""s_lshl3_add_u32 s{sT2}, s2, s{sW}
        s_mov_b32 s{sW2+2}, {1376*1024}
        s_mov_b32 s{sW2+3}, 0x00020000
        s_mov_b32 s{sWO+2}, {512*1024}
        s_mov_b32 s{sWO+3}, 0x00020000
        s_mul_i32 s{sT3}, s{sT2}, {6*128}
        s_lshl_b32 s{sT2}, s{sT2}, 8""")
        for o in range(0, 6 * 128, SW): a(f"s_buffer_load_dword s80, {srd(sW2)}, s{sT3} offset:{o}")
        for o in range(0, 2 * 128, SW): a(f"s_buffer_load_dword s80, {srd(sWO)}, s{sT2} offset:{o}")
if MW == 1: wtouch()
a.vmem(f"buffer_load_dwordx4 {v(vXR,4)}, v{vL16}, {srd(sX)}, s{sT1} offen", "xr")
a.vmem(f"buffer_load_dword v{vEP}, off, {srd(sWS)}, 0 sc1", "xr")
if MW == 2: wtouch()
if SW: stouch()
if PRIO: a("s_setprio 0")
B3 = lines(f"""s_load_dwordx2 {sp(sPH)}, s[0:1], 16
s_load_dwordx2 {sp(sB1)}, s[0:1], 48
s_load_dwordx2 {sp(sW2)}, s[0:1], 56
s_load_dwordx2 {sp(sWO)}, s[0:1], 24
s_load_dwordx2 {sp(sOUT)}, s[0:1], 64
s_and_b32 s{sSIG}, s{sW}, 3
v_and_b32 v{u0}, 31, v{vL}
s_xor_b32 s{sT3}, s{sSIG}, s{sH}
v_lshrrev_b32 v{u1}, 5, v{vL}
v_bfe_u32 v{u2}, v{vL}, 1, 3
s_lshl_b32 s{sT2}, s{sSIG}, 7
v_xor_b32 v{u2}, v{u1}, v{u2}
s_add_u32 s{sT2}, s{sT2}, s{sT3}
v_lshlrev_b32 v{u2}, 4, v{u2}
s_lshl_b32 s{sT2}, s{sT2}, 5
v_lshl_add_u32 v{u2}, v{u0}, 7, v{u2}
v_bfe_u32 v{t0}, v{vL}, 2, 2
v_xor_b32 v{vXA}, s{sT2}, v{u2}
v_bfe_u32 v{t1}, v{vL}, 4, 1
v_xor_b32 v{vXA+1}, 32, v{vXA}
v_and_b32 v{t2}, 3, v{vL}
v_xor_b32 v{vXA+2}, 64, v{vXA}
v_lshlrev_b32 v{t2}, 3, v{t2}
v_xor_b32 v{vXA+3}, 96, v{vXA}
v_lshl_add_u32 v{t2}, v{t1}, 5, v{t2}
v_lshrrev_b32 v{u2}, 1, v{t0}
s_lshl_b32 s{sT2}, s{sT3}, 6
v_lshl_add_u32 v{u2}, v{u2}, 6, v{t2}
s_add_u32 s{sT2}, s{sT2}, s{sH}
v_lshl_add_u32 v{t3}, v{t0}, 7, v{u2}
s_lshl_b32 s{sT2}, s{sT2}, 6
v_lshl_add_u32 v{u2}, v{u1}, 11, v{t3}
s_or_b32 s{sT2}, s{sT2}, 0x10000
v_xor_b32 v{u3}, v{t0}, v{t1}
v_xor_b32 v{vPM}, s{sT2}, v{u2}
v_and_b32 v{u3}, 1, v{u3}
v_xor_b32 v{vPM+1}, 4096, v{vPM}
v_cmp_eq_u32 vcc, 0, v{u3}
v_xor_b32 v{vPM+2}, 8192, v{vPM}
v_mov_b32 v{u3}, 0x3f803f80
v_xor_b32 v{vPM+3}, 12288, v{vPM}""")
if opt("sw2", 0): B3 = B3[:2] + B3[4:]
B3 += [f"v_cndmask_b32 v{vSEL+i}, 0, v{u3}, vcc" for i in range(4)]
PRO = opt("pro", "x1").split(",")
PRE2 = opt("pre2", 8)
B3N = opt("b3n", 0)
if PRE2 & 8: emits(B3[:B3N])
else: emits(merge(B3, [grp(L) for n in PRO for L in item(n)]))


def mish(acc, pk, tmp):
    L = []
    for g in (0, 8):
        r = [acc + g + i for i in range(8)]; u = [tmp + i for i in range(8)]
        if pk:
            L += [f"v_pk_fma_f32 {P2(u[i])}, {P2(r[i])}, {P2(vC1)}, {sp(sHALF)} op_sel_hi:[1,0,1]" for i in range(0, 8, 2)]
            L += [f"v_exp_f32 v{u[i]}, v{u[i]}" for i in range(8)]
            L += [f"v_pk_add_f32 {P2(u[i])}, {P2(u[i])}, {sp(sISQ)}" for i in range(0, 8, 2)]
            L += [f"v_pk_fma_f32 {P2(u[i])}, {P2(u[i])}, {P2(u[i])}, {sp(sHALF)} neg_lo:[1,0,0] neg_hi:[1,0,0]" for i in range(0, 8, 2)]
            L += [f"v_rcp_f32 v{u[i]}, v{u[i]}" for i in range(8)]
            L += [f"v_pk_fma_f32 {P2(r[i])}, {P2(r[i])}, {P2(u[i])}, {P2(r[i])}" for i in range(0, 8, 2)]
        else:
            L += [f"v_fma_f32 v{u[i]}, v{r[i]}, v{vC1}, -0.5" for i in range(8)]
            L += [f"v_exp_f32 v{u[i]}, v{u[i]}" for i in range(8)]
            L += [f"v_add_f32 v{u[i]}, s{sISQ}, v{u[i]}" for i in range(8)]
            L += [f"v_fma_f32 v{u[i]}, -v{u[i]}, v{u[i]}, -0.5" for i in range(8)]
            L += [f"v_rcp_f32 v{u[i]}, v{u[i]}" for i in range(8)]
            L += [f"v_fmac_f32 v{r[i]}, v{r[i]}, v{u[i]}" for i in range(8)]
        L += [f"v_cvt_pk_bf16_f32 v{acc+g//2+i}, v{r[2*i]}, v{r[2*i+1]}" for i in range(4)]
        L.append(("half", g // 8))
    return L
def frag_store(reg, sb, half, tag="st"):
    return vm(f"buffer_store_dwordx4 {v(reg,4)}, v{vL16}, {srd(sWS)}, s{sb} offen offset:{half*2048} sc1", tag)
def mish_store(acc, pk, sb, tmp, tag="st"):
    return [frag_store(acc + 4 * x[1], sb, x[1], tag) if isinstance(x, tuple) else x for x in mish(acc, pk, tmp)]
def softmax(P, out, pk, m):
    L = [f"v_max3_f32 v{m}, v{P}, v{P+1}, v{P+2}", f"v_max3_f32 v{m+1}, v{P+3}, v{P+4}, v{P+5}"]
    for i in range(6, 14, 4):
        L += [f"v_max3_f32 v{m}, v{m}, v{P+i}, v{P+i+1}", f"v_max3_f32 v{m+1}, v{m+1}, v{P+i+2}, v{P+i+3}"]
    L += [f"v_max3_f32 v{m}, v{m}, v{P+14}, v{P+15}", f"v_max_f32 v{m}, v{m}, v{m+1}", f"v_mul_f32 v{m}, v{m}, v{vC1}"]
    if pk:
        L += [f"v_pk_fma_f32 {P2(P+i)}, {P2(P+i)}, {P2(vC1)}, {P2(m)} op_sel_hi:[1,0,0] neg_lo:[0,0,1] neg_hi:[0,0,1]" for i in range(0, 16, 2)]
        L += [f"v_exp_f32 v{P+i}, v{P+i}" for i in range(16)]
        L += [f"v_pk_add_f32 {P2(m)}, {P2(P)}, {P2(P+2)}", f"v_pk_add_f32 {P2(m+2)}, {P2(P+4)}, {P2(P+6)}"]
        L += [f"v_pk_add_f32 {P2(m+(i&2))}, {P2(m+(i&2))}, {P2(P+i)}" for i in range(8, 16, 2)]
        L += [f"v_pk_add_f32 {P2(m)}, {P2(m)}, {P2(m+2)}", f"v_add_f32 v{m}, v{m}, v{m+1}", f"v_rcp_f32 v{m}, v{m}"]
        L += [f"v_pk_mul_f32 {P2(P+i)}, {P2(P+i)}, {P2(m)} op_sel_hi:[1,0]" for i in range(0, 16, 2)]
    else:
        L += [f"v_fma_f32 v{P+i}, v{P+i}, v{vC1}, -v{m}" for i in range(16)]
        L += [f"v_exp_f32 v{P+i}, v{P+i}" for i in range(16)]
        L += [f"v_add_f32 v{m+i}, v{P+2*i}, v{P+2*i+1}" for i in range(4)]
        L += [f"v_add_f32 v{m+(i&3)}, v{m+(i&3)}, v{P+i}" for i in range(8, 16)]
        L += [f"v_add_f32 v{m}, v{m}, v{m+1}", f"v_add_f32 v{m+2}, v{m+2}, v{m+3}", f"v_add_f32 v{m}, v{m}, v{m+2}", f"v_rcp_f32 v{m}, v{m}"]
        L += [f"v_mul_f32 v{P+i}, v{P+i}, v{m}" for i in range(16)]
    L += [f"v_cvt_pk_bf16_f32 v{out+i}, v{P+2*i}, v{P+2*i+1}" for i in range(8)]
    return L

def one_lane(x): return grp(["s_mov_b64 exec, 1", x, "s_mov_b64 exec, -1"])
def rec_store(): return one_lane(vm(f"buffer_store_dwordx4 {v(vRC,4)}, off, {srd(sWS)}, s{sREC} sc1", "rec"))
def rec1_load(tag="rec1"): return vm(f"buffer_load_dwordx4 {v(vBC,4)}, v{vRA1}, {srd(sWS)}, 0 offen sc1", tag)
FOFF = [12, 0, 128, 4]
OSENT = 1
def pmask(k): return sp((sMASK, sFM)[k])
def poll(k, tag=None):
    return grp([f"s_mov_b64 exec, {pmask(k)}",
                vm(f"buffer_load_dword v{vFV}, v{vFL}, {srd(sWS)}, {f's{sFB}' if k else 0} offen offset:{FOFF[k]} sc1", tag or f"fl{k}"), "s_mov_b64 exec, -1"])
def poll_check(k):
    def p():
        a.wait(vm=f"fl{k}")
        checked([f"v_cmp_ne_u32 vcc, s{sTAG}, v{vFV}", f"s_and_b64 vcc, vcc, {pmask(k)}"], poll(k, "x"), "L_fl")
        pt(f"fl{k}")
    return fn(p, 3)
vTG = 63
def flag_store(k, tag):
    return [f"v_mov_b32 v{vTG}, s{sTAG}", wt(vm=tag), one_lane(vm(f"buffer_store_dword v{vTG}, off, {srd(sWS)}, s{sFL} offset:{FOFF[k]} sc1", "fs")), ptf(f"fs{k}")]
def clr2(sb, off, T):
    if opt("noclr", 0): return "s_nop 0"
    assert T > 27
    return vm(f"buffer_store_dwordx4 {v(vA2B if T > 30 else vT,4)}, v{vL16}, {srd(sWS)}, s{sb} offen offset:{off} sc1", "clr")

def stats():
    e = vXR + 4; r0, r1 = vXR + 12, vXR + 13
    def allsum(r):
        L = [f"v_add_f32_dpp v{r}, v{r}, v{r} row_ror:{s} row_mask:0xf bank_mask:0xf" for s in (8, 4, 2, 1)]
        L += [f"v_mov_b32 v{r1}, v{r}", f"v_permlane16_swap_b32 v{r}, v{r1}", f"v_add_f32 v{r}, v{r}, v{r1}",
              f"v_mov_b32 v{r1}, v{r}", f"v_permlane32_swap_b32 v{r}, v{r1}", f"v_add_f32 v{r}, v{r}, v{r1}"]
        return L
    S = [wt(vm="xr"), f"v_add_u32 v{vRC+3}, 1, v{vEP}"]
    for j in range(4):
        S += [f"v_lshlrev_b32 v{e+2*j}, 16, v{vXR+j}", f"v_and_b32 v{e+2*j+1}, 0xffff0000, v{vXR+j}"]
    S += [f"v_readfirstlane_b32 s{sTAG}, v{vRC+3}"]
    S += [f"v_add_f32 v{vXR+j}, v{e+2*j}, v{e+2*j+1}" for j in range(4)]
    S += [f"v_add_f32 v{vXR}, v{vXR}, v{vXR+1}", f"v_add_f32 v{vXR+2}, v{vXR+2}, v{vXR+3}", f"v_add_f32 v{r0}, v{vXR}, v{vXR+2}"]
    S += allsum(r0)
    S += [f"v_mul_f32 v{vRC}, 0xbb000000, v{r0}"]
    S += [f"v_add_f32 v{e+j}, v{e+j}, v{vRC}" for j in range(8)]
    S += [f"v_mul_f32 v{vXR+j}, v{e+j}, v{e+j}" for j in range(4)]
    S += [f"v_fmac_f32 v{vXR+j}, v{e+4+j}, v{e+4+j}" for j in range(4)]
    S += [f"v_add_f32 v{vXR}, v{vXR}, v{vXR+1}", f"v_add_f32 v{vXR+2}, v{vXR+2}, v{vXR+3}", f"v_add_f32 v{r0}, v{vXR}, v{vXR+2}"]
    S += allsum(r0)
    S += [f"v_mov_b32 v{r1}, 0x3727c5ac", f"v_fmac_f32 v{r1}, 0x3b000000, v{r0}", f"v_rsq_f32 v{vRC+2}, v{r1}",
          f"s_lshl4_add_u32 s{sREC}, s{sREC}, {REC1}" if not PRE2 & 10 else "s_nop 0", f"v_mul_f32 v{vRC+1}, v{r1}, v{vRC+2}"]
    return S

def consts0(ty):
    if ty: return []
    def clr(off): return vm(f"buffer_store_dwordx4 {v(vCL,4)}, v{vL16}, {srd(sWS)}, s{sC0} offen offset:{off} sc1", "clr")
    L = lines(f"""s_lshl2_add_u32 s{sT2}, s{sG}, s{sSIG}
    v_mov_b32 v{vCL}, -1
    s_lshl4_add_u32 s{sT2}, s{sT2}, s{sRB}
    s_mul_i32 s{sT2}, s{sT2}, 1152
    s_add_u32 s{sC0}, s{sT2}, {KVD}""")
    if not opt("noclr", 0): L += [clr(0), "s_mov_b64 exec, 15", clr(1024), "s_mov_b64 exec, -1"]
    return [fn(lambda: skip_if(f"s_cmp_eq_u32 s{sH}, 0", lambda: emits(L), "L_c0"))]
def bases(ty):
    L = lines(f"""s_lshr_b32 s{sT4}, s{sSIG}, 1
    s_lshl1_add_u32 s{sT4}, s{sRB}, s{sT4}
    s_mul_i32 s{sKB}, s{sT4}, 236
    s_and_b32 s{sT4}, s{sSIG}, 1
    s_add_u32 s{sKB}, s{sKB}, s{sT4}
    s_lshl2_add_u32 s{sT2}, s{sTILE}, s{sKB}
    s_lshl_b32 s{sT2}, s{sT2}, 10
    s_add_u32 s{sSB0}, s{sT2}, {ACT}
    s_mov_b32 s{sFB}, {FLG - 8 * REC1}
    s_lshl3_add_u32 s{sFL}, s{sREC}, s{sFB}""")
    if ty == 0:
        return L + lines(f"""s_lshr_b32 s{sT2}, 0xea, s{sG}
        s_and_b32 s{sT2}, s{sT2}, s{sH}
        s_mul_i32 s{sT2}, s{sT2}, {DUM}
        s_add_u32 s{sSB0}, s{sSB0}, s{sT2}""")
    return L + lines(f"""s_add_u32 s{sC1}, s{sSB0}, 8192
    s_lshl1_add_u32 s{sT2}, s{sG}, s{sH}
    s_lshl2_add_u32 s{sT2}, s{sT2}, s{sKB}
    s_lshl_b32 s{sT2}, s{sT2}, 10
    s_add_u32 s{sC0}, s{sT2}, {ACT + 172*1024}""")
def consts1(ty):
    L = [f"s_add_u32 s{sSTART}, s{sSTART}, 4"] * (1 - ty) + lines(f"""s_add_u32 s{sTILE}, s{sSTART}, s{sH}
    s_and_b32 s{sT2}, s2, 7
    s_bfe_u32 s{sT3}, s2, 0x20003
    s_lshl2_add_u32 s{sRB2}, s{sT2}, s{sT3}
    s_lshr_b32 s{sCB}, s2, 5
    s_mov_b32 s{sW2+2}, {1376*1024}
    s_mov_b32 s{sW2+3}, 0x00020000
    s_mov_b32 s{sWO+2}, {512*1024}
    s_mov_b32 s{sWO+3}, 0x00020000""")
    if opt("mt", 1):
        L += lines(f"""s_lshl3_add_u32 s{sT2}, s2, s{sW}
        s_lshl_b32 s{sT2}, s{sT2}, {11 if TA & 2 else 10}
        v_lshl_add_u32 v{vTCH}, v{vL}, 7, s{sT2}
        v_add_u32 v{vTCH+1}, {(1 << 32) - 1376 * 1024:#x}, v{vTCH}""") + [fn(lambda: None) if TA & 2 and ty else touch(0, 16 if TA & 2 else 8)]
    if TOUCH:
        L += lines(f"""s_lshl3_add_u32 s{sT2}, s{sT3}, s{sW}
        s_lshl_b32 s{sT2}, s{sT2}, 9
        s_add_u32 s{sT2}, s{sT2}, s{sCB}
        s_lshl_b32 s{sT2}, s{sT2}, 7
        v_lshl_add_u32 v{vTCH}, v{vL}, 10, s{sT2}
        v_add_u32 v{vTCH+1}, {(1 << 32) - 24 * 65536:#x}, v{vTCH}""")
    L += [f"s_lshl_b32 s{sT3}, s{sT3}, 1"] * (ROT2 == 7) + lines(f"""s_xor_b32 s{sT3}, s{sT3}, s{sCB}
    s_and_b32 s{sT3}, s{sT3}, {ROT2}
    s_lshl_b32 s{sRA}, s{sT3}, 11
    s_lshl_b32 s{sRW}, s{sT3}, 14
    s_lshr_b32 s{sT3}, s{sT3}, {(ROT2 == 7) * 1}
    s_lshl_b32 s{sRA2}, s{sT3}, 11
    s_lshl_b32 s{sRW2}, s{sT3}, 14
    s_lshl1_add_u32 s{sGAM}, s{sSIG}, s{sH}
    s_mul_i32 s{sT4}, s{sGAM}, 11
    s_add_u32 s{sT4}, s{sT4}, 1
    s_lshr_b32 s{sT4}, s{sT4}, 1
    s_min_u32 s{sT4}, s{sT4}, 38
    v_and_b32 v{u3}, 7, v{vRW_}
    v_lshl_add_u32 v{u3}, v{u3}, 10, v{vSW_}
    s_lshl_b32 s{sT2}, s{sT4}, 8
    s_add_u32 s{sT2}, s{sT2}, s{sCB}
    s_lshl_b32 s{sT2}, s{sT2}, 7
    v_add_u32 v{vW2O}, s{sT2}, v{u3}
    v_add_u32 v{vW2O+1}, {8192-1024}, v{vW2O}
    s_lshl_b32 s{sT2}, s{sGAM}, 9
    s_add_u32 s{sT2}, s{sT2}, s{sCB}
    s_lshl_b32 s{sT2}, s{sT2}, 7
    v_add_u32 v{vWOO}, s{sT2}, v{u3}
    v_add_u32 v{vWOO+1}, {8192-1024}, v{vWOO}
    s_mul_i32 s{sT2}, s{sRB2}, 59
    s_add_u32 s{sT2}, s{sT2}, s{sT4}
    s_lshl_b32 s{sT2}, s{sT2}, 12
    s_add_u32 s{sT2}, s{sT2}, {ACT}
    v_add_u32 v{vACT}, s{sT2}, v{vL16}
    s_lshl1_add_u32 s{sT3}, s{sGAM}, 43
    s_sub_u32 s{sT3}, s{sT3}, s{sT4}
    s_lshl_b32 s{sAO}, s{sT3}, 12
    s_mov_b32 s{sWE+2}, {512*(2752, 3072)[ty]}
    s_mov_b32 s{sWE+3}, 0x00020000
    s_lshl_b32 s{sT2}, s{(sSTART, sG)[ty]}, {(6, 7)[ty]}
    v_mul_u32_u24 v{vWC}, {(2752, 3072)[ty]}, v{vRW_}
    v_add3_u32 v{vWC}, v{vWC}, v{vSW_}, s{sT2}
    v_lshlrev_b32 v{vBA}, 1, v{u0}
    s_movk_i32 s{sB1+2}, 2752
    s_mov_b32 s{sB1+3}, 0x00020000
    s_lshl_b32 s{sT4}, s{sTILE}, 6""")
    L += [vm(f"buffer_load_ushort v{vBA+i}, v{vBA}, {srd(sB1)}, s{sT4} offen offset:{128*i}", "misc") for i in reversed(range(1 + ty))]
    L += lines(f"""s_mov_b32 s{sPH+2}, 16384
    s_mov_b32 s{sPH+3}, 0x00020000
    s_and_b32 s{sT2}, s{sW}, 1
    s_lshl_b32 s{sT2}, s{sT2}, 10
    s_lshl_b32 s{sT3}, s{sG}, 11
    s_add_u32 s{sT3}, s{sT3}, s{sT2}""")
    return L
TOUCH = [x for x in opt("touch", "").split(",") if x]
vTCH = LT + 28
def touch(l0, n):
    m = ((1 << n) - 1) << l0
    return grp([f"s_mov_b32 exec_lo, {m & 0xffffffff:#x}", f"s_mov_b32 exec_hi, {m >> 32:#x}",
                vm(f"buffer_load_dword v{vFV}, v{vTCH}, {srd(sW2)}, 0 offen", "tch"),
                vm(f"buffer_load_dword v{vFV}, v{vTCH+1}, {srd(sWO)}, 0 offen", "tch"), "s_mov_b64 exec, -1"])
def wphi_dma():
    return grp([f"s_add_u32 m0, s{sT2}, {WPHI}", f"s_mov_b32 s{sCNT}, {SPIN}",
                vm(f"buffer_load_dwordx4 v{vL16}, {srd(sPH)}, s{sT3} offen lds", "misc")])

def consts2(ty):
    L = lines(f"""s_lshl2_add_u32 s{sT2}, s{sRB}, s{sSIG}
    s_lshl_b32 s{sT2}, s{sT2}, 9
    s_add_u32 s{sT2}, s{sT2}, {REC1}
    v_lshl_add_u32 v{vRA1}, v{u0}, 4, s{sT2}
    s_lshl_b32 s{sT2}, s{sH}, 9
    s_add_u32 s{sT2}, s{sT2}, {CW}
    v_lshl_add_u32 v{vCAR}, v{u0}, 4, s{sT2}
    s_lshl_b32 s{sT2}, s{sSIG}, 2
    v_add_u32 v{vCAW}, s{sT2}, v{vCAR}
    v_lshl_add_u32 v{t3}, v{u1}, 9, v{t3}
    v_add_u32 v{vA2B}, s{sM0R}, v{t3}
    s_mov_b32 s{sHALF}, -0.5
    s_mov_b32 s{sHALF+1}, -0.5
    s_mov_b32 s{sISQ}, 0x3f3504f3
    s_mov_b32 s{sISQ+1}, 0x3f3504f3
    s_mov_b32 s{sLOm}, -1
    s_mov_b32 s{sLOm+1}, 0
    s_mov_b32 s{sMASK}, 0xffff0000
    s_mov_b32 s{sMASK+1}, 0
    v_lshl_add_u32 v{u3}, v{u1}, 2, v{t0}
    v_lshlrev_b32 v{u3}, 5, v{u3}
    v_lshl_add_u32 v{u3}, v{t1}, 4, v{u3}
    v_bfe_u32 v{t3}, v{vL}, 1, 1
    v_lshl_add_u32 v{u3}, v{t3}, 3, v{u3}
    s_lshl_b32 s{sT2}, s{sH}, 10
    s_add_u32 s{sT2}, s{sT2}, {WPHI}
    v_add_u32 v{vPHA}, s{sT2}, v{u3}
    v_bfe_i32 v{vSGN}, v{vL}, 2, 1
    v_and_b32 v{vSGN}, 0x80008000, v{vSGN}""")
    L += [f"v_and_b32 v{vPL+i}, 0xffff, v{vPM+i}" for i in range(4)]
    L += lines(f"""s_lshr_b32 s{sT2}, s{sRB2}, 1
    s_lshl4_add_u32 s{sT2}, s{sT2}, s{sGAM}
    s_lshl_b32 s{sT2}, s{sT2}, 7
    s_add_u32 s{sT2}, s{sT2}, {REC1}
    v_and_b32 v{u3}, 8, v{vL}
    v_mul_u32_u24 v{u3}, 0x70, v{u3}
    v_and_b32 v{u2}, 15, v{vL}
    v_lshl_add_u32 v{u3}, v{u2}, 4, v{u3}
    v_add_u32 v{vFL}, s{sT2}, v{u3}""")
    if ty == 0:
        L += lines(f"""s_lshl_b32 s{sT4}, s{sSIG}, 5
        v_add_u32 v{u0}, s{sT4}, v{u0}
        v_bfe_u32 v{u2}, v{vL}, 1, 2
        v_lshlrev_b32 v{u3}, 1, v{u1}
        v_xor_b32 v{u2}, v{u2}, v{u3}
        s_lshl_b32 s{sT2}, s{sH}, 14
        s_add_u32 s{sT2}, s{sT2}, {PHI}
        v_lshl_add_u32 v{u2}, v{u2}, 4, s{sT2}
        v_lshl_add_u32 v{vPW0}, v{u0}, 6, v{u2}
        v_xor_b32 v{vPW1}, 16, v{vPW0}
        v_mul_u32_u24 v{u0}, 144, v{u0}
        v_add_u32 v{u0}, {VIMG}, v{u0}
        v_mov_b32 v{vTCH+2}, 0x3f803f80
        v_mov_b32 v{vTCH+3}, 0x3f803f80""") + [dsw(f"ds_write_b64 v{u0}, {v(vTCH+2,2)} offset:128")] + lines(f"""
        s_lshl_b32 s{sT2}, s{sH}, 6
        v_lshl_add_u32 v{vVW}, v{u1}, 4, s{sT2}
        v_add_u32 v{vVW}, v{vVW}, v{u0}
        v_lshl_add_u32 v{u1}, v{u1}, 3, v{t0}
        v_and_b32 v{u2}, 1, v{vL}
        v_lshl_add_u32 v{u2}, v{u2}, 1, v{t1}
        v_lshrrev_b32 v{u3}, 1, v{t0}
        v_xor_b32 v{u2}, v{u2}, v{u3}
        v_lshlrev_b32 v{u2}, 4, v{u2}
        v_lshl_add_u32 v{u2}, v{u1}, 6, v{u2}
        v_lshl_add_u32 v{u2}, v{t3}, 3, v{u2}
        s_lshl_b32 s{sT2}, s{sSIG}, 13
        s_add_u32 s{sT2}, s{sT2}, {PHI}
        v_add_u32 v{vKA0}, s{sT2}, v{u2}
        v_xor_b32 v{vKA1}, 32, v{vKA0}
        v_mul_u32_u24 v{u1}, 144, v{u1}
        v_add_u32 v{u2}, s{sT4}, v{t2}
        v_cmp_eq_u32 vcc, 1, v{t1}
        v_mov_b32 v{u3}, 128
        v_add_u32 v{u1}, {VIMG}, v{u1}
        v_cndmask_b32 v{u2}, v{u2}, v{u3}, vcc
        v_add_u32 v{vKB}, v{u1}, v{u2}""")
    else:
        L += lines(f"""s_lshl2_add_u32 s{sT2}, s{sG}, s{sSIG}
        s_mul_i32 s{sT2}, s{sT2}, {16*1152}
        s_add_u32 s{sT2}, s{sT2}, {KVD}
        v_lshrrev_b32 v{u3}, 4, v{vL}
        v_mul_u32_u24 v{u3}, 1152, v{u3}
        v_add_u32 v{u3}, s{sT2}, v{u3}
        s_lshl_b32 s{sT3}, s{sH}, 9
        v_lshlrev_b32 v{t2}, 4, v{u2}
        v_add3_u32 v{vGA}, v{u3}, v{t2}, s{sT3}
        v_bfe_u32 v{vGZ}, v{vL}, 1, 2
        v_mul_u32_u24 v{vGZ}, {4*1152}, v{vGZ}
        v_and_b32 v{t3}, 1, v{vL}
        v_lshl_add_u32 v{u3}, v{t3}, 4, v{u3}
        s_lshl_b32 s{sT3}, s{sH}, 5
        v_add3_u32 v{vGZ}, v{vGZ}, v{u3}, s{sT3}
        s_lshl3_add_u32 s{sT2}, s{sG}, s{sSIG}
        s_lshl4_add_u32 s{sT2}, s{sT2}, {REC1}
        v_lshl_add_u32 v{u3}, v{u2}, 11, s{sT2}
        v_cmp_eq_u32 vcc, 1, v{t1}
        s_mul_i32 s{sT2}, s{sGAM}, 544
        s_add_u32 s{sT2}, s{sT2}, {KVL}
        v_cndmask_b32 v{vFL}, v{vFL}, v{u3}, vcc
        v_lshl_add_u32 v{u3}, v{t1}, 3, s{sT2}
        v_mul_u32_u24 v{vKW}, 272, v{u1}
        v_add3_u32 v{vKW}, v{vKW}, v{u3}, v{t2}
        v_mul_u32_u24 v{vZW}, 272, v{t3}
        v_add_u32 v{vZW}, v{vZW}, v{u3}
        v_and_b32 v{u3}, 3, v{vL}
        v_bfe_u32 v{t3}, v{vL}, 2, 1
        v_lshl_add_u32 v{u3}, v{t3}, 3, v{u3}
        v_bfe_u32 v{t3}, v{vL}, 3, 1
        v_lshl_add_u32 v{u3}, v{t3}, 2, v{u3}
        v_cndmask_b32 v{u3}, v{u3}, 16, vcc
        v_lshlrev_b32 v{u3}, 4, v{u3}
        v_mul_u32_u24 v{u1}, 544, v{u1}
        s_mul_i32 s{sT3}, s{sH}, 2176
        s_add_u32 s{sT3}, s{sT3}, {KVL}
        v_add3_u32 v{vKR}, v{u3}, v{u1}, s{sT3}""")
    return L
def consts3(ty):
    return lines(f"""s_mov_b32 s{sOUT+2}, {2048*1024}
    s_mov_b32 s{sOUT+3}, 0x00020000
    s_and_b32 s{sT2}, s{sRB2}, 1
    s_lshl_b32 s{sT2}, s{sT2}, 1
    s_lshl_b32 s{sFM}, 0x3333, s{sT2}
    s_mov_b32 s{sFM+1}, 0
    s_lshl1_add_u32 s{sT2}, s{sRB2}, s{sH}
    s_lshl_b32 s{sR2}, s{sT2}, 9
    s_add_u32 s{sR2}, s{sR2}, {REC1}
    s_lshl_b32 s{sT2}, s{sT2}, 10
    s_lshl2_add_u32 s{sT3}, s{sCB}, s{sSIG}
    s_add_u32 s{sT2}, s{sT2}, s{sT3}
    s_lshl_b32 s{sOB}, s{sT2}, 5""")

vACC, vWR = 64, 128
vOO, vRSA, vEC, vRS2, vRES, vRW, vRR, vC0, vS0 = 8, 9, 10, 14, 16, 20, 21, 22, 24
vMT = 16
def areg(j): return [192, 200, 208, 248][j % 12] if j % 12 < 4 else (184 + 8 * (j % 8) if j < 9 else 40 + 8 * (j - 9))
def wreg(j): return vWR + 8 * (j % 7)
WS_ = {}
def w_item(j, s):
    WS_[j] = s
    so = (f"s_mov_b32 s{sT0}, {j << 14}" if 8 <= j < 12 else f"s_xor_b32 s{sT0}, s{sRW if j < 8 else sRW2}, {(j % 12) << 14}")
    d, ad = (srd(sW2), vW2O) if j < 12 else (srd(sWO), vWOO)
    return grp([f"s_add_u32 m0, s{sM0R}, {s * SZ}", so,
                vm(f"buffer_load_dwordx4 v{ad}, {d}, s{sT0} offen lds", f"w{j}"),
                vm(f"buffer_load_dwordx4 v{ad+1}, {d}, s{sT0} offen offset:1024 lds", f"w{j}")])
def w_read(j):
    s = WS_[j]
    ad = [vA2L, vA2M, vA2T][s >> 2]; off = (s & 3) * SZ
    L = [wt(vm=f"w{j}")]
    for b in range(2):
        L.append(dsw(f"ds_read_b64_tr_b16 {v(wreg(j)+4*b,2)}, v{ad+b} offset:{off}", f"r{j}"))
        L.append(dsw(f"ds_read_b64_tr_b16 {v(wreg(j)+4*b+2,2)}, v{ad+b} offset:{off+1024}", f"r{j}"))
    return L
vBW, vBR = 38, 56
def w_raw(j):
    WS_[j] = -1
    return [grp([f"s_xor_b32 s{sT0}, s{sRW}, {j << 14}", vm(f"buffer_load_dwordx4 {v(wreg(j)+4,4)}, v{vW2O}, {srd(sW2)}, s{sT0} offen", f"w{j}")]),
            grp([f"s_xor_b32 s{sT0}, s{sRW}, {j << 14}", vm(f"buffer_load_dwordx4 {v(wreg(j)+8,4)}, v{vW2O+1}, {srd(sW2)}, s{sT0} offen offset:1024", f"w{j}")])]
def bnc_addrs():
    return lines(f"""s_lshr_b32 s{sT2}, s{sM0R}, 1
    s_sub_u32 s{sT3}, {BNC}, s{sT2}
    s_add_u32 s{sT2}, s{sT2}, {BNC}
    v_add_u32 v{vBW}, s{sT2}, v{vL16}
    v_add_u32 v{vBR}, s{sT3}, v{vA2L}
    v_add_u32 v{vBR+1}, s{sT3}, v{vA2L+1}""")
def w_conv(j):
    L = [wt(vm=f"w{j}")]
    for hf in range(2):
        L.append(dsw(f"ds_write_b128 v{vBW}, {v(wreg(j)+4+4*hf,4)}", f"r{j}"))
        L += [dsw(f"ds_read_b64_tr_b16 {v(wreg(j)+4*b+2*hf,2)}, v{vBR+b}", f"r{j}") for b in range(2)]
    return L
def w_refill(j, q):
    return [wt(lg=f"r{q}"), w_item(j, WS_[q])]
def p2_addrs():
    return lines(f"""v_mov_b32 v{vA2L}, v{vA2B}
    v_xor_b32 v{vA2L+1}, 64, v{vA2B}
    v_add_u32 v{vA2M}, {4*SZ}, v{vA2L}
    v_add_u32 v{vA2M+1}, {4*SZ}, v{vA2L+1}
    v_add_u32 v{vA2T}, {8*SZ}, v{vA2L}
    v_add_u32 v{vA2T+1}, {8*SZ}, v{vA2L+1}""")
def a_load(j, tag=None, st=(0, 1)):
    def p():
        if j < 8: a(f"s_xor_b32 s{sT1}, s{sRA}, {j << 11}")
        elif j < 12: a(f"s_movk_i32 s{sT1}, {j << 11}")
        else: a(f"s_xor_b32 s{sT1}, s{sRA2}, {(j - 12) << 11}\ns_add_u32 s{sT1}, s{sAO}, s{sT1}")
        for s in st:
            if not opt("noact", 0): a.vmem(f"buffer_load_dwordx4 {v(areg(j)+4*s,4)}, v{vACT}, {srd(sWS)}, s{sT1} offen offset:{1024*s} {'sc1' if j >= opt('asc', 0) else opt('asf', '')}", tag or f"a{j}")
    return fn(p, 3 * len(st) + 1)
def p6(body): skip_if(f"s_cmp_lt_u32 s{sW}, 3", body, "L_p6")
def p6f(L): return fn(lambda: p6(lambda: emits(L)), 6)
def selectors(tmp):
    L = lines(f"""v_and_b32 v{tmp}, 1, v{vL}
    v_mov_b32 v{tmp+1}, 0x3f80
    v_lshlrev_b32 v{tmp}, 4, v{tmp}
    v_lshlrev_b32 v{tmp+1}, v{tmp}, v{tmp+1}
    v_bfe_u32 v{tmp}, v{vL}, 1, 3""")
    for r in range(0, 8, 2):
        L += [grp([f"v_cmp_eq_u32 vcc, {r}, v{tmp}", f"v_cmp_eq_u32 {sp(sCM)}, {r+1}, v{tmp}",
                   f"v_cndmask_b32 v{vS0+r}, 0, v{tmp+1}, vcc", f"v_cndmask_b32 v{vS0+r+1}, 0, v{tmp+1}, {sp(sCM)}"])]
    return L
def tail_addrs():
    x = vC0
    return lines(f"""v_and_b32 v{x}, 15, v{vL}
    v_lshrrev_b32 v{x+1}, 5, v{vL}
    v_lshl_add_u32 v{x+1}, v{x+1}, 4, v{x}
    v_lshlrev_b32 v{vRSA}, 4, v{x+1}
    v_and_b32 v{vOO}, 16, v{vL}
    v_lshl_add_u32 v{vOO}, v{x+1}, 10, v{vOO}
    v_add_u32 v{vRW}, s{sM0R}, v{vL16}
    s_lshr_b32 s{sT2}, s{sW}, 1
    s_and_b32 s{sT3}, s{sW}, 1
    s_lshl4_add_u32 s{sT2}, s{sT2}, s{sT3}
    s_lshl_b32 s{sT2}, s{sT2}, 10
    v_lshl_add_u32 v{x}, v{x}, 4, s{sT2}
    v_lshrrev_b32 v{x+1}, 4, v{vL}
    v_lshl_add_u32 v{vRR}, v{x+1}, 11, v{x}""")
def rs_load(tag="rs"): return vm(f"buffer_load_dwordx2 {P2(vRS2)}, v{vRSA}, {srd(sWS)}, s{sR2} offen offset:8 sc1", tag)
def res_load(): return vm(f"buffer_load_dwordx4 {v(vRES,4)}, v{vOO}, {srd(sX)}, s{sOB} offen", "res")
def ep_loads():
    a(f"v_lshlrev_b32 v{vBW}, 7, v{vL}")
    for i in range(4):
        a(f"s_mov_b32 s{sT2}, {REC1 + i*8192}")
        a(f"buffer_load_dword v{vEC+i}, v{vBW}, {srd(sWS)}, s{sT2} offen offset:12 sc1")
def if_first(body):
    a(f"s_or_b32 s{sT2}, s2, s{sW}")
    skip_if(f"s_cmp_eq_u32 s{sT2}, 0", body, "L_ep")
def maxchain(regs, d):
    L = []; regs = list(regs); first = True
    while regs:
        if first: x = regs[:3]; regs = regs[3:]; first = False
        else: x = [d] + regs[:2]; regs = regs[2:]
        L.append(f"v_max3_u32 v{d}, v{x[0]}, v{x[1]}, v{x[2]}" if len(x) == 3 else f"v_max_u32 v{d}, v{x[0]}, v{x[1]}")
    return L + [f"v_cmp_eq_u32 vcc, -1, v{d}"]
def sentinel(js, st):
    checked(maxchain([areg(j) + 4 * s for j in js for s in st], vC0), lambda: emits([a_load(j, "x", st) for j in js]), "L_s")
def step_mfma(j, st, first=False, gaps=()):
    gaps = list(gaps)
    for s in st:
        for b in range(2):
            acc = vACC + 32 * s + 16 * b
            a(f"{MF} {v(acc,16)}, {v(wreg(j)+4*b,4)}, {v(areg(j)+4*s,4)}, {'0' if first else v(acc,16)}")
            if gaps: emits(gaps.pop(0))
    for g in gaps: emits(g)

def c_loads(): return [p6f([a_load(10), a_load(11)]), a_load(8), a_load(9)]
def o_loads(): return [a_load(j, "o0", (0,)) for j in range(12, 16)] + [a_load(j, "o1", (1,)) for j in range(12, 16)]
WP = [[x for x in opt(k, "").split(",") if x] for k in ("awp", "bwp")]
def phase2(ty, side, GR, spec):
    def add(p, L): side[p] = side.get(p, []) + L
    assert sorted(WS_) == list(range(16))
    last = -1
    for x in WP[ty]:
        j, p = map(int, x.split("@")); assert p < j; last = p
        add(p, w_conv(j))
    for x in spec.split(","):
        n, p = x.split("@")
        assert n != "o" or int(p) >= 4
        assert n != "c" or int(p) >= last
        add(int(p), GR.pop(n))
    assert not set(GR) - set("hl"), GR
    add(5, [p6f(w_read(10) + w_read(11))])
    for j, k in ((7, 1), (8, 2), (9, 3), (12, 6), (13, 7), (14, 8), (15, 9)): add(k, w_read(j))
    for j in range(10):
        if j == 8:
            a.wait(vm="a9")
            sentinel((8, 9), (0, 1))
        a.wait(vm=f"a{j}", lg=f"r{j}")
        pt(f"s{j}")
        if j == 0: pt("f0")
        step_mfma(j, (0, 1), j == 0, split(side.get(j, []), 4))
    a.wait(lg="r12")
    def body():
        sentinel((10, 11), (0, 1))
        for j in (10, 11): step_mfma(j, (0, 1))
    p6(body)
    emits(side.get(10, []))
    pt("f1")
    a.wait(vm="o0", lg="all")
    if OSENT: sentinel(range(12, 16), (0,))
    pt("f2")
    checked([f"v_cmp_ne_u32 vcc, s{sTAG}, v{vRS2+1}"], rs_load("x"), "L_rs")
    vU = 216
    U = []
    for j in range(4): U += [f"v_lshlrev_b32 v{vU+2*j}, 16, v{vRES+j}", f"v_and_b32 v{vU+1+2*j}, s{sMASK}, v{vRES+j}"]
    G = split(U, 8)
    for j in range(12, 16): step_mfma(j, (0,), False, G[2*(j-12):2*(j-12)+2])
    a.wait(vm="o1")
    if OSENT: sentinel(range(12, 16), (1,))
    def pack(k):
        acc = vACC + 16 * k; L = []
        for hf in range(2):
            L += [f"v_cvt_pk_bf16_f32 v{acc+4*hf+i}, v{acc+8*hf+2*i}, v{acc+8*hf+2*i+1}" for i in range(4)]
            L += [dsw(f"ds_write_b128 v{vRW}, {v(acc+4*hf,4)} offset:{k*SZ+1024*hf}")]
        return L
    G = [[]] + split(pack(0) + pack(1), 7)
    for j in range(12, 16): step_mfma(j, (1,), False, G[2*(j-12):2*(j-12)+2])
    pt("f3")
    if ty == 0:
        def ep():
            checked([f"v_xor_b32 v{vEC+i}, s{sTAG}, v{vEC+i}" for i in range(4)] +
                    [f"v_or3_b32 v{vEC}, v{vEC}, v{vEC+1}, v{vEC+2}", f"v_or_b32 v{vEC}, v{vEC}, v{vEC+3}", f"v_cmp_ne_u32 vcc, 0, v{vEC}"],
                    ep_loads, "L_epc")
            a(f"""v_mov_b32 v{vEC}, s{sTAG}
            s_mov_b64 exec, 1
            buffer_store_dword v{vEC}, off, {srd(sWS)}, 0 sc1
            s_mov_b64 exec, -1""")
        if_first(ep)
    emits(pack(2) + pack(3))
    a.wait(lg="all")
    a("s_barrier")
    R = 224
    for p in range(4):
        for k in range(2):
            a.ds(f"ds_read_b128 {v(R+8*p+4*k,4)}, v{vRR} offset:{8192*k+256*p}", f"t{p}{k}")
    D = vWR
    for p in (0, 2, 1, 3):
        for k in range(2):
            a.wait(lg=f"t{p}{k}")
            d = D + 4 * (p >> 1)
            a(f"{MF16} {v(d,4)}, {v(vS0+4*(p&1),4)}, {v(R+8*p+4*k,4)}, {'0' if (p & 1) == 0 and k == 0 else v(d,4)}")
    for j in range(0, 8, 2): a(f"v_pk_fma_f32 {P2(D+j)}, {P2(D+j)}, {P2(vRS2)}, {P2(vU+j)} op_sel_hi:[1,0,1]")
    for j in range(4): a(f"v_cvt_pk_bf16_f32 v{D+8+j}, v{D+2*j}, v{D+2*j+1}")
    a(f"buffer_store_dwordx4 {v(D+8,4)}, v{vOO}, {srd(sOUT)}, s{sOB} offen")
    pt("end")
    a("s_branch L_fin")

def reads(T):
    tg = f"k{T}"; ks = T & 3
    if T < 32:
        off = ((T >> 2) & 3) * SZ; b = vWF + 8 * ks
        return [dsw(f"ds_read_b128 {v(vX+4*T,4)}, v{vXA+ks} offset:{off}", tg)] + [
                dsw(f"ds_read_b64_tr_b16 {v(b+2*i,2)}, v{vPM+ks} offset:{off+512*i}", tg) for i in range(4)]
    t = T - 32; s = RS[t >> 3]; ad = (vPL if s < 4 else vPM) + ks; off = (s & 3) * SZ + ((t >> 2) & 1) * 1024
    return [dsw(f"ds_read_b64_tr_b16 {v(vWF+4*ks+2*i,2)}, v{ad} offset:{off+512*i}", tg) for i in range(2)]
def bar(vmt=None, lg=None, name=None):
    def p():
        for x in ([vmt] if isinstance(vmt, str) else (vmt or [])): a.wait(vm=x)
        if lg: a.wait(lg=lg)
        if name: pt(name + "w")
        a("s_barrier")
        if name: pt(name)
    return fn(p, 1)
def put(S, T, L): S[T] = S.get(T, []) + list(L)
def spread(S, L, T0, T1):
    for i, G in enumerate(split(L, T1 - T0 + 1)): put(S, T0 + i, G)
def corr(quads, biases):
    L = [f"v_lshlrev_b32 v{b}, 16, v{b}" for b in biases if b] + [wt(lg="cw")]
    for q in quads: L += [f"v_add_f32 v{q}, v{q}, v{q+1}", f"v_add_f32 v{q+2}, v{q+2}, v{q+3}"]
    L += [f"v_add_f32 v{q}, v{q}, v{q+2}" for q in quads]
    return L + [f"v_cndmask_b32 v{q}, {v(b) if b else 0}, v{q}, {sLO}" for q, b in zip(quads, biases)]
SEQ = opt("seq", "x3/x4/x5/x6/x7/b0,b1/b2,b3").split("/")
DSP = opt("dsp", 1)
SPL = opt("spl", 3)
vQ2 = 44
def stream(ty, S, E):
    DQ = [L for n in opt("pre", "x2").split(",") if n for L in item(n)]
    for c in range(7): E[4 * c + 1] = [bar(f"x{c+1}", None, f"c{c}")] + E.get(4 * c + 1, [])
    S[29] = [dsw(f"ds_write_b32 v{vCAW}, v{vCS+4*i} offset:{1024*i}", "cw") for i in range(2)] + S.get(29, [])
    S[30] = [dsw(f"ds_read_b128 {v(vT+4*i,4)}, v{vCAR} offset:{1024*i}", "cw") for i in range(2)] + S.get(30, [])
    put(S, 31, corr((vT, vT + 4), (vBA, vBA + 1) if ty else (None, None)))
    S[32] = [f"{MF32} {v(K,16)}, v{q}, v{vBC}, {v(K,16)}" for K, q in ((K0, vT), (K1, vT + 4))] + S.get(32, [])
    S[61] = [dsw(f"ds_write_b32 v{vCAW}, v{vCS} offset:1024", "cw")] + S.get(61, [])
    S[62] = [dsw(f"ds_read_b128 {v(vQ2,4)}, v{vCAR} offset:1024", "cw")] + S.get(62, [])
    put(S, 63, corr((vQ2,), (None if ty else vBA,)) + [f"{MF32} {v(K2,16)}, v{vQ2}, v{vBC}, {v(K2,16)}"])
    emits(reads(0) + reads(1))
    for T in range(64):
        t = T & 31; ks = T & 3
        R = reads(T + 2) if T < 30 else (reads(32) + reads(33) if T == 30 else (reads(T + 3) if T + 3 < 64 else []))
        pt(f"T{T}")
        a.wait(lg=f"k{T}")
        F = S.get(T, [])
        if T < 32:
            b = vWF + 8 * ks
            G = split(F, 2)
            a(f"{MF} {v(K0,16)}, {v(b,4)}, {v(vX+4*t,4)}, {'0' if t == 0 else v(K0,16)}")
            emits(R[:SPL])
            if DQ and (DSP > 1 or T < 2): emits(DQ.pop(0))
            emits(G[0])
            a(f"{MF} {v(K1,16)}, {v(b+4,4)}, {v(vX+4*t,4)}, {'0' if t == 0 else v(K1,16)}")
            emits(R[SPL:])
            if DQ: emits(DQ.pop(0))
            if ks == 0:
                for i in range(2): a(f"{MF16} {v(vCS+4*i,4)}, {v(vSEL,4)}, {v(b+4*i,4)}, {'0' if t == 0 else v(vCS+4*i,4)}")
            emits(G[1])
        else:
            b = vWF + 4 * ks
            if ks == 0: a(f"{MF16} {v(vCS,4)}, {v(vSEL,4)}, {v(b,4)}, {'0' if t == 0 else v(vCS,4)}")
            a(f"{MF} {v(K2,16)}, {v(b,4)}, {v(vX+4*t,4)}, {'0' if t == 0 else v(K2,16)}")
            emits(R + F)
        if ks == 1: assert not DQ
        emits(E.get(T, []))
        if T < 28 and ks == 1:
            for n in SEQ[T >> 2].split(","):
                if n: DQ += item(n)
        if t == 31: pt(f"p{1 + (T >> 5)}")
    assert not DQ
PH = [vXA, vCS + 4]
def ph_reads(): return [dsw(f"ds_read_b64_tr_b16 {v(PH[i>>1]+2*(i&1),2)}, v{vPHA} offset:{256*i}", "ph") for i in range(4)]
def ph_signs(): return [wt(lg="ph")] + [f"v_xor_b32 v{PH[i>>2]+(i&3)}, v{vSGN}, v{PH[i>>2]+(i&3)}" for i in range(8)]
def start(ty, S, E):
    LATE = []
    if PRE2 & 8:
        C1 = consts1(ty); k = C1.index(f"s_movk_i32 s{sB1+2}, 2752")
        tch = [x for x in C1[:k] if callable(x)]
        C2 = consts2(ty) + bases(ty) + consts3(ty)
        def low(x): return isinstance(x, str) and x[:2] == "s_" and 36 <= int(x.split()[1].strip("s,")) < 48
        i = C2.index(f"s_lshl_b32 s{sFM}, 0x3333, s{sT2}")
        LATE = [tch + C1[k:], C2[i-2:i] + [x for x in C2 if low(x)]]
        L = B3[B3N:] + consts0(ty) + [x for x in C1[:k] if not callable(x)] + [f"s_lshl4_add_u32 s{sREC}, s{sREC}, {REC1}"] + [x for x in C2 if not low(x)]
        emits(merge(L, [grp(G) for n in PRO for G in item(n)], opt("x1a", 150), opt("x1b", 300)))
    else: emits(consts0(ty))
    pt("i1")
    a("s_waitcnt lgkmcnt(0)")
    if MW == 3: wtouch()
    if opt("mt", 1) == 2: emits(LATE[0][:1]); LATE[0] = LATE[0][1:]
    if PRE2 & 1: emits(consts1(ty) + [wphi_dma()])
    if PRE2 & 2: emits([f"s_lshl4_add_u32 s{sREC}, s{sREC}, {REC1}"] + consts2(ty) + bases(ty))
    if PRE2 & 4: emits(consts3(ty))
    LP = opt("lp", 0)
    OT = [vm(f"buffer_load_dword v{vFV}, off, {srd(sOUT)}, s{sOB}", "tch")] * opt("ot", 0)
    if LP < 0:
        k = opt("mt", 1) != 2
        emits(LATE[0][k:] + [wphi_dma()] + OT); LATE[0] = LATE[0][:k]
    pt("i2")
    a.wait(vm="x0")
    a("s_barrier")
    pt("p0")
    F0, F1, F2 = opt("f0", 6), opt("f1", 13), opt("f2", 26)
    RECP = opt("recp", 7)
    assert RECP >= max(F0, 5) and F1 % 4 == 1 and F2 <= 26
    spread(S, stats(), 0, F0)
    if MW >= 10: put(E, MW - 10, [fn(wtouch)])
    if opt("mt", 1) >= 10: put(E, opt("mt", 1) - 10, LATE[0][:1]); LATE[0] = LATE[0][1:]
    put(E, RECP, [rec_store()])
    if PRE2 & 8:
        if LP > 0: assert LP % 4 == 1 and LP <= F1; put(E, LP, LATE[0] + [wphi_dma()] + OT)
        elif LP < 0: put(S, F0 + 1, LATE[0])
        else: spread(S, LATE[0], F0 + 1, F1); put(E, F1, [wphi_dma()] + OT)
        spread(S, LATE[1], F1 + 1, F1 + 6)
    elif not PRE2 & 1:
        spread(S, consts1(ty), F0 + 1, F1)
        put(E, F1, [wphi_dma()])
    l0 = 0
    for x in TOUCH:
        T, n = map(int, x.split(":")); assert F0 + 3 <= T <= 28
        put(E, T, [touch(l0, n)]); l0 += n
    if not PRE2 & 10: spread(S, consts2(ty) + bases(ty), (F0 if PRE2 & 1 else F1) + 1, F2)
    if not PRE2 & 12: spread(S, consts3(ty), 27, 28)
    put(E, opt("rpos", 24), [rec1_load()])
    def rec():
        a.wait(vm="rec1")
        checked([f"v_cmp_ne_u32 vcc, s{sTAG}, v{vRSTD}"], rec1_load("x"), "L_rec1")
    put(S, 29, [fn(rec), f"v_cndmask_b32 v{vBC}, v{vSD}, v{vBC}, {sLO}", f"v_mov_b32 v{vRSTD}, v{vC1}", f"v_mul_f32 v{vC1}, {LOG2E}, v{vC1}"])
    put(E, 29, [bar("b1", "all", "e1")] + [poll(0)] * ty)
    put(S, 27, [f"v_mov_b32 v{vT}, -1"])
    put(S, 30, p2_addrs() + [f"v_mov_b32 v{vA2B}, -1"])
    put(E, 44, [poll_check(0)] * ty + [bar("b3", "all", "m2"), f"v_lshlrev_b32 v{vFL}, 3, v{vFL}"])
def rest():
    fs = [x for x in range(9) if x not in WS_.values()]
    return [w_item(j, fs.pop(0)) for j in range(16) if j not in WS_]
def place(M, spec, GR, nm="M"):
    ins = {}
    for x in [y for y in spec.split(",") if y]:
        n, r = x.split("@"); r = [int(y) for y in r.split("-")]; L = GR.pop(n)
        for i, y in enumerate(L): ins.setdefault(r[0] + (r[-1] - r[0]) * i // len(L), []).append(y)
    for i in range(300):
        pt(f"{nm}{i}")
        emits(ins.get(i, []))
        if i < len(M): emit(M[i])
def sched(S, spec, free):
    for x in spec.split(","):
        n, T = x.split("@"); T = int(T)
        if n[0] == "r":
            j = int(n[1:]); assert T >= 34 + 2 * j
            for i, g in enumerate(w_raw(j)): put(S, T + i, [g])
        elif n[0] == "c": assert T != 30; put(S, T, [clr2(*CLR[int(n[1:])], T)])
        else:
            j, sl = map(int, n.split(":")); assert T > free[sl], x
            put(S, T, [w_item(j, sl)])

def witems(spec):
    L = []
    for x in [y for y in spec.split(",") if y]:
        j, sl = map(int, x.split(":")); L.append(w_item(j, sl))
    return L
st1 = a.save()
a(f"""s_bitcmp1_b32 s2, 7
s_cbranch_scc1 L_B""")
TYPE[0] = 0
S, E = {}, {}
start(0, S, E)
put(S, 30, ph_reads())
put(S, 32, ph_signs())
V = []
for hf in range(2):
    V += [f"v_mul_f32 v{K1+8*hf+i}, v{K1+8*hf+i}, v{vRSTD}" for i in range(8)]
    V += [f"v_cvt_pk_bf16_f32 v{K1+8*hf+i}, v{K1+8*hf+2*i}, v{K1+8*hf+2*i+1}" for i in range(4)]
    V += [dsw(f"ds_write_b128 v{vVW}, {v(K1+8*hf,4)} offset:{32*hf}")]
L = [f"v_cvt_pk_bf16_f32 v{vT+j}, v{K0+2*j}, v{K0+2*j+1}" for j in range(8)]
L += [ptf("L1")] + V[:2] + [f"{MF} {v(K0,16)}, {v(PH[0],4)}, {v(vT,4)}, 0"] + V[2:] + [f"{MF} {v(K1,16)}, {v(PH[1],4)}, {v(vT+4,4)}, 0"]
PKA = opt("pka", 1)
for hd, P in enumerate((K0, K1)):
    L += [ptf(f"L{2+hd}")] + softmax(P, P, PKA, vT)
    L += [dsw(f"ds_write_b128 v{vPW0}, {v(P,4)} offset:{hd*8192}"), dsw(f"ds_write_b128 v{vPW1}, {v(P+4,4)} offset:{hd*8192}")]
SPOS = opt("spos", 36)
KI = witems(opt("ki", "8:7"))
if KI: L = merge(L, KI, opt("ki0", 60))
spread(S, L, opt("ka", 33), SPOS)
FS = 44 if SPOS < 44 else 61
CLR = [(sSB0, 0), (sSB0, 2048)]
put(S, opt("fpa", 48), flag_store(1, "clr"))
sched(S, opt("sa", "c0@28,c1@28,7:6@31,r0@41,r1@44,r2@47,r3@50,r4@53,r5@56,r6@59"),
      {6: 29, 7: 29, 0: 44, 4: 44, 1: 61, 5: 61, 2: FS, 3: FS, 8: FS})
def kv():
    KB = [K1, K1 + 8, vT]
    def kv_reads(t):
        b = KB[t % 3]
        a.ds(f"ds_read_b64_tr_b16 {v(b,2)}, v{vKA0} offset:{t*1024}", f"kv{t}")
        a.ds(f"ds_read_b64_tr_b16 {v(b+2,2)}, v{vKA1} offset:{t*1024+256}", f"kv{t}")
        a.ds(f"ds_read_b64_tr_b16 {v(b+4,2)}, v{vKB} offset:{t*2304}", f"kv{t}")
        a.ds(f"ds_read_b64_tr_b16 {v(b+6,2)}, v{vKB} offset:{t*2304+576}", f"kv{t}")
    if opt("kprio", 1): a("s_setprio 2")
    for t in range(3): kv_reads(t)
    for t in range(8):
        a.wait(lg=f"kv{t}")
        b = KB[t % 3]
        a(f"{MF} {v(K0,16)}, {v(b,4)}, {v(b+4,4)}, {'0' if t == 0 else v(K0,16)}")
        if t >= 1 and t + 2 < 8: kv_reads(t + 2)
    for i in range(8): a(f"v_cvt_pk_bf16_f32 v{K1+i}, v{K0+2*i}, v{K0+2*i+1}")
    for i in range(4): a(f"v_permlane16_swap_b32 v{K1+i}, v{K1+4+i}")
    a(f"""buffer_store_dwordx4 {v(K1,4)}, v{vL16}, {srd(sWS)}, s{sC0} offen sc1
    s_mov_b32 exec_lo, 0x00010001
    s_mov_b32 exec_hi, 0x00010001
    buffer_store_dwordx4 {v(K1+4,4)}, v{vL}, {srd(sWS)}, s{sC0} offen offset:1024 sc1
    s_mov_b64 exec, -1""")
    if opt("kprio", 1): a("s_setprio 0")
    pt("kv")
put(E, SPOS, [bar(None, "all", "S"), fn(lambda: skip_if(f"s_cmp_eq_u32 s{sH}, 0", kv, "L_kv"))])
spread(S, selectors(K1), max(SPOS + 2, 50), 61)
CPR = opt("cpr", 1)
put(E, 61, [bar(None, "all", "Y"), p6f([w_item(10, 1), w_item(11, 5)])] + ["s_setprio 3"] * CPR)
stream(0, S, E)
def groups():
    G = {"a": [a_load(j) for j in range(4)], "b": [a_load(j) for j in range(4, 8)], "c": c_loads(), "o": o_loads(),
         "w": bnc_addrs() + sum([w_conv(j) for j in range(7 - len(WP[TYPE[0]]))], []), "s": rest(), "r": [rs_load(), res_load()]}
    if opt("bsp", 0): G["q"] = G["b"][2:]; G["b"] = G["b"][:2]
    for k in (1,): G[f"p{k}"] = [poll(k)]; G[f"k{k}"] = [poll_check(k)]
    return G
GR = groups()
place(mish_store(K2, True, sSB0, vMT) + ["s_setprio 0"] * CPR + [ptf("ms")] + tail_addrs(), opt("ao", "p1@0,s@0-24,w@40-90,k1@25,a@25-40,b@78-90,r@96"), GR)
phase2(0, {1: [fn(lambda: if_first(ep_loads), 4)]}, GR, opt("ap", "c@3,o@7"))

a.label("L_B")
a.restore(st1)
TYPE[0] = 1
WS_.clear()
S, E = {}, {}
start(1, S, E)
J0 = opt("j0", 17)
assert J0 % 4 == 1
put(E, J0, [w_item(7, 8)])
CLR = [(sC0, 0), (sC0, 2048)]
sched(S, opt("sb", "c0@28,c1@28," * OSENT + "8:2@31,r0@37,r1@40,r2@43,r3@46,r4@49,r5@52,r6@55"),
      {2: 29, 3: 29, 6: 29, 7: 29, 0: 44, 4: 44})
PKB = opt("pkb", 1)
MB = mish_store(K0, PKB, sSB0, vT) + mish_store(K1, PKB, sC1, vT) + selectors(K0 + 8)
MI = witems(opt("mi", "9:3,12:6,13:7"))
if MI: MB = merge(MB, MI, opt("mi0", 20))
spread(S, MB, 33, opt("ma", 35))
FPB = opt("fpb", 58)
if FPB: put(S, FPB, flag_store(1, "st"))
put(S, 56, ph_reads()); put(S, 62, ph_signs())
put(E, 61, [bar(None, "all", "Y"), p6f([w_item(10, 1), w_item(11, 5)])] + ["s_setprio 3"] * CPR)
vTL = [K0 + 4 * i for i in range(8)]; vZL = 128 if opt("gpos", 0) else 64
Q0, Q1 = 216, 232
def t_load(i, tag=None):
    def p():
        a(f"s_movk_i32 s{sT1}, {(i>>1)*4*1152}")
        a.vmem(f"buffer_load_dwordx4 {v(vTL[i],4)}, v{vGA}, {srd(sWS)}, s{sT1} offen offset:{(i&1)*256} sc1", tag or "t")
    return fn(p, 4)
def z_load(tag=None): return vm(f"buffer_load_dwordx4 {v(vZL,4)}, v{vGZ}, {srd(sWS)}, 0 offen offset:1024 sc1", tag or "t")
GL = [z_load()] + [t_load(i) for i in range(8)]
GPOS = opt("gpos", 0)
if GPOS:
    assert GPOS > 44
    spread(S, [ptf("g0")] + GL, GPOS, opt("gend", 61))
PP = opt("pp", 0)
if PP: put(S, PP, [poll(1)])
stream(1, S, E)
for j in range(8): a(f"v_cvt_pk_bf16_f32 v{K2+j}, v{K2+2*j}, v{K2+2*j+1}")
a(f"{MF} {v(Q0,16)}, {v(PH[0],4)}, {v(K2,4)}, 0")
a(f"{MF} {v(Q1,16)}, {v(PH[1],4)}, {v(K2+4,4)}, 0")
M = softmax(Q0, Q0, True, 20) + softmax(Q1, Q0 + 8, True, 20)
print("B list", len(M))
GR = groups()
GR.update({"h": ["s_setprio 3"], "l": ["s_setprio 0"]})
if not GPOS: GR["g"] = GL
if PP: GR.pop("p1")
if not FPB: GR["f"] = flag_store(1, "st")
vD, vDZ = K2 + 8, K2 + 12
vKF = 64
def got():
    pt("sm")
    a.wait(vm="t")
    checked(maxchain(vTL + [vZL], vD), lambda: emits([z_load("x")] + [t_load(i, "x") for i in range(8)]), "L_t")
    pt("g")
D = [fn(got), f"{MF16} {v(vDZ,4)}, {v(vS0,4)}, {v(vZL,4)}, 0"]
D += [f"{MF16} {v(vD,4)}, {v(vS0+4*(i&1),4)}, {v(vTL[i],4)}, {'0' if i == 0 else v(vD,4)}" for i in range(8)]
for sh in (2, 4):
    D += [f"v_add_f32_dpp v{vDZ+j}, v{vDZ+j}, v{vDZ+j} row_ror:{sh} row_mask:0xf bank_mask:0xf" for j in range(4)]
D += [f"v_cvt_pk_bf16_f32 v{vDZ}, v{vDZ}, v{vDZ+1}", f"v_cvt_pk_bf16_f32 v{vDZ+1}, v{vDZ+2}, v{vDZ+3}",
      grp(["s_mov_b64 exec, 0x30003", dsw(f"ds_write_b64 v{vZW}, {v(vDZ,2)} offset:256"), "s_mov_b64 exec, -1"]),
      f"v_cvt_pk_bf16_f32 v{vD}, v{vD}, v{vD+1}", f"v_cvt_pk_bf16_f32 v{vD+1}, v{vD+2}, v{vD+3}", dsw(f"ds_write_b64 v{vKW}, {v(vD,2)}")]
GR["d"] = D
GR["e"] = [bar(None, "all", "K")] + [dsw(f"ds_read_b128 {v(vKF+8*hh+4*j,4)}, v{vKR} offset:{hh*1088+j*272}", f"kf{hh}") for hh in range(2) for j in range(2)]
place(M, opt("bo", "g@0-20,p1@21,s@30-60,d@100,k1@120,a@120,e@122"), GR)
X = split(tail_addrs(), 3)
emits(X[0])
OD = [K2, K1]
for hh in range(2):
    a.wait(lg=f"kf{hh}")
    a(f"{MF} {v(OD[hh],16)}, {v(vKF+8*hh,4)}, {v(Q0+8*hh,4)}, 0")
    a(f"{MF} {v(OD[hh],16)}, {v(vKF+8*hh+4,4)}, {v(Q0+8*hh+4,4)}, {v(OD[hh],16)}")
emits(X[1] + X[2])
for D in OD: a(f"v_add_f32 v{D+8}, 0x358637bd, v{D+8}")
for D in OD: a(f"v_rcp_f32 v{D+8}, v{D+8}")
for D in OD: a(f"v_mul_f32 v{D+8}, v{D+8}, v{vSD}")
for hh, D in enumerate(OD):
    for i in range(0, 8, 2): a(f"v_pk_mul_f32 {P2(D+i)}, {P2(D+i)}, {P2(D+8)} op_sel_hi:[1,0]")
    for i in range(4): a(f"v_cvt_pk_bf16_f32 v{D+12+i}, v{D+2*i}, v{D+2*i+1}")
    frag_store(D + 12, sC0, hh)()
if CPR: a("s_setprio 0")
pt("o")
W = GR.pop("w", [])
place(W, opt("bn", "b@0,r@10"), GR, "N")
phase2(1, {}, GR, opt("bp", "c@2,o@6"))

for blk in retries: blk()
a.label("L_fin")
if STAMP >= 0:
    n = nst[0]
    a(f"""s_cmp_eq_u32 s{sW}, {STAMP}
    s_cbranch_scc0 L_end
    s_waitcnt lgkmcnt(0)
    s_sub_u32 s{sT0}, {SPIN}, s{sCNT}
    s_mul_i32 s{sT0}, s{sT0}, 100
    s_add_u32 s{sST0+2}, s{sST0}, s{sT0}
    s_addc_u32 s{sST0+3}, s{sST0+1}, 0
    s_mul_i32 s{sT0}, s2, {n*8}
    s_add_u32 s{sT0}, s{sT0}, {STAMP_OFF}
    s_mov_b64 exec, 1""")
    for i in range(n):
        a(f"v_mov_b32 v{64+2*i}, s{sST0+2*i}")
        a(f"v_mov_b32 v{65+2*i}, s{sST0+2*i+1}")
        a(f"buffer_store_dwordx2 {v(64+2*i,2)}, off, {srd(sWS)}, s{sT0} offset:{i*8}")
a.label("L_end")
a.pad()
open(out_path, "w").write(header(256, 512, LDS_SIZE) + a.text() + footer(vgpr=256))
print("instructions:", sum(1 for x in a.L if x.states), "nops:", sum(1 for x in a.L if x.kind == "nop"), "stamps", nst[0])
```

```python
import sys
from asmdsl import Asm
from gen_common import header, footer

OPT = dict(a.split("=") for a in sys.argv[2:])
def opt(k, d): return type(d)(OPT.get(k, d))
STAMP = opt("stamp", -1)
CYC = opt("cyc", 0)
PTS = [p.split("|") for p in opt("pts", "p0,p1,Y,S|g,kv|o,f0,f2,end").split(",") if p]
ROTM = opt("rotm", 7)
ROT2 = opt("rot2", 7)
SPIN = opt("spin", 200000)
out_path = sys.argv[1]

SZ = 16384
KVL, WPHI, CW, BNC = 9 * SZ, 9 * SZ + 2048, 9 * SZ + 4096, 9 * SZ + 8192
PHI, VIMG = 2 * SZ, 8 * SZ
LDS_SIZE = 163840
REC1 = 0x1000
KVD = 0x20000
FLG = 0xc0000
ACT = 0x140000
DUM = 0x1000000
STAMP_OFF = 128 << 20

sW, sSIG, sH, sT0, sT1 = 3, 4, 5, 6, 7
sX, sWD, sWE, sW2, sWO, sOUT, sWS = 8, 12, 16, 20, 24, 28, 32
sPH, sB1, sPC = 36, 40, 44
sHALF, sISQ, sLOm, sFM, sMASK, sCM = 36, 38, 40, 42, 44, 46
sFMB, sTILE, sFL, sFB, sRA2, sRW2 = 48, 50, 51, 52, 53, 54
(sM0R, sTAG, sCNT, sT2, sT3, sRHO, sRB, sG, sSTART, sT4, sC0, sC1, sSB0, sOB, sRA, sRW, sAO, sR2,
 sRB2, sCB, sGAM, sREC, sSTR, sKB) = range(56, 80)
sST0 = 82
sLO = f"s[{sLOm}:{sLOm+1}]"
def srd(n): return f"s[{n}:{n+3}]"
def sp(n): return f"s[{n}:{n+1}]"

vL = 0
vXO, vWA, vWC, vL16, vBA = 1, 3, 5, 7, 8
vA2L, vA2M, vA2T = 1, 3, 5
vBC, vSD, vC1, vRSTD = 10, 11, 12, 13
vCAW, vCAR, vPL, vPM = 14, 15, 16, 20
vT = 24
vW2O, vWOO, vFL, vACT, vA2B, vFV = 32, 34, 36, 37, 38, 39
vXA, vSEL, vCS = 40, 44, 48
vPHA, vSGN = 56, 57
vPW0, vPW1, vKA0, vKA1, vKB, vVW = 58, 59, 60, 61, 62, 63
vGA, vGZ, vKW, vZW, vKR = 58, 59, 60, 61, 62
vWF = 64
K2, K0, K1 = 80, 96, 112
vX = 128
def v(n, k=1): return f"v{n}" if k == 1 else f"v[{n}:{n+k-1}]"
def P2(n): return v(n, 2)

a = Asm()
nst = [2]
def stamp(i):
    if STAMP >= 0:
        assert i < 10
        a(f"{'s_memtime' if CYC else 's_memrealtime'} s[{sST0+2*i}:{sST0+2*i+1}]")
        nst[0] = max(nst[0], i + 1)
def pt(name):
    for i, p in enumerate(PTS):
        if name in p: stamp(2 + i)

MF = "v_mfma_f32_32x32x16_bf16"
MF16 = "v_mfma_f32_16x16x32_bf16"
MF32 = "v_mfma_f32_32x32x2_f32"
LOG2E = "0x3fb8aa3b"

def lines(txt): return [l.strip() for l in txt.strip().split("\n") if l.strip()]
def cost(x):
    if callable(x): return getattr(x, "cost", 1)
    return 2 if ("v_exp" in x or "v_rcp" in x or "v_mfma" in x) else 1
def emit(x):
    if callable(x): x()
    else: a(x)
def emits(L):
    for x in L: emit(x)
def fn(f, c=1):
    f.cost = c; return f
def ptf(name): return fn(lambda: pt(name), 0)
def grp(L): return fn(lambda: emits(L), sum(cost(x) for x in L))
def merge(main, side, start=0, end=None):
    end = len(main) if end is None else min(end, len(main))
    tot = sum(cost(x) for x in main[start:end]); out = list(main[:start]); acc = 0; k = 0
    for x in main[start:end]:
        while k < len(side) and acc >= k * tot / len(side): out.append(side[k]); k += 1
        out.append(x); acc += cost(x)
    return out + side[k:] + list(main[end:])
def split(L, n):
    tot = sum(cost(x) for x in L); G = [[] for _ in range(n)]; acc = 0
    for x in L:
        G[min(n - 1, int(acc * n / max(tot, 1)))].append(x); acc += cost(x)
    return G
def vm(txt, tag):
    if opt("now2", 0) and tag[0] == "w": return fn(lambda: None, 3)
    return fn(lambda: a.vmem(txt, tag), 3)
def dsw(txt, tag="w"): return fn(lambda: a.ds(txt, tag), 2)
def wt(**kw): return fn(lambda: a.wait(**kw), 0)

retries = []
def checked(cmp_lines, reload, name):
    lab = a.newlabel(name)
    a.label(lab + "_c")
    for l in cmp_lines: a(l)
    a(f"s_cbranch_vccnz {lab}_r")
    a.label(lab + "_k")
    def blk():
        a.label(lab + "_r")
        a(f"""s_cmp_eq_u32 s{sCNT}, 0
        s_cbranch_scc1 {lab}_k
        s_sub_u32 s{sCNT}, s{sCNT}, 1""")
        reload()
        a(f"""s_waitcnt vmcnt(0)
        s_branch {lab}_c""")
    retries.append(blk)
def skip_if(cmp_line, body, name):
    lab = a.newlabel(name)
    a(cmp_line); a(f"s_cbranch_scc0 {lab}")
    st = a.save()
    body()
    a.label(lab)
    a.restore(st)

t0, t1, t2, t3, u0, u1, u2, u3 = range(vT, vT + 8)
LT = vX + 96
vXR, vRC, vCL = LT, LT + 16, LT + 20
vRW_, vSW_, vEP, vRA1 = LT + 24, LT + 25, LT + 26, 6
TYPE = [0]
RS = [0, 4, 1, 5]
def rot(c, d): return [f"s_add_u32 s{d}, s{sRHO}, {128*c}", f"s_and_b32 s{d}, s{d}, 0x380"]
def x_item(c):
    s = [f"s_add_u32 m0, s{sM0R}, {(c & 3) * SZ}"] + rot(c, sT0)
    return [s + [vm(f"buffer_load_dwordx4 v{vXO}, {srd(sX)}, s{sT0} offen lds", f"x{c}")],
            [vm(f"buffer_load_dwordx4 v{vXO+1}, {srd(sX)}, s{sT0} offen offset:1024 lds", f"x{c}")]]
def w_item1(c):
    b = (4 + (c & 3)) * SZ
    return [[f"s_add_u32 m0, s{sM0R}, {b}", f"s_mul_i32 s{sT0}, s{sT0}, s{sSTR}",
             vm(f"buffer_load_dwordx4 v{vWA}, {srd(sWD)}, s{sT0} offen lds", f"x{c}")],
            [f"s_add_u32 m0, s{sM0R}, {b+1024}", vm(f"buffer_load_dwordx4 v{vWA+1}, {srd(sWD)}, s{sT0} offen lds", f"x{c}")]]
def r_item(i):
    return [[f"s_add_u32 m0, s{sM0R}, {RS[i]*SZ + 1024*k}"] + rot(2 * i + k, sT0) +
            [f"s_mul_i32 s{sT0}, s{sT0}, {(1376, 1536)[TYPE[0]]}", vm(f"buffer_load_dwordx4 v{vWC}, {srd(sWE)}, s{sT0} offen lds", f"b{i}")]
            for k in range(2)]
def item(n):
    i = int(n[1:])
    return x_item(i) + w_item1(i) if n[0] == "x" else r_item(i)

PRIO = opt("prio", 1)
a(f"""s_cmp_ge_u32 s2, 256
s_cbranch_scc1 L_end""")
stamp(0)
a(f"""s_getpc_b64 {sp(sPC)}
L_pc:
s_load_dwordx2 {sp(sX)}, s[0:1], 0
s_lshr_b32 s{sT1}, s2, 2
s_and_b32 s{sT1}, s{sT1}, 32
s_add_u32 s{sT3}, s{sT1}, 8
s_load_dwordx2 {sp(sWD)}, s[0:1], s{sT3}
s_bfe_u32 s{sT0}, s2, 0x30003
v_lshrrev_b32 v{t0}, 6, v0
s_mov_b32 s{sPC+2}, L_end-L_pc
v_lshl_add_u32 v{t1}, v0, 3, s{sT0}
s_mov_b32 s{sPC+3}, 0x00020000
v_lshlrev_b32 v{t1}, 7, v{t1}
v_readfirstlane_b32 s{sW}, v{t0}
buffer_load_dword v{LT+27}, v{t1}, {srd(sPC)}, 0 offen""")
if PRIO: a("s_setprio 3")
if opt("sw2", 0): a(f"""s_load_dwordx2 {sp(sW2)}, s[0:1], 56
s_load_dwordx2 {sp(sWO)}, s[0:1], 24""")
a(f"""s_load_dwordx2 {sp(sWS)}, s[0:1], 80
v_lshrrev_b32 v{vRW_}, 3, v0
s_sub_u32 s{sT4}, 40, s{sT1}
s_and_b32 s{sT1}, s2, 1
v_and_b32 v{t1}, 56, v{vRW_}
s_lshl3_add_u32 s{sRB}, s{sT1}, s{sT0}       ; rb
v_add_u32 v{t0}, v{vRW_}, v{t1}
s_lshr_b32 s{sT1}, s2, 6
v_bfe_u32 v{t2}, v0, 4, 2
s_lshl1_add_u32 s{sRHO}, s{sT1}, s{sT0}
v_bitop3_b32 v{t2}, v0, v{t2}, 7 bitop3:0x28
s_lshl_b32 s{sT2}, s{sRB}, 17
v_lshl_add_u32 v{t2}, v{t2}, 4, s{sT2}
s_and_b32 s{sRHO}, s{sRHO}, {ROTM}
v_lshl_add_u32 v{vXO}, v{t0}, 10, v{t2}
s_lshl_b32 s{sRHO}, s{sRHO}, 7
v_xor_b32 v{vXO+1}, 64, v{vXO}
s_lshl_b32 s{sM0R}, s{sW}, 11
v_add_u32 v{vXO+1}, {8192-1024}, v{vXO+1}
s_mov_b32 s{sX+2}, {2048*1024}
v_bfe_u32 v{t3}, v0, 4, 1
s_mov_b32 s{sX+3}, 0x00020000
v_lshlrev_b32 v{t3}, 2, v{t3}
s_mov_b32 m0, s{sM0R}
v_bitop3_b32 v{t3}, v0, v{t3}, 7 bitop3:0x28
s_bfe_u32 s{sT1}, s2, 0x10006
v_lshlrev_b32 v{vSW_}, 4, v{t3}
s_and_b32 s{sG}, s2, 6
s_or_b32 s{sG}, s{sG}, s{sT1}                ; g
s_mul_i32 s{sSTART}, s{sG}, 11
s_waitcnt lgkmcnt(0)""")
a.vmem(f"buffer_load_dwordx4 v{vXO}, {srd(sX)}, s{sRHO} offen lds", "x0")
a(f"""s_add_u32 s{sSTART}, s{sSTART}, 1
s_lshr_b32 s{sSTART}, s{sSTART}, 1
s_min_u32 s{sSTART}, s{sSTART}, 38
s_lshl1_add_u32 s{sT1}, s{sG}, 16""")
a.vmem(f"buffer_load_dwordx4 v{vXO+1}, {srd(sX)}, s{sRHO} offen offset:1024 lds", "x0")
a(f"""s_movk_i32 s{sSTR}, 1536
s_movk_i32 s{sT2}, 1024
s_bitcmp1_b32 s2, 7
s_cselect_b32 s{sSTR}, 1376, s{sSTR}
s_cselect_b32 s{sT1}, s{sSTART}, s{sT1}
s_cselect_b32 s{sT2}, 128, s{sT2}
v_mul_u32_u24 v{vWA}, s{sSTR}, v{vRW_}
s_lshl_b32 s{sT1}, s{sT1}, 6
s_lshl_b32 s{sWD+2}, s{sSTR}, 10
v_lshl_add_u32 v{vWA}, v{vWA}, 1, v{vSW_}
s_mov_b32 s{sWD+3}, 0x00020000
s_mov_b32 s{sT0}, s{sRHO}
v_add_u32 v{vWA}, s{sT1}, v{vWA}
s_load_dwordx2 {sp(sWE)}, s[0:1], s{sT4}
v_add_u32 v{vWA+1}, s{sT2}, v{vWA}""")
for L in w_item1(0): emits(L)
pt("i0")
a(f"""v_and_b32 v{vL}, 63, v0
s_lshr_b32 s{sT1}, s2, 7
s_lshl1_add_u32 s{sT1}, s{sRB}, s{sT1}
v_lshlrev_b32 v{vL16}, 4, v{vL}
s_lshl3_add_u32 s{sT1}, s{sT1}, s{sG}
s_lshl3_add_u32 s{sREC}, s{sT1}, s{sW}
s_lshl_b32 s{sT1}, s{sREC}, 10
s_mov_b32 s{sWS+2}, {256<<20}
s_mov_b32 s{sWS+3}, 0x00020000
s_lshr_b32 s{sH}, s{sW}, 2""")
TA = opt("ta", 0)
def wtouch():
    if TA & 1 and TYPE[0]: return
    a(f"""s_and_b32 s{sT2}, s2, 127
    v_lshlrev_b32 v{t0}, 7, v{vL}
    s_lshl3_add_u32 s{sT2}, s{sT2}, s{sW}
    s_mul_i32 s{sT2}, s{sT2}, {12*128}
    s_mov_b64 exec, 0xfff
    v_add_u32 v{t0}, s{sT2}, v{t0}""")
    a.vmem(f"buffer_load_dword v{LT+27}, v{t0}, {srd(sWD)}, 0 offen", "tch")
    if TA & 1: a.vmem(f"buffer_load_dword v{LT+27}, v{t0}, {srd(sWE)}, 0 offen", "tch")
    a("s_mov_b64 exec, -1")
if opt("e3", 0):
    a(f"""s_lshl3_add_u32 s{sT2}, s2, s{sW}
    s_lshl_b32 s{sT2}, s{sT2}, 11
    s_add_u32 s{sT2}, s{sT2}, 384
    v_lshl_add_u32 v{t0}, v{vL}, 10, s{sT2}
    s_mov_b64 exec, 3""")
    a.vmem(f"buffer_load_dword v{LT+27}, v{t0}, {srd(sWD)}, 0 offen", "tch")
    a("s_mov_b64 exec, -1")
MW = opt("mw", 0)
SW = opt("sw", 0)
def stouch():
    a(f"""s_and_b32 s{sT2}, s2, 127
    s_lshl3_add_u32 s{sT2}, s{sT2}, s{sW}
    s_mul_i32 s{sT2}, s{sT2}, {12*128}""")
    for o in range(0, 12 * 128, SW): a(f"s_buffer_load_dword s80, {srd(sWD)}, s{sT2} offset:{o}")
    if opt("sw2", 0):
        a(f"""s_lshl3_add_u32 s{sT2}, s2, s{sW}
        s_mov_b32 s{sW2+2}, {1376*1024}
        s_mov_b32 s{sW2+3}, 0x00020000
        s_mov_b32 s{sWO+2}, {512*1024}
        s_mov_b32 s{sWO+3}, 0x00020000
        s_mul_i32 s{sT3}, s{sT2}, {6*128}
        s_lshl_b32 s{sT2}, s{sT2}, 8""")
        for o in range(0, 6 * 128, SW): a(f"s_buffer_load_dword s80, {srd(sW2)}, s{sT3} offset:{o}")
        for o in range(0, 2 * 128, SW): a(f"s_buffer_load_dword s80, {srd(sWO)}, s{sT2} offset:{o}")
if MW == 1: wtouch()
a.vmem(f"buffer_load_dwordx4 {v(vXR,4)}, v{vL16}, {srd(sX)}, s{sT1} offen", "xr")
a.vmem(f"buffer_load_dword v{vEP}, off, {srd(sWS)}, 0 sc1", "xr")
if MW == 2: wtouch()
if SW: stouch()
if PRIO: a("s_setprio 0")
B3 = lines(f"""s_load_dwordx2 {sp(sPH)}, s[0:1], 16
s_load_dwordx2 {sp(sB1)}, s[0:1], 48
s_load_dwordx2 {sp(sW2)}, s[0:1], 56
s_load_dwordx2 {sp(sWO)}, s[0:1], 24
s_load_dwordx2 {sp(sOUT)}, s[0:1], 64
s_and_b32 s{sSIG}, s{sW}, 3
v_and_b32 v{u0}, 31, v{vL}
s_xor_b32 s{sT3}, s{sSIG}, s{sH}
v_lshrrev_b32 v{u1}, 5, v{vL}
v_bfe_u32 v{u2}, v{vL}, 1, 3
s_lshl_b32 s{sT2}, s{sSIG}, 7
v_xor_b32 v{u2}, v{u1}, v{u2}
s_add_u32 s{sT2}, s{sT2}, s{sT3}
v_lshlrev_b32 v{u2}, 4, v{u2}
s_lshl_b32 s{sT2}, s{sT2}, 5
v_lshl_add_u32 v{u2}, v{u0}, 7, v{u2}
v_bfe_u32 v{t0}, v{vL}, 2, 2
v_xor_b32 v{vXA}, s{sT2}, v{u2}
v_bfe_u32 v{t1}, v{vL}, 4, 1
v_xor_b32 v{vXA+1}, 32, v{vXA}
v_and_b32 v{t2}, 3, v{vL}
v_xor_b32 v{vXA+2}, 64, v{vXA}
v_lshlrev_b32 v{t2}, 3, v{t2}
v_xor_b32 v{vXA+3}, 96, v{vXA}
v_lshl_add_u32 v{t2}, v{t1}, 5, v{t2}
v_lshrrev_b32 v{u2}, 1, v{t0}
s_lshl_b32 s{sT2}, s{sT3}, 6
v_lshl_add_u32 v{u2}, v{u2}, 6, v{t2}
s_add_u32 s{sT2}, s{sT2}, s{sH}
v_lshl_add_u32 v{t3}, v{t0}, 7, v{u2}
s_lshl_b32 s{sT2}, s{sT2}, 6
v_lshl_add_u32 v{u2}, v{u1}, 11, v{t3}
s_or_b32 s{sT2}, s{sT2}, 0x10000
v_xor_b32 v{u3}, v{t0}, v{t1}
v_xor_b32 v{vPM}, s{sT2}, v{u2}
v_and_b32 v{u3}, 1, v{u3}
v_xor_b32 v{vPM+1}, 4096, v{vPM}
v_cmp_eq_u32 vcc, 0, v{u3}
v_xor_b32 v{vPM+2}, 8192, v{vPM}
v_mov_b32 v{u3}, 0x3f803f80
v_xor_b32 v{vPM+3}, 12288, v{vPM}""")
if opt("sw2", 0): B3 = B3[:2] + B3[4:]
B3 += [f"v_cndmask_b32 v{vSEL+i}, 0, v{u3}, vcc" for i in range(4)]
PRO = opt("pro", "x1").split(",")
PRE2 = opt("pre2", 8)
B3N = opt("b3n", 0)
if PRE2 & 8: emits(B3[:B3N])
else: emits(merge(B3, [grp(L) for n in PRO for L in item(n)]))


def mish(acc, pk, tmp):
    L = []
    for g in (0, 8):
        r = [acc + g + i for i in range(8)]; u = [tmp + i for i in range(8)]
        if pk:
            L += [f"v_pk_fma_f32 {P2(u[i])}, {P2(r[i])}, {P2(vC1)}, {sp(sHALF)} op_sel_hi:[1,0,1]" for i in range(0, 8, 2)]
            L += [f"v_exp_f32 v{u[i]}, v{u[i]}" for i in range(8)]
            L += [f"v_pk_add_f32 {P2(u[i])}, {P2(u[i])}, {sp(sISQ)}" for i in range(0, 8, 2)]
            L += [f"v_pk_fma_f32 {P2(u[i])}, {P2(u[i])}, {P2(u[i])}, {sp(sHALF)} neg_lo:[1,0,0] neg_hi:[1,0,0]" for i in range(0, 8, 2)]
            L += [f"v_rcp_f32 v{u[i]}, v{u[i]}" for i in range(8)]
            L += [f"v_pk_fma_f32 {P2(r[i])}, {P2(r[i])}, {P2(u[i])}, {P2(r[i])}" for i in range(0, 8, 2)]
        else:
            L += [f"v_fma_f32 v{u[i]}, v{r[i]}, v{vC1}, -0.5" for i in range(8)]
            L += [f"v_exp_f32 v{u[i]}, v{u[i]}" for i in range(8)]
            L += [f"v_add_f32 v{u[i]}, s{sISQ}, v{u[i]}" for i in range(8)]
            L += [f"v_fma_f32 v{u[i]}, -v{u[i]}, v{u[i]}, -0.5" for i in range(8)]
            L += [f"v_rcp_f32 v{u[i]}, v{u[i]}" for i in range(8)]
            L += [f"v_fmac_f32 v{r[i]}, v{r[i]}, v{u[i]}" for i in range(8)]
        L += [f"v_cvt_pk_bf16_f32 v{acc+g//2+i}, v{r[2*i]}, v{r[2*i+1]}" for i in range(4)]
        L.append(("half", g // 8))
    return L
def frag_store(reg, sb, half, tag="st"):
    return vm(f"buffer_store_dwordx4 {v(reg,4)}, v{vL16}, {srd(sWS)}, s{sb} offen offset:{half*2048} sc1", tag)
def mish_store(acc, pk, sb, tmp, tag="st"):
    return [frag_store(acc + 4 * x[1], sb, x[1], tag) if isinstance(x, tuple) else x for x in mish(acc, pk, tmp)]
def softmax(P, out, pk, m):
    L = [f"v_max3_f32 v{m}, v{P}, v{P+1}, v{P+2}", f"v_max3_f32 v{m+1}, v{P+3}, v{P+4}, v{P+5}"]
    for i in range(6, 14, 4):
        L += [f"v_max3_f32 v{m}, v{m}, v{P+i}, v{P+i+1}", f"v_max3_f32 v{m+1}, v{m+1}, v{P+i+2}, v{P+i+3}"]
    L += [f"v_max3_f32 v{m}, v{m}, v{P+14}, v{P+15}", f"v_max_f32 v{m}, v{m}, v{m+1}", f"v_mul_f32 v{m}, v{m}, v{vC1}"]
    if pk:
        L += [f"v_pk_fma_f32 {P2(P+i)}, {P2(P+i)}, {P2(vC1)}, {P2(m)} op_sel_hi:[1,0,0] neg_lo:[0,0,1] neg_hi:[0,0,1]" for i in range(0, 16, 2)]
        L += [f"v_exp_f32 v{P+i}, v{P+i}" for i in range(16)]
        L += [f"v_pk_add_f32 {P2(m)}, {P2(P)}, {P2(P+2)}", f"v_pk_add_f32 {P2(m+2)}, {P2(P+4)}, {P2(P+6)}"]
        L += [f"v_pk_add_f32 {P2(m+(i&2))}, {P2(m+(i&2))}, {P2(P+i)}" for i in range(8, 16, 2)]
        L += [f"v_pk_add_f32 {P2(m)}, {P2(m)}, {P2(m+2)}", f"v_add_f32 v{m}, v{m}, v{m+1}", f"v_rcp_f32 v{m}, v{m}"]
        L += [f"v_pk_mul_f32 {P2(P+i)}, {P2(P+i)}, {P2(m)} op_sel_hi:[1,0]" for i in range(0, 16, 2)]
    else:
        L += [f"v_fma_f32 v{P+i}, v{P+i}, v{vC1}, -v{m}" for i in range(16)]
        L += [f"v_exp_f32 v{P+i}, v{P+i}" for i in range(16)]
        L += [f"v_add_f32 v{m+i}, v{P+2*i}, v{P+2*i+1}" for i in range(4)]
        L += [f"v_add_f32 v{m+(i&3)}, v{m+(i&3)}, v{P+i}" for i in range(8, 16)]
        L += [f"v_add_f32 v{m}, v{m}, v{m+1}", f"v_add_f32 v{m+2}, v{m+2}, v{m+3}", f"v_add_f32 v{m}, v{m}, v{m+2}", f"v_rcp_f32 v{m}, v{m}"]
        L += [f"v_mul_f32 v{P+i}, v{P+i}, v{m}" for i in range(16)]
    L += [f"v_cvt_pk_bf16_f32 v{out+i}, v{P+2*i}, v{P+2*i+1}" for i in range(8)]
    return L

def one_lane(x): return grp(["s_mov_b64 exec, 1", x, "s_mov_b64 exec, -1"])
def rec_store(): return one_lane(vm(f"buffer_store_dwordx4 {v(vRC,4)}, off, {srd(sWS)}, s{sREC} sc1", "rec"))
def rec1_load(tag="rec1"): return vm(f"buffer_load_dwordx4 {v(vBC,4)}, v{vRA1}, {srd(sWS)}, 0 offen sc1", tag)
FOFF = [12, 0, 128, 4]
OSENT = 1
def pmask(k): return sp((sMASK, sFM)[k])
def poll(k, tag=None):
    return grp([f"s_mov_b64 exec, {pmask(k)}",
                vm(f"buffer_load_dword v{vFV}, v{vFL}, {srd(sWS)}, {f's{sFB}' if k else 0} offen offset:{FOFF[k]} sc1", tag or f"fl{k}"), "s_mov_b64 exec, -1"])
def poll_check(k):
    def p():
        a.wait(vm=f"fl{k}")
        checked([f"v_cmp_ne_u32 vcc, s{sTAG}, v{vFV}", f"s_and_b64 vcc, vcc, {pmask(k)}"], poll(k, "x"), "L_fl")
        pt(f"fl{k}")
    return fn(p, 3)
vTG = 63
def flag_store(k, tag):
    return [f"v_mov_b32 v{vTG}, s{sTAG}", wt(vm=tag), one_lane(vm(f"buffer_store_dword v{vTG}, off, {srd(sWS)}, s{sFL} offset:{FOFF[k]} sc1", "fs")), ptf(f"fs{k}")]
def clr2(sb, off, T):
    if opt("noclr", 0): return "s_nop 0"
    assert T > 27
    return vm(f"buffer_store_dwordx4 {v(vA2B if T > 30 else vT,4)}, v{vL16}, {srd(sWS)}, s{sb} offen offset:{off} sc1", "clr")

def stats():
    e = vXR + 4; r0, r1 = vXR + 12, vXR + 13
    def allsum(r):
        L = [f"v_add_f32_dpp v{r}, v{r}, v{r} row_ror:{s} row_mask:0xf bank_mask:0xf" for s in (8, 4, 2, 1)]
        L += [f"v_mov_b32 v{r1}, v{r}", f"v_permlane16_swap_b32 v{r}, v{r1}", f"v_add_f32 v{r}, v{r}, v{r1}",
              f"v_mov_b32 v{r1}, v{r}", f"v_permlane32_swap_b32 v{r}, v{r1}", f"v_add_f32 v{r}, v{r}, v{r1}"]
        return L
    S = [wt(vm="xr"), f"v_add_u32 v{vRC+3}, 1, v{vEP}"]
    for j in range(4):
        S += [f"v_lshlrev_b32 v{e+2*j}, 16, v{vXR+j}", f"v_and_b32 v{e+2*j+1}, 0xffff0000, v{vXR+j}"]
    S += [f"v_readfirstlane_b32 s{sTAG}, v{vRC+3}"]
    S += [f"v_add_f32 v{vXR+j}, v{e+2*j}, v{e+2*j+1}" for j in range(4)]
    S += [f"v_add_f32 v{vXR}, v{vXR}, v{vXR+1}", f"v_add_f32 v{vXR+2}, v{vXR+2}, v{vXR+3}", f"v_add_f32 v{r0}, v{vXR}, v{vXR+2}"]
    S += allsum(r0)
    S += [f"v_mul_f32 v{vRC}, 0xbb000000, v{r0}"]
    S += [f"v_add_f32 v{e+j}, v{e+j}, v{vRC}" for j in range(8)]
    S += [f"v_mul_f32 v{vXR+j}, v{e+j}, v{e+j}" for j in range(4)]
    S += [f"v_fmac_f32 v{vXR+j}, v{e+4+j}, v{e+4+j}" for j in range(4)]
    S += [f"v_add_f32 v{vXR}, v{vXR}, v{vXR+1}", f"v_add_f32 v{vXR+2}, v{vXR+2}, v{vXR+3}", f"v_add_f32 v{r0}, v{vXR}, v{vXR+2}"]
    S += allsum(r0)
    S += [f"v_mov_b32 v{r1}, 0x3727c5ac", f"v_fmac_f32 v{r1}, 0x3b000000, v{r0}", f"v_rsq_f32 v{vRC+2}, v{r1}",
          f"s_lshl4_add_u32 s{sREC}, s{sREC}, {REC1}" if not PRE2 & 10 else "s_nop 0", f"v_mul_f32 v{vRC+1}, v{r1}, v{vRC+2}"]
    return S

def consts0(ty):
    if ty: return []
    def clr(off): return vm(f"buffer_store_dwordx4 {v(vCL,4)}, v{vL16}, {srd(sWS)}, s{sC0} offen offset:{off} sc1", "clr")
    L = lines(f"""s_lshl2_add_u32 s{sT2}, s{sG}, s{sSIG}
    v_mov_b32 v{vCL}, -1
    s_lshl4_add_u32 s{sT2}, s{sT2}, s{sRB}
    s_mul_i32 s{sT2}, s{sT2}, 1152
    s_add_u32 s{sC0}, s{sT2}, {KVD}""")
    if not opt("noclr", 0): L += [clr(0), "s_mov_b64 exec, 15", clr(1024), "s_mov_b64 exec, -1"]
    return [fn(lambda: skip_if(f"s_cmp_eq_u32 s{sH}, 0", lambda: emits(L), "L_c0"))]
def bases(ty):
    L = lines(f"""s_lshr_b32 s{sT4}, s{sSIG}, 1
    s_lshl1_add_u32 s{sT4}, s{sRB}, s{sT4}
    s_mul_i32 s{sKB}, s{sT4}, 236
    s_and_b32 s{sT4}, s{sSIG}, 1
    s_add_u32 s{sKB}, s{sKB}, s{sT4}
    s_lshl2_add_u32 s{sT2}, s{sTILE}, s{sKB}
    s_lshl_b32 s{sT2}, s{sT2}, 10
    s_add_u32 s{sSB0}, s{sT2}, {ACT}
    s_mov_b32 s{sFB}, {FLG - 8 * REC1}
    s_lshl3_add_u32 s{sFL}, s{sREC}, s{sFB}""")
    if ty == 0:
        return L + lines(f"""s_lshr_b32 s{sT2}, 0xea, s{sG}
        s_and_b32 s{sT2}, s{sT2}, s{sH}
        s_mul_i32 s{sT2}, s{sT2}, {DUM}
        s_add_u32 s{sSB0}, s{sSB0}, s{sT2}""")
    return L + lines(f"""s_add_u32 s{sC1}, s{sSB0}, 8192
    s_lshl1_add_u32 s{sT2}, s{sG}, s{sH}
    s_lshl2_add_u32 s{sT2}, s{sT2}, s{sKB}
    s_lshl_b32 s{sT2}, s{sT2}, 10
    s_add_u32 s{sC0}, s{sT2}, {ACT + 172*1024}""")
def consts1(ty):
    L = [f"s_add_u32 s{sSTART}, s{sSTART}, 4"] * (1 - ty) + lines(f"""s_add_u32 s{sTILE}, s{sSTART}, s{sH}
    s_and_b32 s{sT2}, s2, 7
    s_bfe_u32 s{sT3}, s2, 0x20003
    s_lshl2_add_u32 s{sRB2}, s{sT2}, s{sT3}
    s_lshr_b32 s{sCB}, s2, 5
    s_xor_b32 s{sCB}, s{sCB}, {opt("cbx", 0)}
    s_mov_b32 s{sW2+2}, {1376*1024}
    s_mov_b32 s{sW2+3}, 0x00020000
    s_mov_b32 s{sWO+2}, {512*1024}
    s_mov_b32 s{sWO+3}, 0x00020000""")
    if opt("mt", 1):
        n = 16 if TA & 2 else 8
        L += lines(f"""s_lshl3_add_u32 s{sT2}, s2, s{sW}
        s_lshl_b32 s{sT2}, s{sT2}, {11 if TA & 2 else 10}
        v_lshl_add_u32 v{vTCH}, v{vL}, 7, s{sT2}""")
        if opt("t3", 0):
            L += lines(f"""s_lshr_b32 s{sT2}, s2, 3
            s_lshl3_add_u32 s{sT2}, s{sT2}, s{sW}
            s_sub_u32 s{sT2}, s{sT2}, 1
            s_mul_i32 s{sT2}, s{sT2}, {n * 1024}
            s_add_u32 s{sT2}, s{sT2}, 384
            v_lshl_add_u32 v{vTCH+1}, v{vL}, 10, s{sT2}
            v_cmp_gt_u32 vcc, {n}, v{vL}
            v_cndmask_b32 v{vTCH}, v{vTCH+1}, v{vTCH}, vcc""")
            n *= 2
        L += [f"v_add_u32 v{vTCH+1}, {(1 << 32) - 1376 * 1024:#x}, v{vTCH}", fn(lambda: None) if TA & 2 and ty else touch(0, n)]
    if TOUCH:
        L += lines(f"""s_lshl3_add_u32 s{sT2}, s{sT3}, s{sW}
        s_lshl_b32 s{sT2}, s{sT2}, 9
        s_add_u32 s{sT2}, s{sT2}, s{sCB}
        s_lshl_b32 s{sT2}, s{sT2}, 7
        v_lshl_add_u32 v{vTCH}, v{vL}, 10, s{sT2}
        v_add_u32 v{vTCH+1}, {(1 << 32) - 24 * 65536:#x}, v{vTCH}""")
    L += [f"s_lshl_b32 s{sT3}, s{sT3}, 1"] * (ROT2 == 7) + lines(f"""s_xor_b32 s{sT3}, s{sT3}, s{sCB}
    s_and_b32 s{sT3}, s{sT3}, {ROT2}
    s_lshl_b32 s{sRA}, s{sT3}, 11
    s_lshl_b32 s{sRW}, s{sT3}, 14
    s_lshr_b32 s{sT3}, s{sT3}, {(ROT2 == 7) * 1}
    s_lshl_b32 s{sRA2}, s{sT3}, 11
    s_lshl_b32 s{sRW2}, s{sT3}, 14
    s_lshl1_add_u32 s{sGAM}, s{sSIG}, s{sH}
    s_mul_i32 s{sT4}, s{sGAM}, 11
    s_add_u32 s{sT4}, s{sT4}, 1
    s_lshr_b32 s{sT4}, s{sT4}, 1
    s_min_u32 s{sT4}, s{sT4}, 38
    v_and_b32 v{u3}, 7, v{vRW_}
    v_lshl_add_u32 v{u3}, v{u3}, 10, v{vSW_}
    s_lshl_b32 s{sT2}, s{sT4}, 8
    s_add_u32 s{sT2}, s{sT2}, s{sCB}
    s_lshl_b32 s{sT2}, s{sT2}, 7
    v_add_u32 v{vW2O}, s{sT2}, v{u3}
    v_add_u32 v{vW2O+1}, {8192-1024}, v{vW2O}
    s_lshl_b32 s{sT2}, s{sGAM}, 9
    s_add_u32 s{sT2}, s{sT2}, s{sCB}
    s_lshl_b32 s{sT2}, s{sT2}, 7
    v_add_u32 v{vWOO}, s{sT2}, v{u3}
    v_add_u32 v{vWOO+1}, {8192-1024}, v{vWOO}
    s_mul_i32 s{sT2}, s{sRB2}, 59
    s_add_u32 s{sT2}, s{sT2}, s{sT4}
    s_lshl_b32 s{sT2}, s{sT2}, 12
    s_add_u32 s{sT2}, s{sT2}, {ACT}
    v_add_u32 v{vACT}, s{sT2}, v{vL16}
    s_lshl1_add_u32 s{sT3}, s{sGAM}, 43
    s_sub_u32 s{sT3}, s{sT3}, s{sT4}
    s_lshl_b32 s{sAO}, s{sT3}, 12
    s_mov_b32 s{sWE+2}, {512*(2752, 3072)[ty]}
    s_mov_b32 s{sWE+3}, 0x00020000
    s_lshl_b32 s{sT2}, s{(sSTART, sG)[ty]}, {(6, 7)[ty]}
    v_mul_u32_u24 v{vWC}, {(2752, 3072)[ty]}, v{vRW_}
    v_add3_u32 v{vWC}, v{vWC}, v{vSW_}, s{sT2}
    v_lshlrev_b32 v{vBA}, 1, v{u0}
    s_movk_i32 s{sB1+2}, 2752
    s_mov_b32 s{sB1+3}, 0x00020000
    s_lshl_b32 s{sT4}, s{sTILE}, 6""")
    L += [vm(f"buffer_load_ushort v{vBA+i}, v{vBA}, {srd(sB1)}, s{sT4} offen offset:{128*i}", "misc") for i in reversed(range(1 + ty))]
    L += lines(f"""s_mov_b32 s{sPH+2}, 16384
    s_mov_b32 s{sPH+3}, 0x00020000
    s_and_b32 s{sT2}, s{sW}, 1
    s_lshl_b32 s{sT2}, s{sT2}, 10
    s_lshl_b32 s{sT3}, s{sG}, 11
    s_add_u32 s{sT3}, s{sT3}, s{sT2}""")
    return L
TOUCH = [x for x in opt("touch", "").split(",") if x]
vTCH = LT + 28
def touch(l0, n):
    m = ((1 << n) - 1) << l0
    return grp([f"s_mov_b32 exec_lo, {m & 0xffffffff:#x}", f"s_mov_b32 exec_hi, {m >> 32:#x}",
                vm(f"buffer_load_dword v{vFV}, v{vTCH}, {srd(sW2)}, 0 offen", "tch"),
                vm(f"buffer_load_dword v{vFV}, v{vTCH+1}, {srd(sWO)}, 0 offen", "tch"), "s_mov_b64 exec, -1"])
def wphi_dma():
    return grp([f"s_add_u32 m0, s{sT2}, {WPHI}", f"s_mov_b32 s{sCNT}, {SPIN}",
                vm(f"buffer_load_dwordx4 v{vL16}, {srd(sPH)}, s{sT3} offen lds", "misc")])

def consts2(ty):
    L = lines(f"""s_lshl2_add_u32 s{sT2}, s{sRB}, s{sSIG}
    s_lshl_b32 s{sT2}, s{sT2}, 9
    s_add_u32 s{sT2}, s{sT2}, {REC1}
    v_lshl_add_u32 v{vRA1}, v{u0}, 4, s{sT2}
    s_lshl_b32 s{sT2}, s{sH}, 9
    s_add_u32 s{sT2}, s{sT2}, {CW}
    v_lshl_add_u32 v{vCAR}, v{u0}, 4, s{sT2}
    s_lshl_b32 s{sT2}, s{sSIG}, 2
    v_add_u32 v{vCAW}, s{sT2}, v{vCAR}
    v_lshl_add_u32 v{t3}, v{u1}, 9, v{t3}
    v_add_u32 v{vA2B}, s{sM0R}, v{t3}
    s_mov_b32 s{sHALF}, -0.5
    s_mov_b32 s{sHALF+1}, -0.5
    s_mov_b32 s{sISQ}, 0x3f3504f3
    s_mov_b32 s{sISQ+1}, 0x3f3504f3
    s_mov_b32 s{sLOm}, -1
    s_mov_b32 s{sLOm+1}, 0
    s_mov_b32 s{sMASK}, 0xffff0000
    s_mov_b32 s{sMASK+1}, 0
    v_lshl_add_u32 v{u3}, v{u1}, 2, v{t0}
    v_lshlrev_b32 v{u3}, 5, v{u3}
    v_lshl_add_u32 v{u3}, v{t1}, 4, v{u3}
    v_bfe_u32 v{t3}, v{vL}, 1, 1
    v_lshl_add_u32 v{u3}, v{t3}, 3, v{u3}
    s_lshl_b32 s{sT2}, s{sH}, 10
    s_add_u32 s{sT2}, s{sT2}, {WPHI}
    v_add_u32 v{vPHA}, s{sT2}, v{u3}
    v_bfe_i32 v{vSGN}, v{vL}, 2, 1
    v_and_b32 v{vSGN}, 0x80008000, v{vSGN}""")
    L += [f"v_and_b32 v{vPL+i}, 0xffff, v{vPM+i}" for i in range(4)]
    L += lines(f"""s_lshr_b32 s{sT2}, s{sRB2}, 1
    s_lshl4_add_u32 s{sT2}, s{sT2}, s{sGAM}
    s_lshl_b32 s{sT2}, s{sT2}, 7
    s_add_u32 s{sT2}, s{sT2}, {REC1}
    v_and_b32 v{u3}, 8, v{vL}
    v_mul_u32_u24 v{u3}, 0x70, v{u3}
    v_and_b32 v{u2}, 15, v{vL}
    v_lshl_add_u32 v{u3}, v{u2}, 4, v{u3}
    v_add_u32 v{vFL}, s{sT2}, v{u3}""")
    if ty == 0:
        L += lines(f"""s_lshl_b32 s{sT4}, s{sSIG}, 5
        v_add_u32 v{u0}, s{sT4}, v{u0}
        v_bfe_u32 v{u2}, v{vL}, 1, 2
        v_lshlrev_b32 v{u3}, 1, v{u1}
        v_xor_b32 v{u2}, v{u2}, v{u3}
        s_lshl_b32 s{sT2}, s{sH}, 14
        s_add_u32 s{sT2}, s{sT2}, {PHI}
        v_lshl_add_u32 v{u2}, v{u2}, 4, s{sT2}
        v_lshl_add_u32 v{vPW0}, v{u0}, 6, v{u2}
        v_xor_b32 v{vPW1}, 16, v{vPW0}
        v_mul_u32_u24 v{u0}, 144, v{u0}
        v_add_u32 v{u0}, {VIMG}, v{u0}
        v_mov_b32 v{vTCH+2}, 0x3f803f80
        v_mov_b32 v{vTCH+3}, 0x3f803f80""") + [dsw(f"ds_write_b64 v{u0}, {v(vTCH+2,2)} offset:128")] + lines(f"""
        s_lshl_b32 s{sT2}, s{sH}, 6
        v_lshl_add_u32 v{vVW}, v{u1}, 4, s{sT2}
        v_add_u32 v{vVW}, v{vVW}, v{u0}
        v_lshl_add_u32 v{u1}, v{u1}, 3, v{t0}
        v_and_b32 v{u2}, 1, v{vL}
        v_lshl_add_u32 v{u2}, v{u2}, 1, v{t1}
        v_lshrrev_b32 v{u3}, 1, v{t0}
        v_xor_b32 v{u2}, v{u2}, v{u3}
        v_lshlrev_b32 v{u2}, 4, v{u2}
        v_lshl_add_u32 v{u2}, v{u1}, 6, v{u2}
        v_lshl_add_u32 v{u2}, v{t3}, 3, v{u2}
        s_lshl_b32 s{sT2}, s{sSIG}, 13
        s_add_u32 s{sT2}, s{sT2}, {PHI}
        v_add_u32 v{vKA0}, s{sT2}, v{u2}
        v_xor_b32 v{vKA1}, 32, v{vKA0}
        v_mul_u32_u24 v{u1}, 144, v{u1}
        v_add_u32 v{u2}, s{sT4}, v{t2}
        v_cmp_eq_u32 vcc, 1, v{t1}
        v_mov_b32 v{u3}, 128
        v_add_u32 v{u1}, {VIMG}, v{u1}
        v_cndmask_b32 v{u2}, v{u2}, v{u3}, vcc
        v_add_u32 v{vKB}, v{u1}, v{u2}""")
    else:
        L += lines(f"""s_lshl2_add_u32 s{sT2}, s{sG}, s{sSIG}
        s_mul_i32 s{sT2}, s{sT2}, {16*1152}
        s_add_u32 s{sT2}, s{sT2}, {KVD}
        v_lshrrev_b32 v{u3}, 4, v{vL}
        v_mul_u32_u24 v{u3}, 1152, v{u3}
        v_add_u32 v{u3}, s{sT2}, v{u3}
        s_lshl_b32 s{sT3}, s{sH}, 9
        v_lshlrev_b32 v{t2}, 4, v{u2}
        v_add3_u32 v{vGA}, v{u3}, v{t2}, s{sT3}
        v_bfe_u32 v{vGZ}, v{vL}, 1, 2
        v_mul_u32_u24 v{vGZ}, {4*1152}, v{vGZ}
        v_and_b32 v{t3}, 1, v{vL}
        v_lshl_add_u32 v{u3}, v{t3}, 4, v{u3}
        s_lshl_b32 s{sT3}, s{sH}, 5
        v_add3_u32 v{vGZ}, v{vGZ}, v{u3}, s{sT3}
        s_lshl3_add_u32 s{sT2}, s{sG}, s{sSIG}
        s_lshl4_add_u32 s{sT2}, s{sT2}, {REC1}
        v_lshl_add_u32 v{u3}, v{u2}, 11, s{sT2}
        v_cmp_eq_u32 vcc, 1, v{t1}
        s_mul_i32 s{sT2}, s{sGAM}, 544
        s_add_u32 s{sT2}, s{sT2}, {KVL}
        v_cndmask_b32 v{vFL}, v{vFL}, v{u3}, vcc
        v_lshl_add_u32 v{u3}, v{t1}, 3, s{sT2}
        v_mul_u32_u24 v{vKW}, 272, v{u1}
        v_add3_u32 v{vKW}, v{vKW}, v{u3}, v{t2}
        v_mul_u32_u24 v{vZW}, 272, v{t3}
        v_add_u32 v{vZW}, v{vZW}, v{u3}
        v_and_b32 v{u3}, 3, v{vL}
        v_bfe_u32 v{t3}, v{vL}, 2, 1
        v_lshl_add_u32 v{u3}, v{t3}, 3, v{u3}
        v_bfe_u32 v{t3}, v{vL}, 3, 1
        v_lshl_add_u32 v{u3}, v{t3}, 2, v{u3}
        v_cndmask_b32 v{u3}, v{u3}, 16, vcc
        v_lshlrev_b32 v{u3}, 4, v{u3}
        v_mul_u32_u24 v{u1}, 544, v{u1}
        s_mul_i32 s{sT3}, s{sH}, 2176
        s_add_u32 s{sT3}, s{sT3}, {KVL}
        v_add3_u32 v{vKR}, v{u3}, v{u1}, s{sT3}""")
    return L
def consts3(ty):
    return lines(f"""s_mov_b32 s{sOUT+2}, {2048*1024}
    s_mov_b32 s{sOUT+3}, 0x00020000
    s_and_b32 s{sT2}, s{sRB2}, 1
    s_lshl_b32 s{sT2}, s{sT2}, 1
    s_lshl_b32 s{sFM}, 0x3333, s{sT2}
    s_mov_b32 s{sFM+1}, 0
    s_lshl1_add_u32 s{sT2}, s{sRB2}, s{sH}
    s_lshl_b32 s{sR2}, s{sT2}, 9
    s_add_u32 s{sR2}, s{sR2}, {REC1}
    s_lshl_b32 s{sT2}, s{sT2}, 10
    s_lshl2_add_u32 s{sT3}, s{sCB}, s{sSIG}
    s_add_u32 s{sT2}, s{sT2}, s{sT3}
    s_lshl_b32 s{sOB}, s{sT2}, 5""")

vACC, vWR = 64, 128
vOO, vRSA, vEC, vRS2, vRES, vRW, vRR, vC0, vS0 = 8, 9, 10, 14, 16, 20, 21, 22, 24
vMT = 16
def areg(j): return [192, 200, 208, 248][j % 12] if j % 12 < 4 else (184 + 8 * (j % 8) if j < 9 else 40 + 8 * (j - 9))
def wreg(j): return vWR + 8 * (j % 7)
WS_ = {}
def w_item(j, s):
    WS_[j] = s
    so = (f"s_mov_b32 s{sT0}, {j << 14}" if 8 <= j < 12 else f"s_xor_b32 s{sT0}, s{sRW if j < 8 else sRW2}, {(j % 12) << 14}")
    d, ad = (srd(sW2), vW2O) if j < 12 else (srd(sWO), vWOO)
    return grp([f"s_add_u32 m0, s{sM0R}, {s * SZ}", so,
                vm(f"buffer_load_dwordx4 v{ad}, {d}, s{sT0} offen lds", f"w{j}"),
                vm(f"buffer_load_dwordx4 v{ad+1}, {d}, s{sT0} offen offset:1024 lds", f"w{j}")])
def w_read(j):
    s = WS_[j]
    ad = [vA2L, vA2M, vA2T][s >> 2]; off = (s & 3) * SZ
    L = [wt(vm=f"w{j}")]
    for b in range(2):
        L.append(dsw(f"ds_read_b64_tr_b16 {v(wreg(j)+4*b,2)}, v{ad+b} offset:{off}", f"r{j}"))
        L.append(dsw(f"ds_read_b64_tr_b16 {v(wreg(j)+4*b+2,2)}, v{ad+b} offset:{off+1024}", f"r{j}"))
    return L
vBW, vBR = 38, 56
def w_raw(j):
    WS_[j] = -1
    return [grp([f"s_xor_b32 s{sT0}, s{sRW}, {j << 14}", vm(f"buffer_load_dwordx4 {v(wreg(j)+4,4)}, v{vW2O}, {srd(sW2)}, s{sT0} offen", f"w{j}")]),
            grp([f"s_xor_b32 s{sT0}, s{sRW}, {j << 14}", vm(f"buffer_load_dwordx4 {v(wreg(j)+8,4)}, v{vW2O+1}, {srd(sW2)}, s{sT0} offen offset:1024", f"w{j}")])]
def bnc_addrs():
    return lines(f"""s_lshr_b32 s{sT2}, s{sM0R}, 1
    s_sub_u32 s{sT3}, {BNC}, s{sT2}
    s_add_u32 s{sT2}, s{sT2}, {BNC}
    v_add_u32 v{vBW}, s{sT2}, v{vL16}
    v_add_u32 v{vBR}, s{sT3}, v{vA2L}
    v_add_u32 v{vBR+1}, s{sT3}, v{vA2L+1}""")
def w_conv(j):
    L = [wt(vm=f"w{j}")]
    for hf in range(2):
        L.append(dsw(f"ds_write_b128 v{vBW}, {v(wreg(j)+4+4*hf,4)}", f"r{j}"))
        L += [dsw(f"ds_read_b64_tr_b16 {v(wreg(j)+4*b+2*hf,2)}, v{vBR+b}", f"r{j}") for b in range(2)]
    return L
def w_refill(j, q):
    return [wt(lg=f"r{q}"), w_item(j, WS_[q])]
def p2_addrs():
    return lines(f"""v_mov_b32 v{vA2L}, v{vA2B}
    v_xor_b32 v{vA2L+1}, 64, v{vA2B}
    v_add_u32 v{vA2M}, {4*SZ}, v{vA2L}
    v_add_u32 v{vA2M+1}, {4*SZ}, v{vA2L+1}
    v_add_u32 v{vA2T}, {8*SZ}, v{vA2L}
    v_add_u32 v{vA2T+1}, {8*SZ}, v{vA2L+1}""")
def a_load(j, tag=None, st=(0, 1)):
    def p():
        if j < 8: a(f"s_xor_b32 s{sT1}, s{sRA}, {j << 11}")
        elif j < 12: a(f"s_movk_i32 s{sT1}, {j << 11}")
        else: a(f"s_xor_b32 s{sT1}, s{sRA2}, {(j - 12) << 11}\ns_add_u32 s{sT1}, s{sAO}, s{sT1}")
        for s in st:
            if not opt("noact", 0): a.vmem(f"buffer_load_dwordx4 {v(areg(j)+4*s,4)}, v{vACT}, {srd(sWS)}, s{sT1} offen offset:{1024*s} {'sc1' if j >= opt('asc', 0) else opt('asf', '')}", tag or f"a{j}")
    return fn(p, 3 * len(st) + 1)
def p6(body): skip_if(f"s_cmp_lt_u32 s{sW}, 3", body, "L_p6")
def p6f(L): return fn(lambda: p6(lambda: emits(L)), 6)
def selectors(tmp):
    L = lines(f"""v_and_b32 v{tmp}, 1, v{vL}
    v_mov_b32 v{tmp+1}, 0x3f80
    v_lshlrev_b32 v{tmp}, 4, v{tmp}
    v_lshlrev_b32 v{tmp+1}, v{tmp}, v{tmp+1}
    v_bfe_u32 v{tmp}, v{vL}, 1, 3""")
    for r in range(0, 8, 2):
        L += [grp([f"v_cmp_eq_u32 vcc, {r}, v{tmp}", f"v_cmp_eq_u32 {sp(sCM)}, {r+1}, v{tmp}",
                   f"v_cndmask_b32 v{vS0+r}, 0, v{tmp+1}, vcc", f"v_cndmask_b32 v{vS0+r+1}, 0, v{tmp+1}, {sp(sCM)}"])]
    return L
def tail_addrs():
    x = vC0
    return lines(f"""v_and_b32 v{x}, 15, v{vL}
    v_lshrrev_b32 v{x+1}, 5, v{vL}
    v_lshl_add_u32 v{x+1}, v{x+1}, 4, v{x}
    v_lshlrev_b32 v{vRSA}, 4, v{x+1}
    v_and_b32 v{vOO}, 16, v{vL}
    v_lshl_add_u32 v{vOO}, v{x+1}, 10, v{vOO}
    v_add_u32 v{vRW}, s{sM0R}, v{vL16}
    s_lshr_b32 s{sT2}, s{sW}, 1
    s_and_b32 s{sT3}, s{sW}, 1
    s_lshl4_add_u32 s{sT2}, s{sT2}, s{sT3}
    s_lshl_b32 s{sT2}, s{sT2}, 10
    v_lshl_add_u32 v{x}, v{x}, 4, s{sT2}
    v_lshrrev_b32 v{x+1}, 4, v{vL}
    v_lshl_add_u32 v{vRR}, v{x+1}, 11, v{x}""")
def rs_load(tag="rs"): return vm(f"buffer_load_dwordx2 {P2(vRS2)}, v{vRSA}, {srd(sWS)}, s{sR2} offen offset:8 sc1", tag)
def res_load(): return vm(f"buffer_load_dwordx4 {v(vRES,4)}, v{vOO}, {srd(sX)}, s{sOB} offen", "res")
def ep_loads():
    a(f"v_lshlrev_b32 v{vBW}, 7, v{vL}")
    for i in range(4):
        a(f"s_mov_b32 s{sT2}, {REC1 + i*8192}")
        a(f"buffer_load_dword v{vEC+i}, v{vBW}, {srd(sWS)}, s{sT2} offen offset:12 sc1")
def if_first(body):
    a(f"s_or_b32 s{sT2}, s2, s{sW}")
    skip_if(f"s_cmp_eq_u32 s{sT2}, 0", body, "L_ep")
def maxchain(regs, d):
    L = []; regs = list(regs); first = True
    while regs:
        if first: x = regs[:3]; regs = regs[3:]; first = False
        else: x = [d] + regs[:2]; regs = regs[2:]
        L.append(f"v_max3_u32 v{d}, v{x[0]}, v{x[1]}, v{x[2]}" if len(x) == 3 else f"v_max_u32 v{d}, v{x[0]}, v{x[1]}")
    return L + [f"v_cmp_eq_u32 vcc, -1, v{d}"]
def sentinel(js, st):
    checked(maxchain([areg(j) + 4 * s for j in js for s in st], vC0), lambda: emits([a_load(j, "x", st) for j in js]), "L_s")
def step_mfma(j, st, first=False, gaps=()):
    gaps = list(gaps)
    for s in st:
        for b in range(2):
            acc = vACC + 32 * s + 16 * b
            a(f"{MF} {v(acc,16)}, {v(wreg(j)+4*b,4)}, {v(areg(j)+4*s,4)}, {'0' if first else v(acc,16)}")
            if gaps: emits(gaps.pop(0))
    for g in gaps: emits(g)

def c_loads(): return [p6f([a_load(10), a_load(11)]), a_load(8), a_load(9)]
def o_loads(): return [a_load(j, "o0", (0,)) for j in range(12, 16)] + [a_load(j, "o1", (1,)) for j in range(12, 16)]
WP = [[x for x in opt(k, "").split(",") if x] for k in ("awp", "bwp")]
def phase2(ty, side, GR, spec):
    def add(p, L): side[p] = side.get(p, []) + L
    assert sorted(WS_) == list(range(16))
    last = -1
    for x in WP[ty]:
        j, p = map(int, x.split("@")); assert p < j; last = p
        add(p, w_conv(j))
    for x in spec.split(","):
        n, p = x.split("@")
        assert n != "o" or int(p) >= 4
        assert n != "c" or int(p) >= last
        add(int(p), GR.pop(n))
    assert not set(GR) - set("hl"), GR
    add(5, [p6f(w_read(10) + w_read(11))])
    for j, k in ((7, 1), (8, 2), (9, 3), (12, 6), (13, 7), (14, 8), (15, 9)): add(k, w_read(j))
    for j in range(10):
        if j == 8:
            a.wait(vm="a9")
            sentinel((8, 9), (0, 1))
        a.wait(vm=f"a{j}", lg=f"r{j}")
        pt(f"s{j}")
        if j == 0: pt("f0")
        step_mfma(j, (0, 1), j == 0, split(side.get(j, []), 4))
    a.wait(lg="r12")
    def body():
        sentinel((10, 11), (0, 1))
        for j in (10, 11): step_mfma(j, (0, 1))
    p6(body)
    emits(side.get(10, []))
    pt("f1")
    a.wait(vm="o0", lg="all")
    if OSENT: sentinel(range(12, 16), (0,))
    pt("f2")
    checked([f"v_cmp_ne_u32 vcc, s{sTAG}, v{vRS2+1}"], rs_load("x"), "L_rs")
    vU = 216
    U = []
    for j in range(4): U += [f"v_lshlrev_b32 v{vU+2*j}, 16, v{vRES+j}", f"v_and_b32 v{vU+1+2*j}, s{sMASK}, v{vRES+j}"]
    G = split(U, 8)
    for j in range(12, 16): step_mfma(j, (0,), False, G[2*(j-12):2*(j-12)+2])
    a.wait(vm="o1")
    if OSENT: sentinel(range(12, 16), (1,))
    def pack(k):
        acc = vACC + 16 * k; L = []
        for hf in range(2):
            L += [f"v_cvt_pk_bf16_f32 v{acc+4*hf+i}, v{acc+8*hf+2*i}, v{acc+8*hf+2*i+1}" for i in range(4)]
            L += [dsw(f"ds_write_b128 v{vRW}, {v(acc+4*hf,4)} offset:{k*SZ+1024*hf}")]
        return L
    G = [[]] + split(pack(0) + pack(1), 7)
    for j in range(12, 16): step_mfma(j, (1,), False, G[2*(j-12):2*(j-12)+2])
    pt("f3")
    if ty == 0:
        def ep():
            checked([f"v_xor_b32 v{vEC+i}, s{sTAG}, v{vEC+i}" for i in range(4)] +
                    [f"v_or3_b32 v{vEC}, v{vEC}, v{vEC+1}, v{vEC+2}", f"v_or_b32 v{vEC}, v{vEC}, v{vEC+3}", f"v_cmp_ne_u32 vcc, 0, v{vEC}"],
                    ep_loads, "L_epc")
            a(f"""v_mov_b32 v{vEC}, s{sTAG}
            s_mov_b64 exec, 1
            buffer_store_dword v{vEC}, off, {srd(sWS)}, 0 sc1
            s_mov_b64 exec, -1""")
        if_first(ep)
    emits(pack(2) + pack(3))
    a.wait(lg="all")
    a("s_barrier")
    R = 224
    for p in range(4):
        for k in range(2):
            a.ds(f"ds_read_b128 {v(R+8*p+4*k,4)}, v{vRR} offset:{8192*k+256*p}", f"t{p}{k}")
    D = vWR
    for p in (0, 2, 1, 3):
        for k in range(2):
            a.wait(lg=f"t{p}{k}")
            d = D + 4 * (p >> 1)
            a(f"{MF16} {v(d,4)}, {v(vS0+4*(p&1),4)}, {v(R+8*p+4*k,4)}, {'0' if (p & 1) == 0 and k == 0 else v(d,4)}")
    for j in range(0, 8, 2): a(f"v_pk_fma_f32 {P2(D+j)}, {P2(D+j)}, {P2(vRS2)}, {P2(vU+j)} op_sel_hi:[1,0,1]")
    for j in range(4): a(f"v_cvt_pk_bf16_f32 v{D+8+j}, v{D+2*j}, v{D+2*j+1}")
    a(f"buffer_store_dwordx4 {v(D+8,4)}, v{vOO}, {srd(sOUT)}, s{sOB} offen")
    pt("end")
    a("s_branch L_fin")

def reads(T):
    tg = f"k{T}"; ks = T & 3
    if T < 32:
        off = ((T >> 2) & 3) * SZ; b = vWF + 8 * ks
        return [dsw(f"ds_read_b128 {v(vX+4*T,4)}, v{vXA+ks} offset:{off}", tg)] + [
                dsw(f"ds_read_b64_tr_b16 {v(b+2*i,2)}, v{vPM+ks} offset:{off+512*i}", tg) for i in range(4)]
    t = T - 32; s = RS[t >> 3]; ad = (vPL if s < 4 else vPM) + ks; off = (s & 3) * SZ + ((t >> 2) & 1) * 1024
    return [dsw(f"ds_read_b64_tr_b16 {v(vWF+4*ks+2*i,2)}, v{ad} offset:{off+512*i}", tg) for i in range(2)]
def bar(vmt=None, lg=None, name=None):
    def p():
        for x in ([vmt] if isinstance(vmt, str) else (vmt or [])): a.wait(vm=x)
        if lg: a.wait(lg=lg)
        if name: pt(name + "w")
        a("s_barrier")
        if name: pt(name)
    return fn(p, 1)
def put(S, T, L): S[T] = S.get(T, []) + list(L)
def spread(S, L, T0, T1):
    for i, G in enumerate(split(L, T1 - T0 + 1)): put(S, T0 + i, G)
def corr(quads, biases):
    L = [f"v_lshlrev_b32 v{b}, 16, v{b}" for b in biases if b] + [wt(lg="cw")]
    for q in quads: L += [f"v_add_f32 v{q}, v{q}, v{q+1}", f"v_add_f32 v{q+2}, v{q+2}, v{q+3}"]
    L += [f"v_add_f32 v{q}, v{q}, v{q+2}" for q in quads]
    return L + [f"v_cndmask_b32 v{q}, {v(b) if b else 0}, v{q}, {sLO}" for q, b in zip(quads, biases)]
SEQ = opt("seq", "x3/x4/x5/x6/x7/b0,b1/b2,b3").split("/")
DSP = opt("dsp", 1)
SPL = opt("spl", 3)
vQ2 = 44
def stream(ty, S, E):
    DQ = [L for n in opt("pre", "x2").split(",") if n for L in item(n)]
    for c in range(7): E[4 * c + 1] = [bar(f"x{c+1}", None, f"c{c}")] + E.get(4 * c + 1, [])
    S[29] = [dsw(f"ds_write_b32 v{vCAW}, v{vCS+4*i} offset:{1024*i}", "cw") for i in range(2)] + S.get(29, [])
    S[30] = [dsw(f"ds_read_b128 {v(vT+4*i,4)}, v{vCAR} offset:{1024*i}", "cw") for i in range(2)] + S.get(30, [])
    put(S, 31, corr((vT, vT + 4), (vBA, vBA + 1) if ty else (None, None)))
    S[32] = [f"{MF32} {v(K,16)}, v{q}, v{vBC}, {v(K,16)}" for K, q in ((K0, vT), (K1, vT + 4))] + S.get(32, [])
    S[61] = [dsw(f"ds_write_b32 v{vCAW}, v{vCS} offset:1024", "cw")] + S.get(61, [])
    S[62] = [dsw(f"ds_read_b128 {v(vQ2,4)}, v{vCAR} offset:1024", "cw")] + S.get(62, [])
    put(S, 63, corr((vQ2,), (None if ty else vBA,)) + [f"{MF32} {v(K2,16)}, v{vQ2}, v{vBC}, {v(K2,16)}"])
    emits(reads(0) + reads(1))
    for T in range(64):
        t = T & 31; ks = T & 3
        R = reads(T + 2) if T < 30 else (reads(32) + reads(33) if T == 30 else (reads(T + 3) if T + 3 < 64 else []))
        pt(f"T{T}")
        a.wait(lg=f"k{T}")
        F = S.get(T, [])
        if T < 32:
            b = vWF + 8 * ks
            G = split(F, 2)
            a(f"{MF} {v(K0,16)}, {v(b,4)}, {v(vX+4*t,4)}, {'0' if t == 0 else v(K0,16)}")
            emits(R[:SPL])
            if DQ and (DSP > 1 or T < 2): emits(DQ.pop(0))
            emits(G[0])
            a(f"{MF} {v(K1,16)}, {v(b+4,4)}, {v(vX+4*t,4)}, {'0' if t == 0 else v(K1,16)}")
            emits(R[SPL:])
            if DQ: emits(DQ.pop(0))
            if ks == 0:
                for i in range(2): a(f"{MF16} {v(vCS+4*i,4)}, {v(vSEL,4)}, {v(b+4*i,4)}, {'0' if t == 0 else v(vCS+4*i,4)}")
            emits(G[1])
        else:
            b = vWF + 4 * ks
            if ks == 0: a(f"{MF16} {v(vCS,4)}, {v(vSEL,4)}, {v(b,4)}, {'0' if t == 0 else v(vCS,4)}")
            a(f"{MF} {v(K2,16)}, {v(b,4)}, {v(vX+4*t,4)}, {'0' if t == 0 else v(K2,16)}")
            emits(R + F)
        if ks == 1: assert not DQ
        emits(E.get(T, []))
        if T < 28 and ks == 1:
            for n in SEQ[T >> 2].split(","):
                if n: DQ += item(n)
        if t == 31: pt(f"p{1 + (T >> 5)}")
    assert not DQ
PH = [vXA, vCS + 4]
def ph_reads(): return [dsw(f"ds_read_b64_tr_b16 {v(PH[i>>1]+2*(i&1),2)}, v{vPHA} offset:{256*i}", "ph") for i in range(4)]
def ph_signs(): return [wt(lg="ph")] + [f"v_xor_b32 v{PH[i>>2]+(i&3)}, v{vSGN}, v{PH[i>>2]+(i&3)}" for i in range(8)]
def start(ty, S, E):
    LATE = []
    if PRE2 & 8:
        C1 = consts1(ty); k = C1.index(f"s_movk_i32 s{sB1+2}, 2752")
        tch = [x for x in C1[:k] if callable(x)]
        C2 = consts2(ty) + bases(ty) + consts3(ty)
        def low(x): return isinstance(x, str) and x[:2] == "s_" and 36 <= int(x.split()[1].strip("s,")) < 48
        i = C2.index(f"s_lshl_b32 s{sFM}, 0x3333, s{sT2}")
        LATE = [tch + C1[k:], C2[i-2:i] + [x for x in C2 if low(x)]]
        L = B3[B3N:] + consts0(ty) + [x for x in C1[:k] if not callable(x)] + [f"s_lshl4_add_u32 s{sREC}, s{sREC}, {REC1}"] + [x for x in C2 if not low(x)]
        emits(merge(L, [grp(G) for n in PRO for G in item(n)], opt("x1a", 150), opt("x1b", 300)))
    else: emits(consts0(ty))
    pt("i1")
    a("s_waitcnt lgkmcnt(0)")
    if MW == 3: wtouch()
    if opt("mt", 1) == 2: emits(LATE[0][:1]); LATE[0] = LATE[0][1:]
    if PRE2 & 1: emits(consts1(ty) + [wphi_dma()])
    if PRE2 & 2: emits([f"s_lshl4_add_u32 s{sREC}, s{sREC}, {REC1}"] + consts2(ty) + bases(ty))
    if PRE2 & 4: emits(consts3(ty))
    LP = opt("lp", 0)
    OT = [vm(f"buffer_load_dword v{vFV}, off, {srd(sOUT)}, s{sOB}", "tch")] * opt("ot", 0)
    if LP < 0:
        k = opt("mt", 1) != 2
        emits(LATE[0][k:] + [wphi_dma()] + OT); LATE[0] = LATE[0][:k]
    pt("i2")
    a.wait(vm="x0")
    a("s_barrier")
    pt("p0")
    F0, F1, F2 = opt("f0", 6), opt("f1", 13), opt("f2", 26)
    RECP = opt("recp", 7)
    assert RECP >= max(F0, 5) and F1 % 4 == 1 and F2 <= 26
    spread(S, stats(), 0, F0)
    if MW >= 10: put(E, MW - 10, [fn(wtouch)])
    if opt("mt", 1) >= 10: put(E, opt("mt", 1) - 10, LATE[0][:1]); LATE[0] = LATE[0][1:]
    put(E, RECP, [rec_store()])
    if PRE2 & 8:
        if LP > 0: assert LP % 4 == 1 and LP <= F1; put(E, LP, LATE[0] + [wphi_dma()] + OT)
        elif LP < 0: put(S, F0 + 1, LATE[0])
        else: spread(S, LATE[0], F0 + 1, F1); put(E, F1, [wphi_dma()] + OT)
        spread(S, LATE[1], F1 + 1, F1 + 6)
    elif not PRE2 & 1:
        spread(S, consts1(ty), F0 + 1, F1)
        put(E, F1, [wphi_dma()])
    l0 = 0
    for x in TOUCH:
        T, n = map(int, x.split(":")); assert F0 + 3 <= T <= 28
        put(E, T, [touch(l0, n)]); l0 += n
    if not PRE2 & 10: spread(S, consts2(ty) + bases(ty), (F0 if PRE2 & 1 else F1) + 1, F2)
    if not PRE2 & 12: spread(S, consts3(ty), 27, 28)
    put(E, opt("rpos", 24), [rec1_load()])
    def rec():
        a.wait(vm="rec1")
        checked([f"v_cmp_ne_u32 vcc, s{sTAG}, v{vRSTD}"], rec1_load("x"), "L_rec1")
    put(S, 29, [fn(rec), f"v_cndmask_b32 v{vBC}, v{vSD}, v{vBC}, {sLO}", f"v_mov_b32 v{vRSTD}, v{vC1}", f"v_mul_f32 v{vC1}, {LOG2E}, v{vC1}"])
    put(E, 29, [bar("b1", "all", "e1")] + [poll(0)] * ty)
    put(S, 27, [f"v_mov_b32 v{vT}, -1"])
    put(S, 30, p2_addrs() + [f"v_mov_b32 v{vA2B}, -1"])
    put(E, 44, [poll_check(0)] * ty + [bar("b3", "all", "m2"), f"v_lshlrev_b32 v{vFL}, 3, v{vFL}"])
def rest():
    fs = [x for x in range(9) if x not in WS_.values()]
    return [w_item(j, fs.pop(0)) for j in range(16) if j not in WS_]
def place(M, spec, GR, nm="M"):
    ins = {}
    for x in [y for y in spec.split(",") if y]:
        n, r = x.split("@"); r = [int(y) for y in r.split("-")]; L = GR.pop(n)
        for i, y in enumerate(L): ins.setdefault(r[0] + (r[-1] - r[0]) * i // len(L), []).append(y)
    for i in range(300):
        pt(f"{nm}{i}")
        emits(ins.get(i, []))
        if i < len(M): emit(M[i])
def sched(S, spec, free):
    for x in spec.split(","):
        n, T = x.split("@"); T = int(T)
        if n[0] == "r":
            j = int(n[1:]); assert T >= 34 + 2 * j
            for i, g in enumerate(w_raw(j)): put(S, T + i, [g])
        elif n[0] == "c": assert T != 30; put(S, T, [clr2(*CLR[int(n[1:])], T)])
        else:
            j, sl = map(int, n.split(":")); assert T > free[sl], x
            put(S, T, [w_item(j, sl)])

def witems(spec):
    L = []
    for x in [y for y in spec.split(",") if y]:
        j, sl = map(int, x.split(":")); L.append(w_item(j, sl))
    return L
st1 = a.save()
a(f"""s_bitcmp1_b32 s2, 7
s_cbranch_scc1 L_B""")
TYPE[0] = 0
S, E = {}, {}
start(0, S, E)
put(S, 30, ph_reads())
put(S, 32, ph_signs())
V = []
for hf in range(2):
    V += [f"v_mul_f32 v{K1+8*hf+i}, v{K1+8*hf+i}, v{vRSTD}" for i in range(8)]
    V += [f"v_cvt_pk_bf16_f32 v{K1+8*hf+i}, v{K1+8*hf+2*i}, v{K1+8*hf+2*i+1}" for i in range(4)]
    V += [dsw(f"ds_write_b128 v{vVW}, {v(K1+8*hf,4)} offset:{32*hf}")]
L = [f"v_cvt_pk_bf16_f32 v{vT+j}, v{K0+2*j}, v{K0+2*j+1}" for j in range(8)]
L += [ptf("L1")] + V[:2] + [f"{MF} {v(K0,16)}, {v(PH[0],4)}, {v(vT,4)}, 0"] + V[2:] + [f"{MF} {v(K1,16)}, {v(PH[1],4)}, {v(vT+4,4)}, 0"]
PKA = opt("pka", 1)
for hd, P in enumerate((K0, K1)):
    L += [ptf(f"L{2+hd}")] + softmax(P, P, PKA, vT)
    L += [dsw(f"ds_write_b128 v{vPW0}, {v(P,4)} offset:{hd*8192}"), dsw(f"ds_write_b128 v{vPW1}, {v(P+4,4)} offset:{hd*8192}")]
SPOS = opt("spos", 36)
KI = witems(opt("ki", "8:7"))
if KI: L = merge(L, KI, opt("ki0", 60))
spread(S, L, opt("ka", 33), SPOS)
FS = 44 if SPOS < 44 else 61
CLR = [(sSB0, 0), (sSB0, 2048)]
put(S, opt("fpa", 48), flag_store(1, "clr"))
sched(S, opt("sa", "c0@28,c1@28,7:6@31,r0@41,r1@44,r2@47,r3@50,r4@53,r5@56,r6@59"),
      {6: 29, 7: 29, 0: 44, 4: 44, 1: 61, 5: 61, 2: FS, 3: FS, 8: FS})
def kv():
    KB = [K1, K1 + 8, vT]
    def kv_reads(t):
        b = KB[t % 3]
        a.ds(f"ds_read_b64_tr_b16 {v(b,2)}, v{vKA0} offset:{t*1024}", f"kv{t}")
        a.ds(f"ds_read_b64_tr_b16 {v(b+2,2)}, v{vKA1} offset:{t*1024+256}", f"kv{t}")
        a.ds(f"ds_read_b64_tr_b16 {v(b+4,2)}, v{vKB} offset:{t*2304}", f"kv{t}")
        a.ds(f"ds_read_b64_tr_b16 {v(b+6,2)}, v{vKB} offset:{t*2304+576}", f"kv{t}")
    if opt("kprio", 1): a("s_setprio 2")
    for t in range(3): kv_reads(t)
    for t in range(8):
        a.wait(lg=f"kv{t}")
        b = KB[t % 3]
        a(f"{MF} {v(K0,16)}, {v(b,4)}, {v(b+4,4)}, {'0' if t == 0 else v(K0,16)}")
        if t >= 1 and t + 2 < 8: kv_reads(t + 2)
    for i in range(8): a(f"v_cvt_pk_bf16_f32 v{K1+i}, v{K0+2*i}, v{K0+2*i+1}")
    for i in range(4): a(f"v_permlane16_swap_b32 v{K1+i}, v{K1+4+i}")
    a(f"""buffer_store_dwordx4 {v(K1,4)}, v{vL16}, {srd(sWS)}, s{sC0} offen sc1
    s_mov_b32 exec_lo, 0x00010001
    s_mov_b32 exec_hi, 0x00010001
    buffer_store_dwordx4 {v(K1+4,4)}, v{vL}, {srd(sWS)}, s{sC0} offen offset:1024 sc1
    s_mov_b64 exec, -1""")
    if opt("kprio", 1): a("s_setprio 0")
    pt("kv")
put(E, SPOS, [bar(None, "all", "S"), fn(lambda: skip_if(f"s_cmp_eq_u32 s{sH}, 0", kv, "L_kv"))])
spread(S, selectors(K1), max(SPOS + 2, 50), 61)
CPR = opt("cpr", 1)
put(E, 61, [bar(None, "all", "Y"), p6f([w_item(10, 1), w_item(11, 5)])] + ["s_setprio 3"] * CPR)
stream(0, S, E)
def groups():
    G = {"a": [a_load(j) for j in range(4)], "b": [a_load(j) for j in range(4, 8)], "c": c_loads(), "o": o_loads(),
         "w": bnc_addrs() + sum([w_conv(j) for j in range(7 - len(WP[TYPE[0]]))], []), "s": rest(), "r": [rs_load(), res_load()]}
    if opt("bsp", 0): G["q"] = G["b"][2:]; G["b"] = G["b"][:2]
    for k in (1,): G[f"p{k}"] = [poll(k)]; G[f"k{k}"] = [poll_check(k)]
    return G
GR = groups()
place(mish_store(K2, True, sSB0, vMT) + ["s_setprio 0"] * CPR + [ptf("ms")] + tail_addrs(), opt("ao", "p1@0,s@0-24,w@40-90,k1@25,a@25-40,b@78-90,r@96"), GR)
phase2(0, {1: [fn(lambda: if_first(ep_loads), 4)]}, GR, opt("ap", "c@3,o@7"))

a.label("L_B")
a.restore(st1)
TYPE[0] = 1
WS_.clear()
S, E = {}, {}
start(1, S, E)
J0 = opt("j0", 17)
assert J0 % 4 == 1
put(E, J0, [w_item(7, 8)])
CLR = [(sC0, 0), (sC0, 2048)]
sched(S, opt("sb", "c0@28,c1@28," * OSENT + "8:2@31,r0@37,r1@40,r2@43,r3@46,r4@49,r5@52,r6@55"),
      {2: 29, 3: 29, 6: 29, 7: 29, 0: 44, 4: 44})
PKB = opt("pkb", 1)
MB = mish_store(K0, PKB, sSB0, vT) + mish_store(K1, PKB, sC1, vT) + selectors(K0 + 8)
MI = witems(opt("mi", "9:3,12:6,13:7"))
if MI: MB = merge(MB, MI, opt("mi0", 20))
spread(S, MB, 33, opt("ma", 35))
FPB = opt("fpb", 58)
if FPB: put(S, FPB, flag_store(1, "st"))
put(S, 56, ph_reads()); put(S, 62, ph_signs())
put(E, 61, [bar(None, "all", "Y"), p6f([w_item(10, 1), w_item(11, 5)])] + ["s_setprio 3"] * CPR)
vTL = [K0 + 4 * i for i in range(8)]; vZL = 128 if opt("gpos", 0) else 64
Q0, Q1 = 216, 232
def t_load(i, tag=None):
    def p():
        a(f"s_movk_i32 s{sT1}, {(i>>1)*4*1152}")
        a.vmem(f"buffer_load_dwordx4 {v(vTL[i],4)}, v{vGA}, {srd(sWS)}, s{sT1} offen offset:{(i&1)*256} sc1", tag or "t")
    return fn(p, 4)
def z_load(tag=None): return vm(f"buffer_load_dwordx4 {v(vZL,4)}, v{vGZ}, {srd(sWS)}, 0 offen offset:1024 sc1", tag or "t")
GL = [z_load()] + [t_load(i) for i in range(8)]
GPOS = opt("gpos", 0)
if GPOS:
    assert GPOS > 44
    spread(S, [ptf("g0")] + GL, GPOS, opt("gend", 61))
PP = opt("pp", 0)
if PP: put(S, PP, [poll(1)])
stream(1, S, E)
for j in range(8): a(f"v_cvt_pk_bf16_f32 v{K2+j}, v{K2+2*j}, v{K2+2*j+1}")
a(f"{MF} {v(Q0,16)}, {v(PH[0],4)}, {v(K2,4)}, 0")
a(f"{MF} {v(Q1,16)}, {v(PH[1],4)}, {v(K2+4,4)}, 0")
M = softmax(Q0, Q0, True, 20) + softmax(Q1, Q0 + 8, True, 20)
print("B list", len(M))
GR = groups()
GR.update({"h": ["s_setprio 3"], "l": ["s_setprio 0"]})
if not GPOS: GR["g"] = GL
if PP: GR.pop("p1")
if not FPB: GR["f"] = flag_store(1, "st")
vD, vDZ = K2 + 8, K2 + 12
vKF = 64
def got():
    pt("sm")
    a.wait(vm="t")
    checked(maxchain(vTL + [vZL], vD), lambda: emits([z_load("x")] + [t_load(i, "x") for i in range(8)]), "L_t")
    pt("g")
D = [fn(got), f"{MF16} {v(vDZ,4)}, {v(vS0,4)}, {v(vZL,4)}, 0"]
D += [f"{MF16} {v(vD,4)}, {v(vS0+4*(i&1),4)}, {v(vTL[i],4)}, {'0' if i == 0 else v(vD,4)}" for i in range(8)]
for sh in (2, 4):
    D += [f"v_add_f32_dpp v{vDZ+j}, v{vDZ+j}, v{vDZ+j} row_ror:{sh} row_mask:0xf bank_mask:0xf" for j in range(4)]
D += [f"v_cvt_pk_bf16_f32 v{vDZ}, v{vDZ}, v{vDZ+1}", f"v_cvt_pk_bf16_f32 v{vDZ+1}, v{vDZ+2}, v{vDZ+3}",
      grp(["s_mov_b64 exec, 0x30003", dsw(f"ds_write_b64 v{vZW}, {v(vDZ,2)} offset:256"), "s_mov_b64 exec, -1"]),
      f"v_cvt_pk_bf16_f32 v{vD}, v{vD}, v{vD+1}", f"v_cvt_pk_bf16_f32 v{vD+1}, v{vD+2}, v{vD+3}", dsw(f"ds_write_b64 v{vKW}, {v(vD,2)}")]
GR["d"] = D
GR["e"] = [bar(None, "all", "K")] + [dsw(f"ds_read_b128 {v(vKF+8*hh+4*j,4)}, v{vKR} offset:{hh*1088+j*272}", f"kf{hh}") for hh in range(2) for j in range(2)]
place(M, opt("bo", "g@0-20,p1@21,s@30-60,d@100,k1@120,a@120,e@122"), GR)
X = split(tail_addrs(), 3)
emits(X[0])
OD = [K2, K1]
for hh in range(2):
    a.wait(lg=f"kf{hh}")
    a(f"{MF} {v(OD[hh],16)}, {v(vKF+8*hh,4)}, {v(Q0+8*hh,4)}, 0")
    a(f"{MF} {v(OD[hh],16)}, {v(vKF+8*hh+4,4)}, {v(Q0+8*hh+4,4)}, {v(OD[hh],16)}")
emits(X[1] + X[2])
for D in OD: a(f"v_add_f32 v{D+8}, 0x358637bd, v{D+8}")
for D in OD: a(f"v_rcp_f32 v{D+8}, v{D+8}")
for D in OD: a(f"v_mul_f32 v{D+8}, v{D+8}, v{vSD}")
for hh, D in enumerate(OD):
    for i in range(0, 8, 2): a(f"v_pk_mul_f32 {P2(D+i)}, {P2(D+i)}, {P2(D+8)} op_sel_hi:[1,0]")
    for i in range(4): a(f"v_cvt_pk_bf16_f32 v{D+12+i}, v{D+2*i}, v{D+2*i+1}")
    frag_store(D + 12, sC0, hh)()
if CPR: a("s_setprio 0")
pt("o")
W = GR.pop("w", [])
place(W, opt("bn", "b@0,r@10"), GR, "N")
phase2(1, {}, GR, opt("bp", "c@2,o@6"))

for blk in retries: blk()
a.label("L_fin")
if STAMP >= 0:
    n = nst[0]
    a(f"""s_cmp_eq_u32 s{sW}, {STAMP}
    s_cbranch_scc0 L_end
    s_waitcnt lgkmcnt(0)
    s_sub_u32 s{sT0}, {SPIN}, s{sCNT}
    s_mul_i32 s{sT0}, s{sT0}, 100
    s_add_u32 s{sST0+2}, s{sST0}, s{sT0}
    s_addc_u32 s{sST0+3}, s{sST0+1}, 0
    s_mul_i32 s{sT0}, s2, {n*8}
    s_add_u32 s{sT0}, s{sT0}, {STAMP_OFF}
    s_mov_b64 exec, 1""")
    for i in range(n):
        a(f"v_mov_b32 v{64+2*i}, s{sST0+2*i}")
        a(f"v_mov_b32 v{65+2*i}, s{sST0+2*i+1}")
        a(f"buffer_store_dwordx2 {v(64+2*i,2)}, off, {srd(sWS)}, s{sT0} offset:{i*8}")
a.label("L_end")
a.pad()
open(out_path, "w").write(header(256, 512, LDS_SIZE) + a.text() + footer(vgpr=256))
print("instructions:", sum(1 for x in a.L if x.states), "nops:", sum(1 for x in a.L if x.kind == "nop"), "stamps", nst[0])
```

```python
import sys
from asmdsl import Asm
from gen_common import header, footer

OPT = dict(a.split("=") for a in sys.argv[2:])
def opt(k, d): return type(d)(OPT.get(k, d))
STAMP = opt("stamp", -1)
CYC = opt("cyc", 0)
PTS = [p.split("|") for p in opt("pts", "p0,p1,Y,S|g,kv|o,f0,f2,end").split(",") if p]
ROTM = opt("rotm", 3)
ROT2 = opt("rot2", 7)
SPIN = opt("spin", 200000)
out_path = sys.argv[1]

SZ = 16384
KVL, WPHI, CW, BNC = 9 * SZ, 9 * SZ + 2048, 9 * SZ + 4096, 9 * SZ + 8192
PHI, VIMG = 2 * SZ, 8 * SZ
LDS_SIZE = 163840
REC1 = 0x1000
KVD = 0x20000
FLG = 0xc0000
ACT = 0x140000
DUM = 0x1000000
STAMP_OFF = 128 << 20

sW, sSIG, sH, sT0, sT1 = 3, 4, 5, 6, 7
sX, sWD, sWE, sW2, sWO, sOUT, sWS = 8, 12, 16, 20, 24, 28, 32
sPH, sB1, sPC = 36, 40, 44
sHALF, sISQ, sLOm, sFM, sMASK, sCM = 36, 38, 40, 42, 44, 46
sFMB, sTILE, sFL, sFB, sRA2, sRW2 = 48, 50, 51, 52, 53, 54
(sM0R, sTAG, sCNT, sT2, sT3, sRHO, sRB, sG, sSTART, sT4, sC0, sC1, sSB0, sOB, sRA, sRW, sAO, sR2,
 sRB2, sCB, sGAM, sREC, sSTR, sKB) = range(56, 80)
sST0 = 82
sLO = f"s[{sLOm}:{sLOm+1}]"
def srd(n): return f"s[{n}:{n+3}]"
def sp(n): return f"s[{n}:{n+1}]"

vL = 0
vXO, vWA, vWC, vL16, vBA = 1, 3, 5, 7, 8
vA2L, vA2M, vA2T = 1, 3, 5
vBC, vSD, vC1, vRSTD = 10, 11, 12, 13
vCAW, vCAR, vPL, vPM = 14, 15, 16, 20
vT = 24
vW2O, vWOO, vFL, vACT, vA2B, vFV = 32, 34, 36, 37, 38, 39
vXA, vSEL, vCS = 40, 44, 48
vPHA, vSGN = 56, 57
vPW0, vPW1, vKA0, vKA1, vKB, vVW = 58, 59, 60, 61, 62, 63
vGA, vGZ, vKW, vZW, vKR = 58, 59, 60, 61, 62
vWF = 64
K2, K0, K1 = 80, 96, 112
vX = 128
def v(n, k=1): return f"v{n}" if k == 1 else f"v[{n}:{n+k-1}]"
def P2(n): return v(n, 2)

a = Asm()
nst = [2]
def stamp(i):
    if STAMP >= 0:
        assert i < 10
        a(f"{'s_memtime' if CYC else 's_memrealtime'} s[{sST0+2*i}:{sST0+2*i+1}]")
        nst[0] = max(nst[0], i + 1)
def pt(name):
    for i, p in enumerate(PTS):
        if name in p: stamp(2 + i)

MF = "v_mfma_f32_32x32x16_bf16"
MF16 = "v_mfma_f32_16x16x32_bf16"
MF32 = "v_mfma_f32_32x32x2_f32"
LOG2E = "0x3fb8aa3b"

def lines(txt): return [l.strip() for l in txt.strip().split("\n") if l.strip()]
def cost(x):
    if callable(x): return getattr(x, "cost", 1)
    return 2 if ("v_exp" in x or "v_rcp" in x or "v_mfma" in x) else 1
def emit(x):
    if callable(x): x()
    else: a(x)
def emits(L):
    for x in L: emit(x)
def fn(f, c=1):
    f.cost = c; return f
def ptf(name): return fn(lambda: pt(name), 0)
def grp(L): return fn(lambda: emits(L), sum(cost(x) for x in L))
def merge(main, side, start=0, end=None):
    end = len(main) if end is None else min(end, len(main))
    tot = sum(cost(x) for x in main[start:end]); out = list(main[:start]); acc = 0; k = 0
    for x in main[start:end]:
        while k < len(side) and acc >= k * tot / len(side): out.append(side[k]); k += 1
        out.append(x); acc += cost(x)
    return out + side[k:] + list(main[end:])
def split(L, n):
    tot = sum(cost(x) for x in L); G = [[] for _ in range(n)]; acc = 0
    for x in L:
        G[min(n - 1, int(acc * n / max(tot, 1)))].append(x); acc += cost(x)
    return G
def vm(txt, tag):
    if opt("now2", 0) and tag[0] == "w": return fn(lambda: None, 3)
    return fn(lambda: a.vmem(txt, tag), 3)
def dsw(txt, tag="w"): return fn(lambda: a.ds(txt, tag), 2)
def wt(**kw): return fn(lambda: a.wait(**kw), 0)

retries = []
def checked(cmp_lines, reload, name):
    lab = a.newlabel(name)
    a.label(lab + "_c")
    for l in cmp_lines: a(l)
    a(f"s_cbranch_vccnz {lab}_r")
    a.label(lab + "_k")
    def blk():
        a.label(lab + "_r")
        a(f"""s_cmp_eq_u32 s{sCNT}, 0
        s_cbranch_scc1 {lab}_k
        s_sub_u32 s{sCNT}, s{sCNT}, 1""")
        reload()
        a(f"""s_waitcnt vmcnt(0)
        s_branch {lab}_c""")
    retries.append(blk)
def skip_if(cmp_line, body, name):
    lab = a.newlabel(name)
    a(cmp_line); a(f"s_cbranch_scc0 {lab}")
    st = a.save()
    body()
    a.label(lab)
    a.restore(st)

t0, t1, t2, t3, u0, u1, u2, u3 = range(vT, vT + 8)
LT = vX + 96
vXR, vRC, vCL = LT, LT + 16, LT + 20
vRW_, vSW_, vEP, vRA1 = LT + 24, LT + 25, LT + 26, 6
TYPE = [0]
RS = [0, 4, 1, 5]
def rot(c, d): return [f"s_add_u32 s{d}, s{sRHO}, {128*c}", f"s_and_b32 s{d}, s{d}, 0x380"]
def x_item(c):
    s = [f"s_add_u32 m0, s{sM0R}, {(c & 3) * SZ}"] + rot(c, sT0)
    return [s + [vm(f"buffer_load_dwordx4 v{vXO}, {srd(sX)}, s{sT0} offen lds", f"x{c}")],
            [vm(f"buffer_load_dwordx4 v{vXO+1}, {srd(sX)}, s{sT0} offen offset:1024 lds", f"x{c}")]]
def w_item1(c):
    b = (4 + (c & 3)) * SZ
    return [[f"s_add_u32 m0, s{sM0R}, {b}", f"s_mul_i32 s{sT0}, s{sT0}, s{sSTR}",
             vm(f"buffer_load_dwordx4 v{vWA}, {srd(sWD)}, s{sT0} offen lds", f"x{c}")],
            [f"s_add_u32 m0, s{sM0R}, {b+1024}", vm(f"buffer_load_dwordx4 v{vWA+1}, {srd(sWD)}, s{sT0} offen lds", f"x{c}")]]
def r_item(i):
    return [[f"s_add_u32 m0, s{sM0R}, {RS[i]*SZ + 1024*k}"] + rot(2 * i + k, sT0) +
            [f"s_mul_i32 s{sT0}, s{sT0}, {(1376, 1536)[TYPE[0]]}", vm(f"buffer_load_dwordx4 v{vWC}, {srd(sWE)}, s{sT0} offen lds", f"b{i}")]
            for k in range(2)]
def item(n):
    i = int(n[1:])
    return x_item(i) + w_item1(i) if n[0] == "x" else r_item(i)

PRIO = opt("prio", 1)
a(f"""s_cmp_ge_u32 s2, 256
s_cbranch_scc1 L_end""")
stamp(0)
a(f"""s_getpc_b64 {sp(sPC)}
L_pc:
s_load_dwordx2 {sp(sX)}, s[0:1], 0
s_lshr_b32 s{sT1}, s2, 2
s_and_b32 s{sT1}, s{sT1}, 32
s_add_u32 s{sT3}, s{sT1}, 8
s_load_dwordx2 {sp(sWD)}, s[0:1], s{sT3}
s_bfe_u32 s{sT0}, s2, 0x30003
v_lshrrev_b32 v{t0}, 6, v0
s_mov_b32 s{sPC+2}, L_end-L_pc
v_lshl_add_u32 v{t1}, v0, 3, s{sT0}
s_mov_b32 s{sPC+3}, 0x00020000
v_lshlrev_b32 v{t1}, 7, v{t1}
v_readfirstlane_b32 s{sW}, v{t0}
buffer_load_dword v{LT+27}, v{t1}, {srd(sPC)}, 0 offen""")
if PRIO: a("s_setprio 3")
if opt("sw2", 0): a(f"""s_load_dwordx2 {sp(sW2)}, s[0:1], 56
s_load_dwordx2 {sp(sWO)}, s[0:1], 24""")
a(f"""s_load_dwordx2 {sp(sWS)}, s[0:1], 80
v_lshrrev_b32 v{vRW_}, 3, v0
s_sub_u32 s{sT4}, 40, s{sT1}
s_and_b32 s{sT1}, s2, 1
v_and_b32 v{t1}, 56, v{vRW_}
s_lshl3_add_u32 s{sRB}, s{sT1}, s{sT0}       ; rb
v_add_u32 v{t0}, v{vRW_}, v{t1}
s_lshr_b32 s{sT1}, s2, 6
v_bfe_u32 v{t2}, v0, 4, 2
s_lshl1_add_u32 s{sRHO}, s{sT1}, s{sT0}
v_bitop3_b32 v{t2}, v0, v{t2}, 7 bitop3:0x28
s_lshl_b32 s{sT2}, s{sRB}, 17
v_lshl_add_u32 v{t2}, v{t2}, 4, s{sT2}
s_and_b32 s{sRHO}, s{sRHO}, {ROTM}
v_lshl_add_u32 v{vXO}, v{t0}, 10, v{t2}
s_lshl_b32 s{sRHO}, s{sRHO}, 7
v_xor_b32 v{vXO+1}, 64, v{vXO}
s_add_u32 s{sRHO}, s{sRHO}, {opt("rot0", 0) * 128}
s_lshl_b32 s{sM0R}, s{sW}, 11
v_add_u32 v{vXO+1}, {8192-1024}, v{vXO+1}
s_mov_b32 s{sX+2}, {2048*1024}
v_bfe_u32 v{t3}, v0, 4, 1
s_mov_b32 s{sX+3}, 0x00020000
v_lshlrev_b32 v{t3}, 2, v{t3}
s_mov_b32 m0, s{sM0R}
v_bitop3_b32 v{t3}, v0, v{t3}, 7 bitop3:0x28
s_bfe_u32 s{sT1}, s2, 0x10006
v_lshlrev_b32 v{vSW_}, 4, v{t3}
s_and_b32 s{sG}, s2, 6
s_or_b32 s{sG}, s{sG}, s{sT1}                ; g
s_mul_i32 s{sSTART}, s{sG}, 11
s_waitcnt lgkmcnt(0)""")
a.vmem(f"buffer_load_dwordx4 v{vXO}, {srd(sX)}, s{sRHO} offen lds", "x0")
a(f"""s_add_u32 s{sSTART}, s{sSTART}, 1
s_lshr_b32 s{sSTART}, s{sSTART}, 1
s_min_u32 s{sSTART}, s{sSTART}, 38
s_lshl1_add_u32 s{sT1}, s{sG}, 16""")
a.vmem(f"buffer_load_dwordx4 v{vXO+1}, {srd(sX)}, s{sRHO} offen offset:1024 lds", "x0")
a(f"""s_movk_i32 s{sSTR}, 1536
s_movk_i32 s{sT2}, 1024
s_bitcmp1_b32 s2, 7
s_cselect_b32 s{sSTR}, 1376, s{sSTR}
s_cselect_b32 s{sT1}, s{sSTART}, s{sT1}
s_cselect_b32 s{sT2}, 128, s{sT2}
v_mul_u32_u24 v{vWA}, s{sSTR}, v{vRW_}
s_lshl_b32 s{sT1}, s{sT1}, 6
s_lshl_b32 s{sWD+2}, s{sSTR}, 10
v_lshl_add_u32 v{vWA}, v{vWA}, 1, v{vSW_}
s_mov_b32 s{sWD+3}, 0x00020000
s_mov_b32 s{sT0}, s{sRHO}
v_add_u32 v{vWA}, s{sT1}, v{vWA}
s_load_dwordx2 {sp(sWE)}, s[0:1], s{sT4}
v_add_u32 v{vWA+1}, s{sT2}, v{vWA}""")
for L in w_item1(0): emits(L)
pt("i0")
a(f"""v_and_b32 v{vL}, 63, v0
s_lshr_b32 s{sT1}, s2, 7
s_lshl1_add_u32 s{sT1}, s{sRB}, s{sT1}
v_lshlrev_b32 v{vL16}, 4, v{vL}
s_lshl3_add_u32 s{sT1}, s{sT1}, s{sG}
s_lshl3_add_u32 s{sREC}, s{sT1}, s{sW}
s_lshl_b32 s{sT1}, s{sREC}, 10
s_mov_b32 s{sWS+2}, {256<<20}
s_mov_b32 s{sWS+3}, 0x00020000
s_lshr_b32 s{sH}, s{sW}, 2""")
TA = opt("ta", 0)
EX = opt("ex", 0)
def share(d, n, tmp):
    L = [f"s_mov_b32 s{sT3}, 0x40000000"]
    if EX & 1:
        L += lines(f"""s_add_u32 s{sT4}, s{sT2}, {(256 - 1) * n * 128}
        s_cmp_lt_u32 s2, 32
        s_cselect_b32 s{sT3}, s{sT4}, s{sT3}
        s_lshr_b32 s{sT4}, s2, 5
        s_cmp_eq_u32 s{sT4}, 1
        s_cselect_b32 s{sT2}, 0x40000000, s{sT2}""")
    if EX & 2:
        L += lines(f"""s_add_u32 s{sT4}, s{sT2}, {(16 - 1) * n * 128}
        s_and_b32 s{sT1}, s2, 0xc6
        s_cmp_eq_u32 s{sT1}, 0x40
        s_cselect_b32 s{sT3}, s{sT4}, s{sT3}
        s_cmp_eq_u32 s{sT1}, 0x42
        s_cselect_b32 s{sT2}, 0x40000000, s{sT2}""")
    return L + lines(f"""v_lshl_add_u32 v{d}, v{vL}, 7, s{sT2}
    v_lshl_add_u32 v{tmp}, v{vL}, 7, s{sT3}
    v_cmp_gt_u32 vcc, {n}, v{vL}
    v_cndmask_b32 v{d}, v{tmp}, v{d}, vcc""")
vWA_ = LT + 14
def waddr():
    L = lines(f"""s_and_b32 s{sT2}, s2, 127
    s_lshl3_add_u32 s{sT2}, s{sT2}, s{sW}
    s_mul_i32 s{sT2}, s{sT2}, {12*128}""")
    return L + share(vWA_, 12, u3)
def wtouch():
    if EX and not TYPE[0]:
        a("s_mov_b64 exec, 0xffffff")
        a.vmem(f"buffer_load_dword v{LT+27}, v{vWA_}, {srd(sWD)}, 0 offen", "tch")
        a("s_mov_b64 exec, -1")
        return
    if TA & 1 and TYPE[0]: return
    a(f"""s_and_b32 s{sT2}, s2, 127
    v_lshlrev_b32 v{t0}, 7, v{vL}
    s_lshl3_add_u32 s{sT2}, s{sT2}, s{sW}
    s_mul_i32 s{sT2}, s{sT2}, {12*128}
    s_mov_b64 exec, 0xfff
    v_add_u32 v{t0}, s{sT2}, v{t0}""")
    a.vmem(f"buffer_load_dword v{LT+27}, v{t0}, {srd(sWD)}, 0 offen", "tch")
    if TA & 1: a.vmem(f"buffer_load_dword v{LT+27}, v{t0}, {srd(sWE)}, 0 offen", "tch")
    a("s_mov_b64 exec, -1")
if opt("e3", 0):
    a(f"""s_lshl3_add_u32 s{sT2}, s2, s{sW}
    s_lshl_b32 s{sT2}, s{sT2}, 11
    s_add_u32 s{sT2}, s{sT2}, 384
    v_lshl_add_u32 v{t0}, v{vL}, 10, s{sT2}
    s_mov_b64 exec, 3""")
    a.vmem(f"buffer_load_dword v{LT+27}, v{t0}, {srd(sWD)}, 0 offen", "tch")
    a("s_mov_b64 exec, -1")
MW = opt("mw", 11)
SW = opt("sw", 0)
def stouch():
    a(f"""s_and_b32 s{sT2}, s2, 127
    s_lshl3_add_u32 s{sT2}, s{sT2}, s{sW}
    s_mul_i32 s{sT2}, s{sT2}, {12*128}""")
    for o in range(0, 12 * 128, SW): a(f"s_buffer_load_dword s80, {srd(sWD)}, s{sT2} offset:{o}")
    if opt("sw2", 0):
        a(f"""s_lshl3_add_u32 s{sT2}, s2, s{sW}
        s_mov_b32 s{sW2+2}, {1376*1024}
        s_mov_b32 s{sW2+3}, 0x00020000
        s_mov_b32 s{sWO+2}, {512*1024}
        s_mov_b32 s{sWO+3}, 0x00020000
        s_mul_i32 s{sT3}, s{sT2}, {6*128}
        s_lshl_b32 s{sT2}, s{sT2}, 8""")
        for o in range(0, 6 * 128, SW): a(f"s_buffer_load_dword s80, {srd(sW2)}, s{sT3} offset:{o}")
        for o in range(0, 2 * 128, SW): a(f"s_buffer_load_dword s80, {srd(sWO)}, s{sT2} offset:{o}")
if MW == 1: wtouch()
a.vmem(f"buffer_load_dwordx4 {v(vXR,4)}, v{vL16}, {srd(sX)}, s{sT1} offen", "xr")
a.vmem(f"buffer_load_dword v{vEP}, off, {srd(sWS)}, 0 sc1", "xr")
if MW == 2: wtouch()
if SW: stouch()
if PRIO: a("s_setprio 0")
B3 = lines(f"""s_load_dwordx2 {sp(sPH)}, s[0:1], 16
s_load_dwordx2 {sp(sB1)}, s[0:1], 48
s_load_dwordx2 {sp(sW2)}, s[0:1], 56
s_load_dwordx2 {sp(sWO)}, s[0:1], 24
s_load_dwordx2 {sp(sOUT)}, s[0:1], 64
s_and_b32 s{sSIG}, s{sW}, 3
v_and_b32 v{u0}, 31, v{vL}
s_xor_b32 s{sT3}, s{sSIG}, s{sH}
v_lshrrev_b32 v{u1}, 5, v{vL}
v_bfe_u32 v{u2}, v{vL}, 1, 3
s_lshl_b32 s{sT2}, s{sSIG}, 7
v_xor_b32 v{u2}, v{u1}, v{u2}
s_add_u32 s{sT2}, s{sT2}, s{sT3}
v_lshlrev_b32 v{u2}, 4, v{u2}
s_lshl_b32 s{sT2}, s{sT2}, 5
v_lshl_add_u32 v{u2}, v{u0}, 7, v{u2}
v_bfe_u32 v{t0}, v{vL}, 2, 2
v_xor_b32 v{vXA}, s{sT2}, v{u2}
v_bfe_u32 v{t1}, v{vL}, 4, 1
v_xor_b32 v{vXA+1}, 32, v{vXA}
v_and_b32 v{t2}, 3, v{vL}
v_xor_b32 v{vXA+2}, 64, v{vXA}
v_lshlrev_b32 v{t2}, 3, v{t2}
v_xor_b32 v{vXA+3}, 96, v{vXA}
v_lshl_add_u32 v{t2}, v{t1}, 5, v{t2}
v_lshrrev_b32 v{u2}, 1, v{t0}
s_lshl_b32 s{sT2}, s{sT3}, 6
v_lshl_add_u32 v{u2}, v{u2}, 6, v{t2}
s_add_u32 s{sT2}, s{sT2}, s{sH}
v_lshl_add_u32 v{t3}, v{t0}, 7, v{u2}
s_lshl_b32 s{sT2}, s{sT2}, 6
v_lshl_add_u32 v{u2}, v{u1}, 11, v{t3}
s_or_b32 s{sT2}, s{sT2}, 0x10000
v_xor_b32 v{u3}, v{t0}, v{t1}
v_xor_b32 v{vPM}, s{sT2}, v{u2}
v_and_b32 v{u3}, 1, v{u3}
v_xor_b32 v{vPM+1}, 4096, v{vPM}
v_cmp_eq_u32 vcc, 0, v{u3}
v_xor_b32 v{vPM+2}, 8192, v{vPM}
v_mov_b32 v{u3}, 0x3f803f80
v_xor_b32 v{vPM+3}, 12288, v{vPM}""")
if opt("sw2", 0): B3 = B3[:2] + B3[4:]
B3 += [f"v_cndmask_b32 v{vSEL+i}, 0, v{u3}, vcc" for i in range(4)]
PRO = opt("pro", "x1").split(",")
PRE2 = opt("pre2", 8)
B3N = opt("b3n", 0)
if PRE2 & 8: emits(B3[:B3N])
else: emits(merge(B3, [grp(L) for n in PRO for L in item(n)]))


def mish(acc, pk, tmp):
    L = []
    for g in (0, 8):
        r = [acc + g + i for i in range(8)]; u = [tmp + i for i in range(8)]
        if pk:
            L += [f"v_pk_fma_f32 {P2(u[i])}, {P2(r[i])}, {P2(vC1)}, {sp(sHALF)} op_sel_hi:[1,0,1]" for i in range(0, 8, 2)]
            L += [f"v_exp_f32 v{u[i]}, v{u[i]}" for i in range(8)]
            L += [f"v_pk_add_f32 {P2(u[i])}, {P2(u[i])}, {sp(sISQ)}" for i in range(0, 8, 2)]
            L += [f"v_pk_fma_f32 {P2(u[i])}, {P2(u[i])}, {P2(u[i])}, {sp(sHALF)} neg_lo:[1,0,0] neg_hi:[1,0,0]" for i in range(0, 8, 2)]
            L += [f"v_rcp_f32 v{u[i]}, v{u[i]}" for i in range(8)]
            L += [f"v_pk_fma_f32 {P2(r[i])}, {P2(r[i])}, {P2(u[i])}, {P2(r[i])}" for i in range(0, 8, 2)]
        else:
            L += [f"v_fma_f32 v{u[i]}, v{r[i]}, v{vC1}, -0.5" for i in range(8)]
            L += [f"v_exp_f32 v{u[i]}, v{u[i]}" for i in range(8)]
            L += [f"v_add_f32 v{u[i]}, s{sISQ}, v{u[i]}" for i in range(8)]
            L += [f"v_fma_f32 v{u[i]}, -v{u[i]}, v{u[i]}, -0.5" for i in range(8)]
            L += [f"v_rcp_f32 v{u[i]}, v{u[i]}" for i in range(8)]
            L += [f"v_fmac_f32 v{r[i]}, v{r[i]}, v{u[i]}" for i in range(8)]
        L += [f"v_cvt_pk_bf16_f32 v{acc+g//2+i}, v{r[2*i]}, v{r[2*i+1]}" for i in range(4)]
        L.append(("half", g // 8))
    return L
def frag_store(reg, sb, half, tag="st"):
    return vm(f"buffer_store_dwordx4 {v(reg,4)}, v{vL16}, {srd(sWS)}, s{sb} offen offset:{half*2048} sc1", tag)
def mish_store(acc, pk, sb, tmp, tag="st"):
    return [frag_store(acc + 4 * x[1], sb, x[1], tag) if isinstance(x, tuple) else x for x in mish(acc, pk, tmp)]
def softmax(P, out, pk, m):
    L = [f"v_max3_f32 v{m}, v{P}, v{P+1}, v{P+2}", f"v_max3_f32 v{m+1}, v{P+3}, v{P+4}, v{P+5}"]
    for i in range(6, 14, 4):
        L += [f"v_max3_f32 v{m}, v{m}, v{P+i}, v{P+i+1}", f"v_max3_f32 v{m+1}, v{m+1}, v{P+i+2}, v{P+i+3}"]
    L += [f"v_max3_f32 v{m}, v{m}, v{P+14}, v{P+15}", f"v_max_f32 v{m}, v{m}, v{m+1}", f"v_mul_f32 v{m}, v{m}, v{vC1}"]
    if pk:
        L += [f"v_pk_fma_f32 {P2(P+i)}, {P2(P+i)}, {P2(vC1)}, {P2(m)} op_sel_hi:[1,0,0] neg_lo:[0,0,1] neg_hi:[0,0,1]" for i in range(0, 16, 2)]
        L += [f"v_exp_f32 v{P+i}, v{P+i}" for i in range(16)]
        L += [f"v_pk_add_f32 {P2(m)}, {P2(P)}, {P2(P+2)}", f"v_pk_add_f32 {P2(m+2)}, {P2(P+4)}, {P2(P+6)}"]
        L += [f"v_pk_add_f32 {P2(m+(i&2))}, {P2(m+(i&2))}, {P2(P+i)}" for i in range(8, 16, 2)]
        L += [f"v_pk_add_f32 {P2(m)}, {P2(m)}, {P2(m+2)}", f"v_add_f32 v{m}, v{m}, v{m+1}", f"v_rcp_f32 v{m}, v{m}"]
        L += [f"v_pk_mul_f32 {P2(P+i)}, {P2(P+i)}, {P2(m)} op_sel_hi:[1,0]" for i in range(0, 16, 2)]
    else:
        L += [f"v_fma_f32 v{P+i}, v{P+i}, v{vC1}, -v{m}" for i in range(16)]
        L += [f"v_exp_f32 v{P+i}, v{P+i}" for i in range(16)]
        L += [f"v_add_f32 v{m+i}, v{P+2*i}, v{P+2*i+1}" for i in range(4)]
        L += [f"v_add_f32 v{m+(i&3)}, v{m+(i&3)}, v{P+i}" for i in range(8, 16)]
        L += [f"v_add_f32 v{m}, v{m}, v{m+1}", f"v_add_f32 v{m+2}, v{m+2}, v{m+3}", f"v_add_f32 v{m}, v{m}, v{m+2}", f"v_rcp_f32 v{m}, v{m}"]
        L += [f"v_mul_f32 v{P+i}, v{P+i}, v{m}" for i in range(16)]
    L += [f"v_cvt_pk_bf16_f32 v{out+i}, v{P+2*i}, v{P+2*i+1}" for i in range(8)]
    return L

def one_lane(x): return grp(["s_mov_b64 exec, 1", x, "s_mov_b64 exec, -1"])
def rec_store(): return one_lane(vm(f"buffer_store_dwordx4 {v(vRC,4)}, off, {srd(sWS)}, s{sREC} sc1", "rec"))
def rec1_load(tag="rec1"): return vm(f"buffer_load_dwordx4 {v(vBC,4)}, v{vRA1}, {srd(sWS)}, 0 offen sc1", tag)
FOFF = [12, 0, 128, 4]
OSENT = 1
def pmask(k): return sp((sMASK, sFM)[k])
def poll(k, tag=None):
    return grp([f"s_mov_b64 exec, {pmask(k)}",
                vm(f"buffer_load_dword v{vFV}, v{vFL}, {srd(sWS)}, {f's{sFB}' if k else 0} offen offset:{FOFF[k]} sc1", tag or f"fl{k}"), "s_mov_b64 exec, -1"])
def poll_check(k):
    def p():
        a.wait(vm=f"fl{k}")
        checked([f"v_cmp_ne_u32 vcc, s{sTAG}, v{vFV}", f"s_and_b64 vcc, vcc, {pmask(k)}"], poll(k, "x"), "L_fl")
        pt(f"fl{k}")
    return fn(p, 3)
vTG = 63
def flag_store(k, tag):
    return [f"v_mov_b32 v{vTG}, s{sTAG}", wt(vm=tag), one_lane(vm(f"buffer_store_dword v{vTG}, off, {srd(sWS)}, s{sFL} offset:{FOFF[k]} sc1", "fs")), ptf(f"fs{k}")]
def clr2(sb, off, T):
    if opt("noclr", 0): return "s_nop 0"
    assert T > 27
    return vm(f"buffer_store_dwordx4 {v(vA2B if T > 30 else vT,4)}, v{vL16}, {srd(sWS)}, s{sb} offen offset:{off} sc1", "clr")

def stats():
    e = vXR + 4; r0, r1 = vXR + 12, vXR + 13
    def allsum(r):
        L = [f"v_add_f32_dpp v{r}, v{r}, v{r} row_ror:{s} row_mask:0xf bank_mask:0xf" for s in (8, 4, 2, 1)]
        L += [f"v_mov_b32 v{r1}, v{r}", f"v_permlane16_swap_b32 v{r}, v{r1}", f"v_add_f32 v{r}, v{r}, v{r1}",
              f"v_mov_b32 v{r1}, v{r}", f"v_permlane32_swap_b32 v{r}, v{r1}", f"v_add_f32 v{r}, v{r}, v{r1}"]
        return L
    S = [wt(vm="xr"), f"v_add_u32 v{vRC+3}, 1, v{vEP}"]
    for j in range(4):
        S += [f"v_lshlrev_b32 v{e+2*j}, 16, v{vXR+j}", f"v_and_b32 v{e+2*j+1}, 0xffff0000, v{vXR+j}"]
    S += [f"v_readfirstlane_b32 s{sTAG}, v{vRC+3}"]
    S += [f"v_add_f32 v{vXR+j}, v{e+2*j}, v{e+2*j+1}" for j in range(4)]
    S += [f"v_add_f32 v{vXR}, v{vXR}, v{vXR+1}", f"v_add_f32 v{vXR+2}, v{vXR+2}, v{vXR+3}", f"v_add_f32 v{r0}, v{vXR}, v{vXR+2}"]
    S += allsum(r0)
    S += [f"v_mul_f32 v{vRC}, 0xbb000000, v{r0}"]
    S += [f"v_add_f32 v{e+j}, v{e+j}, v{vRC}" for j in range(8)]
    S += [f"v_mul_f32 v{vXR+j}, v{e+j}, v{e+j}" for j in range(4)]
    S += [f"v_fmac_f32 v{vXR+j}, v{e+4+j}, v{e+4+j}" for j in range(4)]
    S += [f"v_add_f32 v{vXR}, v{vXR}, v{vXR+1}", f"v_add_f32 v{vXR+2}, v{vXR+2}, v{vXR+3}", f"v_add_f32 v{r0}, v{vXR}, v{vXR+2}"]
    S += allsum(r0)
    S += [f"v_mov_b32 v{r1}, 0x3727c5ac", f"v_fmac_f32 v{r1}, 0x3b000000, v{r0}", f"v_rsq_f32 v{vRC+2}, v{r1}",
          f"s_lshl4_add_u32 s{sREC}, s{sREC}, {REC1}" if not PRE2 & 10 else "s_nop 0", f"v_mul_f32 v{vRC+1}, v{r1}, v{vRC+2}"]
    return S

def consts0(ty):
    if ty: return []
    def clr(off): return vm(f"buffer_store_dwordx4 {v(vCL,4)}, v{vL16}, {srd(sWS)}, s{sC0} offen offset:{off} sc1", "clr")
    L = lines(f"""s_lshl2_add_u32 s{sT2}, s{sG}, s{sSIG}
    v_mov_b32 v{vCL}, -1
    s_lshl4_add_u32 s{sT2}, s{sT2}, s{sRB}
    s_mul_i32 s{sT2}, s{sT2}, 1152
    s_add_u32 s{sC0}, s{sT2}, {KVD}""")
    if not opt("noclr", 0): L += [clr(0), "s_mov_b64 exec, 15", clr(1024), "s_mov_b64 exec, -1"]
    return [fn(lambda: skip_if(f"s_cmp_eq_u32 s{sH}, 0", lambda: emits(L), "L_c0"))]
def bases(ty):
    L = lines(f"""s_lshr_b32 s{sT4}, s{sSIG}, 1
    s_lshl1_add_u32 s{sT4}, s{sRB}, s{sT4}
    s_mul_i32 s{sKB}, s{sT4}, 236
    s_and_b32 s{sT4}, s{sSIG}, 1
    s_add_u32 s{sKB}, s{sKB}, s{sT4}
    s_lshl2_add_u32 s{sT2}, s{sTILE}, s{sKB}
    s_lshl_b32 s{sT2}, s{sT2}, 10
    s_add_u32 s{sSB0}, s{sT2}, {ACT}
    s_mov_b32 s{sFB}, {FLG - 8 * REC1}
    s_lshl3_add_u32 s{sFL}, s{sREC}, s{sFB}""")
    if ty == 0:
        return L + lines(f"""s_lshr_b32 s{sT2}, 0xea, s{sG}
        s_and_b32 s{sT2}, s{sT2}, s{sH}
        s_mul_i32 s{sT2}, s{sT2}, {DUM}
        s_add_u32 s{sSB0}, s{sSB0}, s{sT2}""")
    return L + lines(f"""s_add_u32 s{sC1}, s{sSB0}, 8192
    s_lshl1_add_u32 s{sT2}, s{sG}, s{sH}
    s_lshl2_add_u32 s{sT2}, s{sT2}, s{sKB}
    s_lshl_b32 s{sT2}, s{sT2}, 10
    s_add_u32 s{sC0}, s{sT2}, {ACT + 172*1024}""")
def consts1(ty):
    L = [f"s_add_u32 s{sSTART}, s{sSTART}, 4"] * (1 - ty) + lines(f"""s_add_u32 s{sTILE}, s{sSTART}, s{sH}
    s_and_b32 s{sT2}, s2, 7
    s_bfe_u32 s{sT3}, s2, 0x20003
    s_lshl2_add_u32 s{sRB2}, s{sT2}, s{sT3}
    s_lshr_b32 s{sCB}, s2, 5
    s_xor_b32 s{sCB}, s{sCB}, {opt("cbx", 2)}
    s_mov_b32 s{sW2+2}, {1376*1024}
    s_mov_b32 s{sW2+3}, 0x00020000
    s_mov_b32 s{sWO+2}, {512*1024}
    s_mov_b32 s{sWO+3}, 0x00020000""")
    if opt("mt", 15):
        n = 16 if TA & 2 else 8
        L += lines(f"""s_lshl3_add_u32 s{sT2}, s2, s{sW}
        s_lshl_b32 s{sT2}, s{sT2}, {11 if TA & 2 else 10}
        v_lshl_add_u32 v{vTCH}, v{vL}, 7, s{sT2}""")
        if EX and not ty:
            L = L[:-1] + share(vTCH, 8, vTCH + 1) + waddr() + [f"s_bfe_u32 s{sT3}, s2, 0x20003"]
            n = 16
        if opt("t3", 0):
            L += lines(f"""s_lshr_b32 s{sT2}, s2, 3
            s_lshl3_add_u32 s{sT2}, s{sT2}, s{sW}
            s_sub_u32 s{sT2}, s{sT2}, 1
            s_mul_i32 s{sT2}, s{sT2}, {n * 1024}
            s_add_u32 s{sT2}, s{sT2}, 384
            v_lshl_add_u32 v{vTCH+1}, v{vL}, 10, s{sT2}
            v_cmp_gt_u32 vcc, {n}, v{vL}
            v_cndmask_b32 v{vTCH}, v{vTCH+1}, v{vTCH}, vcc""")
            n *= 2
        L += [f"v_add_u32 v{vTCH+1}, {(1 << 32) - 1376 * 1024:#x}, v{vTCH}", fn(lambda: None) if TA & 2 and ty else touch(0, n)]
    if TOUCH:
        L += lines(f"""s_lshl3_add_u32 s{sT2}, s{sT3}, s{sW}
        s_lshl_b32 s{sT2}, s{sT2}, 9
        s_add_u32 s{sT2}, s{sT2}, s{sCB}
        s_lshl_b32 s{sT2}, s{sT2}, 7
        v_lshl_add_u32 v{vTCH}, v{vL}, 10, s{sT2}
        v_add_u32 v{vTCH+1}, {(1 << 32) - 24 * 65536:#x}, v{vTCH}""")
    L += [f"s_lshl_b32 s{sT3}, s{sT3}, 1"] * (ROT2 == 7) + lines(f"""s_xor_b32 s{sT3}, s{sT3}, s{sCB}
    s_and_b32 s{sT3}, s{sT3}, {ROT2}
    s_lshl_b32 s{sRA}, s{sT3}, 11
    s_lshl_b32 s{sRW}, s{sT3}, 14
    s_lshr_b32 s{sT3}, s{sT3}, {(ROT2 == 7) * 1}
    s_lshl_b32 s{sRA2}, s{sT3}, 11
    s_lshl_b32 s{sRW2}, s{sT3}, 14
    s_lshl1_add_u32 s{sGAM}, s{sSIG}, s{sH}
    s_mul_i32 s{sT4}, s{sGAM}, 11
    s_add_u32 s{sT4}, s{sT4}, 1
    s_lshr_b32 s{sT4}, s{sT4}, 1
    s_min_u32 s{sT4}, s{sT4}, 38
    v_and_b32 v{u3}, 7, v{vRW_}
    v_lshl_add_u32 v{u3}, v{u3}, 10, v{vSW_}
    s_lshl_b32 s{sT2}, s{sT4}, 8
    s_add_u32 s{sT2}, s{sT2}, s{sCB}
    s_lshl_b32 s{sT2}, s{sT2}, 7
    v_add_u32 v{vW2O}, s{sT2}, v{u3}
    v_add_u32 v{vW2O+1}, {8192-1024}, v{vW2O}
    s_lshl_b32 s{sT2}, s{sGAM}, 9
    s_add_u32 s{sT2}, s{sT2}, s{sCB}
    s_lshl_b32 s{sT2}, s{sT2}, 7
    v_add_u32 v{vWOO}, s{sT2}, v{u3}
    v_add_u32 v{vWOO+1}, {8192-1024}, v{vWOO}
    s_mul_i32 s{sT2}, s{sRB2}, 59
    s_add_u32 s{sT2}, s{sT2}, s{sT4}
    s_lshl_b32 s{sT2}, s{sT2}, 12
    s_add_u32 s{sT2}, s{sT2}, {ACT}
    v_add_u32 v{vACT}, s{sT2}, v{vL16}
    s_lshl1_add_u32 s{sT3}, s{sGAM}, 43
    s_sub_u32 s{sT3}, s{sT3}, s{sT4}
    s_lshl_b32 s{sAO}, s{sT3}, 12
    s_mov_b32 s{sWE+2}, {512*(2752, 3072)[ty]}
    s_mov_b32 s{sWE+3}, 0x00020000
    s_lshl_b32 s{sT2}, s{(sSTART, sG)[ty]}, {(6, 7)[ty]}
    v_mul_u32_u24 v{vWC}, {(2752, 3072)[ty]}, v{vRW_}
    v_add3_u32 v{vWC}, v{vWC}, v{vSW_}, s{sT2}
    v_lshlrev_b32 v{vBA}, 1, v{u0}
    s_movk_i32 s{sB1+2}, 2752
    s_mov_b32 s{sB1+3}, 0x00020000
    s_lshl_b32 s{sT4}, s{sTILE}, 6""")
    L += [vm(f"buffer_load_ushort v{vBA+i}, v{vBA}, {srd(sB1)}, s{sT4} offen offset:{128*i}", "misc") for i in reversed(range(1 + ty))]
    L += lines(f"""s_mov_b32 s{sPH+2}, 16384
    s_mov_b32 s{sPH+3}, 0x00020000
    s_and_b32 s{sT2}, s{sW}, 1
    s_lshl_b32 s{sT2}, s{sT2}, 10
    s_lshl_b32 s{sT3}, s{sG}, 11
    s_add_u32 s{sT3}, s{sT3}, s{sT2}""")
    return L
TOUCH = [x for x in opt("touch", "").split(",") if x]
vTCH = LT + 28
def touch(l0, n):
    m = ((1 << n) - 1) << l0
    return grp([f"s_mov_b32 exec_lo, {m & 0xffffffff:#x}", f"s_mov_b32 exec_hi, {m >> 32:#x}",
                vm(f"buffer_load_dword v{vFV}, v{vTCH}, {srd(sW2)}, 0 offen", "tch"),
                vm(f"buffer_load_dword v{vFV}, v{vTCH+1}, {srd(sWO)}, 0 offen", "tch"), "s_mov_b64 exec, -1"])
def wphi_dma():
    return grp([f"s_add_u32 m0, s{sT2}, {WPHI}", f"s_mov_b32 s{sCNT}, {SPIN}",
                vm(f"buffer_load_dwordx4 v{vL16}, {srd(sPH)}, s{sT3} offen lds", "misc")])

def consts2(ty):
    L = lines(f"""s_lshl2_add_u32 s{sT2}, s{sRB}, s{sSIG}
    s_lshl_b32 s{sT2}, s{sT2}, 9
    s_add_u32 s{sT2}, s{sT2}, {REC1}
    v_lshl_add_u32 v{vRA1}, v{u0}, 4, s{sT2}
    s_lshl_b32 s{sT2}, s{sH}, 9
    s_add_u32 s{sT2}, s{sT2}, {CW}
    v_lshl_add_u32 v{vCAR}, v{u0}, 4, s{sT2}
    s_lshl_b32 s{sT2}, s{sSIG}, 2
    v_add_u32 v{vCAW}, s{sT2}, v{vCAR}
    v_lshl_add_u32 v{t3}, v{u1}, 9, v{t3}
    v_add_u32 v{vA2B}, s{sM0R}, v{t3}
    s_mov_b32 s{sHALF}, -0.5
    s_mov_b32 s{sHALF+1}, -0.5
    s_mov_b32 s{sISQ}, 0x3f3504f3
    s_mov_b32 s{sISQ+1}, 0x3f3504f3
    s_mov_b32 s{sLOm}, -1
    s_mov_b32 s{sLOm+1}, 0
    s_mov_b32 s{sMASK}, 0xffff0000
    s_mov_b32 s{sMASK+1}, 0
    v_lshl_add_u32 v{u3}, v{u1}, 2, v{t0}
    v_lshlrev_b32 v{u3}, 5, v{u3}
    v_lshl_add_u32 v{u3}, v{t1}, 4, v{u3}
    v_bfe_u32 v{t3}, v{vL}, 1, 1
    v_lshl_add_u32 v{u3}, v{t3}, 3, v{u3}
    s_lshl_b32 s{sT2}, s{sH}, 10
    s_add_u32 s{sT2}, s{sT2}, {WPHI}
    v_add_u32 v{vPHA}, s{sT2}, v{u3}
    v_bfe_i32 v{vSGN}, v{vL}, 2, 1
    v_and_b32 v{vSGN}, 0x80008000, v{vSGN}""")
    L += [f"v_and_b32 v{vPL+i}, 0xffff, v{vPM+i}" for i in range(4)]
    L += lines(f"""s_lshr_b32 s{sT2}, s{sRB2}, 1
    s_lshl4_add_u32 s{sT2}, s{sT2}, s{sGAM}
    s_lshl_b32 s{sT2}, s{sT2}, 7
    s_add_u32 s{sT2}, s{sT2}, {REC1}
    v_and_b32 v{u3}, 8, v{vL}
    v_mul_u32_u24 v{u3}, 0x70, v{u3}
    v_and_b32 v{u2}, 15, v{vL}
    v_lshl_add_u32 v{u3}, v{u2}, 4, v{u3}
    v_add_u32 v{vFL}, s{sT2}, v{u3}""")
    if ty == 0:
        L += lines(f"""s_lshl_b32 s{sT4}, s{sSIG}, 5
        v_add_u32 v{u0}, s{sT4}, v{u0}
        v_bfe_u32 v{u2}, v{vL}, 1, 2
        v_lshlrev_b32 v{u3}, 1, v{u1}
        v_xor_b32 v{u2}, v{u2}, v{u3}
        s_lshl_b32 s{sT2}, s{sH}, 14
        s_add_u32 s{sT2}, s{sT2}, {PHI}
        v_lshl_add_u32 v{u2}, v{u2}, 4, s{sT2}
        v_lshl_add_u32 v{vPW0}, v{u0}, 6, v{u2}
        v_xor_b32 v{vPW1}, 16, v{vPW0}
        v_mul_u32_u24 v{u0}, 144, v{u0}
        v_add_u32 v{u0}, {VIMG}, v{u0}
        v_mov_b32 v{vTCH+2}, 0x3f803f80
        v_mov_b32 v{vTCH+3}, 0x3f803f80""") + [dsw(f"ds_write_b64 v{u0}, {v(vTCH+2,2)} offset:128")] + lines(f"""
        s_lshl_b32 s{sT2}, s{sH}, 6
        v_lshl_add_u32 v{vVW}, v{u1}, 4, s{sT2}
        v_add_u32 v{vVW}, v{vVW}, v{u0}
        v_lshl_add_u32 v{u1}, v{u1}, 3, v{t0}
        v_and_b32 v{u2}, 1, v{vL}
        v_lshl_add_u32 v{u2}, v{u2}, 1, v{t1}
        v_lshrrev_b32 v{u3}, 1, v{t0}
        v_xor_b32 v{u2}, v{u2}, v{u3}
        v_lshlrev_b32 v{u2}, 4, v{u2}
        v_lshl_add_u32 v{u2}, v{u1}, 6, v{u2}
        v_lshl_add_u32 v{u2}, v{t3}, 3, v{u2}
        s_lshl_b32 s{sT2}, s{sSIG}, 13
        s_add_u32 s{sT2}, s{sT2}, {PHI}
        v_add_u32 v{vKA0}, s{sT2}, v{u2}
        v_xor_b32 v{vKA1}, 32, v{vKA0}
        v_mul_u32_u24 v{u1}, 144, v{u1}
        v_add_u32 v{u2}, s{sT4}, v{t2}
        v_cmp_eq_u32 vcc, 1, v{t1}
        v_mov_b32 v{u3}, 128
        v_add_u32 v{u1}, {VIMG}, v{u1}
        v_cndmask_b32 v{u2}, v{u2}, v{u3}, vcc
        v_add_u32 v{vKB}, v{u1}, v{u2}""")
    else:
        L += lines(f"""s_lshl2_add_u32 s{sT2}, s{sG}, s{sSIG}
        s_mul_i32 s{sT2}, s{sT2}, {16*1152}
        s_add_u32 s{sT2}, s{sT2}, {KVD}
        v_lshrrev_b32 v{u3}, 4, v{vL}
        v_mul_u32_u24 v{u3}, 1152, v{u3}
        v_add_u32 v{u3}, s{sT2}, v{u3}
        s_lshl_b32 s{sT3}, s{sH}, 9
        v_lshlrev_b32 v{t2}, 4, v{u2}
        v_add3_u32 v{vGA}, v{u3}, v{t2}, s{sT3}
        v_bfe_u32 v{vGZ}, v{vL}, 1, 2
        v_mul_u32_u24 v{vGZ}, {4*1152}, v{vGZ}
        v_and_b32 v{t3}, 1, v{vL}
        v_lshl_add_u32 v{u3}, v{t3}, 4, v{u3}
        s_lshl_b32 s{sT3}, s{sH}, 5
        v_add3_u32 v{vGZ}, v{vGZ}, v{u3}, s{sT3}
        s_lshl3_add_u32 s{sT2}, s{sG}, s{sSIG}
        s_lshl4_add_u32 s{sT2}, s{sT2}, {REC1}
        v_lshl_add_u32 v{u3}, v{u2}, 11, s{sT2}
        v_cmp_eq_u32 vcc, 1, v{t1}
        s_mul_i32 s{sT2}, s{sGAM}, 544
        s_add_u32 s{sT2}, s{sT2}, {KVL}
        v_cndmask_b32 v{vFL}, v{vFL}, v{u3}, vcc
        v_lshl_add_u32 v{u3}, v{t1}, 3, s{sT2}
        v_mul_u32_u24 v{vKW}, 272, v{u1}
        v_add3_u32 v{vKW}, v{vKW}, v{u3}, v{t2}
        v_mul_u32_u24 v{vZW}, 272, v{t3}
        v_add_u32 v{vZW}, v{vZW}, v{u3}
        v_and_b32 v{u3}, 3, v{vL}
        v_bfe_u32 v{t3}, v{vL}, 2, 1
        v_lshl_add_u32 v{u3}, v{t3}, 3, v{u3}
        v_bfe_u32 v{t3}, v{vL}, 3, 1
        v_lshl_add_u32 v{u3}, v{t3}, 2, v{u3}
        v_cndmask_b32 v{u3}, v{u3}, 16, vcc
        v_lshlrev_b32 v{u3}, 4, v{u3}
        v_mul_u32_u24 v{u1}, 544, v{u1}
        s_mul_i32 s{sT3}, s{sH}, 2176
        s_add_u32 s{sT3}, s{sT3}, {KVL}
        v_add3_u32 v{vKR}, v{u3}, v{u1}, s{sT3}""")
    return L
def consts3(ty):
    return lines(f"""s_mov_b32 s{sOUT+2}, {2048*1024}
    s_mov_b32 s{sOUT+3}, 0x00020000
    s_and_b32 s{sT2}, s{sRB2}, 1
    s_lshl_b32 s{sT2}, s{sT2}, 1
    s_lshl_b32 s{sFM}, 0x3333, s{sT2}
    s_mov_b32 s{sFM+1}, 0
    s_lshl1_add_u32 s{sT2}, s{sRB2}, s{sH}
    s_lshl_b32 s{sR2}, s{sT2}, 9
    s_add_u32 s{sR2}, s{sR2}, {REC1}
    s_lshl_b32 s{sT2}, s{sT2}, 10
    s_lshl2_add_u32 s{sT3}, s{sCB}, s{sSIG}
    s_add_u32 s{sT2}, s{sT2}, s{sT3}
    s_lshl_b32 s{sOB}, s{sT2}, 5""")

vACC, vWR = 64, 128
vOO, vRSA, vEC, vRS2, vRES, vRW, vRR, vC0, vS0 = 8, 9, 10, 14, 16, 20, 21, 22, 24
vMT = 16
def areg(j): return [192, 200, 208, 248][j % 12] if j % 12 < 4 else (184 + 8 * (j % 8) if j < 9 else 40 + 8 * (j - 9))
def wreg(j): return vWR + 8 * (j % 7)
WS_ = {}
def w_item(j, s):
    WS_[j] = s
    so = (f"s_mov_b32 s{sT0}, {j << 14}" if 8 <= j < 12 else f"s_xor_b32 s{sT0}, s{sRW if j < 8 else sRW2}, {(j % 12) << 14}")
    d, ad = (srd(sW2), vW2O) if j < 12 else (srd(sWO), vWOO)
    return grp([f"s_add_u32 m0, s{sM0R}, {s * SZ}", so,
                vm(f"buffer_load_dwordx4 v{ad}, {d}, s{sT0} offen lds", f"w{j}"),
                vm(f"buffer_load_dwordx4 v{ad+1}, {d}, s{sT0} offen offset:1024 lds", f"w{j}")])
def w_read(j):
    s = WS_[j]
    ad = [vA2L, vA2M, vA2T][s >> 2]; off = (s & 3) * SZ
    L = [wt(vm=f"w{j}")]
    for b in range(2):
        L.append(dsw(f"ds_read_b64_tr_b16 {v(wreg(j)+4*b,2)}, v{ad+b} offset:{off}", f"r{j}"))
        L.append(dsw(f"ds_read_b64_tr_b16 {v(wreg(j)+4*b+2,2)}, v{ad+b} offset:{off+1024}", f"r{j}"))
    return L
vBW, vBR = 38, 56
def w_raw(j):
    WS_[j] = -1
    return [grp([f"s_xor_b32 s{sT0}, s{sRW}, {j << 14}", vm(f"buffer_load_dwordx4 {v(wreg(j)+4,4)}, v{vW2O}, {srd(sW2)}, s{sT0} offen", f"w{j}")]),
            grp([f"s_xor_b32 s{sT0}, s{sRW}, {j << 14}", vm(f"buffer_load_dwordx4 {v(wreg(j)+8,4)}, v{vW2O+1}, {srd(sW2)}, s{sT0} offen offset:1024", f"w{j}")])]
def bnc_addrs():
    return lines(f"""s_lshr_b32 s{sT2}, s{sM0R}, 1
    s_sub_u32 s{sT3}, {BNC}, s{sT2}
    s_add_u32 s{sT2}, s{sT2}, {BNC}
    v_add_u32 v{vBW}, s{sT2}, v{vL16}
    v_add_u32 v{vBR}, s{sT3}, v{vA2L}
    v_add_u32 v{vBR+1}, s{sT3}, v{vA2L+1}""")
def w_conv(j):
    L = [wt(vm=f"w{j}")]
    for hf in range(2):
        L.append(dsw(f"ds_write_b128 v{vBW}, {v(wreg(j)+4+4*hf,4)}", f"r{j}"))
        L += [dsw(f"ds_read_b64_tr_b16 {v(wreg(j)+4*b+2*hf,2)}, v{vBR+b}", f"r{j}") for b in range(2)]
    return L
def w_refill(j, q):
    return [wt(lg=f"r{q}"), w_item(j, WS_[q])]
def p2_addrs():
    return lines(f"""v_mov_b32 v{vA2L}, v{vA2B}
    v_xor_b32 v{vA2L+1}, 64, v{vA2B}
    v_add_u32 v{vA2M}, {4*SZ}, v{vA2L}
    v_add_u32 v{vA2M+1}, {4*SZ}, v{vA2L+1}
    v_add_u32 v{vA2T}, {8*SZ}, v{vA2L}
    v_add_u32 v{vA2T+1}, {8*SZ}, v{vA2L+1}""")
def a_load(j, tag=None, st=(0, 1)):
    def p():
        if j < 8: a(f"s_xor_b32 s{sT1}, s{sRA}, {j << 11}")
        elif j < 12: a(f"s_movk_i32 s{sT1}, {j << 11}")
        else: a(f"s_xor_b32 s{sT1}, s{sRA2}, {(j - 12) << 11}\ns_add_u32 s{sT1}, s{sAO}, s{sT1}")
        for s in st:
            if not opt("noact", 0): a.vmem(f"buffer_load_dwordx4 {v(areg(j)+4*s,4)}, v{vACT}, {srd(sWS)}, s{sT1} offen offset:{1024*s} {'sc1' if j >= opt('asc', 0) else opt('asf', '')}", tag or f"a{j}")
    return fn(p, 3 * len(st) + 1)
def p6(body): skip_if(f"s_cmp_lt_u32 s{sW}, 3", body, "L_p6")
def p6f(L): return fn(lambda: p6(lambda: emits(L)), 6)
def selectors(tmp):
    L = lines(f"""v_and_b32 v{tmp}, 1, v{vL}
    v_mov_b32 v{tmp+1}, 0x3f80
    v_lshlrev_b32 v{tmp}, 4, v{tmp}
    v_lshlrev_b32 v{tmp+1}, v{tmp}, v{tmp+1}
    v_bfe_u32 v{tmp}, v{vL}, 1, 3""")
    for r in range(0, 8, 2):
        L += [grp([f"v_cmp_eq_u32 vcc, {r}, v{tmp}", f"v_cmp_eq_u32 {sp(sCM)}, {r+1}, v{tmp}",
                   f"v_cndmask_b32 v{vS0+r}, 0, v{tmp+1}, vcc", f"v_cndmask_b32 v{vS0+r+1}, 0, v{tmp+1}, {sp(sCM)}"])]
    return L
def tail_addrs():
    x = vC0
    return lines(f"""v_and_b32 v{x}, 15, v{vL}
    v_lshrrev_b32 v{x+1}, 5, v{vL}
    v_lshl_add_u32 v{x+1}, v{x+1}, 4, v{x}
    v_lshlrev_b32 v{vRSA}, 4, v{x+1}
    v_and_b32 v{vOO}, 16, v{vL}
    v_lshl_add_u32 v{vOO}, v{x+1}, 10, v{vOO}
    v_add_u32 v{vRW}, s{sM0R}, v{vL16}
    s_lshr_b32 s{sT2}, s{sW}, 1
    s_and_b32 s{sT3}, s{sW}, 1
    s_lshl4_add_u32 s{sT2}, s{sT2}, s{sT3}
    s_lshl_b32 s{sT2}, s{sT2}, 10
    v_lshl_add_u32 v{x}, v{x}, 4, s{sT2}
    v_lshrrev_b32 v{x+1}, 4, v{vL}
    v_lshl_add_u32 v{vRR}, v{x+1}, 11, v{x}""")
def rs_load(tag="rs"): return vm(f"buffer_load_dwordx2 {P2(vRS2)}, v{vRSA}, {srd(sWS)}, s{sR2} offen offset:8 sc1", tag)
def res_load(): return vm(f"buffer_load_dwordx4 {v(vRES,4)}, v{vOO}, {srd(sX)}, s{sOB} offen", "res")
def ep_loads():
    a(f"v_lshlrev_b32 v{vBW}, 7, v{vL}")
    for i in range(4):
        a(f"s_mov_b32 s{sT2}, {REC1 + i*8192}")
        a(f"buffer_load_dword v{vEC+i}, v{vBW}, {srd(sWS)}, s{sT2} offen offset:12 sc1")
def if_first(body):
    a(f"s_or_b32 s{sT2}, s2, s{sW}")
    skip_if(f"s_cmp_eq_u32 s{sT2}, 0", body, "L_ep")
def maxchain(regs, d):
    L = []; regs = list(regs); first = True
    while regs:
        if first: x = regs[:3]; regs = regs[3:]; first = False
        else: x = [d] + regs[:2]; regs = regs[2:]
        L.append(f"v_max3_u32 v{d}, v{x[0]}, v{x[1]}, v{x[2]}" if len(x) == 3 else f"v_max_u32 v{d}, v{x[0]}, v{x[1]}")
    return L + [f"v_cmp_eq_u32 vcc, -1, v{d}"]
def sentinel(js, st):
    checked(maxchain([areg(j) + 4 * s for j in js for s in st], vC0), lambda: emits([a_load(j, "x", st) for j in js]), "L_s")
def step_mfma(j, st, first=False, gaps=()):
    gaps = list(gaps)
    for s in st:
        for b in range(2):
            acc = vACC + 32 * s + 16 * b
            a(f"{MF} {v(acc,16)}, {v(wreg(j)+4*b,4)}, {v(areg(j)+4*s,4)}, {'0' if first else v(acc,16)}")
            if gaps: emits(gaps.pop(0))
    for g in gaps: emits(g)

def c_loads(): return [p6f([a_load(10), a_load(11)]), a_load(8), a_load(9)]
def o_loads(): return [a_load(j, "o0", (0,)) for j in range(12, 16)] + [a_load(j, "o1", (1,)) for j in range(12, 16)]
WP = [[x for x in opt(k, "").split(",") if x] for k in ("awp", "bwp")]
def phase2(ty, side, GR, spec):
    def add(p, L): side[p] = side.get(p, []) + L
    assert sorted(WS_) == list(range(16))
    last = -1
    for x in WP[ty]:
        j, p = map(int, x.split("@")); assert p < j; last = p
        add(p, w_conv(j))
    for x in spec.split(","):
        n, p = x.split("@")
        assert n != "o" or int(p) >= 4
        assert n != "c" or int(p) >= last
        add(int(p), GR.pop(n))
    assert not set(GR) - set("hl"), GR
    add(5, [p6f(w_read(10) + w_read(11))])
    for j, k in ((7, 1), (8, 2), (9, 3), (12, 6), (13, 7), (14, 8), (15, 9)): add(k, w_read(j))
    for j in range(10):
        if j == 8:
            a.wait(vm="a9")
            sentinel((8, 9), (0, 1))
        a.wait(vm=f"a{j}", lg=f"r{j}")
        pt(f"s{j}")
        if j == 0: pt("f0")
        step_mfma(j, (0, 1), j == 0, split(side.get(j, []), 4))
    a.wait(lg="r12")
    def body():
        sentinel((10, 11), (0, 1))
        for j in (10, 11): step_mfma(j, (0, 1))
    p6(body)
    emits(side.get(10, []))
    pt("f1")
    a.wait(vm="o0", lg="all")
    if OSENT: sentinel(range(12, 16), (0,))
    pt("f2")
    checked([f"v_cmp_ne_u32 vcc, s{sTAG}, v{vRS2+1}"], rs_load("x"), "L_rs")
    vU = 216
    U = []
    for j in range(4): U += [f"v_lshlrev_b32 v{vU+2*j}, 16, v{vRES+j}", f"v_and_b32 v{vU+1+2*j}, s{sMASK}, v{vRES+j}"]
    G = split(U, 8)
    for j in range(12, 16): step_mfma(j, (0,), False, G[2*(j-12):2*(j-12)+2])
    a.wait(vm="o1")
    if OSENT: sentinel(range(12, 16), (1,))
    def pack(k):
        acc = vACC + 16 * k; L = []
        for hf in range(2):
            L += [f"v_cvt_pk_bf16_f32 v{acc+4*hf+i}, v{acc+8*hf+2*i}, v{acc+8*hf+2*i+1}" for i in range(4)]
            L += [dsw(f"ds_write_b128 v{vRW}, {v(acc+4*hf,4)} offset:{k*SZ+1024*hf}")]
        return L
    G = [[]] + split(pack(0) + pack(1), 7)
    for j in range(12, 16): step_mfma(j, (1,), False, G[2*(j-12):2*(j-12)+2])
    pt("f3")
    if ty == 0:
        def ep():
            checked([f"v_xor_b32 v{vEC+i}, s{sTAG}, v{vEC+i}" for i in range(4)] +
                    [f"v_or3_b32 v{vEC}, v{vEC}, v{vEC+1}, v{vEC+2}", f"v_or_b32 v{vEC}, v{vEC}, v{vEC+3}", f"v_cmp_ne_u32 vcc, 0, v{vEC}"],
                    ep_loads, "L_epc")
            a(f"""v_mov_b32 v{vEC}, s{sTAG}
            s_mov_b64 exec, 1
            buffer_store_dword v{vEC}, off, {srd(sWS)}, 0 sc1
            s_mov_b64 exec, -1""")
        if_first(ep)
    emits(pack(2) + pack(3))
    a.wait(lg="all")
    a("s_barrier")
    R = 224
    for p in range(4):
        for k in range(2):
            a.ds(f"ds_read_b128 {v(R+8*p+4*k,4)}, v{vRR} offset:{8192*k+256*p}", f"t{p}{k}")
    D = vWR
    for p in (0, 2, 1, 3):
        for k in range(2):
            a.wait(lg=f"t{p}{k}")
            d = D + 4 * (p >> 1)
            a(f"{MF16} {v(d,4)}, {v(vS0+4*(p&1),4)}, {v(R+8*p+4*k,4)}, {'0' if (p & 1) == 0 and k == 0 else v(d,4)}")
    for j in range(0, 8, 2): a(f"v_pk_fma_f32 {P2(D+j)}, {P2(D+j)}, {P2(vRS2)}, {P2(vU+j)} op_sel_hi:[1,0,1]")
    for j in range(4): a(f"v_cvt_pk_bf16_f32 v{D+8+j}, v{D+2*j}, v{D+2*j+1}")
    a(f"buffer_store_dwordx4 {v(D+8,4)}, v{vOO}, {srd(sOUT)}, s{sOB} offen")
    pt("end")
    a("s_branch L_fin")

def reads(T):
    tg = f"k{T}"; ks = T & 3
    if T < 32:
        off = ((T >> 2) & 3) * SZ; b = vWF + 8 * ks
        return [dsw(f"ds_read_b128 {v(vX+4*T,4)}, v{vXA+ks} offset:{off}", tg)] + [
                dsw(f"ds_read_b64_tr_b16 {v(b+2*i,2)}, v{vPM+ks} offset:{off+512*i}", tg) for i in range(4)]
    t = T - 32; s = RS[t >> 3]; ad = (vPL if s < 4 else vPM) + ks; off = (s & 3) * SZ + ((t >> 2) & 1) * 1024
    return [dsw(f"ds_read_b64_tr_b16 {v(vWF+4*ks+2*i,2)}, v{ad} offset:{off+512*i}", tg) for i in range(2)]
def bar(vmt=None, lg=None, name=None):
    def p():
        for x in ([vmt] if isinstance(vmt, str) else (vmt or [])): a.wait(vm=x)
        if lg: a.wait(lg=lg)
        if name: pt(name + "w")
        a("s_barrier")
        if name: pt(name)
    return fn(p, 1)
def put(S, T, L): S[T] = S.get(T, []) + list(L)
def spread(S, L, T0, T1):
    for i, G in enumerate(split(L, T1 - T0 + 1)): put(S, T0 + i, G)
def corr(quads, biases):
    L = [f"v_lshlrev_b32 v{b}, 16, v{b}" for b in biases if b] + [wt(lg="cw")]
    for q in quads: L += [f"v_add_f32 v{q}, v{q}, v{q+1}", f"v_add_f32 v{q+2}, v{q+2}, v{q+3}"]
    L += [f"v_add_f32 v{q}, v{q}, v{q+2}" for q in quads]
    return L + [f"v_cndmask_b32 v{q}, {v(b) if b else 0}, v{q}, {sLO}" for q, b in zip(quads, biases)]
SEQ = opt("seq", "x3/x4/x5/x6/x7/b0,b1/b2,b3").split("/")
DSP = opt("dsp", 1)
SPL = opt("spl", 3)
vQ2 = 44
def stream(ty, S, E):
    DQ = [L for n in opt("pre", "x2").split(",") if n for L in item(n)]
    for c in range(7): E[4 * c + 1] = [bar(f"x{c+1}", None, f"c{c}")] + E.get(4 * c + 1, [])
    S[29] = [dsw(f"ds_write_b32 v{vCAW}, v{vCS+4*i} offset:{1024*i}", "cw") for i in range(2)] + S.get(29, [])
    S[30] = [dsw(f"ds_read_b128 {v(vT+4*i,4)}, v{vCAR} offset:{1024*i}", "cw") for i in range(2)] + S.get(30, [])
    put(S, 31, corr((vT, vT + 4), (vBA, vBA + 1) if ty else (None, None)))
    S[32] = [f"{MF32} {v(K,16)}, v{q}, v{vBC}, {v(K,16)}" for K, q in ((K0, vT), (K1, vT + 4))] + S.get(32, [])
    S[61] = [dsw(f"ds_write_b32 v{vCAW}, v{vCS} offset:1024", "cw")] + S.get(61, [])
    S[62] = [dsw(f"ds_read_b128 {v(vQ2,4)}, v{vCAR} offset:1024", "cw")] + S.get(62, [])
    put(S, 63, corr((vQ2,), (None if ty else vBA,)) + [f"{MF32} {v(K2,16)}, v{vQ2}, v{vBC}, {v(K2,16)}"])
    emits(reads(0) + reads(1))
    for T in range(64):
        t = T & 31; ks = T & 3
        R = reads(T + 2) if T < 30 else (reads(32) + reads(33) if T == 30 else (reads(T + 3) if T + 3 < 64 else []))
        pt(f"T{T}")
        a.wait(lg=f"k{T}")
        F = S.get(T, [])
        if T < 32:
            b = vWF + 8 * ks
            G = split(F, 2)
            a(f"{MF} {v(K0,16)}, {v(b,4)}, {v(vX+4*t,4)}, {'0' if t == 0 else v(K0,16)}")
            emits(R[:SPL])
            if DQ and (DSP > 1 or T < 2): emits(DQ.pop(0))
            emits(G[0])
            a(f"{MF} {v(K1,16)}, {v(b+4,4)}, {v(vX+4*t,4)}, {'0' if t == 0 else v(K1,16)}")
            emits(R[SPL:])
            if DQ: emits(DQ.pop(0))
            if ks == 0:
                for i in range(2): a(f"{MF16} {v(vCS+4*i,4)}, {v(vSEL,4)}, {v(b+4*i,4)}, {'0' if t == 0 else v(vCS+4*i,4)}")
            emits(G[1])
        else:
            b = vWF + 4 * ks
            if ks == 0: a(f"{MF16} {v(vCS,4)}, {v(vSEL,4)}, {v(b,4)}, {'0' if t == 0 else v(vCS,4)}")
            a(f"{MF} {v(K2,16)}, {v(b,4)}, {v(vX+4*t,4)}, {'0' if t == 0 else v(K2,16)}")
            emits(R + F)
        if ks == 1: assert not DQ
        emits(E.get(T, []))
        if T < 28 and ks == 1:
            for n in SEQ[T >> 2].split(","):
                if n: DQ += item(n)
        if t == 31: pt(f"p{1 + (T >> 5)}")
    assert not DQ
PH = [vXA, vCS + 4]
def ph_reads(): return [dsw(f"ds_read_b64_tr_b16 {v(PH[i>>1]+2*(i&1),2)}, v{vPHA} offset:{256*i}", "ph") for i in range(4)]
def ph_signs(): return [wt(lg="ph")] + [f"v_xor_b32 v{PH[i>>2]+(i&3)}, v{vSGN}, v{PH[i>>2]+(i&3)}" for i in range(8)]
def start(ty, S, E):
    LATE = []
    if PRE2 & 8:
        C1 = consts1(ty); k = C1.index(f"s_movk_i32 s{sB1+2}, 2752")
        tch = [x for x in C1[:k] if callable(x)]
        C2 = consts2(ty) + bases(ty) + consts3(ty)
        def low(x): return isinstance(x, str) and x[:2] == "s_" and 36 <= int(x.split()[1].strip("s,")) < 48
        i = C2.index(f"s_lshl_b32 s{sFM}, 0x3333, s{sT2}")
        LATE = [tch + C1[k:], C2[i-2:i] + [x for x in C2 if low(x)]]
        L = B3[B3N:] + consts0(ty) + [x for x in C1[:k] if not callable(x)] + [f"s_lshl4_add_u32 s{sREC}, s{sREC}, {REC1}"] + [x for x in C2 if not low(x)]
        emits(merge(L, [grp(G) for n in PRO for G in item(n)], opt("x1a", 150), opt("x1b", 300)))
    else: emits(consts0(ty))
    pt("i1")
    a("s_waitcnt lgkmcnt(0)")
    if MW == 3: wtouch()
    if opt("mt", 15) == 2: emits(LATE[0][:1]); LATE[0] = LATE[0][1:]
    if PRE2 & 1: emits(consts1(ty) + [wphi_dma()])
    if PRE2 & 2: emits([f"s_lshl4_add_u32 s{sREC}, s{sREC}, {REC1}"] + consts2(ty) + bases(ty))
    if PRE2 & 4: emits(consts3(ty))
    LP = opt("lp", 5)
    OT = [vm(f"buffer_load_dword v{vFV}, off, {srd(sOUT)}, s{sOB}", "tch")] * opt("ot", 1)
    if LP < 0:
        k = opt("mt", 15) != 2
        emits(LATE[0][k:] + [wphi_dma()] + OT); LATE[0] = LATE[0][:k]
    pt("i2")
    a.wait(vm="x0")
    a("s_barrier")
    pt("p0")
    F0, F1, F2 = opt("f0", 6), opt("f1", 13), opt("f2", 26)
    RECP = opt("recp", 7)
    assert RECP >= max(F0, 5) and F1 % 4 == 1 and F2 <= 26
    spread(S, stats(), 0, F0)
    if MW >= 10: put(E, MW - 10, [fn(wtouch)])
    if opt("mt", 15) >= 10: put(E, opt("mt", 15) - 10, LATE[0][:1]); LATE[0] = LATE[0][1:]
    put(E, RECP, [rec_store()])
    if PRE2 & 8:
        if LP > 0: assert LP % 4 == 1 and LP <= F1; put(E, LP, LATE[0] + [wphi_dma()] + OT)
        elif LP < 0: put(S, F0 + 1, LATE[0])
        else: spread(S, LATE[0], F0 + 1, F1); put(E, F1, [wphi_dma()] + OT)
        spread(S, LATE[1], F1 + 1, F1 + 6)
    elif not PRE2 & 1:
        spread(S, consts1(ty), F0 + 1, F1)
        put(E, F1, [wphi_dma()])
    l0 = 0
    for x in TOUCH:
        T, n = map(int, x.split(":")); assert F0 + 3 <= T <= 28
        put(E, T, [touch(l0, n)]); l0 += n
    if not PRE2 & 10: spread(S, consts2(ty) + bases(ty), (F0 if PRE2 & 1 else F1) + 1, F2)
    if not PRE2 & 12: spread(S, consts3(ty), 27, 28)
    put(E, opt("rpos", 24), [rec1_load()])
    def rec():
        a.wait(vm="rec1")
        checked([f"v_cmp_ne_u32 vcc, s{sTAG}, v{vRSTD}"], rec1_load("x"), "L_rec1")
    put(S, 29, [fn(rec), f"v_cndmask_b32 v{vBC}, v{vSD}, v{vBC}, {sLO}", f"v_mov_b32 v{vRSTD}, v{vC1}", f"v_mul_f32 v{vC1}, {LOG2E}, v{vC1}"])
    put(E, 29, [bar("b1", "all", "e1")] + [poll(0)] * ty)
    put(S, 27, [f"v_mov_b32 v{vT}, -1"])
    put(S, 30, p2_addrs() + [f"v_mov_b32 v{vA2B}, -1"])
    put(E, 44, [poll_check(0)] * ty + [bar("b3", "all", "m2"), f"v_lshlrev_b32 v{vFL}, 3, v{vFL}"])
def rest():
    fs = [x for x in range(9) if x not in WS_.values()]
    return [w_item(j, fs.pop(0)) for j in range(16) if j not in WS_]
def place(M, spec, GR, nm="M"):
    ins = {}
    for x in [y for y in spec.split(",") if y]:
        n, r = x.split("@"); r = [int(y) for y in r.split("-")]; L = GR.pop(n)
        for i, y in enumerate(L): ins.setdefault(r[0] + (r[-1] - r[0]) * i // len(L), []).append(y)
    for i in range(300):
        pt(f"{nm}{i}")
        emits(ins.get(i, []))
        if i < len(M): emit(M[i])
def sched(S, spec, free):
    for x in spec.split(","):
        n, T = x.split("@"); T = int(T)
        if n[0] == "r":
            j = int(n[1:]); assert T >= 34 + 2 * j
            for i, g in enumerate(w_raw(j)): put(S, T + i, [g])
        elif n[0] == "c": assert T != 30; put(S, T, [clr2(*CLR[int(n[1:])], T)])
        else:
            j, sl = map(int, n.split(":")); assert T > free[sl], x
            put(S, T, [w_item(j, sl)])

def witems(spec):
    L = []
    for x in [y for y in spec.split(",") if y]:
        j, sl = map(int, x.split(":")); L.append(w_item(j, sl))
    return L
st1 = a.save()
a(f"""s_bitcmp1_b32 s2, 7
s_cbranch_scc1 L_B""")
TYPE[0] = 0
S, E = {}, {}
start(0, S, E)
put(S, 30, ph_reads())
put(S, 32, ph_signs())
V = []
for hf in range(2):
    V += [f"v_mul_f32 v{K1+8*hf+i}, v{K1+8*hf+i}, v{vRSTD}" for i in range(8)]
    V += [f"v_cvt_pk_bf16_f32 v{K1+8*hf+i}, v{K1+8*hf+2*i}, v{K1+8*hf+2*i+1}" for i in range(4)]
    V += [dsw(f"ds_write_b128 v{vVW}, {v(K1+8*hf,4)} offset:{32*hf}")]
L = [f"v_cvt_pk_bf16_f32 v{vT+j}, v{K0+2*j}, v{K0+2*j+1}" for j in range(8)]
L += [ptf("L1")] + V[:2] + [f"{MF} {v(K0,16)}, {v(PH[0],4)}, {v(vT,4)}, 0"] + V[2:] + [f"{MF} {v(K1,16)}, {v(PH[1],4)}, {v(vT+4,4)}, 0"]
PKA = opt("pka", 1)
for hd, P in enumerate((K0, K1)):
    L += [ptf(f"L{2+hd}")] + softmax(P, P, PKA, vT)
    L += [dsw(f"ds_write_b128 v{vPW0}, {v(P,4)} offset:{hd*8192}"), dsw(f"ds_write_b128 v{vPW1}, {v(P+4,4)} offset:{hd*8192}")]
SPOS = opt("spos", 36)
KI = witems(opt("ki", "8:7"))
if KI: L = merge(L, KI, opt("ki0", 60))
spread(S, L, opt("ka", 33), SPOS)
FS = 44 if SPOS < 44 else 61
CLR = [(sSB0, 0), (sSB0, 2048)]
put(S, opt("fpa", 48), flag_store(1, "clr"))
sched(S, opt("sa", "c0@28,c1@28,7:6@31,r0@41,r1@44,r2@47,r3@50,r4@53,r5@56,r6@59"),
      {6: 29, 7: 29, 0: 44, 4: 44, 1: 61, 5: 61, 2: FS, 3: FS, 8: FS})
def kv():
    KB = [K1, K1 + 8, vT]
    def kv_reads(t):
        b = KB[t % 3]
        a.ds(f"ds_read_b64_tr_b16 {v(b,2)}, v{vKA0} offset:{t*1024}", f"kv{t}")
        a.ds(f"ds_read_b64_tr_b16 {v(b+2,2)}, v{vKA1} offset:{t*1024+256}", f"kv{t}")
        a.ds(f"ds_read_b64_tr_b16 {v(b+4,2)}, v{vKB} offset:{t*2304}", f"kv{t}")
        a.ds(f"ds_read_b64_tr_b16 {v(b+6,2)}, v{vKB} offset:{t*2304+576}", f"kv{t}")
    if opt("kprio", 1): a("s_setprio 2")
    for t in range(3): kv_reads(t)
    for t in range(8):
        a.wait(lg=f"kv{t}")
        b = KB[t % 3]
        a(f"{MF} {v(K0,16)}, {v(b,4)}, {v(b+4,4)}, {'0' if t == 0 else v(K0,16)}")
        if t >= 1 and t + 2 < 8: kv_reads(t + 2)
    for i in range(8): a(f"v_cvt_pk_bf16_f32 v{K1+i}, v{K0+2*i}, v{K0+2*i+1}")
    for i in range(4): a(f"v_permlane16_swap_b32 v{K1+i}, v{K1+4+i}")
    a(f"""buffer_store_dwordx4 {v(K1,4)}, v{vL16}, {srd(sWS)}, s{sC0} offen sc1
    s_mov_b32 exec_lo, 0x00010001
    s_mov_b32 exec_hi, 0x00010001
    buffer_store_dwordx4 {v(K1+4,4)}, v{vL}, {srd(sWS)}, s{sC0} offen offset:1024 sc1
    s_mov_b64 exec, -1""")
    if opt("kprio", 1): a("s_setprio 0")
    pt("kv")
put(E, SPOS, [bar(None, "all", "S"), fn(lambda: skip_if(f"s_cmp_eq_u32 s{sH}, 0", kv, "L_kv"))])
spread(S, selectors(K1), max(SPOS + 2, 50), 61)
CPR = opt("cpr", 1)
put(E, 61, [bar(None, "all", "Y"), p6f([w_item(10, 1), w_item(11, 5)])] + ["s_setprio 3"] * CPR)
stream(0, S, E)
def groups():
    G = {"a": [a_load(j) for j in range(4)], "b": [a_load(j) for j in range(4, 8)], "c": c_loads(), "o": o_loads(),
         "w": bnc_addrs() + sum([w_conv(j) for j in range(7 - len(WP[TYPE[0]]))], []), "s": rest(), "r": [rs_load(), res_load()]}
    if opt("bsp", 0): G["q"] = G["b"][2:]; G["b"] = G["b"][:2]
    for k in (1,): G[f"p{k}"] = [poll(k)]; G[f"k{k}"] = [poll_check(k)]
    return G
GR = groups()
place(mish_store(K2, True, sSB0, vMT) + ["s_setprio 0"] * CPR + [ptf("ms")] + tail_addrs(), opt("ao", "p1@0,s@0-24,w@40-90,k1@25,a@25-40,b@78-90,r@96"), GR)
phase2(0, {1: [fn(lambda: if_first(ep_loads), 4)]}, GR, opt("ap", "c@3,o@7"))

a.label("L_B")
a.restore(st1)
TYPE[0] = 1
WS_.clear()
S, E = {}, {}
start(1, S, E)
J0 = opt("j0", 17)
assert J0 % 4 == 1
put(E, J0, [w_item(7, 8)])
CLR = [(sC0, 0), (sC0, 2048)]
sched(S, opt("sb", "c0@28,c1@28," * OSENT + "8:2@31,r0@37,r1@40,r2@43,r3@46,r4@49,r5@52,r6@55"),
      {2: 29, 3: 29, 6: 29, 7: 29, 0: 44, 4: 44})
PKB = opt("pkb", 1)
MB = mish_store(K0, PKB, sSB0, vT) + mish_store(K1, PKB, sC1, vT) + selectors(K0 + 8)
MI = witems(opt("mi", "9:3,12:6,13:7"))
if MI: MB = merge(MB, MI, opt("mi0", 20))
spread(S, MB, 33, opt("ma", 35))
FPB = opt("fpb", 58)
if FPB: put(S, FPB, flag_store(1, "st"))
put(S, 56, ph_reads()); put(S, 62, ph_signs())
put(E, 61, [bar(None, "all", "Y"), p6f([w_item(10, 1), w_item(11, 5)])] + ["s_setprio 3"] * CPR)
vTL = [K0 + 4 * i for i in range(8)]; vZL = 128 if opt("gpos", 0) else 64
Q0, Q1 = 216, 232
def t_load(i, tag=None):
    def p():
        a(f"s_movk_i32 s{sT1}, {(i>>1)*4*1152}")
        a.vmem(f"buffer_load_dwordx4 {v(vTL[i],4)}, v{vGA}, {srd(sWS)}, s{sT1} offen offset:{(i&1)*256} sc1", tag or "t")
    return fn(p, 4)
def z_load(tag=None): return vm(f"buffer_load_dwordx4 {v(vZL,4)}, v{vGZ}, {srd(sWS)}, 0 offen offset:1024 sc1", tag or "t")
GL = [z_load()] + [t_load(i) for i in range(8)]
GPOS = opt("gpos", 0)
if GPOS:
    assert GPOS > 44
    spread(S, [ptf("g0")] + GL, GPOS, opt("gend", 61))
PP = opt("pp", 0)
if PP: put(S, PP, [poll(1)])
stream(1, S, E)
for j in range(8): a(f"v_cvt_pk_bf16_f32 v{K2+j}, v{K2+2*j}, v{K2+2*j+1}")
a(f"{MF} {v(Q0,16)}, {v(PH[0],4)}, {v(K2,4)}, 0")
a(f"{MF} {v(Q1,16)}, {v(PH[1],4)}, {v(K2+4,4)}, 0")
M = softmax(Q0, Q0, True, 20) + softmax(Q1, Q0 + 8, True, 20)
print("B list", len(M))
GR = groups()
GR.update({"h": ["s_setprio 3"], "l": ["s_setprio 0"]})
if not GPOS: GR["g"] = GL
if PP: GR.pop("p1")
if not FPB: GR["f"] = flag_store(1, "st")
vD, vDZ = K2 + 8, K2 + 12
vKF = 64
def got():
    pt("sm")
    a.wait(vm="t")
    checked(maxchain(vTL + [vZL], vD), lambda: emits([z_load("x")] + [t_load(i, "x") for i in range(8)]), "L_t")
    pt("g")
D = [fn(got), f"{MF16} {v(vDZ,4)}, {v(vS0,4)}, {v(vZL,4)}, 0"]
D += [f"{MF16} {v(vD,4)}, {v(vS0+4*(i&1),4)}, {v(vTL[i],4)}, {'0' if i == 0 else v(vD,4)}" for i in range(8)]
for sh in (2, 4):
    D += [f"v_add_f32_dpp v{vDZ+j}, v{vDZ+j}, v{vDZ+j} row_ror:{sh} row_mask:0xf bank_mask:0xf" for j in range(4)]
D += [f"v_cvt_pk_bf16_f32 v{vDZ}, v{vDZ}, v{vDZ+1}", f"v_cvt_pk_bf16_f32 v{vDZ+1}, v{vDZ+2}, v{vDZ+3}",
      grp(["s_mov_b64 exec, 0x30003", dsw(f"ds_write_b64 v{vZW}, {v(vDZ,2)} offset:256"), "s_mov_b64 exec, -1"]),
      f"v_cvt_pk_bf16_f32 v{vD}, v{vD}, v{vD+1}", f"v_cvt_pk_bf16_f32 v{vD+1}, v{vD+2}, v{vD+3}", dsw(f"ds_write_b64 v{vKW}, {v(vD,2)}")]
GR["d"] = D
GR["e"] = [bar(None, "all", "K")] + [dsw(f"ds_read_b128 {v(vKF+8*hh+4*j,4)}, v{vKR} offset:{hh*1088+j*272}", f"kf{hh}") for hh in range(2) for j in range(2)]
place(M, opt("bo", "g@0-20,p1@21,s@30-60,d@100,k1@120,a@120,e@122"), GR)
X = split(tail_addrs(), 3)
emits(X[0])
OD = [K2, K1]
for hh in range(2):
    a.wait(lg=f"kf{hh}")
    a(f"{MF} {v(OD[hh],16)}, {v(vKF+8*hh,4)}, {v(Q0+8*hh,4)}, 0")
    a(f"{MF} {v(OD[hh],16)}, {v(vKF+8*hh+4,4)}, {v(Q0+8*hh+4,4)}, {v(OD[hh],16)}")
emits(X[1] + X[2])
for D in OD: a(f"v_add_f32 v{D+8}, 0x358637bd, v{D+8}")
for D in OD: a(f"v_rcp_f32 v{D+8}, v{D+8}")
for D in OD: a(f"v_mul_f32 v{D+8}, v{D+8}, v{vSD}")
for hh, D in enumerate(OD):
    for i in range(0, 8, 2): a(f"v_pk_mul_f32 {P2(D+i)}, {P2(D+i)}, {P2(D+8)} op_sel_hi:[1,0]")
    for i in range(4): a(f"v_cvt_pk_bf16_f32 v{D+12+i}, v{D+2*i}, v{D+2*i+1}")
    frag_store(D + 12, sC0, hh)()
if CPR: a("s_setprio 0")
pt("o")
W = GR.pop("w", [])
place(W, opt("bn", "b@0,r@10"), GR, "N")
phase2(1, {}, GR, opt("bp", "c@2,o@6"))

for blk in retries: blk()
a.label("L_fin")
if STAMP >= 0:
    n = nst[0]
    a(f"""s_cmp_eq_u32 s{sW}, {STAMP}
    s_cbranch_scc0 L_end
    s_waitcnt lgkmcnt(0)
    s_sub_u32 s{sT0}, {SPIN}, s{sCNT}
    s_mul_i32 s{sT0}, s{sT0}, 100
    s_add_u32 s{sST0+2}, s{sST0}, s{sT0}
    s_addc_u32 s{sST0+3}, s{sST0+1}, 0
    s_mul_i32 s{sT0}, s2, {n*8}
    s_add_u32 s{sT0}, s{sT0}, {STAMP_OFF}
    s_mov_b64 exec, 1""")
    for i in range(n):
        a(f"v_mov_b32 v{64+2*i}, s{sST0+2*i}")
        a(f"v_mov_b32 v{65+2*i}, s{sST0+2*i+1}")
        a(f"buffer_store_dwordx2 {v(64+2*i,2)}, off, {srd(sWS)}, s{sT0} offset:{i*8}")
a.label("L_end")
a.pad()
open(out_path, "w").write(header(256, 512, LDS_SIZE) + a.text() + footer(vgpr=256))
print("instructions:", sum(1 for x in a.L if x.states), "nops:", sum(1 for x in a.L if x.kind == "nop"), "stamps", nst[0])
```

```python
import sys
from asmdsl import Asm
from gen_common import header, footer

OPT = dict(a.split("=") for a in sys.argv[2:])
def opt(k, d): return type(d)(OPT.get(k, d))
STAMP = opt("stamp", -1)
CYC = opt("cyc", 0)
PTS = [p.split("|") for p in opt("pts", "p0,p1,Y,S|g,kv|o,f0,f2,end").split(",") if p]
ROTM = opt("rotm", 1)
ROT2 = opt("rot2", 7)
SPIN = opt("spin", 200000)
out_path = sys.argv[1]

SZ = 16384
KVL, WPHI, CW, BNC = 9 * SZ, 9 * SZ + 2048, 9 * SZ + 4096, 9 * SZ + 8192
PHI, VIMG = 2 * SZ, 8 * SZ
LDS_SIZE = 163840
REC1 = 0x1000
KVD = 0x20000
FLG = 0xc0000
ACT = 0x140000
DUM = 0x1000000
STAMP_OFF = 128 << 20

sW, sSIG, sH, sT0, sT1 = 3, 4, 5, 6, 7
sX, sWD, sWE, sW2, sWO, sOUT, sWS = 8, 12, 16, 20, 24, 28, 32
sPH, sB1, sPC = 36, 40, 44
sHALF, sISQ, sLOm, sFM, sMASK, sCM = 36, 38, 40, 42, 44, 46
sFMB, sTILE, sFL, sFB, sRA2, sRW2 = 48, 50, 51, 52, 53, 54
(sM0R, sTAG, sCNT, sT2, sT3, sRHO, sRB, sG, sSTART, sT4, sC0, sC1, sSB0, sOB, sRA, sRW, sAO, sR2,
 sRB2, sCB, sGAM, sREC, sSTR, sKB) = range(56, 80)
sST0 = 82
sLO = f"s[{sLOm}:{sLOm+1}]"
def srd(n): return f"s[{n}:{n+3}]"
def sp(n): return f"s[{n}:{n+1}]"

vL = 0
vXO, vWA, vWC, vL16, vBA = 1, 3, 5, 7, 8
vA2L, vA2M, vA2T = 1, 3, 5
vBC, vSD, vC1, vRSTD = 10, 11, 12, 13
vCAW, vCAR, vPL, vPM = 14, 15, 16, 20
vT = 24
vW2O, vWOO, vFL, vACT, vA2B, vFV = 32, 34, 36, 37, 38, 39
vXA, vSEL, vCS = 40, 44, 48
vPHA, vSGN = 56, 57
vPW0, vPW1, vKA0, vKA1, vKB, vVW = 58, 59, 60, 61, 62, 63
vGA, vGZ, vKW, vZW, vKR = 58, 59, 60, 61, 62
vWF = 64
K2, K0, K1 = 80, 96, 112
vX = 128
def v(n, k=1): return f"v{n}" if k == 1 else f"v[{n}:{n+k-1}]"
def P2(n): return v(n, 2)

a = Asm()
nst = [2]
def stamp(i):
    if STAMP >= 0:
        assert i < 10
        a(f"{'s_memtime' if CYC else 's_memrealtime'} s[{sST0+2*i}:{sST0+2*i+1}]")
        nst[0] = max(nst[0], i + 1)
def pt(name):
    for i, p in enumerate(PTS):
        if name in p: stamp(2 + i)

MF = "v_mfma_f32_32x32x16_bf16"
MF16 = "v_mfma_f32_16x16x32_bf16"
MF32 = "v_mfma_f32_32x32x2_f32"
LOG2E = "0x3fb8aa3b"

def lines(txt): return [l.strip() for l in txt.strip().split("\n") if l.strip()]
def cost(x):
    if callable(x): return getattr(x, "cost", 1)
    return 2 if ("v_exp" in x or "v_rcp" in x or "v_mfma" in x) else 1
def emit(x):
    if callable(x): x()
    else: a(x)
def emits(L):
    for x in L: emit(x)
def fn(f, c=1):
    f.cost = c; return f
def ptf(name): return fn(lambda: pt(name), 0)
def grp(L): return fn(lambda: emits(L), sum(cost(x) for x in L))
def merge(main, side, start=0, end=None):
    end = len(main) if end is None else min(end, len(main))
    tot = sum(cost(x) for x in main[start:end]); out = list(main[:start]); acc = 0; k = 0
    for x in main[start:end]:
        while k < len(side) and acc >= k * tot / len(side): out.append(side[k]); k += 1
        out.append(x); acc += cost(x)
    return out + side[k:] + list(main[end:])
def split(L, n):
    tot = sum(cost(x) for x in L); G = [[] for _ in range(n)]; acc = 0
    for x in L:
        G[min(n - 1, int(acc * n / max(tot, 1)))].append(x); acc += cost(x)
    return G
def vm(txt, tag):
    if opt("now2", 0) and tag[0] == "w": return fn(lambda: None, 3)
    return fn(lambda: a.vmem(txt, tag), 3)
def dsw(txt, tag="w"): return fn(lambda: a.ds(txt, tag), 2)
def wt(**kw): return fn(lambda: a.wait(**kw), 0)

retries = []
def checked(cmp_lines, reload, name):
    lab = a.newlabel(name)
    a.label(lab + "_c")
    for l in cmp_lines: a(l)
    a(f"s_cbranch_vccnz {lab}_r")
    a.label(lab + "_k")
    def blk():
        a.label(lab + "_r")
        a(f"""s_cmp_eq_u32 s{sCNT}, 0
        s_cbranch_scc1 {lab}_k
        s_sub_u32 s{sCNT}, s{sCNT}, 1""")
        reload()
        a(f"""s_waitcnt vmcnt(0)
        s_branch {lab}_c""")
    retries.append(blk)
def skip_if(cmp_line, body, name):
    lab = a.newlabel(name)
    a(cmp_line); a(f"s_cbranch_scc0 {lab}")
    st = a.save()
    body()
    a.label(lab)
    a.restore(st)

t0, t1, t2, t3, u0, u1, u2, u3 = range(vT, vT + 8)
LT = vX + 96
vXR, vRC, vCL = LT, LT + 16, LT + 20
vRW_, vSW_, vEP, vRA1 = LT + 24, LT + 25, LT + 26, 6
TYPE = [0]
RS = [0, 4, 1, 5]
def rot(c, d): return [f"s_add_u32 s{d}, s{sRHO}, {128*c}", f"s_and_b32 s{d}, s{d}, 0x380"]
def x_item(c):
    s = [f"s_add_u32 m0, s{sM0R}, {(c & 3) * SZ}"] + rot(c, sT0)
    return [s + [vm(f"buffer_load_dwordx4 v{vXO}, {srd(sX)}, s{sT0} offen lds", f"x{c}")],
            [vm(f"buffer_load_dwordx4 v{vXO+1}, {srd(sX)}, s{sT0} offen offset:1024 lds", f"x{c}")]]
def w_item1(c):
    b = (4 + (c & 3)) * SZ
    return [[f"s_add_u32 m0, s{sM0R}, {b}", f"s_mul_i32 s{sT0}, s{sT0}, s{sSTR}",
             vm(f"buffer_load_dwordx4 v{vWA}, {srd(sWD)}, s{sT0} offen lds", f"x{c}")],
            [f"s_add_u32 m0, s{sM0R}, {b+1024}", vm(f"buffer_load_dwordx4 v{vWA+1}, {srd(sWD)}, s{sT0} offen lds", f"x{c}")]]
def r_item(i):
    return [[f"s_add_u32 m0, s{sM0R}, {RS[i]*SZ + 1024*k}"] + rot(2 * i + k, sT0) +
            [f"s_mul_i32 s{sT0}, s{sT0}, {(1376, 1536)[TYPE[0]]}", vm(f"buffer_load_dwordx4 v{vWC}, {srd(sWE)}, s{sT0} offen lds", f"b{i}")]
            for k in range(2)]
def item(n):
    i = int(n[1:])
    return x_item(i) + w_item1(i) if n[0] == "x" else r_item(i)

PRIO = opt("prio", 1)
a(f"""s_cmp_ge_u32 s2, 256
s_cbranch_scc1 L_end""")
stamp(0)
a(f"""s_getpc_b64 {sp(sPC)}
L_pc:
s_load_dwordx2 {sp(sX)}, s[0:1], 0
s_lshr_b32 s{sT1}, s2, 2
s_and_b32 s{sT1}, s{sT1}, 32
s_add_u32 s{sT3}, s{sT1}, 8
s_load_dwordx2 {sp(sWD)}, s[0:1], s{sT3}
s_bfe_u32 s{sT0}, s2, 0x30003
v_lshrrev_b32 v{t0}, 6, v0
s_mov_b32 s{sPC+2}, L_end-L_pc
v_lshl_add_u32 v{t1}, v0, 3, s{sT0}
s_mov_b32 s{sPC+3}, 0x00020000
v_lshlrev_b32 v{t1}, 7, v{t1}
v_readfirstlane_b32 s{sW}, v{t0}
buffer_load_dword v{LT+27}, v{t1}, {srd(sPC)}, 0 offen""")
if PRIO: a("s_setprio 3")
if opt("sw2", 0): a(f"""s_load_dwordx2 {sp(sW2)}, s[0:1], 56
s_load_dwordx2 {sp(sWO)}, s[0:1], 24""")
a(f"""s_load_dwordx2 {sp(sWS)}, s[0:1], 80
v_lshrrev_b32 v{vRW_}, 3, v0
s_sub_u32 s{sT4}, 40, s{sT1}
s_and_b32 s{sT1}, s2, 1
v_and_b32 v{t1}, 56, v{vRW_}
s_lshl3_add_u32 s{sRB}, s{sT1}, s{sT0}       ; rb
v_add_u32 v{t0}, v{vRW_}, v{t1}
s_lshr_b32 s{sT1}, s2, 6
v_bfe_u32 v{t2}, v0, 4, 2
s_lshl1_add_u32 s{sRHO}, s{sT1}, s{sT0}
v_bitop3_b32 v{t2}, v0, v{t2}, 7 bitop3:0x28
s_lshl_b32 s{sT2}, s{sRB}, 17
v_lshl_add_u32 v{t2}, v{t2}, 4, s{sT2}
s_and_b32 s{sRHO}, s{sRHO}, {ROTM}
v_lshl_add_u32 v{vXO}, v{t0}, 10, v{t2}
s_lshl_b32 s{sRHO}, s{sRHO}, 7
v_xor_b32 v{vXO+1}, 64, v{vXO}
s_add_u32 s{sRHO}, s{sRHO}, {opt("rot0", 4) * 128}
s_lshl_b32 s{sM0R}, s{sW}, 11
v_add_u32 v{vXO+1}, {8192-1024}, v{vXO+1}
s_mov_b32 s{sX+2}, {2048*1024}
v_bfe_u32 v{t3}, v0, 4, 1
s_mov_b32 s{sX+3}, 0x00020000
v_lshlrev_b32 v{t3}, 2, v{t3}
s_mov_b32 m0, s{sM0R}
v_bitop3_b32 v{t3}, v0, v{t3}, 7 bitop3:0x28
s_bfe_u32 s{sT1}, s2, 0x10006
v_lshlrev_b32 v{vSW_}, 4, v{t3}
s_and_b32 s{sG}, s2, 6
s_or_b32 s{sG}, s{sG}, s{sT1}                ; g
s_mul_i32 s{sSTART}, s{sG}, 11
s_waitcnt lgkmcnt(0)""")
a.vmem(f"buffer_load_dwordx4 v{vXO}, {srd(sX)}, s{sRHO} offen lds", "x0")
a(f"""s_add_u32 s{sSTART}, s{sSTART}, 1
s_lshr_b32 s{sSTART}, s{sSTART}, 1
s_min_u32 s{sSTART}, s{sSTART}, 38
s_lshl1_add_u32 s{sT1}, s{sG}, 16""")
a.vmem(f"buffer_load_dwordx4 v{vXO+1}, {srd(sX)}, s{sRHO} offen offset:1024 lds", "x0")
a(f"""s_movk_i32 s{sSTR}, 1536
s_movk_i32 s{sT2}, 1024
s_bitcmp1_b32 s2, 7
s_cselect_b32 s{sSTR}, 1376, s{sSTR}
s_cselect_b32 s{sT1}, s{sSTART}, s{sT1}
s_cselect_b32 s{sT2}, 128, s{sT2}
v_mul_u32_u24 v{vWA}, s{sSTR}, v{vRW_}
s_lshl_b32 s{sT1}, s{sT1}, 6
s_lshl_b32 s{sWD+2}, s{sSTR}, 10
v_lshl_add_u32 v{vWA}, v{vWA}, 1, v{vSW_}
s_mov_b32 s{sWD+3}, 0x00020000
s_mov_b32 s{sT0}, s{sRHO}
v_add_u32 v{vWA}, s{sT1}, v{vWA}
s_load_dwordx2 {sp(sWE)}, s[0:1], s{sT4}
v_add_u32 v{vWA+1}, s{sT2}, v{vWA}""")
for L in w_item1(0): emits(L)
pt("i0")
a(f"""v_and_b32 v{vL}, 63, v0
s_lshr_b32 s{sT1}, s2, 7
s_lshl1_add_u32 s{sT1}, s{sRB}, s{sT1}
v_lshlrev_b32 v{vL16}, 4, v{vL}
s_lshl3_add_u32 s{sT1}, s{sT1}, s{sG}
s_lshl3_add_u32 s{sREC}, s{sT1}, s{sW}
s_lshl_b32 s{sT1}, s{sREC}, 10
s_mov_b32 s{sWS+2}, {256<<20}
s_mov_b32 s{sWS+3}, 0x00020000
s_lshr_b32 s{sH}, s{sW}, 2""")
TA = opt("ta", 0)
EX = opt("ex", 3)
def share(d, n, tmp):
    L = [f"s_mov_b32 s{sT3}, 0x40000000"]
    if EX & 1:
        L += lines(f"""s_add_u32 s{sT4}, s{sT2}, {(256 - 1) * n * 128}
        s_cmp_lt_u32 s2, 32
        s_cselect_b32 s{sT3}, s{sT4}, s{sT3}
        s_lshr_b32 s{sT4}, s2, 5
        s_cmp_eq_u32 s{sT4}, 1
        s_cselect_b32 s{sT2}, 0x40000000, s{sT2}""")
    if EX & 2:
        L += lines(f"""s_add_u32 s{sT4}, s{sT2}, {(16 - 1) * n * 128}
        s_and_b32 s{sT1}, s2, 0xc6
        s_cmp_eq_u32 s{sT1}, 0x40
        s_cselect_b32 s{sT3}, s{sT4}, s{sT3}
        s_cmp_eq_u32 s{sT1}, 0x42
        s_cselect_b32 s{sT2}, 0x40000000, s{sT2}""")
    return L + lines(f"""v_lshl_add_u32 v{d}, v{vL}, 7, s{sT2}
    v_lshl_add_u32 v{tmp}, v{vL}, 7, s{sT3}
    v_cmp_gt_u32 vcc, {n}, v{vL}
    v_cndmask_b32 v{d}, v{tmp}, v{d}, vcc""")
vWA_ = LT + 14
def waddr():
    L = lines(f"""s_and_b32 s{sT2}, s2, 127
    s_lshl3_add_u32 s{sT2}, s{sT2}, s{sW}
    s_mul_i32 s{sT2}, s{sT2}, {12*128}""")
    return L + share(vWA_, 12, u3)
def wtouch():
    if EX and not TYPE[0]:
        a("s_mov_b64 exec, 0xffffff")
        a.vmem(f"buffer_load_dword v{LT+27}, v{vWA_}, {srd(sWD)}, 0 offen", "tch")
        a("s_mov_b64 exec, -1")
        return
    if TA & 1 and TYPE[0]: return
    a(f"""s_and_b32 s{sT2}, s2, 127
    v_lshlrev_b32 v{t0}, 7, v{vL}
    s_lshl3_add_u32 s{sT2}, s{sT2}, s{sW}
    s_mul_i32 s{sT2}, s{sT2}, {12*128}
    s_mov_b64 exec, 0xfff
    v_add_u32 v{t0}, s{sT2}, v{t0}""")
    a.vmem(f"buffer_load_dword v{LT+27}, v{t0}, {srd(sWD)}, 0 offen", "tch")
    if TA & 1: a.vmem(f"buffer_load_dword v{LT+27}, v{t0}, {srd(sWE)}, 0 offen", "tch")
    a("s_mov_b64 exec, -1")
if opt("e3", 0):
    a(f"""s_lshl3_add_u32 s{sT2}, s2, s{sW}
    s_lshl_b32 s{sT2}, s{sT2}, 11
    s_add_u32 s{sT2}, s{sT2}, 384
    v_lshl_add_u32 v{t0}, v{vL}, 10, s{sT2}
    s_mov_b64 exec, 3""")
    a.vmem(f"buffer_load_dword v{LT+27}, v{t0}, {srd(sWD)}, 0 offen", "tch")
    a("s_mov_b64 exec, -1")
MW = opt("mw", 11)
SW = opt("sw", 0)
def stouch():
    a(f"""s_and_b32 s{sT2}, s2, 127
    s_lshl3_add_u32 s{sT2}, s{sT2}, s{sW}
    s_mul_i32 s{sT2}, s{sT2}, {12*128}""")
    for o in range(0, 12 * 128, SW): a(f"s_buffer_load_dword s80, {srd(sWD)}, s{sT2} offset:{o}")
    if opt("sw2", 0):
        a(f"""s_lshl3_add_u32 s{sT2}, s2, s{sW}
        s_mov_b32 s{sW2+2}, {1376*1024}
        s_mov_b32 s{sW2+3}, 0x00020000
        s_mov_b32 s{sWO+2}, {512*1024}
        s_mov_b32 s{sWO+3}, 0x00020000
        s_mul_i32 s{sT3}, s{sT2}, {6*128}
        s_lshl_b32 s{sT2}, s{sT2}, 8""")
        for o in range(0, 6 * 128, SW): a(f"s_buffer_load_dword s80, {srd(sW2)}, s{sT3} offset:{o}")
        for o in range(0, 2 * 128, SW): a(f"s_buffer_load_dword s80, {srd(sWO)}, s{sT2} offset:{o}")
if MW == 1: wtouch()
a.vmem(f"buffer_load_dwordx4 {v(vXR,4)}, v{vL16}, {srd(sX)}, s{sT1} offen", "xr")
a.vmem(f"buffer_load_dword v{vEP}, off, {srd(sWS)}, 0 sc1", "xr")
if MW == 2: wtouch()
if SW: stouch()
if PRIO: a("s_setprio 0")
B3 = lines(f"""s_load_dwordx2 {sp(sPH)}, s[0:1], 16
s_load_dwordx2 {sp(sB1)}, s[0:1], 48
s_load_dwordx2 {sp(sW2)}, s[0:1], 56
s_load_dwordx2 {sp(sWO)}, s[0:1], 24
s_load_dwordx2 {sp(sOUT)}, s[0:1], 64
s_and_b32 s{sSIG}, s{sW}, 3
v_and_b32 v{u0}, 31, v{vL}
s_xor_b32 s{sT3}, s{sSIG}, s{sH}
v_lshrrev_b32 v{u1}, 5, v{vL}
v_bfe_u32 v{u2}, v{vL}, 1, 3
s_lshl_b32 s{sT2}, s{sSIG}, 7
v_xor_b32 v{u2}, v{u1}, v{u2}
s_add_u32 s{sT2}, s{sT2}, s{sT3}
v_lshlrev_b32 v{u2}, 4, v{u2}
s_lshl_b32 s{sT2}, s{sT2}, 5
v_lshl_add_u32 v{u2}, v{u0}, 7, v{u2}
v_bfe_u32 v{t0}, v{vL}, 2, 2
v_xor_b32 v{vXA}, s{sT2}, v{u2}
v_bfe_u32 v{t1}, v{vL}, 4, 1
v_xor_b32 v{vXA+1}, 32, v{vXA}
v_and_b32 v{t2}, 3, v{vL}
v_xor_b32 v{vXA+2}, 64, v{vXA}
v_lshlrev_b32 v{t2}, 3, v{t2}
v_xor_b32 v{vXA+3}, 96, v{vXA}
v_lshl_add_u32 v{t2}, v{t1}, 5, v{t2}
v_lshrrev_b32 v{u2}, 1, v{t0}
s_lshl_b32 s{sT2}, s{sT3}, 6
v_lshl_add_u32 v{u2}, v{u2}, 6, v{t2}
s_add_u32 s{sT2}, s{sT2}, s{sH}
v_lshl_add_u32 v{t3}, v{t0}, 7, v{u2}
s_lshl_b32 s{sT2}, s{sT2}, 6
v_lshl_add_u32 v{u2}, v{u1}, 11, v{t3}
s_or_b32 s{sT2}, s{sT2}, 0x10000
v_xor_b32 v{u3}, v{t0}, v{t1}
v_xor_b32 v{vPM}, s{sT2}, v{u2}
v_and_b32 v{u3}, 1, v{u3}
v_xor_b32 v{vPM+1}, 4096, v{vPM}
v_cmp_eq_u32 vcc, 0, v{u3}
v_xor_b32 v{vPM+2}, 8192, v{vPM}
v_mov_b32 v{u3}, 0x3f803f80
v_xor_b32 v{vPM+3}, 12288, v{vPM}""")
if opt("sw2", 0): B3 = B3[:2] + B3[4:]
B3 += [f"v_cndmask_b32 v{vSEL+i}, 0, v{u3}, vcc" for i in range(4)]
PRO = opt("pro", "x1").split(",")
PRE2 = opt("pre2", 8)
B3N = opt("b3n", 0)
if PRE2 & 8: emits(B3[:B3N])
else: emits(merge(B3, [grp(L) for n in PRO for L in item(n)]))


def mish(acc, pk, tmp):
    L = []
    for g in (0, 8):
        r = [acc + g + i for i in range(8)]; u = [tmp + i for i in range(8)]
        if pk:
            L += [f"v_pk_fma_f32 {P2(u[i])}, {P2(r[i])}, {P2(vC1)}, {sp(sHALF)} op_sel_hi:[1,0,1]" for i in range(0, 8, 2)]
            L += [f"v_exp_f32 v{u[i]}, v{u[i]}" for i in range(8)]
            L += [f"v_pk_add_f32 {P2(u[i])}, {P2(u[i])}, {sp(sISQ)}" for i in range(0, 8, 2)]
            L += [f"v_pk_fma_f32 {P2(u[i])}, {P2(u[i])}, {P2(u[i])}, {sp(sHALF)} neg_lo:[1,0,0] neg_hi:[1,0,0]" for i in range(0, 8, 2)]
            L += [f"v_rcp_f32 v{u[i]}, v{u[i]}" for i in range(8)]
            L += [f"v_pk_fma_f32 {P2(r[i])}, {P2(r[i])}, {P2(u[i])}, {P2(r[i])}" for i in range(0, 8, 2)]
        else:
            L += [f"v_fma_f32 v{u[i]}, v{r[i]}, v{vC1}, -0.5" for i in range(8)]
            L += [f"v_exp_f32 v{u[i]}, v{u[i]}" for i in range(8)]
            L += [f"v_add_f32 v{u[i]}, s{sISQ}, v{u[i]}" for i in range(8)]
            L += [f"v_fma_f32 v{u[i]}, -v{u[i]}, v{u[i]}, -0.5" for i in range(8)]
            L += [f"v_rcp_f32 v{u[i]}, v{u[i]}" for i in range(8)]
            L += [f"v_fmac_f32 v{r[i]}, v{r[i]}, v{u[i]}" for i in range(8)]
        L += [f"v_cvt_pk_bf16_f32 v{acc+g//2+i}, v{r[2*i]}, v{r[2*i+1]}" for i in range(4)]
        L.append(("half", g // 8))
    return L
ND = opt("nd", 1)
def vST(): return vBA + 1 if ND and not TYPE[0] else vL16
def frag_store(reg, sb, half, tag="st"):
    return vm(f"buffer_store_dwordx4 {v(reg,4)}, v{vST()}, {srd(sWS)}, s{sb} offen offset:{half*2048} sc1", tag)
def mish_store(acc, pk, sb, tmp, tag="st"):
    return [frag_store(acc + 4 * x[1], sb, x[1], tag) if isinstance(x, tuple) else x for x in mish(acc, pk, tmp)]
def softmax(P, out, pk, m):
    L = [f"v_max3_f32 v{m}, v{P}, v{P+1}, v{P+2}", f"v_max3_f32 v{m+1}, v{P+3}, v{P+4}, v{P+5}"]
    for i in range(6, 14, 4):
        L += [f"v_max3_f32 v{m}, v{m}, v{P+i}, v{P+i+1}", f"v_max3_f32 v{m+1}, v{m+1}, v{P+i+2}, v{P+i+3}"]
    L += [f"v_max3_f32 v{m}, v{m}, v{P+14}, v{P+15}", f"v_max_f32 v{m}, v{m}, v{m+1}", f"v_mul_f32 v{m}, v{m}, v{vC1}"]
    if pk:
        L += [f"v_pk_fma_f32 {P2(P+i)}, {P2(P+i)}, {P2(vC1)}, {P2(m)} op_sel_hi:[1,0,0] neg_lo:[0,0,1] neg_hi:[0,0,1]" for i in range(0, 16, 2)]
        L += [f"v_exp_f32 v{P+i}, v{P+i}" for i in range(16)]
        L += [f"v_pk_add_f32 {P2(m)}, {P2(P)}, {P2(P+2)}", f"v_pk_add_f32 {P2(m+2)}, {P2(P+4)}, {P2(P+6)}"]
        L += [f"v_pk_add_f32 {P2(m+(i&2))}, {P2(m+(i&2))}, {P2(P+i)}" for i in range(8, 16, 2)]
        L += [f"v_pk_add_f32 {P2(m)}, {P2(m)}, {P2(m+2)}", f"v_add_f32 v{m}, v{m}, v{m+1}", f"v_rcp_f32 v{m}, v{m}"]
        L += [f"v_pk_mul_f32 {P2(P+i)}, {P2(P+i)}, {P2(m)} op_sel_hi:[1,0]" for i in range(0, 16, 2)]
    else:
        L += [f"v_fma_f32 v{P+i}, v{P+i}, v{vC1}, -v{m}" for i in range(16)]
        L += [f"v_exp_f32 v{P+i}, v{P+i}" for i in range(16)]
        L += [f"v_add_f32 v{m+i}, v{P+2*i}, v{P+2*i+1}" for i in range(4)]
        L += [f"v_add_f32 v{m+(i&3)}, v{m+(i&3)}, v{P+i}" for i in range(8, 16)]
        L += [f"v_add_f32 v{m}, v{m}, v{m+1}", f"v_add_f32 v{m+2}, v{m+2}, v{m+3}", f"v_add_f32 v{m}, v{m}, v{m+2}", f"v_rcp_f32 v{m}, v{m}"]
        L += [f"v_mul_f32 v{P+i}, v{P+i}, v{m}" for i in range(16)]
    L += [f"v_cvt_pk_bf16_f32 v{out+i}, v{P+2*i}, v{P+2*i+1}" for i in range(8)]
    return L

def one_lane(x): return grp(["s_mov_b64 exec, 1", x, "s_mov_b64 exec, -1"])
def rec_store(): return one_lane(vm(f"buffer_store_dwordx4 {v(vRC,4)}, off, {srd(sWS)}, s{sREC} sc1", "rec"))
def rec1_load(tag="rec1"): return vm(f"buffer_load_dwordx4 {v(vBC,4)}, v{vRA1}, {srd(sWS)}, 0 offen sc1", tag)
FOFF = [12, 0, 128, 4]
OSENT = 1
def pmask(k): return sp((sMASK, sFM)[k])
def poll(k, tag=None):
    return grp([f"s_mov_b64 exec, {pmask(k)}",
                vm(f"buffer_load_dword v{vFV}, v{vFL}, {srd(sWS)}, {f's{sFB}' if k else 0} offen offset:{FOFF[k]} sc1", tag or f"fl{k}"), "s_mov_b64 exec, -1"])
def poll_check(k):
    def p():
        a.wait(vm=f"fl{k}")
        checked([f"v_cmp_ne_u32 vcc, s{sTAG}, v{vFV}", f"s_and_b64 vcc, vcc, {pmask(k)}"], poll(k, "x"), "L_fl")
        pt(f"fl{k}")
    return fn(p, 3)
vTG = 63
def flag_store(k, tag):
    return [f"v_mov_b32 v{vTG}, s{sTAG}", wt(vm=tag), one_lane(vm(f"buffer_store_dword v{vTG}, off, {srd(sWS)}, s{sFL} offset:{FOFF[k]} sc1", "fs")), ptf(f"fs{k}")]
def clr2(sb, off, T):
    if opt("noclr", 0): return "s_nop 0"
    assert T > 27
    return vm(f"buffer_store_dwordx4 {v(vA2B if T > 30 else vT,4)}, v{vST()}, {srd(sWS)}, s{sb} offen offset:{off} sc1", "clr")

def stats():
    e = vXR + 4; r0, r1 = vXR + 12, vXR + 13
    def allsum(r):
        L = [f"v_add_f32_dpp v{r}, v{r}, v{r} row_ror:{s} row_mask:0xf bank_mask:0xf" for s in (8, 4, 2, 1)]
        L += [f"v_mov_b32 v{r1}, v{r}", f"v_permlane16_swap_b32 v{r}, v{r1}", f"v_add_f32 v{r}, v{r}, v{r1}",
              f"v_mov_b32 v{r1}, v{r}", f"v_permlane32_swap_b32 v{r}, v{r1}", f"v_add_f32 v{r}, v{r}, v{r1}"]
        return L
    S = [wt(vm="xr"), f"v_add_u32 v{vRC+3}, 1, v{vEP}"]
    for j in range(4):
        S += [f"v_lshlrev_b32 v{e+2*j}, 16, v{vXR+j}", f"v_and_b32 v{e+2*j+1}, 0xffff0000, v{vXR+j}"]
    S += [f"v_readfirstlane_b32 s{sTAG}, v{vRC+3}"]
    S += [f"v_add_f32 v{vXR+j}, v{e+2*j}, v{e+2*j+1}" for j in range(4)]
    S += [f"v_add_f32 v{vXR}, v{vXR}, v{vXR+1}", f"v_add_f32 v{vXR+2}, v{vXR+2}, v{vXR+3}", f"v_add_f32 v{r0}, v{vXR}, v{vXR+2}"]
    S += allsum(r0)
    S += [f"v_mul_f32 v{vRC}, 0xbb000000, v{r0}"]
    S += [f"v_add_f32 v{e+j}, v{e+j}, v{vRC}" for j in range(8)]
    S += [f"v_mul_f32 v{vXR+j}, v{e+j}, v{e+j}" for j in range(4)]
    S += [f"v_fmac_f32 v{vXR+j}, v{e+4+j}, v{e+4+j}" for j in range(4)]
    S += [f"v_add_f32 v{vXR}, v{vXR}, v{vXR+1}", f"v_add_f32 v{vXR+2}, v{vXR+2}, v{vXR+3}", f"v_add_f32 v{r0}, v{vXR}, v{vXR+2}"]
    S += allsum(r0)
    S += [f"v_mov_b32 v{r1}, 0x3727c5ac", f"v_fmac_f32 v{r1}, 0x3b000000, v{r0}", f"v_rsq_f32 v{vRC+2}, v{r1}",
          f"s_lshl4_add_u32 s{sREC}, s{sREC}, {REC1}" if not PRE2 & 10 else "s_nop 0", f"v_mul_f32 v{vRC+1}, v{r1}, v{vRC+2}"]
    return S

def consts0(ty):
    if ty: return []
    def clr(off): return vm(f"buffer_store_dwordx4 {v(vCL,4)}, v{vL16}, {srd(sWS)}, s{sC0} offen offset:{off} sc1", "clr")
    L = lines(f"""s_lshl2_add_u32 s{sT2}, s{sG}, s{sSIG}
    v_mov_b32 v{vCL}, -1
    s_lshl4_add_u32 s{sT2}, s{sT2}, s{sRB}
    s_mul_i32 s{sT2}, s{sT2}, 1152
    s_add_u32 s{sC0}, s{sT2}, {KVD}""")
    if not opt("noclr", 0): L += [clr(0), "s_mov_b64 exec, 15", clr(1024), "s_mov_b64 exec, -1"]
    return [fn(lambda: skip_if(f"s_cmp_eq_u32 s{sH}, 0", lambda: emits(L), "L_c0"))]
def bases(ty):
    L = lines(f"""s_lshr_b32 s{sT4}, s{sSIG}, 1
    s_lshl1_add_u32 s{sT4}, s{sRB}, s{sT4}
    s_mul_i32 s{sKB}, s{sT4}, 236
    s_and_b32 s{sT4}, s{sSIG}, 1
    s_add_u32 s{sKB}, s{sKB}, s{sT4}
    s_lshl2_add_u32 s{sT2}, s{sTILE}, s{sKB}
    s_lshl_b32 s{sT2}, s{sT2}, 10
    s_add_u32 s{sSB0}, s{sT2}, {ACT}
    s_mov_b32 s{sFB}, {FLG - 8 * REC1}
    s_lshl3_add_u32 s{sFL}, s{sREC}, s{sFB}""")
    if ty == 0:
        if ND:
            return L + lines(f"""s_lshr_b32 s{sT2}, 0xea, s{sG}
            s_and_b32 s{sT3}, s{sT2}, s{sH}
            s_lshl_b32 s{sT3}, s{sT3}, 28
            v_add_u32 v{vBA+1}, s{sT3}, v{vL16}
            s_and_b32 s{sT2}, s{sT2}, 1
            s_lshl_b32 s{sT2}, s{sT2}, 6
            v_and_b32 v{u3}, s{sT2}, v{vSW_}
            v_lshl_add_u32 v{vWC}, v{u3}, 22, v{vWC}""")
        return L + lines(f"""s_lshr_b32 s{sT2}, 0xea, s{sG}
        s_and_b32 s{sT2}, s{sT2}, s{sH}
        s_mul_i32 s{sT2}, s{sT2}, {DUM}
        s_add_u32 s{sSB0}, s{sSB0}, s{sT2}""")
    return L + lines(f"""s_add_u32 s{sC1}, s{sSB0}, 8192
    s_lshl1_add_u32 s{sT2}, s{sG}, s{sH}
    s_lshl2_add_u32 s{sT2}, s{sT2}, s{sKB}
    s_lshl_b32 s{sT2}, s{sT2}, 10
    s_add_u32 s{sC0}, s{sT2}, {ACT + 172*1024}""")
def consts1(ty):
    L = [f"s_add_u32 s{sSTART}, s{sSTART}, 4"] * (1 - ty) + lines(f"""s_add_u32 s{sTILE}, s{sSTART}, s{sH}
    s_and_b32 s{sT2}, s2, 7
    s_bfe_u32 s{sT3}, s2, 0x20003
    s_lshl2_add_u32 s{sRB2}, s{sT2}, s{sT3}
    s_lshr_b32 s{sCB}, s2, 5
    s_xor_b32 s{sCB}, s{sCB}, {opt("cbx", 2)}
    s_mov_b32 s{sW2+2}, {1376*1024}
    s_mov_b32 s{sW2+3}, 0x00020000
    s_mov_b32 s{sWO+2}, {512*1024}
    s_mov_b32 s{sWO+3}, 0x00020000""")
    if opt("mt", 15):
        n = 16 if TA & 2 else 8
        L += lines(f"""s_lshl3_add_u32 s{sT2}, s2, s{sW}
        s_lshl_b32 s{sT2}, s{sT2}, {11 if TA & 2 else 10}
        v_lshl_add_u32 v{vTCH}, v{vL}, 7, s{sT2}""")
        if EX and not ty:
            L = L[:-1] + share(vTCH, n, vTCH + 1) + waddr() + [f"s_bfe_u32 s{sT3}, s2, 0x20003"]
            n *= 2
        if opt("t3", 0):
            L += lines(f"""s_lshr_b32 s{sT2}, s2, 3
            s_lshl3_add_u32 s{sT2}, s{sT2}, s{sW}
            s_sub_u32 s{sT2}, s{sT2}, 1
            s_mul_i32 s{sT2}, s{sT2}, {n * 1024}
            s_add_u32 s{sT2}, s{sT2}, 384
            v_lshl_add_u32 v{vTCH+1}, v{vL}, 10, s{sT2}
            v_cmp_gt_u32 vcc, {n}, v{vL}
            v_cndmask_b32 v{vTCH}, v{vTCH+1}, v{vTCH}, vcc""")
            n *= 2
        L += [f"v_add_u32 v{vTCH+1}, {(1 << 32) - 1376 * 1024:#x}, v{vTCH}", fn(lambda: None) if TA & 2 and ty else touch(0, n)]
    if TOUCH:
        L += lines(f"""s_lshl3_add_u32 s{sT2}, s{sT3}, s{sW}
        s_lshl_b32 s{sT2}, s{sT2}, 9
        s_add_u32 s{sT2}, s{sT2}, s{sCB}
        s_lshl_b32 s{sT2}, s{sT2}, 7
        v_lshl_add_u32 v{vTCH}, v{vL}, 10, s{sT2}
        v_add_u32 v{vTCH+1}, {(1 << 32) - 24 * 65536:#x}, v{vTCH}""")
    L += [f"s_lshl_b32 s{sT3}, s{sT3}, 1"] * (ROT2 == 7) + lines(f"""s_xor_b32 s{sT3}, s{sT3}, s{sCB}
    s_and_b32 s{sT3}, s{sT3}, {ROT2}
    s_lshl_b32 s{sRA}, s{sT3}, 11
    s_lshl_b32 s{sRW}, s{sT3}, 14
    s_lshr_b32 s{sT3}, s{sT3}, {(ROT2 == 7) * 1}
    s_lshl_b32 s{sRA2}, s{sT3}, 11
    s_lshl_b32 s{sRW2}, s{sT3}, 14
    s_lshl1_add_u32 s{sGAM}, s{sSIG}, s{sH}
    s_mul_i32 s{sT4}, s{sGAM}, 11
    s_add_u32 s{sT4}, s{sT4}, 1
    s_lshr_b32 s{sT4}, s{sT4}, 1
    s_min_u32 s{sT4}, s{sT4}, 38
    v_and_b32 v{u3}, 7, v{vRW_}
    v_lshl_add_u32 v{u3}, v{u3}, 10, v{vSW_}
    s_lshl_b32 s{sT2}, s{sT4}, 8
    s_add_u32 s{sT2}, s{sT2}, s{sCB}
    s_lshl_b32 s{sT2}, s{sT2}, 7
    v_add_u32 v{vW2O}, s{sT2}, v{u3}
    v_add_u32 v{vW2O+1}, {8192-1024}, v{vW2O}
    s_lshl_b32 s{sT2}, s{sGAM}, 9
    s_add_u32 s{sT2}, s{sT2}, s{sCB}
    s_lshl_b32 s{sT2}, s{sT2}, 7
    v_add_u32 v{vWOO}, s{sT2}, v{u3}
    v_add_u32 v{vWOO+1}, {8192-1024}, v{vWOO}
    s_mul_i32 s{sT2}, s{sRB2}, 59
    s_add_u32 s{sT2}, s{sT2}, s{sT4}
    s_lshl_b32 s{sT2}, s{sT2}, 12
    s_add_u32 s{sT2}, s{sT2}, {ACT}
    v_add_u32 v{vACT}, s{sT2}, v{vL16}
    s_lshl1_add_u32 s{sT3}, s{sGAM}, 43
    s_sub_u32 s{sT3}, s{sT3}, s{sT4}
    s_lshl_b32 s{sAO}, s{sT3}, 12
    s_mov_b32 s{sWE+2}, {512*(2752, 3072)[ty]}
    s_mov_b32 s{sWE+3}, 0x00020000
    s_lshl_b32 s{sT2}, s{(sSTART, sG)[ty]}, {(6, 7)[ty]}
    v_mul_u32_u24 v{vWC}, {(2752, 3072)[ty]}, v{vRW_}
    v_add3_u32 v{vWC}, v{vWC}, v{vSW_}, s{sT2}
    v_lshlrev_b32 v{vBA}, 1, v{u0}
    s_movk_i32 s{sB1+2}, 2752
    s_mov_b32 s{sB1+3}, 0x00020000
    s_lshl_b32 s{sT4}, s{sTILE}, 6""")
    L += [vm(f"buffer_load_ushort v{vBA+i}, v{vBA}, {srd(sB1)}, s{sT4} offen offset:{128*i}", "misc") for i in reversed(range(1 + ty))]
    L += lines(f"""s_mov_b32 s{sPH+2}, 16384
    s_mov_b32 s{sPH+3}, 0x00020000
    s_and_b32 s{sT2}, s{sW}, 1
    s_lshl_b32 s{sT2}, s{sT2}, 10
    s_lshl_b32 s{sT3}, s{sG}, 11
    s_add_u32 s{sT3}, s{sT3}, s{sT2}""")
    return L
TOUCH = [x for x in opt("touch", "").split(",") if x]
vTCH = LT + 28
def touch(l0, n):
    m = ((1 << n) - 1) << l0
    return grp([f"s_mov_b32 exec_lo, {m & 0xffffffff:#x}", f"s_mov_b32 exec_hi, {m >> 32:#x}",
                vm(f"buffer_load_dword v{vFV}, v{vTCH}, {srd(sW2)}, 0 offen", "tch"),
                vm(f"buffer_load_dword v{vFV}, v{vTCH+1}, {srd(sWO)}, 0 offen", "tch"), "s_mov_b64 exec, -1"])
def wphi_dma():
    return grp([f"s_add_u32 m0, s{sT2}, {WPHI}", f"s_mov_b32 s{sCNT}, {SPIN}",
                vm(f"buffer_load_dwordx4 v{vL16}, {srd(sPH)}, s{sT3} offen lds", "misc")])

def consts2(ty):
    L = lines(f"""s_lshl2_add_u32 s{sT2}, s{sRB}, s{sSIG}
    s_lshl_b32 s{sT2}, s{sT2}, 9
    s_add_u32 s{sT2}, s{sT2}, {REC1}
    v_lshl_add_u32 v{vRA1}, v{u0}, 4, s{sT2}
    s_lshl_b32 s{sT2}, s{sH}, 9
    s_add_u32 s{sT2}, s{sT2}, {CW}
    v_lshl_add_u32 v{vCAR}, v{u0}, 4, s{sT2}
    s_lshl_b32 s{sT2}, s{sSIG}, 2
    v_add_u32 v{vCAW}, s{sT2}, v{vCAR}
    v_lshl_add_u32 v{t3}, v{u1}, 9, v{t3}
    v_add_u32 v{vA2B}, s{sM0R}, v{t3}
    s_mov_b32 s{sHALF}, -0.5
    s_mov_b32 s{sHALF+1}, -0.5
    s_mov_b32 s{sISQ}, 0x3f3504f3
    s_mov_b32 s{sISQ+1}, 0x3f3504f3
    s_mov_b32 s{sLOm}, -1
    s_mov_b32 s{sLOm+1}, 0
    s_mov_b32 s{sMASK}, 0xffff0000
    s_mov_b32 s{sMASK+1}, 0
    v_lshl_add_u32 v{u3}, v{u1}, 2, v{t0}
    v_lshlrev_b32 v{u3}, 5, v{u3}
    v_lshl_add_u32 v{u3}, v{t1}, 4, v{u3}
    v_bfe_u32 v{t3}, v{vL}, 1, 1
    v_lshl_add_u32 v{u3}, v{t3}, 3, v{u3}
    s_lshl_b32 s{sT2}, s{sH}, 10
    s_add_u32 s{sT2}, s{sT2}, {WPHI}
    v_add_u32 v{vPHA}, s{sT2}, v{u3}
    v_bfe_i32 v{vSGN}, v{vL}, 2, 1
    v_and_b32 v{vSGN}, 0x80008000, v{vSGN}""")
    L += [f"v_and_b32 v{vPL+i}, 0xffff, v{vPM+i}" for i in range(4)]
    L += lines(f"""s_lshr_b32 s{sT2}, s{sRB2}, 1
    s_lshl4_add_u32 s{sT2}, s{sT2}, s{sGAM}
    s_lshl_b32 s{sT2}, s{sT2}, 7
    s_add_u32 s{sT2}, s{sT2}, {REC1}
    v_and_b32 v{u3}, 8, v{vL}
    v_mul_u32_u24 v{u3}, 0x70, v{u3}
    v_and_b32 v{u2}, 15, v{vL}
    v_lshl_add_u32 v{u3}, v{u2}, 4, v{u3}
    v_add_u32 v{vFL}, s{sT2}, v{u3}""")
    if ty == 0:
        L += lines(f"""s_lshl_b32 s{sT4}, s{sSIG}, 5
        v_add_u32 v{u0}, s{sT4}, v{u0}
        v_bfe_u32 v{u2}, v{vL}, 1, 2
        v_lshlrev_b32 v{u3}, 1, v{u1}
        v_xor_b32 v{u2}, v{u2}, v{u3}
        s_lshl_b32 s{sT2}, s{sH}, 14
        s_add_u32 s{sT2}, s{sT2}, {PHI}
        v_lshl_add_u32 v{u2}, v{u2}, 4, s{sT2}
        v_lshl_add_u32 v{vPW0}, v{u0}, 6, v{u2}
        v_xor_b32 v{vPW1}, 16, v{vPW0}
        v_mul_u32_u24 v{u0}, 144, v{u0}
        v_add_u32 v{u0}, {VIMG}, v{u0}
        v_mov_b32 v{vTCH+2}, 0x3f803f80
        v_mov_b32 v{vTCH+3}, 0x3f803f80""") + [dsw(f"ds_write_b64 v{u0}, {v(vTCH+2,2)} offset:128")] + lines(f"""
        s_lshl_b32 s{sT2}, s{sH}, 6
        v_lshl_add_u32 v{vVW}, v{u1}, 4, s{sT2}
        v_add_u32 v{vVW}, v{vVW}, v{u0}
        v_lshl_add_u32 v{u1}, v{u1}, 3, v{t0}
        v_and_b32 v{u2}, 1, v{vL}
        v_lshl_add_u32 v{u2}, v{u2}, 1, v{t1}
        v_lshrrev_b32 v{u3}, 1, v{t0}
        v_xor_b32 v{u2}, v{u2}, v{u3}
        v_lshlrev_b32 v{u2}, 4, v{u2}
        v_lshl_add_u32 v{u2}, v{u1}, 6, v{u2}
        v_lshl_add_u32 v{u2}, v{t3}, 3, v{u2}
        s_lshl_b32 s{sT2}, s{sSIG}, 13
        s_add_u32 s{sT2}, s{sT2}, {PHI}
        v_add_u32 v{vKA0}, s{sT2}, v{u2}
        v_xor_b32 v{vKA1}, 32, v{vKA0}
        v_mul_u32_u24 v{u1}, 144, v{u1}
        v_add_u32 v{u2}, s{sT4}, v{t2}
        v_cmp_eq_u32 vcc, 1, v{t1}
        v_mov_b32 v{u3}, 128
        v_add_u32 v{u1}, {VIMG}, v{u1}
        v_cndmask_b32 v{u2}, v{u2}, v{u3}, vcc
        v_add_u32 v{vKB}, v{u1}, v{u2}""")
    else:
        L += lines(f"""s_lshl2_add_u32 s{sT2}, s{sG}, s{sSIG}
        s_mul_i32 s{sT2}, s{sT2}, {16*1152}
        s_add_u32 s{sT2}, s{sT2}, {KVD}
        v_lshrrev_b32 v{u3}, 4, v{vL}
        v_mul_u32_u24 v{u3}, 1152, v{u3}
        v_add_u32 v{u3}, s{sT2}, v{u3}
        s_lshl_b32 s{sT3}, s{sH}, 9
        v_lshlrev_b32 v{t2}, 4, v{u2}
        v_add3_u32 v{vGA}, v{u3}, v{t2}, s{sT3}
        v_bfe_u32 v{vGZ}, v{vL}, 1, 2
        v_mul_u32_u24 v{vGZ}, {4*1152}, v{vGZ}
        v_and_b32 v{t3}, 1, v{vL}
        v_lshl_add_u32 v{u3}, v{t3}, 4, v{u3}
        s_lshl_b32 s{sT3}, s{sH}, 5
        v_add3_u32 v{vGZ}, v{vGZ}, v{u3}, s{sT3}
        s_lshl3_add_u32 s{sT2}, s{sG}, s{sSIG}
        s_lshl4_add_u32 s{sT2}, s{sT2}, {REC1}
        v_lshl_add_u32 v{u3}, v{u2}, 11, s{sT2}
        v_cmp_eq_u32 vcc, 1, v{t1}
        s_mul_i32 s{sT2}, s{sGAM}, 544
        s_add_u32 s{sT2}, s{sT2}, {KVL}
        v_cndmask_b32 v{vFL}, v{vFL}, v{u3}, vcc
        v_lshl_add_u32 v{u3}, v{t1}, 3, s{sT2}
        v_mul_u32_u24 v{vKW}, 272, v{u1}
        v_add3_u32 v{vKW}, v{vKW}, v{u3}, v{t2}
        v_mul_u32_u24 v{vZW}, 272, v{t3}
        v_add_u32 v{vZW}, v{vZW}, v{u3}
        v_and_b32 v{u3}, 3, v{vL}
        v_bfe_u32 v{t3}, v{vL}, 2, 1
        v_lshl_add_u32 v{u3}, v{t3}, 3, v{u3}
        v_bfe_u32 v{t3}, v{vL}, 3, 1
        v_lshl_add_u32 v{u3}, v{t3}, 2, v{u3}
        v_cndmask_b32 v{u3}, v{u3}, 16, vcc
        v_lshlrev_b32 v{u3}, 4, v{u3}
        v_mul_u32_u24 v{u1}, 544, v{u1}
        s_mul_i32 s{sT3}, s{sH}, 2176
        s_add_u32 s{sT3}, s{sT3}, {KVL}
        v_add3_u32 v{vKR}, v{u3}, v{u1}, s{sT3}""")
    return L
def consts3(ty):
    return lines(f"""s_mov_b32 s{sOUT+2}, {2048*1024}
    s_mov_b32 s{sOUT+3}, 0x00020000
    s_and_b32 s{sT2}, s{sRB2}, 1
    s_lshl_b32 s{sT2}, s{sT2}, 1
    s_lshl_b32 s{sFM}, 0x3333, s{sT2}
    s_mov_b32 s{sFM+1}, 0
    s_lshl1_add_u32 s{sT2}, s{sRB2}, s{sH}
    s_lshl_b32 s{sR2}, s{sT2}, 9
    s_add_u32 s{sR2}, s{sR2}, {REC1}
    s_lshl_b32 s{sT2}, s{sT2}, 10
    s_lshl2_add_u32 s{sT3}, s{sCB}, s{sSIG}
    s_add_u32 s{sT2}, s{sT2}, s{sT3}
    s_lshl_b32 s{sOB}, s{sT2}, 5""")

vACC, vWR = 64, 128
vOO, vRSA, vEC, vRS2, vRES, vRW, vRR, vC0, vS0 = 8, 9, 10, 14, 16, 20, 21, 22, 24
vMT = 16
def areg(j): return [192, 200, 208, 248][j % 12] if j % 12 < 4 else (184 + 8 * (j % 8) if j < 9 else 40 + 8 * (j - 9))
def wreg(j): return vWR + 8 * (j % 7)
WS_ = {}
def w_item(j, s):
    WS_[j] = s
    so = (f"s_mov_b32 s{sT0}, {j << 14}" if 8 <= j < 12 else f"s_xor_b32 s{sT0}, s{sRW if j < 8 else sRW2}, {(j % 12) << 14}")
    d, ad = (srd(sW2), vW2O) if j < 12 else (srd(sWO), vWOO)
    return grp([f"s_add_u32 m0, s{sM0R}, {s * SZ}", so,
                vm(f"buffer_load_dwordx4 v{ad}, {d}, s{sT0} offen lds", f"w{j}"),
                vm(f"buffer_load_dwordx4 v{ad+1}, {d}, s{sT0} offen offset:1024 lds", f"w{j}")])
def w_read(j):
    s = WS_[j]
    ad = [vA2L, vA2M, vA2T][s >> 2]; off = (s & 3) * SZ
    L = [wt(vm=f"w{j}")]
    for b in range(2):
        L.append(dsw(f"ds_read_b64_tr_b16 {v(wreg(j)+4*b,2)}, v{ad+b} offset:{off}", f"r{j}"))
        L.append(dsw(f"ds_read_b64_tr_b16 {v(wreg(j)+4*b+2,2)}, v{ad+b} offset:{off+1024}", f"r{j}"))
    return L
vBW, vBR = 38, 56
def w_raw(j):
    WS_[j] = -1
    return [grp([f"s_xor_b32 s{sT0}, s{sRW}, {j << 14}", vm(f"buffer_load_dwordx4 {v(wreg(j)+4,4)}, v{vW2O}, {srd(sW2)}, s{sT0} offen", f"w{j}")]),
            grp([f"s_xor_b32 s{sT0}, s{sRW}, {j << 14}", vm(f"buffer_load_dwordx4 {v(wreg(j)+8,4)}, v{vW2O+1}, {srd(sW2)}, s{sT0} offen offset:1024", f"w{j}")])]
def bnc_addrs():
    return lines(f"""s_lshr_b32 s{sT2}, s{sM0R}, 1
    s_sub_u32 s{sT3}, {BNC}, s{sT2}
    s_add_u32 s{sT2}, s{sT2}, {BNC}
    v_add_u32 v{vBW}, s{sT2}, v{vL16}
    v_add_u32 v{vBR}, s{sT3}, v{vA2L}
    v_add_u32 v{vBR+1}, s{sT3}, v{vA2L+1}""")
def w_conv(j):
    L = [wt(vm=f"w{j}")]
    for hf in range(2):
        L.append(dsw(f"ds_write_b128 v{vBW}, {v(wreg(j)+4+4*hf,4)}", f"r{j}"))
        L += [dsw(f"ds_read_b64_tr_b16 {v(wreg(j)+4*b+2*hf,2)}, v{vBR+b}", f"r{j}") for b in range(2)]
    return L
def w_refill(j, q):
    return [wt(lg=f"r{q}"), w_item(j, WS_[q])]
def p2_addrs():
    return lines(f"""v_mov_b32 v{vA2L}, v{vA2B}
    v_xor_b32 v{vA2L+1}, 64, v{vA2B}
    v_add_u32 v{vA2M}, {4*SZ}, v{vA2L}
    v_add_u32 v{vA2M+1}, {4*SZ}, v{vA2L+1}
    v_add_u32 v{vA2T}, {8*SZ}, v{vA2L}
    v_add_u32 v{vA2T+1}, {8*SZ}, v{vA2L+1}""")
def a_load(j, tag=None, st=(0, 1)):
    def p():
        if j < 8: a(f"s_xor_b32 s{sT1}, s{sRA}, {j << 11}")
        elif j < 12: a(f"s_movk_i32 s{sT1}, {j << 11}")
        else: a(f"s_xor_b32 s{sT1}, s{sRA2}, {(j - 12) << 11}\ns_add_u32 s{sT1}, s{sAO}, s{sT1}")
        for s in st:
            if not opt("noact", 0): a.vmem(f"buffer_load_dwordx4 {v(areg(j)+4*s,4)}, v{vACT}, {srd(sWS)}, s{sT1} offen offset:{1024*s} {'sc1' if j >= opt('asc', 0) else opt('asf', '')}", tag or f"a{j}")
    return fn(p, 3 * len(st) + 1)
def p6(body): skip_if(f"s_cmp_lt_u32 s{sW}, 3", body, "L_p6")
def p6f(L): return fn(lambda: p6(lambda: emits(L)), 6)
def selectors(tmp):
    L = lines(f"""v_and_b32 v{tmp}, 1, v{vL}
    v_mov_b32 v{tmp+1}, 0x3f80
    v_lshlrev_b32 v{tmp}, 4, v{tmp}
    v_lshlrev_b32 v{tmp+1}, v{tmp}, v{tmp+1}
    v_bfe_u32 v{tmp}, v{vL}, 1, 3""")
    for r in range(0, 8, 2):
        L += [grp([f"v_cmp_eq_u32 vcc, {r}, v{tmp}", f"v_cmp_eq_u32 {sp(sCM)}, {r+1}, v{tmp}",
                   f"v_cndmask_b32 v{vS0+r}, 0, v{tmp+1}, vcc", f"v_cndmask_b32 v{vS0+r+1}, 0, v{tmp+1}, {sp(sCM)}"])]
    return L
def tail_addrs():
    x = vC0
    return lines(f"""v_and_b32 v{x}, 15, v{vL}
    v_lshrrev_b32 v{x+1}, 5, v{vL}
    v_lshl_add_u32 v{x+1}, v{x+1}, 4, v{x}
    v_lshlrev_b32 v{vRSA}, 4, v{x+1}
    v_and_b32 v{vOO}, 16, v{vL}
    v_lshl_add_u32 v{vOO}, v{x+1}, 10, v{vOO}
    v_add_u32 v{vRW}, s{sM0R}, v{vL16}
    s_lshr_b32 s{sT2}, s{sW}, 1
    s_and_b32 s{sT3}, s{sW}, 1
    s_lshl4_add_u32 s{sT2}, s{sT2}, s{sT3}
    s_lshl_b32 s{sT2}, s{sT2}, 10
    v_lshl_add_u32 v{x}, v{x}, 4, s{sT2}
    v_lshrrev_b32 v{x+1}, 4, v{vL}
    v_lshl_add_u32 v{vRR}, v{x+1}, 11, v{x}""")
def rs_load(tag="rs"): return vm(f"buffer_load_dwordx2 {P2(vRS2)}, v{vRSA}, {srd(sWS)}, s{sR2} offen offset:8 sc1", tag)
def res_load(): return vm(f"buffer_load_dwordx4 {v(vRES,4)}, v{vOO}, {srd(sX)}, s{sOB} offen", "res")
def ep_loads():
    a(f"v_lshlrev_b32 v{vBW}, 7, v{vL}")
    for i in range(4):
        a(f"s_mov_b32 s{sT2}, {REC1 + i*8192}")
        a(f"buffer_load_dword v{vEC+i}, v{vBW}, {srd(sWS)}, s{sT2} offen offset:12 sc1")
def if_first(body):
    a(f"s_or_b32 s{sT2}, s2, s{sW}")
    skip_if(f"s_cmp_eq_u32 s{sT2}, 0", body, "L_ep")
def maxchain(regs, d):
    L = []; regs = list(regs); first = True
    while regs:
        if first: x = regs[:3]; regs = regs[3:]; first = False
        else: x = [d] + regs[:2]; regs = regs[2:]
        L.append(f"v_max3_u32 v{d}, v{x[0]}, v{x[1]}, v{x[2]}" if len(x) == 3 else f"v_max_u32 v{d}, v{x[0]}, v{x[1]}")
    return L + [f"v_cmp_eq_u32 vcc, -1, v{d}"]
def sentinel(js, st):
    checked(maxchain([areg(j) + 4 * s for j in js for s in st], vC0), lambda: emits([a_load(j, "x", st) for j in js]), "L_s")
def step_mfma(j, st, first=False, gaps=()):
    gaps = list(gaps)
    for s in st:
        for b in range(2):
            acc = vACC + 32 * s + 16 * b
            a(f"{MF} {v(acc,16)}, {v(wreg(j)+4*b,4)}, {v(areg(j)+4*s,4)}, {'0' if first else v(acc,16)}")
            if gaps: emits(gaps.pop(0))
    for g in gaps: emits(g)

def c_loads(): return [p6f([a_load(10), a_load(11)]), a_load(8), a_load(9)]
def o_loads(): return [a_load(j, "o0", (0,)) for j in range(12, 16)] + [a_load(j, "o1", (1,)) for j in range(12, 16)]
WP = [[x for x in opt(k, "").split(",") if x] for k in ("awp", "bwp")]
def phase2(ty, side, GR, spec):
    def add(p, L): side[p] = side.get(p, []) + L
    assert sorted(WS_) == list(range(16))
    last = -1
    for x in WP[ty]:
        j, p = map(int, x.split("@")); assert p < j; last = p
        add(p, w_conv(j))
    for x in spec.split(","):
        n, p = x.split("@")
        assert n != "o" or int(p) >= 4
        assert n != "c" or int(p) >= last
        add(int(p), GR.pop(n))
    assert not set(GR) - set("hl"), GR
    add(5, [p6f(w_read(10) + w_read(11))])
    for j, k in ((7, 1), (8, 2), (9, 3), (12, 6), (13, 7), (14, 8), (15, 9)): add(k, w_read(j))
    for j in range(10):
        if j == 8:
            a.wait(vm="a9")
            sentinel((8, 9), (0, 1))
        a.wait(vm=f"a{j}", lg=f"r{j}")
        pt(f"s{j}")
        if j == 0: pt("f0")
        step_mfma(j, (0, 1), j == 0, split(side.get(j, []), 4))
    a.wait(lg="r12")
    def body():
        sentinel((10, 11), (0, 1))
        for j in (10, 11): step_mfma(j, (0, 1))
    p6(body)
    emits(side.get(10, []))
    pt("f1")
    a.wait(vm="o0", lg="all")
    if OSENT: sentinel(range(12, 16), (0,))
    pt("f2")
    checked([f"v_cmp_ne_u32 vcc, s{sTAG}, v{vRS2+1}"], rs_load("x"), "L_rs")
    vU = 216
    U = []
    for j in range(4): U += [f"v_lshlrev_b32 v{vU+2*j}, 16, v{vRES+j}", f"v_and_b32 v{vU+1+2*j}, s{sMASK}, v{vRES+j}"]
    G = split(U, 8)
    for j in range(12, 16): step_mfma(j, (0,), False, G[2*(j-12):2*(j-12)+2])
    a.wait(vm="o1")
    if OSENT: sentinel(range(12, 16), (1,))
    def pack(k):
        acc = vACC + 16 * k; L = []
        for hf in range(2):
            L += [f"v_cvt_pk_bf16_f32 v{acc+4*hf+i}, v{acc+8*hf+2*i}, v{acc+8*hf+2*i+1}" for i in range(4)]
            L += [dsw(f"ds_write_b128 v{vRW}, {v(acc+4*hf,4)} offset:{k*SZ+1024*hf}")]
        return L
    G = [[]] + split(pack(0) + pack(1), 7)
    for j in range(12, 16): step_mfma(j, (1,), False, G[2*(j-12):2*(j-12)+2])
    pt("f3")
    if ty == 0:
        def ep():
            checked([f"v_xor_b32 v{vEC+i}, s{sTAG}, v{vEC+i}" for i in range(4)] +
                    [f"v_or3_b32 v{vEC}, v{vEC}, v{vEC+1}, v{vEC+2}", f"v_or_b32 v{vEC}, v{vEC}, v{vEC+3}", f"v_cmp_ne_u32 vcc, 0, v{vEC}"],
                    ep_loads, "L_epc")
            a(f"""v_mov_b32 v{vEC}, s{sTAG}
            s_mov_b64 exec, 1
            buffer_store_dword v{vEC}, off, {srd(sWS)}, 0 sc1
            s_mov_b64 exec, -1""")
        if_first(ep)
    emits(pack(2) + pack(3))
    a.wait(lg="all")
    a("s_barrier")
    R = 224
    for p in range(4):
        for k in range(2):
            a.ds(f"ds_read_b128 {v(R+8*p+4*k,4)}, v{vRR} offset:{8192*k+256*p}", f"t{p}{k}")
    D = vWR
    for p in (0, 2, 1, 3):
        for k in range(2):
            a.wait(lg=f"t{p}{k}")
            d = D + 4 * (p >> 1)
            a(f"{MF16} {v(d,4)}, {v(vS0+4*(p&1),4)}, {v(R+8*p+4*k,4)}, {'0' if (p & 1) == 0 and k == 0 else v(d,4)}")
    for j in range(0, 8, 2): a(f"v_pk_fma_f32 {P2(D+j)}, {P2(D+j)}, {P2(vRS2)}, {P2(vU+j)} op_sel_hi:[1,0,1]")
    for j in range(4): a(f"v_cvt_pk_bf16_f32 v{D+8+j}, v{D+2*j}, v{D+2*j+1}")
    a(f"buffer_store_dwordx4 {v(D+8,4)}, v{vOO}, {srd(sOUT)}, s{sOB} offen")
    pt("end")
    a("s_branch L_fin")

def reads(T):
    tg = f"k{T}"; ks = T & 3
    if T < 32:
        off = ((T >> 2) & 3) * SZ; b = vWF + 8 * ks
        return [dsw(f"ds_read_b128 {v(vX+4*T,4)}, v{vXA+ks} offset:{off}", tg)] + [
                dsw(f"ds_read_b64_tr_b16 {v(b+2*i,2)}, v{vPM+ks} offset:{off+512*i}", tg) for i in range(4)]
    t = T - 32; s = RS[t >> 3]; ad = (vPL if s < 4 else vPM) + ks; off = (s & 3) * SZ + ((t >> 2) & 1) * 1024
    return [dsw(f"ds_read_b64_tr_b16 {v(vWF+4*ks+2*i,2)}, v{ad} offset:{off+512*i}", tg) for i in range(2)]
def bar(vmt=None, lg=None, name=None):
    def p():
        for x in ([vmt] if isinstance(vmt, str) else (vmt or [])): a.wait(vm=x)
        if lg: a.wait(lg=lg)
        if name: pt(name + "w")
        a("s_barrier")
        if name: pt(name)
    return fn(p, 1)
def put(S, T, L): S[T] = S.get(T, []) + list(L)
def spread(S, L, T0, T1):
    for i, G in enumerate(split(L, T1 - T0 + 1)): put(S, T0 + i, G)
def corr(quads, biases):
    L = [f"v_lshlrev_b32 v{b}, 16, v{b}" for b in biases if b] + [wt(lg="cw")]
    for q in quads: L += [f"v_add_f32 v{q}, v{q}, v{q+1}", f"v_add_f32 v{q+2}, v{q+2}, v{q+3}"]
    L += [f"v_add_f32 v{q}, v{q}, v{q+2}" for q in quads]
    return L + [f"v_cndmask_b32 v{q}, {v(b) if b else 0}, v{q}, {sLO}" for q, b in zip(quads, biases)]
SEQ = opt("seq", "x3/x4/x5/x6/x7/b0,b1/b2,b3").split("/")
DSP = opt("dsp", 1)
SPL = opt("spl", 3)
vQ2 = 44
def stream(ty, S, E):
    DQ = [L for n in opt("pre", "x2").split(",") if n for L in item(n)]
    for c in range(7): E[4 * c + 1] = [bar(f"x{c+1}", None, f"c{c}")] + E.get(4 * c + 1, [])
    S[29] = [dsw(f"ds_write_b32 v{vCAW}, v{vCS+4*i} offset:{1024*i}", "cw") for i in range(2)] + S.get(29, [])
    S[30] = [dsw(f"ds_read_b128 {v(vT+4*i,4)}, v{vCAR} offset:{1024*i}", "cw") for i in range(2)] + S.get(30, [])
    put(S, 31, corr((vT, vT + 4), (vBA, vBA + 1) if ty else (None, None)))
    S[32] = [f"{MF32} {v(K,16)}, v{q}, v{vBC}, {v(K,16)}" for K, q in ((K0, vT), (K1, vT + 4))] + S.get(32, [])
    S[61] = [dsw(f"ds_write_b32 v{vCAW}, v{vCS} offset:1024", "cw")] + S.get(61, [])
    S[62] = [dsw(f"ds_read_b128 {v(vQ2,4)}, v{vCAR} offset:1024", "cw")] + S.get(62, [])
    put(S, 63, corr((vQ2,), (None if ty else vBA,)) + [f"{MF32} {v(K2,16)}, v{vQ2}, v{vBC}, {v(K2,16)}"])
    emits(reads(0) + reads(1))
    for T in range(64):
        t = T & 31; ks = T & 3
        R = reads(T + 2) if T < 30 else (reads(32) + reads(33) if T == 30 else (reads(T + 3) if T + 3 < 64 else []))
        pt(f"T{T}")
        a.wait(lg=f"k{T}")
        F = S.get(T, [])
        if T < 32:
            b = vWF + 8 * ks
            G = split(F, 2)
            a(f"{MF} {v(K0,16)}, {v(b,4)}, {v(vX+4*t,4)}, {'0' if t == 0 else v(K0,16)}")
            emits(R[:SPL])
            if DQ and (DSP > 1 or T < 2): emits(DQ.pop(0))
            emits(G[0])
            a(f"{MF} {v(K1,16)}, {v(b+4,4)}, {v(vX+4*t,4)}, {'0' if t == 0 else v(K1,16)}")
            emits(R[SPL:])
            if DQ: emits(DQ.pop(0))
            if ks == 0:
                for i in range(2): a(f"{MF16} {v(vCS+4*i,4)}, {v(vSEL,4)}, {v(b+4*i,4)}, {'0' if t == 0 else v(vCS+4*i,4)}")
            emits(G[1])
        else:
            b = vWF + 4 * ks
            if ks == 0: a(f"{MF16} {v(vCS,4)}, {v(vSEL,4)}, {v(b,4)}, {'0' if t == 0 else v(vCS,4)}")
            a(f"{MF} {v(K2,16)}, {v(b,4)}, {v(vX+4*t,4)}, {'0' if t == 0 else v(K2,16)}")
            emits(R + F)
        if ks == 1: assert not DQ
        emits(E.get(T, []))
        if T < 28 and ks == 1:
            for n in SEQ[T >> 2].split(","):
                if n: DQ += item(n)
        if t == 31: pt(f"p{1 + (T >> 5)}")
    assert not DQ
PH = [vXA, vCS + 4]
def ph_reads(): return [dsw(f"ds_read_b64_tr_b16 {v(PH[i>>1]+2*(i&1),2)}, v{vPHA} offset:{256*i}", "ph") for i in range(4)]
def ph_signs(): return [wt(lg="ph")] + [f"v_xor_b32 v{PH[i>>2]+(i&3)}, v{vSGN}, v{PH[i>>2]+(i&3)}" for i in range(8)]
def start(ty, S, E):
    LATE = []
    if PRE2 & 8:
        C1 = consts1(ty); k = C1.index(f"s_movk_i32 s{sB1+2}, 2752")
        tch = [x for x in C1[:k] if callable(x)]
        C2 = consts2(ty) + bases(ty) + consts3(ty)
        def low(x): return isinstance(x, str) and x[:2] == "s_" and 36 <= int(x.split()[1].strip("s,")) < 48
        i = C2.index(f"s_lshl_b32 s{sFM}, 0x3333, s{sT2}")
        LATE = [tch + C1[k:], C2[i-2:i] + [x for x in C2 if low(x)]]
        L = B3[B3N:] + consts0(ty) + [x for x in C1[:k] if not callable(x)] + [f"s_lshl4_add_u32 s{sREC}, s{sREC}, {REC1}"] + [x for x in C2 if not low(x)]
        emits(merge(L, [grp(G) for n in PRO for G in item(n)], opt("x1a", 150), opt("x1b", 300)))
    else: emits(consts0(ty))
    pt("i1")
    a("s_waitcnt lgkmcnt(0)")
    if MW == 3: wtouch()
    if opt("mt", 15) == 2: emits(LATE[0][:1]); LATE[0] = LATE[0][1:]
    if PRE2 & 1: emits(consts1(ty) + [wphi_dma()])
    if PRE2 & 2: emits([f"s_lshl4_add_u32 s{sREC}, s{sREC}, {REC1}"] + consts2(ty) + bases(ty))
    if PRE2 & 4: emits(consts3(ty))
    LP = opt("lp", 5)
    OT = [vm(f"buffer_load_dword v{vFV}, off, {srd(sOUT)}, s{sOB}", "tch")] * opt("ot", 1)
    if LP < 0:
        k = opt("mt", 15) != 2
        emits(LATE[0][k:] + [wphi_dma()] + OT); LATE[0] = LATE[0][:k]
    pt("i2")
    a.wait(vm="x0")
    a("s_barrier")
    pt("p0")
    F0, F1, F2 = opt("f0", 6), opt("f1", 13), opt("f2", 26)
    RECP = opt("recp", 7)
    assert RECP >= max(F0, 5) and F1 % 4 == 1 and F2 <= 26
    spread(S, stats(), 0, F0)
    if MW >= 10: put(E, MW - 10, [fn(wtouch)])
    if opt("mt", 15) >= 10: put(E, opt("mt", 15) - 10, LATE[0][:1]); LATE[0] = LATE[0][1:]
    put(E, RECP, [rec_store()])
    if PRE2 & 8:
        if LP > 0: assert LP % 4 == 1 and LP <= F1; put(E, LP, LATE[0] + [wphi_dma()] + OT)
        elif LP < 0: put(S, F0 + 1, LATE[0])
        else: spread(S, LATE[0], F0 + 1, F1); put(E, F1, [wphi_dma()] + OT)
        spread(S, LATE[1], F1 + 1, F1 + 6)
    elif not PRE2 & 1:
        spread(S, consts1(ty), F0 + 1, F1)
        put(E, F1, [wphi_dma()])
    l0 = 0
    for x in TOUCH:
        T, n = map(int, x.split(":")); assert F0 + 3 <= T <= 28
        put(E, T, [touch(l0, n)]); l0 += n
    if not PRE2 & 10: spread(S, consts2(ty) + bases(ty), (F0 if PRE2 & 1 else F1) + 1, F2)
    if not PRE2 & 12: spread(S, consts3(ty), 27, 28)
    put(E, opt("rpos", 24), [rec1_load()])
    def rec():
        a.wait(vm="rec1")
        checked([f"v_cmp_ne_u32 vcc, s{sTAG}, v{vRSTD}"], rec1_load("x"), "L_rec1")
    put(S, 29, [fn(rec), f"v_cndmask_b32 v{vBC}, v{vSD}, v{vBC}, {sLO}", f"v_mov_b32 v{vRSTD}, v{vC1}", f"v_mul_f32 v{vC1}, {LOG2E}, v{vC1}"])
    put(E, 29, [bar("b1", "all", "e1")] + [poll(0)] * ty)
    put(S, 27, [f"v_mov_b32 v{vT}, -1"])
    put(S, 30, p2_addrs() + [f"v_mov_b32 v{vA2B}, -1"])
    put(E, 44, [poll_check(0)] * ty + [bar("b3", "all", "m2"), f"v_lshlrev_b32 v{vFL}, 3, v{vFL}"])
def rest():
    fs = [x for x in range(9) if x not in WS_.values()]
    return [w_item(j, fs.pop(0)) for j in range(16) if j not in WS_]
def place(M, spec, GR, nm="M"):
    ins = {}
    for x in [y for y in spec.split(",") if y]:
        n, r = x.split("@"); r = [int(y) for y in r.split("-")]; L = GR.pop(n)
        for i, y in enumerate(L): ins.setdefault(r[0] + (r[-1] - r[0]) * i // len(L), []).append(y)
    for i in range(300):
        pt(f"{nm}{i}")
        emits(ins.get(i, []))
        if i < len(M): emit(M[i])
def sched(S, spec, free):
    for x in spec.split(","):
        n, T = x.split("@"); T = int(T)
        if n[0] == "r":
            j = int(n[1:]); assert T >= 34 + 2 * j
            for i, g in enumerate(w_raw(j)): put(S, T + i, [g])
        elif n[0] == "c": assert T != 30; put(S, T, [clr2(*CLR[int(n[1:])], T)])
        else:
            j, sl = map(int, n.split(":")); assert T > free[sl], x
            put(S, T, [w_item(j, sl)])

def witems(spec):
    L = []
    for x in [y for y in spec.split(",") if y]:
        j, sl = map(int, x.split(":")); L.append(w_item(j, sl))
    return L
st1 = a.save()
a(f"""s_bitcmp1_b32 s2, 7
s_cbranch_scc1 L_B""")
TYPE[0] = 0
S, E = {}, {}
start(0, S, E)
put(S, 30, ph_reads())
put(S, 32, ph_signs())
V = []
for hf in range(2):
    V += [f"v_mul_f32 v{K1+8*hf+i}, v{K1+8*hf+i}, v{vRSTD}" for i in range(8)]
    V += [f"v_cvt_pk_bf16_f32 v{K1+8*hf+i}, v{K1+8*hf+2*i}, v{K1+8*hf+2*i+1}" for i in range(4)]
    V += [dsw(f"ds_write_b128 v{vVW}, {v(K1+8*hf,4)} offset:{32*hf}")]
L = [f"v_cvt_pk_bf16_f32 v{vT+j}, v{K0+2*j}, v{K0+2*j+1}" for j in range(8)]
L += [ptf("L1")] + V[:2] + [f"{MF} {v(K0,16)}, {v(PH[0],4)}, {v(vT,4)}, 0"] + V[2:] + [f"{MF} {v(K1,16)}, {v(PH[1],4)}, {v(vT+4,4)}, 0"]
PKA = opt("pka", 1)
for hd, P in enumerate((K0, K1)):
    L += [ptf(f"L{2+hd}")] + softmax(P, P, PKA, vT)
    L += [dsw(f"ds_write_b128 v{vPW0}, {v(P,4)} offset:{hd*8192}"), dsw(f"ds_write_b128 v{vPW1}, {v(P+4,4)} offset:{hd*8192}")]
SPOS = opt("spos", 36)
KI = witems(opt("ki", "8:7"))
if KI: L = merge(L, KI, opt("ki0", 60))
spread(S, L, opt("ka", 33), SPOS)
FS = 44 if SPOS < 44 else 61
CLR = [(sSB0, 0), (sSB0, 2048)]
put(S, opt("fpa", 48), flag_store(1, "clr"))
sched(S, opt("sa", "c0@28,c1@28,7:6@31,r0@38,r1@41,r2@44,r3@46,9:0@48,r4@50,r5@53,r6@56,12:4@59"),
      {6: 29, 7: 29, 0: 44, 4: 44, 1: 61, 5: 61, 2: FS, 3: FS, 8: FS})
def kv():
    KB = [K1, K1 + 8, vT]
    def kv_reads(t):
        b = KB[t % 3]
        a.ds(f"ds_read_b64_tr_b16 {v(b,2)}, v{vKA0} offset:{t*1024}", f"kv{t}")
        a.ds(f"ds_read_b64_tr_b16 {v(b+2,2)}, v{vKA1} offset:{t*1024+256}", f"kv{t}")
        a.ds(f"ds_read_b64_tr_b16 {v(b+4,2)}, v{vKB} offset:{t*2304}", f"kv{t}")
        a.ds(f"ds_read_b64_tr_b16 {v(b+6,2)}, v{vKB} offset:{t*2304+576}", f"kv{t}")
    if opt("kprio", 1): a("s_setprio 2")
    for t in range(3): kv_reads(t)
    for t in range(8):
        a.wait(lg=f"kv{t}")
        b = KB[t % 3]
        a(f"{MF} {v(K0,16)}, {v(b,4)}, {v(b+4,4)}, {'0' if t == 0 else v(K0,16)}")
        if t >= 1 and t + 2 < 8: kv_reads(t + 2)
    for i in range(8): a(f"v_cvt_pk_bf16_f32 v{K1+i}, v{K0+2*i}, v{K0+2*i+1}")
    for i in range(4): a(f"v_permlane16_swap_b32 v{K1+i}, v{K1+4+i}")
    a(f"""buffer_store_dwordx4 {v(K1,4)}, v{vL16}, {srd(sWS)}, s{sC0} offen sc1
    s_mov_b32 exec_lo, 0x00010001
    s_mov_b32 exec_hi, 0x00010001
    buffer_store_dwordx4 {v(K1+4,4)}, v{vL}, {srd(sWS)}, s{sC0} offen offset:1024 sc1
    s_mov_b64 exec, -1""")
    if opt("kprio", 1): a("s_setprio 0")
    pt("kv")
put(E, SPOS, [bar(None, "all", "S"), fn(lambda: skip_if(f"s_cmp_eq_u32 s{sH}, 0", kv, "L_kv"))])
spread(S, selectors(K1), max(SPOS + 2, 50), 61)
CPR = opt("cpr", 1)
put(E, 61, [bar(None, "all", "Y"), p6f([w_item(10, 1), w_item(11, 5)])] + ["s_setprio 3"] * CPR)
stream(0, S, E)
def groups():
    G = {"a": [a_load(j) for j in range(4)], "b": [a_load(j) for j in range(4, 8)], "c": c_loads(), "o": o_loads(),
         "w": bnc_addrs() + sum([w_conv(j) for j in range(7 - len(WP[TYPE[0]]))], []), "s": rest(), "r": [rs_load(), res_load()]}
    if opt("bsp", 0): G["q"] = G["b"][2:]; G["b"] = G["b"][:2]
    for k in (1,): G[f"p{k}"] = [poll(k)]; G[f"k{k}"] = [poll_check(k)]
    return G
GR = groups()
place(mish_store(K2, True, sSB0, vMT) + ["s_setprio 0"] * CPR + [ptf("ms")] + tail_addrs(), opt("ao", "s@0-20,p1@12,w@40-90,k1@30,a@30-44,b@78-90,r@96"), GR)
phase2(0, {1: [fn(lambda: if_first(ep_loads), 4)]}, GR, opt("ap", "c@3,o@7"))

a.label("L_B")
a.restore(st1)
TYPE[0] = 1
WS_.clear()
S, E = {}, {}
start(1, S, E)
J0 = opt("j0", 21)
assert J0 % 4 == 1
put(E, J0, [w_item(7, 8)])
CLR = [(sC0, 0), (sC0, 2048)]
sched(S, opt("sb", "c0@28,c1@28," * OSENT + "8:2@31,r0@37,r1@40,r2@43,r3@46,r4@49,r5@52,r6@55"),
      {2: 29, 3: 29, 6: 29, 7: 29, 0: 44, 4: 44})
PKB = opt("pkb", 1)
MB = mish_store(K0, PKB, sSB0, vT) + mish_store(K1, PKB, sC1, vT) + selectors(K0 + 8)
MI = witems(opt("mi", "9:3,12:6,13:7"))
if MI: MB = merge(MB, MI, opt("mi0", 20))
spread(S, MB, 33, opt("ma", 35))
FPB = opt("fpb", 58)
if FPB: put(S, FPB, flag_store(1, "st"))
put(S, 56, ph_reads()); put(S, 62, ph_signs())
put(E, 61, [bar(None, "all", "Y"), p6f([w_item(10, 1), w_item(11, 5)])] + ["s_setprio 3"] * CPR)
vTL = [K0 + 4 * i for i in range(8)]; vZL = 128 if opt("gpos", 0) else 64
Q0, Q1 = 216, 232
def t_load(i, tag=None):
    def p():
        a(f"s_movk_i32 s{sT1}, {(i>>1)*4*1152}")
        a.vmem(f"buffer_load_dwordx4 {v(vTL[i],4)}, v{vGA}, {srd(sWS)}, s{sT1} offen offset:{(i&1)*256} sc1", tag or "t")
    return fn(p, 4)
def z_load(tag=None): return vm(f"buffer_load_dwordx4 {v(vZL,4)}, v{vGZ}, {srd(sWS)}, 0 offen offset:1024 sc1", tag or "t")
GL = [z_load()] + [t_load(i) for i in range(8)]
GPOS = opt("gpos", 0)
if GPOS:
    assert GPOS > 44
    spread(S, [ptf("g0")] + GL, GPOS, opt("gend", 61))
PP = opt("pp", 0)
if PP: put(S, PP, [poll(1)])
stream(1, S, E)
for j in range(8): a(f"v_cvt_pk_bf16_f32 v{K2+j}, v{K2+2*j}, v{K2+2*j+1}")
a(f"{MF} {v(Q0,16)}, {v(PH[0],4)}, {v(K2,4)}, 0")
a(f"{MF} {v(Q1,16)}, {v(PH[1],4)}, {v(K2+4,4)}, 0")
M = softmax(Q0, Q0, True, 20) + softmax(Q1, Q0 + 8, True, 20)
print("B list", len(M))
GR = groups()
GR.update({"h": ["s_setprio 3"], "l": ["s_setprio 0"]})
if not GPOS: GR["g"] = GL
if PP: GR.pop("p1")
if not FPB: GR["f"] = flag_store(1, "st")
vD, vDZ = K2 + 8, K2 + 12
vKF = 64
def got():
    pt("sm")
    a.wait(vm="t")
    checked(maxchain(vTL + [vZL], vD), lambda: emits([z_load("x")] + [t_load(i, "x") for i in range(8)]), "L_t")
    pt("g")
D = [fn(got), f"{MF16} {v(vDZ,4)}, {v(vS0,4)}, {v(vZL,4)}, 0"]
D += [f"{MF16} {v(vD,4)}, {v(vS0+4*(i&1),4)}, {v(vTL[i],4)}, {'0' if i == 0 else v(vD,4)}" for i in range(8)]
for sh in (2, 4):
    D += [f"v_add_f32_dpp v{vDZ+j}, v{vDZ+j}, v{vDZ+j} row_ror:{sh} row_mask:0xf bank_mask:0xf" for j in range(4)]
D += [f"v_cvt_pk_bf16_f32 v{vDZ}, v{vDZ}, v{vDZ+1}", f"v_cvt_pk_bf16_f32 v{vDZ+1}, v{vDZ+2}, v{vDZ+3}",
      grp(["s_mov_b64 exec, 0x30003", dsw(f"ds_write_b64 v{vZW}, {v(vDZ,2)} offset:256"), "s_mov_b64 exec, -1"]),
      f"v_cvt_pk_bf16_f32 v{vD}, v{vD}, v{vD+1}", f"v_cvt_pk_bf16_f32 v{vD+1}, v{vD+2}, v{vD+3}", dsw(f"ds_write_b64 v{vKW}, {v(vD,2)}")]
GR["d"] = D
GR["e"] = [bar(None, "all", "K")] + [dsw(f"ds_read_b128 {v(vKF+8*hh+4*j,4)}, v{vKR} offset:{hh*1088+j*272}", f"kf{hh}") for hh in range(2) for j in range(2)]
place(M, opt("bo", "g@0-20,p1@21,s@30-60,d@100,k1@120,a@120,e@122"), GR)
X = split(tail_addrs(), 3)
emits(X[0])
OD = [K2, K1]
for hh in range(2):
    a.wait(lg=f"kf{hh}")
    a(f"{MF} {v(OD[hh],16)}, {v(vKF+8*hh,4)}, {v(Q0+8*hh,4)}, 0")
    a(f"{MF} {v(OD[hh],16)}, {v(vKF+8*hh+4,4)}, {v(Q0+8*hh+4,4)}, {v(OD[hh],16)}")
emits(X[1] + X[2])
for D in OD: a(f"v_add_f32 v{D+8}, 0x358637bd, v{D+8}")
for D in OD: a(f"v_rcp_f32 v{D+8}, v{D+8}")
for D in OD: a(f"v_mul_f32 v{D+8}, v{D+8}, v{vSD}")
for hh, D in enumerate(OD):
    for i in range(0, 8, 2): a(f"v_pk_mul_f32 {P2(D+i)}, {P2(D+i)}, {P2(D+8)} op_sel_hi:[1,0]")
    for i in range(4): a(f"v_cvt_pk_bf16_f32 v{D+12+i}, v{D+2*i}, v{D+2*i+1}")
    frag_store(D + 12, sC0, hh)()
if CPR: a("s_setprio 0")
pt("o")
W = GR.pop("w", [])
place(W, opt("bn", "r@10"), GR, "N")
phase2(1, {}, GR, opt("bp", "b@0,c@2,o@5"))

for blk in retries: blk()
a.label("L_fin")
if STAMP >= 0:
    n = nst[0]
    a(f"""s_cmp_eq_u32 s{sW}, {STAMP}
    s_cbranch_scc0 L_end
    s_waitcnt lgkmcnt(0)
    s_sub_u32 s{sT0}, {SPIN}, s{sCNT}
    s_mul_i32 s{sT0}, s{sT0}, 100
    s_add_u32 s{sST0+2}, s{sST0}, s{sT0}
    s_addc_u32 s{sST0+3}, s{sST0+1}, 0
    s_mul_i32 s{sT0}, s2, {n*8}
    s_add_u32 s{sT0}, s{sT0}, {STAMP_OFF}
    s_mov_b64 exec, 1""")
    for i in range(n):
        a(f"v_mov_b32 v{64+2*i}, s{sST0+2*i}")
        a(f"v_mov_b32 v{65+2*i}, s{sST0+2*i+1}")
        a(f"buffer_store_dwordx2 {v(64+2*i,2)}, off, {srd(sWS)}, s{sT0} offset:{i*8}")
a.label("L_end")
a.pad()
open(out_path, "w").write(header(256, 512, LDS_SIZE) + a.text() + footer(vgpr=256))
print("instructions:", sum(1 for x in a.L if x.states), "nops:", sum(1 for x in a.L if x.kind == "nop"), "stamps", nst[0])
```

```python
import sys
from asmdsl import Asm
from gen_common import header, footer

OPT = dict(a.split("=") for a in sys.argv[2:])
def opt(k, d): return type(d)(OPT.get(k, d))
STAMP = opt("stamp", -1)
CYC = opt("cyc", 0)
PTS = [p.split("|") for p in opt("pts", "p0,p1,Y,S|g,kv|o,f0,f2,end").split(",") if p]
ROTM = opt("rotm", 1)
ROT2 = opt("rot2", 7)
SPIN = opt("spin", 200000)
out_path = sys.argv[1]

SZ = 16384
KVL, WPHI, CW, BNC = 9 * SZ, 9 * SZ + 2048, 9 * SZ + 4096, 9 * SZ + 8192
PHI, VIMG = 2 * SZ, 8 * SZ
LDS_SIZE = 163840
REC1 = 0x1000
KVD = 0x20000
FLG = 0xc0000
ACT = 0x140000
DUM = 0x1000000
STAMP_OFF = 128 << 20

sW, sSIG, sH, sT0, sT1 = 3, 4, 5, 6, 7
sX, sWD, sWE, sW2, sWO, sOUT, sWS = 8, 12, 16, 20, 24, 28, 32
sPH, sB1, sPC = 36, 40, 44
sHALF, sISQ, sLOm, sFM, sMASK, sCM = 36, 38, 40, 42, 44, 46
sFMB, sTILE, sFL, sFB, sRA2, sRW2 = 48, 50, 51, 52, 53, 54
(sM0R, sTAG, sCNT, sT2, sT3, sRHO, sRB, sG, sSTART, sT4, sC0, sC1, sSB0, sOB, sRA, sRW, sAO, sR2,
 sRB2, sCB, sGAM, sREC, sSTR, sKB) = range(56, 80)
sST0 = 82
sLO = f"s[{sLOm}:{sLOm+1}]"
def srd(n): return f"s[{n}:{n+3}]"
def sp(n): return f"s[{n}:{n+1}]"

vL = 0
vXO, vWA, vWC, vL16, vBA = 1, 3, 5, 7, 8
vA2L, vA2M, vA2T = 1, 3, 5
vBC, vSD, vC1, vRSTD = 10, 11, 12, 13
vCAW, vCAR, vPL, vPM = 14, 15, 16, 20
vT = 24
vW2O, vWOO, vFL, vACT, vA2B, vFV = 32, 34, 36, 37, 38, 39
vXA, vSEL, vCS = 40, 44, 48
vPHA, vSGN = 56, 57
vPW0, vPW1, vKA0, vKA1, vKB, vVW = 58, 59, 60, 61, 62, 63
vGA, vGZ, vKW, vZW, vKR = 58, 59, 60, 61, 62
vWF = 64
K2, K0, K1 = 80, 96, 112
vX = 128
def v(n, k=1): return f"v{n}" if k == 1 else f"v[{n}:{n+k-1}]"
def P2(n): return v(n, 2)

a = Asm()
nst = [2]
def stamp(i):
    if STAMP >= 0:
        assert i < 10
        a(f"{'s_memtime' if CYC else 's_memrealtime'} s[{sST0+2*i}:{sST0+2*i+1}]")
        nst[0] = max(nst[0], i + 1)
def pt(name):
    for i, p in enumerate(PTS):
        if name in p: stamp(2 + i)

MF = "v_mfma_f32_32x32x16_bf16"
MF16 = "v_mfma_f32_16x16x32_bf16"
MF32 = "v_mfma_f32_32x32x2_f32"
LOG2E = "0x3fb8aa3b"

def lines(txt): return [l.strip() for l in txt.strip().split("\n") if l.strip()]
def cost(x):
    if callable(x): return getattr(x, "cost", 1)
    return 2 if ("v_exp" in x or "v_rcp" in x or "v_mfma" in x) else 1
def emit(x):
    if callable(x): x()
    else: a(x)
def emits(L):
    for x in L: emit(x)
def fn(f, c=1):
    f.cost = c; return f
def ptf(name): return fn(lambda: pt(name), 0)
def grp(L): return fn(lambda: emits(L), sum(cost(x) for x in L))
def merge(main, side, start=0, end=None):
    end = len(main) if end is None else min(end, len(main))
    tot = sum(cost(x) for x in main[start:end]); out = list(main[:start]); acc = 0; k = 0
    for x in main[start:end]:
        while k < len(side) and acc >= k * tot / len(side): out.append(side[k]); k += 1
        out.append(x); acc += cost(x)
    return out + side[k:] + list(main[end:])
def split(L, n):
    tot = sum(cost(x) for x in L); G = [[] for _ in range(n)]; acc = 0
    for x in L:
        G[min(n - 1, int(acc * n / max(tot, 1)))].append(x); acc += cost(x)
    return G
def vm(txt, tag):
    if opt("now2", 0) and tag[0] == "w": return fn(lambda: None, 3)
    return fn(lambda: a.vmem(txt, tag), 3)
def dsw(txt, tag="w"): return fn(lambda: a.ds(txt, tag), 2)
def wt(**kw): return fn(lambda: a.wait(**kw), 0)

retries = []
def checked(cmp_lines, reload, name):
    lab = a.newlabel(name)
    a.label(lab + "_c")
    for l in cmp_lines: a(l)
    a(f"s_cbranch_vccnz {lab}_r")
    a.label(lab + "_k")
    def blk():
        a.label(lab + "_r")
        a(f"""s_cmp_eq_u32 s{sCNT}, 0
        s_cbranch_scc1 {lab}_k
        s_sub_u32 s{sCNT}, s{sCNT}, 1""")
        reload()
        a(f"""s_waitcnt vmcnt(0)
        s_branch {lab}_c""")
    retries.append(blk)
def skip_if(cmp_line, body, name):
    lab = a.newlabel(name)
    a(cmp_line); a(f"s_cbranch_scc0 {lab}")
    st = a.save()
    body()
    a.label(lab)
    a.restore(st)

t0, t1, t2, t3, u0, u1, u2, u3 = range(vT, vT + 8)
LT = vX + 96
vXR, vRC, vCL = LT, LT + 16, LT + 20
vRW_, vSW_, vEP, vRA1 = LT + 24, LT + 25, LT + 26, 6
TYPE = [0]
RS = [0, 4, 1, 5]
def rot(c, d): return [f"s_add_u32 s{d}, s{sRHO}, {128*c}", f"s_and_b32 s{d}, s{d}, 0x380"]
def x_item(c):
    s = [f"s_add_u32 m0, s{sM0R}, {(c & 3) * SZ}"] + rot(c, sT0)
    return [s + [vm(f"buffer_load_dwordx4 v{vXO}, {srd(sX)}, s{sT0} offen lds", f"x{c}")],
            [vm(f"buffer_load_dwordx4 v{vXO+1}, {srd(sX)}, s{sT0} offen offset:1024 lds", f"x{c}")]]
def w_item1(c):
    b = (4 + (c & 3)) * SZ
    return [[f"s_add_u32 m0, s{sM0R}, {b}", f"s_mul_i32 s{sT0}, s{sT0}, s{sSTR}",
             vm(f"buffer_load_dwordx4 v{vWA}, {srd(sWD)}, s{sT0} offen lds", f"x{c}")],
            [f"s_add_u32 m0, s{sM0R}, {b+1024}", vm(f"buffer_load_dwordx4 v{vWA+1}, {srd(sWD)}, s{sT0} offen lds", f"x{c}")]]
def r_item(i):
    return [[f"s_add_u32 m0, s{sM0R}, {RS[i]*SZ + 1024*k}"] + rot(2 * i + k, sT0) +
            [f"s_mul_i32 s{sT0}, s{sT0}, {(1376, 1536)[TYPE[0]]}", vm(f"buffer_load_dwordx4 v{vWC}, {srd(sWE)}, s{sT0} offen lds", f"b{i}")]
            for k in range(2)]
def item(n):
    i = int(n[1:])
    return x_item(i) + w_item1(i) if n[0] == "x" else r_item(i)

PRIO = opt("prio", 1)
a(f"""s_cmp_ge_u32 s2, 256
s_cbranch_scc1 L_end""")
stamp(0)
a(f"""s_getpc_b64 {sp(sPC)}
L_pc:
s_load_dwordx2 {sp(sX)}, s[0:1], 0
s_lshr_b32 s{sT1}, s2, 2
s_and_b32 s{sT1}, s{sT1}, 32
s_add_u32 s{sT3}, s{sT1}, 8
s_load_dwordx2 {sp(sWD)}, s[0:1], s{sT3}
s_bfe_u32 s{sT0}, s2, 0x30003
v_lshrrev_b32 v{t0}, 6, v0
s_mov_b32 s{sPC+2}, L_end-L_pc
v_lshl_add_u32 v{t1}, v0, 3, s{sT0}
s_mov_b32 s{sPC+3}, 0x00020000
v_lshlrev_b32 v{t1}, 7, v{t1}
v_readfirstlane_b32 s{sW}, v{t0}
buffer_load_dword v{LT+27}, v{t1}, {srd(sPC)}, 0 offen""")
if PRIO: a("s_setprio 3")
if opt("sw2", 0): a(f"""s_load_dwordx2 {sp(sW2)}, s[0:1], 56
s_load_dwordx2 {sp(sWO)}, s[0:1], 24""")
a(f"""s_load_dwordx2 {sp(sWS)}, s[0:1], 80
v_lshrrev_b32 v{vRW_}, 3, v0
s_sub_u32 s{sT4}, 40, s{sT1}
s_and_b32 s{sT1}, s2, 1
v_and_b32 v{t1}, 56, v{vRW_}
s_lshl3_add_u32 s{sRB}, s{sT1}, s{sT0}       ; rb
v_add_u32 v{t0}, v{vRW_}, v{t1}
s_lshr_b32 s{sT1}, s2, 6
v_bfe_u32 v{t2}, v0, 4, 2
s_lshl1_add_u32 s{sRHO}, s{sT1}, s{sT0}
v_bitop3_b32 v{t2}, v0, v{t2}, 7 bitop3:0x28
s_lshl_b32 s{sT2}, s{sRB}, 17
v_lshl_add_u32 v{t2}, v{t2}, 4, s{sT2}
s_and_b32 s{sRHO}, s{sRHO}, {ROTM}
v_lshl_add_u32 v{vXO}, v{t0}, 10, v{t2}
s_lshl_b32 s{sRHO}, s{sRHO}, 7
v_xor_b32 v{vXO+1}, 64, v{vXO}
s_add_u32 s{sRHO}, s{sRHO}, {opt("rot0", 4) * 128}
s_lshl_b32 s{sM0R}, s{sW}, 11
v_add_u32 v{vXO+1}, {8192-1024}, v{vXO+1}
s_mov_b32 s{sX+2}, {2048*1024}
v_bfe_u32 v{t3}, v0, 4, 1
s_mov_b32 s{sX+3}, 0x00020000
v_lshlrev_b32 v{t3}, 2, v{t3}
s_mov_b32 m0, s{sM0R}
v_bitop3_b32 v{t3}, v0, v{t3}, 7 bitop3:0x28
s_bfe_u32 s{sT1}, s2, 0x10006
v_lshlrev_b32 v{vSW_}, 4, v{t3}
s_and_b32 s{sG}, s2, 6
s_or_b32 s{sG}, s{sG}, s{sT1}                ; g
s_mul_i32 s{sSTART}, s{sG}, 11
s_waitcnt lgkmcnt(0)""")
a.vmem(f"buffer_load_dwordx4 v{vXO}, {srd(sX)}, s{sRHO} offen lds", "x0")
a(f"""s_add_u32 s{sSTART}, s{sSTART}, 1
s_lshr_b32 s{sSTART}, s{sSTART}, 1
s_min_u32 s{sSTART}, s{sSTART}, 38
s_lshl1_add_u32 s{sT1}, s{sG}, 16""")
a.vmem(f"buffer_load_dwordx4 v{vXO+1}, {srd(sX)}, s{sRHO} offen offset:1024 lds", "x0")
a(f"""s_movk_i32 s{sSTR}, 1536
s_movk_i32 s{sT2}, 1024
s_bitcmp1_b32 s2, 7
s_cselect_b32 s{sSTR}, 1376, s{sSTR}
s_cselect_b32 s{sT1}, s{sSTART}, s{sT1}
s_cselect_b32 s{sT2}, 128, s{sT2}
v_mul_u32_u24 v{vWA}, s{sSTR}, v{vRW_}
s_lshl_b32 s{sT1}, s{sT1}, 6
s_lshl_b32 s{sWD+2}, s{sSTR}, 10
v_lshl_add_u32 v{vWA}, v{vWA}, 1, v{vSW_}
s_mov_b32 s{sWD+3}, 0x00020000
s_mov_b32 s{sT0}, s{sRHO}
v_add_u32 v{vWA}, s{sT1}, v{vWA}
s_load_dwordx2 {sp(sWE)}, s[0:1], s{sT4}
v_add_u32 v{vWA+1}, s{sT2}, v{vWA}""")
for L in w_item1(0): emits(L)
pt("i0")
a(f"""v_and_b32 v{vL}, 63, v0
s_lshr_b32 s{sT1}, s2, 7
s_lshl1_add_u32 s{sT1}, s{sRB}, s{sT1}
v_lshlrev_b32 v{vL16}, 4, v{vL}
s_lshl3_add_u32 s{sT1}, s{sT1}, s{sG}
s_lshl3_add_u32 s{sREC}, s{sT1}, s{sW}
s_lshl_b32 s{sT1}, s{sREC}, 10
s_mov_b32 s{sWS+2}, {256<<20}
s_mov_b32 s{sWS+3}, 0x00020000
s_lshr_b32 s{sH}, s{sW}, 2""")
TA = opt("ta", 0)
EX = opt("ex", 3)
def share(d, n, tmp):
    L = [f"s_mov_b32 s{sT3}, 0x40000000"]
    if EX & 1:
        L += lines(f"""s_add_u32 s{sT4}, s{sT2}, {(256 - 1) * n * 128}
        s_cmp_lt_u32 s2, 32
        s_cselect_b32 s{sT3}, s{sT4}, s{sT3}
        s_lshr_b32 s{sT4}, s2, 5
        s_cmp_eq_u32 s{sT4}, 1
        s_cselect_b32 s{sT2}, 0x40000000, s{sT2}""")
    if EX & 2:
        L += lines(f"""s_add_u32 s{sT4}, s{sT2}, {(16 - 1) * n * 128}
        s_and_b32 s{sT1}, s2, 0xc6
        s_cmp_eq_u32 s{sT1}, 0x40
        s_cselect_b32 s{sT3}, s{sT4}, s{sT3}
        s_cmp_eq_u32 s{sT1}, 0x42
        s_cselect_b32 s{sT2}, 0x40000000, s{sT2}""")
    return L + lines(f"""v_lshl_add_u32 v{d}, v{vL}, 7, s{sT2}
    v_lshl_add_u32 v{tmp}, v{vL}, 7, s{sT3}
    v_cmp_gt_u32 vcc, {n}, v{vL}
    v_cndmask_b32 v{d}, v{tmp}, v{d}, vcc""")
vWA_ = LT + 14
def waddr():
    L = lines(f"""s_and_b32 s{sT2}, s2, 127
    s_lshl3_add_u32 s{sT2}, s{sT2}, s{sW}
    s_mul_i32 s{sT2}, s{sT2}, {12*128}""")
    return L + share(vWA_, 12, u3)
def wtouch():
    if EX and not TYPE[0]:
        a("s_mov_b64 exec, 0xffffff")
        a.vmem(f"buffer_load_dword v{LT+27}, v{vWA_}, {srd(sWD)}, 0 offen", "tch")
        a("s_mov_b64 exec, -1")
        return
    if TA & 1 and TYPE[0]: return
    a(f"""s_and_b32 s{sT2}, s2, 127
    v_lshlrev_b32 v{t0}, 7, v{vL}
    s_lshl3_add_u32 s{sT2}, s{sT2}, s{sW}
    s_mul_i32 s{sT2}, s{sT2}, {12*128}
    s_mov_b64 exec, 0xfff
    v_add_u32 v{t0}, s{sT2}, v{t0}""")
    a.vmem(f"buffer_load_dword v{LT+27}, v{t0}, {srd(sWD)}, 0 offen", "tch")
    if TA & 1: a.vmem(f"buffer_load_dword v{LT+27}, v{t0}, {srd(sWE)}, 0 offen", "tch")
    a("s_mov_b64 exec, -1")
if opt("e3", 0):
    a(f"""s_lshl3_add_u32 s{sT2}, s2, s{sW}
    s_lshl_b32 s{sT2}, s{sT2}, 11
    s_add_u32 s{sT2}, s{sT2}, 384
    v_lshl_add_u32 v{t0}, v{vL}, 10, s{sT2}
    s_mov_b64 exec, 3""")
    a.vmem(f"buffer_load_dword v{LT+27}, v{t0}, {srd(sWD)}, 0 offen", "tch")
    a("s_mov_b64 exec, -1")
MW = opt("mw", 11)
SW = opt("sw", 0)
def stouch():
    a(f"""s_and_b32 s{sT2}, s2, 127
    s_lshl3_add_u32 s{sT2}, s{sT2}, s{sW}
    s_mul_i32 s{sT2}, s{sT2}, {12*128}""")
    for o in range(0, 12 * 128, SW): a(f"s_buffer_load_dword s80, {srd(sWD)}, s{sT2} offset:{o}")
    if opt("sw2", 0):
        a(f"""s_lshl3_add_u32 s{sT2}, s2, s{sW}
        s_mov_b32 s{sW2+2}, {1376*1024}
        s_mov_b32 s{sW2+3}, 0x00020000
        s_mov_b32 s{sWO+2}, {512*1024}
        s_mov_b32 s{sWO+3}, 0x00020000
        s_mul_i32 s{sT3}, s{sT2}, {6*128}
        s_lshl_b32 s{sT2}, s{sT2}, 8""")
        for o in range(0, 6 * 128, SW): a(f"s_buffer_load_dword s80, {srd(sW2)}, s{sT3} offset:{o}")
        for o in range(0, 2 * 128, SW): a(f"s_buffer_load_dword s80, {srd(sWO)}, s{sT2} offset:{o}")
if MW == 1: wtouch()
a.vmem(f"buffer_load_dwordx4 {v(vXR,4)}, v{vL16}, {srd(sX)}, s{sT1} offen", "xr")
a.vmem(f"buffer_load_dword v{vEP}, off, {srd(sWS)}, 0 sc1", "xr")
if MW == 2: wtouch()
if SW: stouch()
if PRIO: a("s_setprio 0")
B3 = lines(f"""s_load_dwordx2 {sp(sPH)}, s[0:1], 16
s_load_dwordx2 {sp(sB1)}, s[0:1], 48
s_load_dwordx2 {sp(sW2)}, s[0:1], 56
s_load_dwordx2 {sp(sWO)}, s[0:1], 24
s_load_dwordx2 {sp(sOUT)}, s[0:1], 64
s_and_b32 s{sSIG}, s{sW}, 3
v_and_b32 v{u0}, 31, v{vL}
s_xor_b32 s{sT3}, s{sSIG}, s{sH}
v_lshrrev_b32 v{u1}, 5, v{vL}
v_bfe_u32 v{u2}, v{vL}, 1, 3
s_lshl_b32 s{sT2}, s{sSIG}, 7
v_xor_b32 v{u2}, v{u1}, v{u2}
s_add_u32 s{sT2}, s{sT2}, s{sT3}
v_lshlrev_b32 v{u2}, 4, v{u2}
s_lshl_b32 s{sT2}, s{sT2}, 5
v_lshl_add_u32 v{u2}, v{u0}, 7, v{u2}
v_bfe_u32 v{t0}, v{vL}, 2, 2
v_xor_b32 v{vXA}, s{sT2}, v{u2}
v_bfe_u32 v{t1}, v{vL}, 4, 1
v_xor_b32 v{vXA+1}, 32, v{vXA}
v_and_b32 v{t2}, 3, v{vL}
v_xor_b32 v{vXA+2}, 64, v{vXA}
v_lshlrev_b32 v{t2}, 3, v{t2}
v_xor_b32 v{vXA+3}, 96, v{vXA}
v_lshl_add_u32 v{t2}, v{t1}, 5, v{t2}
v_lshrrev_b32 v{u2}, 1, v{t0}
s_lshl_b32 s{sT2}, s{sT3}, 6
v_lshl_add_u32 v{u2}, v{u2}, 6, v{t2}
s_add_u32 s{sT2}, s{sT2}, s{sH}
v_lshl_add_u32 v{t3}, v{t0}, 7, v{u2}
s_lshl_b32 s{sT2}, s{sT2}, 6
v_lshl_add_u32 v{u2}, v{u1}, 11, v{t3}
s_or_b32 s{sT2}, s{sT2}, 0x10000
v_xor_b32 v{u3}, v{t0}, v{t1}
v_xor_b32 v{vPM}, s{sT2}, v{u2}
v_and_b32 v{u3}, 1, v{u3}
v_xor_b32 v{vPM+1}, 4096, v{vPM}
v_cmp_eq_u32 vcc, 0, v{u3}
v_xor_b32 v{vPM+2}, 8192, v{vPM}
v_mov_b32 v{u3}, 0x3f803f80
v_xor_b32 v{vPM+3}, 12288, v{vPM}""")
if opt("sw2", 0): B3 = B3[:2] + B3[4:]
B3 += [f"v_cndmask_b32 v{vSEL+i}, 0, v{u3}, vcc" for i in range(4)]
PRO = opt("pro", "x1").split(",")
PRE2 = opt("pre2", 8)
B3N = opt("b3n", 0)
if PRE2 & 8: emits(B3[:B3N])
else: emits(merge(B3, [grp(L) for n in PRO for L in item(n)]))


def mish(acc, pk, tmp):
    L = []
    for g in (0, 8):
        r = [acc + g + i for i in range(8)]; u = [tmp + i for i in range(8)]
        if pk:
            L += [f"v_pk_fma_f32 {P2(u[i])}, {P2(r[i])}, {P2(vC1)}, {sp(sHALF)} op_sel_hi:[1,0,1]" for i in range(0, 8, 2)]
            L += [f"v_exp_f32 v{u[i]}, v{u[i]}" for i in range(8)]
            L += [f"v_pk_add_f32 {P2(u[i])}, {P2(u[i])}, {sp(sISQ)}" for i in range(0, 8, 2)]
            L += [f"v_pk_fma_f32 {P2(u[i])}, {P2(u[i])}, {P2(u[i])}, {sp(sHALF)} neg_lo:[1,0,0] neg_hi:[1,0,0]" for i in range(0, 8, 2)]
            L += [f"v_rcp_f32 v{u[i]}, v{u[i]}" for i in range(8)]
            L += [f"v_pk_fma_f32 {P2(r[i])}, {P2(r[i])}, {P2(u[i])}, {P2(r[i])}" for i in range(0, 8, 2)]
        else:
            L += [f"v_fma_f32 v{u[i]}, v{r[i]}, v{vC1}, -0.5" for i in range(8)]
            L += [f"v_exp_f32 v{u[i]}, v{u[i]}" for i in range(8)]
            L += [f"v_add_f32 v{u[i]}, s{sISQ}, v{u[i]}" for i in range(8)]
            L += [f"v_fma_f32 v{u[i]}, -v{u[i]}, v{u[i]}, -0.5" for i in range(8)]
            L += [f"v_rcp_f32 v{u[i]}, v{u[i]}" for i in range(8)]
            L += [f"v_fmac_f32 v{r[i]}, v{r[i]}, v{u[i]}" for i in range(8)]
        L += [f"v_cvt_pk_bf16_f32 v{acc+g//2+i}, v{r[2*i]}, v{r[2*i+1]}" for i in range(4)]
        L.append(("half", g // 8))
    return L
ND = opt("nd", 1)
def vST(): return vBA + 1 if ND and not TYPE[0] else vL16
def frag_store(reg, sb, half, tag="st"):
    return vm(f"buffer_store_dwordx4 {v(reg,4)}, v{vST()}, {srd(sWS)}, s{sb} offen offset:{half*2048} sc1", tag)
def mish_store(acc, pk, sb, tmp, tag="st"):
    return [frag_store(acc + 4 * x[1], sb, x[1], tag) if isinstance(x, tuple) else x for x in mish(acc, pk, tmp)]
def softmax(P, out, pk, m):
    L = [f"v_max3_f32 v{m}, v{P}, v{P+1}, v{P+2}", f"v_max3_f32 v{m+1}, v{P+3}, v{P+4}, v{P+5}"]
    for i in range(6, 14, 4):
        L += [f"v_max3_f32 v{m}, v{m}, v{P+i}, v{P+i+1}", f"v_max3_f32 v{m+1}, v{m+1}, v{P+i+2}, v{P+i+3}"]
    L += [f"v_max3_f32 v{m}, v{m}, v{P+14}, v{P+15}", f"v_max_f32 v{m}, v{m}, v{m+1}", f"v_mul_f32 v{m}, v{m}, v{vC1}"]
    if pk:
        L += [f"v_pk_fma_f32 {P2(P+i)}, {P2(P+i)}, {P2(vC1)}, {P2(m)} op_sel_hi:[1,0,0] neg_lo:[0,0,1] neg_hi:[0,0,1]" for i in range(0, 16, 2)]
        L += [f"v_exp_f32 v{P+i}, v{P+i}" for i in range(16)]
        L += [f"v_pk_add_f32 {P2(m)}, {P2(P)}, {P2(P+2)}", f"v_pk_add_f32 {P2(m+2)}, {P2(P+4)}, {P2(P+6)}"]
        L += [f"v_pk_add_f32 {P2(m+(i&2))}, {P2(m+(i&2))}, {P2(P+i)}" for i in range(8, 16, 2)]
        L += [f"v_pk_add_f32 {P2(m)}, {P2(m)}, {P2(m+2)}", f"v_add_f32 v{m}, v{m}, v{m+1}", f"v_rcp_f32 v{m}, v{m}"]
        L += [f"v_pk_mul_f32 {P2(P+i)}, {P2(P+i)}, {P2(m)} op_sel_hi:[1,0]" for i in range(0, 16, 2)]
    else:
        L += [f"v_fma_f32 v{P+i}, v{P+i}, v{vC1}, -v{m}" for i in range(16)]
        L += [f"v_exp_f32 v{P+i}, v{P+i}" for i in range(16)]
        L += [f"v_add_f32 v{m+i}, v{P+2*i}, v{P+2*i+1}" for i in range(4)]
        L += [f"v_add_f32 v{m+(i&3)}, v{m+(i&3)}, v{P+i}" for i in range(8, 16)]
        L += [f"v_add_f32 v{m}, v{m}, v{m+1}", f"v_add_f32 v{m+2}, v{m+2}, v{m+3}", f"v_add_f32 v{m}, v{m}, v{m+2}", f"v_rcp_f32 v{m}, v{m}"]
        L += [f"v_mul_f32 v{P+i}, v{P+i}, v{m}" for i in range(16)]
    L += [f"v_cvt_pk_bf16_f32 v{out+i}, v{P+2*i}, v{P+2*i+1}" for i in range(8)]
    return L

def one_lane(x): return grp(["s_mov_b64 exec, 1", x, "s_mov_b64 exec, -1"])
def rec_store(): return one_lane(vm(f"buffer_store_dwordx4 {v(vRC,4)}, off, {srd(sWS)}, s{sREC} sc1", "rec"))
def rec1_load(tag="rec1"): return vm(f"buffer_load_dwordx4 {v(vBC,4)}, v{vRA1}, {srd(sWS)}, 0 offen sc1", tag)
FOFF = [12, 0, 128, 4]
OSENT = 1
def pmask(k): return sp((sMASK, sFM)[k])
def poll(k, tag=None):
    return grp([f"s_mov_b64 exec, {pmask(k)}",
                vm(f"buffer_load_dword v{vFV}, v{vFL}, {srd(sWS)}, {f's{sFB}' if k else 0} offen offset:{FOFF[k]} sc1", tag or f"fl{k}"), "s_mov_b64 exec, -1"])
def poll_check(k):
    def p():
        a.wait(vm=f"fl{k}")
        checked([f"v_cmp_ne_u32 vcc, s{sTAG}, v{vFV}", f"s_and_b64 vcc, vcc, {pmask(k)}"], poll(k, "x"), "L_fl")
        pt(f"fl{k}")
    return fn(p, 3)
vTG = 63
def flag_store(k, tag):
    return [f"v_mov_b32 v{vTG}, s{sTAG}", wt(vm=tag), one_lane(vm(f"buffer_store_dword v{vTG}, off, {srd(sWS)}, s{sFL} offset:{FOFF[k]} sc1", "fs")), ptf(f"fs{k}")]
def clr2(sb, off, T):
    if opt("noclr", 0): return "s_nop 0"
    assert T > 27
    return vm(f"buffer_store_dwordx4 {v(vA2B if T > 30 else vT,4)}, v{vST()}, {srd(sWS)}, s{sb} offen offset:{off} sc1", "clr")

def stats():
    e = vXR + 4; r0, r1 = vXR + 12, vXR + 13
    def allsum(r):
        L = [f"v_add_f32_dpp v{r}, v{r}, v{r} row_ror:{s} row_mask:0xf bank_mask:0xf" for s in (8, 4, 2, 1)]
        L += [f"v_mov_b32 v{r1}, v{r}", f"v_permlane16_swap_b32 v{r}, v{r1}", f"v_add_f32 v{r}, v{r}, v{r1}",
              f"v_mov_b32 v{r1}, v{r}", f"v_permlane32_swap_b32 v{r}, v{r1}", f"v_add_f32 v{r}, v{r}, v{r1}"]
        return L
    S = [wt(vm="xr"), f"v_add_u32 v{vRC+3}, 1, v{vEP}"]
    for j in range(4):
        S += [f"v_lshlrev_b32 v{e+2*j}, 16, v{vXR+j}", f"v_and_b32 v{e+2*j+1}, 0xffff0000, v{vXR+j}"]
    S += [f"v_readfirstlane_b32 s{sTAG}, v{vRC+3}"]
    S += [f"v_add_f32 v{vXR+j}, v{e+2*j}, v{e+2*j+1}" for j in range(4)]
    S += [f"v_add_f32 v{vXR}, v{vXR}, v{vXR+1}", f"v_add_f32 v{vXR+2}, v{vXR+2}, v{vXR+3}", f"v_add_f32 v{r0}, v{vXR}, v{vXR+2}"]
    S += allsum(r0)
    S += [f"v_mul_f32 v{vRC}, 0xbb000000, v{r0}"]
    S += [f"v_add_f32 v{e+j}, v{e+j}, v{vRC}" for j in range(8)]
    S += [f"v_mul_f32 v{vXR+j}, v{e+j}, v{e+j}" for j in range(4)]
    S += [f"v_fmac_f32 v{vXR+j}, v{e+4+j}, v{e+4+j}" for j in range(4)]
    S += [f"v_add_f32 v{vXR}, v{vXR}, v{vXR+1}", f"v_add_f32 v{vXR+2}, v{vXR+2}, v{vXR+3}", f"v_add_f32 v{r0}, v{vXR}, v{vXR+2}"]
    S += allsum(r0)
    S += [f"v_mov_b32 v{r1}, 0x3727c5ac", f"v_fmac_f32 v{r1}, 0x3b000000, v{r0}", f"v_rsq_f32 v{vRC+2}, v{r1}",
          f"s_lshl4_add_u32 s{sREC}, s{sREC}, {REC1}" if not PRE2 & 10 else "s_nop 0", f"v_mul_f32 v{vRC+1}, v{r1}, v{vRC+2}"]
    return S

def consts0(ty):
    if ty: return []
    def clr(off): return vm(f"buffer_store_dwordx4 {v(vCL,4)}, v{vL16}, {srd(sWS)}, s{sC0} offen offset:{off} sc1", "clr")
    L = lines(f"""s_lshl2_add_u32 s{sT2}, s{sG}, s{sSIG}
    v_mov_b32 v{vCL}, -1
    s_lshl4_add_u32 s{sT2}, s{sT2}, s{sRB}
    s_mul_i32 s{sT2}, s{sT2}, 1152
    s_add_u32 s{sC0}, s{sT2}, {KVD}""")
    if not opt("noclr", 0): L += [clr(0), "s_mov_b64 exec, 15", clr(1024), "s_mov_b64 exec, -1"]
    return [fn(lambda: skip_if(f"s_cmp_eq_u32 s{sH}, 0", lambda: emits(L), "L_c0"))]
def bases(ty):
    L = lines(f"""s_lshr_b32 s{sT4}, s{sSIG}, 1
    s_lshl1_add_u32 s{sT4}, s{sRB}, s{sT4}
    s_mul_i32 s{sKB}, s{sT4}, 236
    s_and_b32 s{sT4}, s{sSIG}, 1
    s_add_u32 s{sKB}, s{sKB}, s{sT4}
    s_lshl2_add_u32 s{sT2}, s{sTILE}, s{sKB}
    s_lshl_b32 s{sT2}, s{sT2}, 10
    s_add_u32 s{sSB0}, s{sT2}, {ACT}
    s_mov_b32 s{sFB}, {FLG - 8 * REC1}
    s_lshl3_add_u32 s{sFL}, s{sREC}, s{sFB}""")
    if ty == 0:
        if ND:
            return L + lines(f"""s_lshr_b32 s{sT2}, 0xea, s{sG}
            s_and_b32 s{sT3}, s{sT2}, s{sH}
            s_lshl_b32 s{sT3}, s{sT3}, 28
            v_add_u32 v{vBA+1}, s{sT3}, v{vL16}
            s_and_b32 s{sT2}, s{sT2}, 1
            s_lshl_b32 s{sT2}, s{sT2}, 6
            v_and_b32 v{u3}, s{sT2}, v{vSW_}
            v_lshl_add_u32 v{vWC}, v{u3}, 22, v{vWC}""")
        return L + lines(f"""s_lshr_b32 s{sT2}, 0xea, s{sG}
        s_and_b32 s{sT2}, s{sT2}, s{sH}
        s_mul_i32 s{sT2}, s{sT2}, {DUM}
        s_add_u32 s{sSB0}, s{sSB0}, s{sT2}""")
    return L + lines(f"""s_add_u32 s{sC1}, s{sSB0}, 8192
    s_lshl1_add_u32 s{sT2}, s{sG}, s{sH}
    s_lshl2_add_u32 s{sT2}, s{sT2}, s{sKB}
    s_lshl_b32 s{sT2}, s{sT2}, 10
    s_add_u32 s{sC0}, s{sT2}, {ACT + 172*1024}""")
def consts1(ty):
    L = [f"s_add_u32 s{sSTART}, s{sSTART}, 4"] * (1 - ty) + lines(f"""s_add_u32 s{sTILE}, s{sSTART}, s{sH}
    s_and_b32 s{sT2}, s2, 7
    s_bfe_u32 s{sT3}, s2, 0x20003
    s_lshl2_add_u32 s{sRB2}, s{sT2}, s{sT3}
    s_lshr_b32 s{sCB}, s2, 5
    s_xor_b32 s{sCB}, s{sCB}, {opt("cbx", 2)}
    s_mov_b32 s{sW2+2}, {1376*1024}
    s_mov_b32 s{sW2+3}, 0x00020000
    s_mov_b32 s{sWO+2}, {512*1024}
    s_mov_b32 s{sWO+3}, 0x00020000""")
    if opt("mt", 15):
        n = 16 if TA & 2 else 8
        L += lines(f"""s_lshl3_add_u32 s{sT2}, s2, s{sW}
        s_lshl_b32 s{sT2}, s{sT2}, {11 if TA & 2 else 10}
        v_lshl_add_u32 v{vTCH}, v{vL}, 7, s{sT2}""")
        if EX and not ty:
            L = L[:-1] + share(vTCH, n, vTCH + 1) + waddr() + [f"s_bfe_u32 s{sT3}, s2, 0x20003"]
            n *= 2
        if opt("t3", 0):
            L += lines(f"""s_lshr_b32 s{sT2}, s2, 3
            s_lshl3_add_u32 s{sT2}, s{sT2}, s{sW}
            s_sub_u32 s{sT2}, s{sT2}, 1
            s_mul_i32 s{sT2}, s{sT2}, {n * 1024}
            s_add_u32 s{sT2}, s{sT2}, 384
            v_lshl_add_u32 v{vTCH+1}, v{vL}, 10, s{sT2}
            v_cmp_gt_u32 vcc, {n}, v{vL}
            v_cndmask_b32 v{vTCH}, v{vTCH+1}, v{vTCH}, vcc""")
            n *= 2
        L += [f"v_add_u32 v{vTCH+1}, {(1 << 32) - 1376 * 1024:#x}, v{vTCH}", fn(lambda: None) if TA & 2 and ty else touch(0, n)]
    if TOUCH:
        L += lines(f"""s_lshl3_add_u32 s{sT2}, s{sT3}, s{sW}
        s_lshl_b32 s{sT2}, s{sT2}, 9
        s_add_u32 s{sT2}, s{sT2}, s{sCB}
        s_lshl_b32 s{sT2}, s{sT2}, 7
        v_lshl_add_u32 v{vTCH}, v{vL}, 10, s{sT2}
        v_add_u32 v{vTCH+1}, {(1 << 32) - 24 * 65536:#x}, v{vTCH}""")
    L += [f"s_lshl_b32 s{sT3}, s{sT3}, 1"] * (ROT2 == 7) + lines(f"""s_xor_b32 s{sT3}, s{sT3}, s{sCB}
    s_and_b32 s{sT3}, s{sT3}, {ROT2}
    s_lshl_b32 s{sRA}, s{sT3}, 11
    s_lshl_b32 s{sRW}, s{sT3}, 14
    s_lshr_b32 s{sT3}, s{sT3}, {(ROT2 == 7) * 1}
    s_lshl_b32 s{sRA2}, s{sT3}, 11
    s_lshl_b32 s{sRW2}, s{sT3}, 14
    s_lshl1_add_u32 s{sGAM}, s{sSIG}, s{sH}
    s_mul_i32 s{sT4}, s{sGAM}, 11
    s_add_u32 s{sT4}, s{sT4}, 1
    s_lshr_b32 s{sT4}, s{sT4}, 1
    s_min_u32 s{sT4}, s{sT4}, 38
    v_and_b32 v{u3}, 7, v{vRW_}
    v_lshl_add_u32 v{u3}, v{u3}, 10, v{vSW_}
    s_lshl_b32 s{sT2}, s{sT4}, 8
    s_add_u32 s{sT2}, s{sT2}, s{sCB}
    s_lshl_b32 s{sT2}, s{sT2}, 7
    v_add_u32 v{vW2O}, s{sT2}, v{u3}
    v_add_u32 v{vW2O+1}, {8192-1024}, v{vW2O}
    s_lshl_b32 s{sT2}, s{sGAM}, 9
    s_add_u32 s{sT2}, s{sT2}, s{sCB}
    s_lshl_b32 s{sT2}, s{sT2}, 7
    v_add_u32 v{vWOO}, s{sT2}, v{u3}
    v_add_u32 v{vWOO+1}, {8192-1024}, v{vWOO}
    s_mul_i32 s{sT2}, s{sRB2}, 59
    s_add_u32 s{sT2}, s{sT2}, s{sT4}
    s_lshl_b32 s{sT2}, s{sT2}, 12
    s_add_u32 s{sT2}, s{sT2}, {ACT}
    v_add_u32 v{vACT}, s{sT2}, v{vL16}
    s_lshl1_add_u32 s{sT3}, s{sGAM}, 43
    s_sub_u32 s{sT3}, s{sT3}, s{sT4}
    s_lshl_b32 s{sAO}, s{sT3}, 12
    s_mov_b32 s{sWE+2}, {512*(2752, 3072)[ty]}
    s_mov_b32 s{sWE+3}, 0x00020000
    s_lshl_b32 s{sT2}, s{(sSTART, sG)[ty]}, {(6, 7)[ty]}
    v_mul_u32_u24 v{vWC}, {(2752, 3072)[ty]}, v{vRW_}
    v_add3_u32 v{vWC}, v{vWC}, v{vSW_}, s{sT2}
    v_lshlrev_b32 v{vBA}, 1, v{u0}
    s_movk_i32 s{sB1+2}, 2752
    s_mov_b32 s{sB1+3}, 0x00020000
    s_lshl_b32 s{sT4}, s{sTILE}, 6""")
    L += [vm(f"buffer_load_ushort v{vBA+i}, v{vBA}, {srd(sB1)}, s{sT4} offen offset:{128*i}", "misc") for i in reversed(range(1 + ty))]
    L += lines(f"""s_mov_b32 s{sPH+2}, 16384
    s_mov_b32 s{sPH+3}, 0x00020000
    s_and_b32 s{sT2}, s{sW}, 1
    s_lshl_b32 s{sT2}, s{sT2}, 10
    s_lshl_b32 s{sT3}, s{sG}, 11
    s_add_u32 s{sT3}, s{sT3}, s{sT2}""")
    return L
TOUCH = [x for x in opt("touch", "").split(",") if x]
vTCH = LT + 28
def touch(l0, n):
    m = ((1 << n) - 1) << l0
    return grp([f"s_mov_b32 exec_lo, {m & 0xffffffff:#x}", f"s_mov_b32 exec_hi, {m >> 32:#x}",
                vm(f"buffer_load_dword v{vFV}, v{vTCH}, {srd(sW2)}, 0 offen", "tch"),
                vm(f"buffer_load_dword v{vFV}, v{vTCH+1}, {srd(sWO)}, 0 offen", "tch"), "s_mov_b64 exec, -1"])
def wphi_dma():
    return grp([f"s_add_u32 m0, s{sT2}, {WPHI}", f"s_mov_b32 s{sCNT}, {SPIN}",
                vm(f"buffer_load_dwordx4 v{vL16}, {srd(sPH)}, s{sT3} offen lds", "misc")])

def consts2(ty):
    L = lines(f"""s_lshl2_add_u32 s{sT2}, s{sRB}, s{sSIG}
    s_lshl_b32 s{sT2}, s{sT2}, 9
    s_add_u32 s{sT2}, s{sT2}, {REC1}
    v_lshl_add_u32 v{vRA1}, v{u0}, 4, s{sT2}
    s_lshl_b32 s{sT2}, s{sH}, 9
    s_add_u32 s{sT2}, s{sT2}, {CW}
    v_lshl_add_u32 v{vCAR}, v{u0}, 4, s{sT2}
    s_lshl_b32 s{sT2}, s{sSIG}, 2
    v_add_u32 v{vCAW}, s{sT2}, v{vCAR}
    v_lshl_add_u32 v{t3}, v{u1}, 9, v{t3}
    v_add_u32 v{vA2B}, s{sM0R}, v{t3}
    s_mov_b32 s{sHALF}, -0.5
    s_mov_b32 s{sHALF+1}, -0.5
    s_mov_b32 s{sISQ}, 0x3f3504f3
    s_mov_b32 s{sISQ+1}, 0x3f3504f3
    s_mov_b32 s{sLOm}, -1
    s_mov_b32 s{sLOm+1}, 0
    s_mov_b32 s{sMASK}, 0xffff0000
    s_mov_b32 s{sMASK+1}, 0
    v_lshl_add_u32 v{u3}, v{u1}, 2, v{t0}
    v_lshlrev_b32 v{u3}, 5, v{u3}
    v_lshl_add_u32 v{u3}, v{t1}, 4, v{u3}
    v_bfe_u32 v{t3}, v{vL}, 1, 1
    v_lshl_add_u32 v{u3}, v{t3}, 3, v{u3}
    s_lshl_b32 s{sT2}, s{sH}, 10
    s_add_u32 s{sT2}, s{sT2}, {WPHI}
    v_add_u32 v{vPHA}, s{sT2}, v{u3}
    v_bfe_i32 v{vSGN}, v{vL}, 2, 1
    v_and_b32 v{vSGN}, 0x80008000, v{vSGN}""")
    L += [f"v_and_b32 v{vPL+i}, 0xffff, v{vPM+i}" for i in range(4)]
    L += lines(f"""s_lshr_b32 s{sT2}, s{sRB2}, 1
    s_lshl4_add_u32 s{sT2}, s{sT2}, s{sGAM}
    s_lshl_b32 s{sT2}, s{sT2}, 7
    s_add_u32 s{sT2}, s{sT2}, {REC1}
    v_and_b32 v{u3}, 8, v{vL}
    v_mul_u32_u24 v{u3}, 0x70, v{u3}
    v_and_b32 v{u2}, 15, v{vL}
    v_lshl_add_u32 v{u3}, v{u2}, 4, v{u3}
    v_add_u32 v{vFL}, s{sT2}, v{u3}""")
    if ty == 0:
        L += lines(f"""s_lshl_b32 s{sT4}, s{sSIG}, 5
        v_add_u32 v{u0}, s{sT4}, v{u0}
        v_bfe_u32 v{u2}, v{vL}, 1, 2
        v_lshlrev_b32 v{u3}, 1, v{u1}
        v_xor_b32 v{u2}, v{u2}, v{u3}
        s_lshl_b32 s{sT2}, s{sH}, 14
        s_add_u32 s{sT2}, s{sT2}, {PHI}
        v_lshl_add_u32 v{u2}, v{u2}, 4, s{sT2}
        v_lshl_add_u32 v{vPW0}, v{u0}, 6, v{u2}
        v_xor_b32 v{vPW1}, 16, v{vPW0}
        v_mul_u32_u24 v{u0}, 144, v{u0}
        v_add_u32 v{u0}, {VIMG}, v{u0}
        v_mov_b32 v{vTCH+2}, 0x3f803f80
        v_mov_b32 v{vTCH+3}, 0x3f803f80""") + [dsw(f"ds_write_b64 v{u0}, {v(vTCH+2,2)} offset:128")] + lines(f"""
        s_lshl_b32 s{sT2}, s{sH}, 6
        v_lshl_add_u32 v{vVW}, v{u1}, 4, s{sT2}
        v_add_u32 v{vVW}, v{vVW}, v{u0}
        v_lshl_add_u32 v{u1}, v{u1}, 3, v{t0}
        v_and_b32 v{u2}, 1, v{vL}
        v_lshl_add_u32 v{u2}, v{u2}, 1, v{t1}
        v_lshrrev_b32 v{u3}, 1, v{t0}
        v_xor_b32 v{u2}, v{u2}, v{u3}
        v_lshlrev_b32 v{u2}, 4, v{u2}
        v_lshl_add_u32 v{u2}, v{u1}, 6, v{u2}
        v_lshl_add_u32 v{u2}, v{t3}, 3, v{u2}
        s_lshl_b32 s{sT2}, s{sSIG}, 13
        s_add_u32 s{sT2}, s{sT2}, {PHI}
        v_add_u32 v{vKA0}, s{sT2}, v{u2}
        v_xor_b32 v{vKA1}, 32, v{vKA0}
        v_mul_u32_u24 v{u1}, 144, v{u1}
        v_add_u32 v{u2}, s{sT4}, v{t2}
        v_cmp_eq_u32 vcc, 1, v{t1}
        v_mov_b32 v{u3}, 128
        v_add_u32 v{u1}, {VIMG}, v{u1}
        v_cndmask_b32 v{u2}, v{u2}, v{u3}, vcc
        v_add_u32 v{vKB}, v{u1}, v{u2}""")
    else:
        L += lines(f"""s_lshl2_add_u32 s{sT2}, s{sG}, s{sSIG}
        s_mul_i32 s{sT2}, s{sT2}, {16*1152}
        s_add_u32 s{sT2}, s{sT2}, {KVD}
        v_lshrrev_b32 v{u3}, 4, v{vL}
        v_mul_u32_u24 v{u3}, 1152, v{u3}
        v_add_u32 v{u3}, s{sT2}, v{u3}
        s_lshl_b32 s{sT3}, s{sH}, 9
        v_lshlrev_b32 v{t2}, 4, v{u2}
        v_add3_u32 v{vGA}, v{u3}, v{t2}, s{sT3}
        v_bfe_u32 v{vGZ}, v{vL}, 1, 2
        v_mul_u32_u24 v{vGZ}, {4*1152}, v{vGZ}
        v_and_b32 v{t3}, 1, v{vL}
        v_lshl_add_u32 v{u3}, v{t3}, 4, v{u3}
        s_lshl_b32 s{sT3}, s{sH}, 5
        v_add3_u32 v{vGZ}, v{vGZ}, v{u3}, s{sT3}
        s_lshl3_add_u32 s{sT2}, s{sG}, s{sSIG}
        s_lshl4_add_u32 s{sT2}, s{sT2}, {REC1}
        v_lshl_add_u32 v{u3}, v{u2}, 11, s{sT2}
        v_cmp_eq_u32 vcc, 1, v{t1}
        s_mul_i32 s{sT2}, s{sGAM}, 544
        s_add_u32 s{sT2}, s{sT2}, {KVL}
        v_cndmask_b32 v{vFL}, v{vFL}, v{u3}, vcc
        v_lshl_add_u32 v{u3}, v{t1}, 3, s{sT2}
        v_mul_u32_u24 v{vKW}, 272, v{u1}
        v_add3_u32 v{vKW}, v{vKW}, v{u3}, v{t2}
        v_mul_u32_u24 v{vZW}, 272, v{t3}
        v_add_u32 v{vZW}, v{vZW}, v{u3}
        v_and_b32 v{u3}, 3, v{vL}
        v_bfe_u32 v{t3}, v{vL}, 2, 1
        v_lshl_add_u32 v{u3}, v{t3}, 3, v{u3}
        v_bfe_u32 v{t3}, v{vL}, 3, 1
        v_lshl_add_u32 v{u3}, v{t3}, 2, v{u3}
        v_cndmask_b32 v{u3}, v{u3}, 16, vcc
        v_lshlrev_b32 v{u3}, 4, v{u3}
        v_mul_u32_u24 v{u1}, 544, v{u1}
        s_mul_i32 s{sT3}, s{sH}, 2176
        s_add_u32 s{sT3}, s{sT3}, {KVL}
        v_add3_u32 v{vKR}, v{u3}, v{u1}, s{sT3}""")
    return L
def consts3(ty):
    return lines(f"""s_mov_b32 s{sOUT+2}, {2048*1024}
    s_mov_b32 s{sOUT+3}, 0x00020000
    s_and_b32 s{sT2}, s{sRB2}, 1
    s_lshl_b32 s{sT2}, s{sT2}, 1
    s_lshl_b32 s{sFM}, 0x3333, s{sT2}
    s_mov_b32 s{sFM+1}, 0
    """) + (lines(f"""s_lshl3_add_u32 s{sT2}, s{sRB2}, s{sW}
    s_lshl_b32 s{sR2}, s{sT2}, 7
    s_add_u32 s{sR2}, s{sR2}, {REC1}
    s_lshl_b32 s{sT2}, s{sT2}, 6
    s_add_u32 s{sT2}, s{sT2}, s{sCB}
    s_lshl_b32 s{sOB}, s{sT2}, 7""") if FL else lines(f"""
    s_lshl1_add_u32 s{sT2}, s{sRB2}, s{sH}
    s_lshl_b32 s{sR2}, s{sT2}, 9
    s_add_u32 s{sR2}, s{sR2}, {REC1}
    s_lshl_b32 s{sT2}, s{sT2}, 10
    s_lshl2_add_u32 s{sT3}, s{sCB}, s{sSIG}
    s_add_u32 s{sT2}, s{sT2}, s{sT3}
    s_lshl_b32 s{sOB}, s{sT2}, 5"""))

vACC, vWR = 64, 128
vOO, vRSA, vEC, vRS2, vRES, vRW, vRR, vC0, vS0 = 8, 9, 10, 14, 16, 20, 21, 22, 24
vMT = 16
def areg(j): return [192, 200, 208, 248][j % 12] if j % 12 < 4 else (184 + 8 * (j % 8) if j < 9 else 40 + 8 * (j - 9))
def wreg(j): return vWR + 8 * (j % 7)
WS_ = {}
def w_item(j, s):
    WS_[j] = s
    so = (f"s_mov_b32 s{sT0}, {j << 14}" if 8 <= j < 12 else f"s_xor_b32 s{sT0}, s{sRW if j < 8 else sRW2}, {(j % 12) << 14}")
    d, ad = (srd(sW2), vW2O) if j < 12 else (srd(sWO), vWOO)
    return grp([f"s_add_u32 m0, s{sM0R}, {s * SZ}", so,
                vm(f"buffer_load_dwordx4 v{ad}, {d}, s{sT0} offen lds", f"w{j}"),
                vm(f"buffer_load_dwordx4 v{ad+1}, {d}, s{sT0} offen offset:1024 lds", f"w{j}")])
def w_read(j):
    s = WS_[j]
    ad = [vA2L, vA2M, vA2T][s >> 2]; off = (s & 3) * SZ
    L = [wt(vm=f"w{j}")]
    for b in range(2):
        L.append(dsw(f"ds_read_b64_tr_b16 {v(wreg(j)+4*b,2)}, v{ad+b} offset:{off}", f"r{j}"))
        L.append(dsw(f"ds_read_b64_tr_b16 {v(wreg(j)+4*b+2,2)}, v{ad+b} offset:{off+1024}", f"r{j}"))
    return L
vBW, vBR = 38, 56
def w_raw(j):
    WS_[j] = -1
    return [grp([f"s_xor_b32 s{sT0}, s{sRW}, {j << 14}", vm(f"buffer_load_dwordx4 {v(wreg(j)+4,4)}, v{vW2O}, {srd(sW2)}, s{sT0} offen", f"w{j}")]),
            grp([f"s_xor_b32 s{sT0}, s{sRW}, {j << 14}", vm(f"buffer_load_dwordx4 {v(wreg(j)+8,4)}, v{vW2O+1}, {srd(sW2)}, s{sT0} offen offset:1024", f"w{j}")])]
def bnc_addrs():
    return lines(f"""s_lshr_b32 s{sT2}, s{sM0R}, 1
    s_sub_u32 s{sT3}, {BNC}, s{sT2}
    s_add_u32 s{sT2}, s{sT2}, {BNC}
    v_add_u32 v{vBW}, s{sT2}, v{vL16}
    v_add_u32 v{vBR}, s{sT3}, v{vA2L}
    v_add_u32 v{vBR+1}, s{sT3}, v{vA2L+1}""")
def w_conv(j):
    L = [wt(vm=f"w{j}")]
    for hf in range(2):
        L.append(dsw(f"ds_write_b128 v{vBW}, {v(wreg(j)+4+4*hf,4)}", f"r{j}"))
        L += [dsw(f"ds_read_b64_tr_b16 {v(wreg(j)+4*b+2*hf,2)}, v{vBR+b}", f"r{j}") for b in range(2)]
    return L
def w_refill(j, q):
    return [wt(lg=f"r{q}"), w_item(j, WS_[q])]
def p2_addrs():
    return lines(f"""v_mov_b32 v{vA2L}, v{vA2B}
    v_xor_b32 v{vA2L+1}, 64, v{vA2B}
    v_add_u32 v{vA2M}, {4*SZ}, v{vA2L}
    v_add_u32 v{vA2M+1}, {4*SZ}, v{vA2L+1}
    v_add_u32 v{vA2T}, {8*SZ}, v{vA2L}
    v_add_u32 v{vA2T+1}, {8*SZ}, v{vA2L+1}""")
def a_load(j, tag=None, st=(0, 1)):
    def p():
        if j < 8: a(f"s_xor_b32 s{sT1}, s{sRA}, {j << 11}")
        elif j < 12: a(f"s_movk_i32 s{sT1}, {j << 11}")
        else: a(f"s_xor_b32 s{sT1}, s{sRA2}, {(j - 12) << 11}\ns_add_u32 s{sT1}, s{sAO}, s{sT1}")
        for s in st:
            if not opt("noact", 0): a.vmem(f"buffer_load_dwordx4 {v(areg(j)+4*s,4)}, v{vACT}, {srd(sWS)}, s{sT1} offen offset:{1024*s} {'sc1' if j >= opt('asc', 0) else opt('asf', '')}", tag or f"a{j}")
    return fn(p, 3 * len(st) + 1)
def p6(body): skip_if(f"s_cmp_lt_u32 s{sW}, 3", body, "L_p6")
def p6f(L): return fn(lambda: p6(lambda: emits(L)), 6)
def selectors(tmp):
    L = lines(f"""v_and_b32 v{tmp}, 1, v{vL}
    v_mov_b32 v{tmp+1}, 0x3f80
    v_lshlrev_b32 v{tmp}, 4, v{tmp}
    v_lshlrev_b32 v{tmp+1}, v{tmp}, v{tmp+1}
    v_bfe_u32 v{tmp}, v{vL}, 1, 3""")
    for r in range(0, 8, 2):
        L += [grp([f"v_cmp_eq_u32 vcc, {r}, v{tmp}", f"v_cmp_eq_u32 {sp(sCM)}, {r+1}, v{tmp}",
                   f"v_cndmask_b32 v{vS0+r}, 0, v{tmp+1}, vcc", f"v_cndmask_b32 v{vS0+r+1}, 0, v{tmp+1}, {sp(sCM)}"])]
    return L
FL = opt("fl", 0)
WS2, TS2 = 2048, 2 * SZ + 128
def tail_addrs():
    x = vC0
    if FL: return lines(f"""v_bfe_u32 v{x}, v{vL}, 2, 2
    v_lshrrev_b32 v{x+1}, 5, v{vL}
    v_lshl_add_u32 v{x+1}, v{x+1}, 2, v{x}
    v_lshlrev_b32 v{vRSA}, 4, v{x+1}
    v_and_b32 v{vOO}, 16, v{vL}
    v_lshl_add_u32 v{vOO}, v{x+1}, 10, v{vOO}
    v_and_b32 v{x+1}, 3, v{vL}
    v_lshl_add_u32 v{vOO}, v{x+1}, 5, v{vOO}
    v_add_u32 v{vRW}, s{sM0R}, v{vL16}
    s_lshl_b32 s{sT2}, s{sH}, 16
    s_lshl_b32 s{sT3}, s{sSIG}, 7
    s_add_u32 s{sT2}, s{sT2}, s{sT3}
    v_lshl_add_u32 v{vRR}, v{x}, 4, s{sT2}
    v_and_b32 v{x}, 1, v{vL}
    v_mul_u32_u24 v{x}, {SZ + 64}, v{x}
    v_bfe_u32 v{x+1}, v{vL}, 1, 1
    v_mul_u32_u24 v{x+1}, {TS2}, v{x+1}
    v_add3_u32 v{vRR}, v{vRR}, v{x}, v{x+1}
    v_lshrrev_b32 v{x}, 4, v{vL}
    v_lshl_add_u32 v{vRR}, v{x}, 11, v{vRR}
    v_add_u32 v{x+1}, 0x10000, v{vRW}""")
    return lines(f"""v_and_b32 v{x}, 15, v{vL}
    v_lshrrev_b32 v{x+1}, 5, v{vL}
    v_lshl_add_u32 v{x+1}, v{x+1}, 4, v{x}
    v_lshlrev_b32 v{vRSA}, 4, v{x+1}
    v_and_b32 v{vOO}, 16, v{vL}
    v_lshl_add_u32 v{vOO}, v{x+1}, 10, v{vOO}
    v_add_u32 v{vRW}, s{sM0R}, v{vL16}
    s_lshr_b32 s{sT2}, s{sW}, 1
    s_and_b32 s{sT3}, s{sW}, 1
    s_lshl4_add_u32 s{sT2}, s{sT2}, s{sT3}
    s_lshl_b32 s{sT2}, s{sT2}, 10
    v_lshl_add_u32 v{x}, v{x}, 4, s{sT2}
    v_lshrrev_b32 v{x+1}, 4, v{vL}
    v_lshl_add_u32 v{vRR}, v{x+1}, 11, v{x}""")
def rs_load(tag="rs"): return vm(f"buffer_load_dwordx2 {P2(vRS2)}, v{vRSA}, {srd(sWS)}, s{sR2} offen offset:8 sc1", tag)
def res_load(): return vm(f"buffer_load_dwordx4 {v(vRES,4)}, v{vOO}, {srd(sX)}, s{sOB} offen", "res")
def ep_loads():
    a(f"v_lshlrev_b32 v{vBW}, 7, v{vL}")
    for i in range(4):
        a(f"s_mov_b32 s{sT2}, {REC1 + i*8192}")
        a(f"buffer_load_dword v{vEC+i}, v{vBW}, {srd(sWS)}, s{sT2} offen offset:12 sc1")
def if_first(body):
    a(f"s_or_b32 s{sT2}, s2, s{sW}")
    skip_if(f"s_cmp_eq_u32 s{sT2}, 0", body, "L_ep")
def maxchain(regs, d):
    L = []; regs = list(regs); first = True
    while regs:
        if first: x = regs[:3]; regs = regs[3:]; first = False
        else: x = [d] + regs[:2]; regs = regs[2:]
        L.append(f"v_max3_u32 v{d}, v{x[0]}, v{x[1]}, v{x[2]}" if len(x) == 3 else f"v_max_u32 v{d}, v{x[0]}, v{x[1]}")
    return L + [f"v_cmp_eq_u32 vcc, -1, v{d}"]
def sentinel(js, st):
    checked(maxchain([areg(j) + 4 * s for j in js for s in st], vC0), lambda: emits([a_load(j, "x", st) for j in js]), "L_s")
def step_mfma(j, st, first=False, gaps=()):
    gaps = list(gaps)
    for s in st:
        for b in range(2):
            acc = vACC + 32 * s + 16 * b
            a(f"{MF} {v(acc,16)}, {v(wreg(j)+4*b,4)}, {v(areg(j)+4*s,4)}, {'0' if first else v(acc,16)}")
            if gaps: emits(gaps.pop(0))
    for g in gaps: emits(g)

def c_loads(): return [p6f([a_load(10), a_load(11)]), a_load(8), a_load(9)]
def o_loads(): return [a_load(j, "o0", (0,)) for j in range(12, 16)] + [a_load(j, "o1", (1,)) for j in range(12, 16)]
WP = [[x for x in opt(k, "").split(",") if x] for k in ("awp", "bwp")]
def phase2(ty, side, GR, spec):
    def add(p, L): side[p] = side.get(p, []) + L
    assert sorted(WS_) == list(range(16))
    last = -1
    for x in WP[ty]:
        j, p = map(int, x.split("@")); assert p < j; last = p
        add(p, w_conv(j))
    for x in spec.split(","):
        n, p = x.split("@")
        assert n != "o" or int(p) >= 4
        assert n != "c" or int(p) >= last
        add(int(p), GR.pop(n))
    assert not set(GR) - set("hl"), GR
    add(5, [p6f(w_read(10) + w_read(11))])
    for j, k in ((7, 1), (8, 2), (9, 3), (12, 6), (13, 7), (14, 8), (15, 9)): add(k, w_read(j))
    for j in range(10):
        if j == 8:
            a.wait(vm="a9")
            sentinel((8, 9), (0, 1))
        a.wait(vm=f"a{j}", lg=f"r{j}")
        pt(f"s{j}")
        if j == 0: pt("f0")
        step_mfma(j, (0, 1), j == 0, split(side.get(j, []), 4))
    a.wait(lg="r12")
    def body():
        sentinel((10, 11), (0, 1))
        for j in (10, 11): step_mfma(j, (0, 1))
    p6(body)
    emits(side.get(10, []))
    pt("f1")
    a.wait(vm="o0", lg="all")
    if OSENT: sentinel(range(12, 16), (0,))
    pt("f2")
    checked([f"v_cmp_ne_u32 vcc, s{sTAG}, v{vRS2+1}"], rs_load("x"), "L_rs")
    vU = 216
    U = []
    for j in range(4): U += [f"v_lshlrev_b32 v{vU+2*j}, 16, v{vRES+j}", f"v_and_b32 v{vU+1+2*j}, s{sMASK}, v{vRES+j}"]
    G = split(U, 8)
    for j in range(12, 16): step_mfma(j, (0,), False, G[2*(j-12):2*(j-12)+2])
    a.wait(vm="o1")
    if OSENT: sentinel(range(12, 16), (1,))
    def pack(k):
        acc = vACC + 16 * k; L = []
        for hf in range(2):
            L += [f"v_cvt_pk_bf16_f32 v{acc+4*hf+i}, v{acc+8*hf+2*i}, v{acc+8*hf+2*i+1}" for i in range(4)]
            L += [dsw(f"ds_write_b128 v{vC0+1 if FL and k > 1 else vRW}, {v(acc+4*hf,4)} offset:{(k&1)*TS2+(SZ+64)*hf if FL else k*SZ+1024*hf}")]
        return L
    G = [[]] + split(pack(0) + pack(1), 7)
    for j in range(12, 16): step_mfma(j, (1,), False, G[2*(j-12):2*(j-12)+2])
    pt("f3")
    if ty == 0:
        def ep():
            checked([f"v_xor_b32 v{vEC+i}, s{sTAG}, v{vEC+i}" for i in range(4)] +
                    [f"v_or3_b32 v{vEC}, v{vEC}, v{vEC+1}, v{vEC+2}", f"v_or_b32 v{vEC}, v{vEC}, v{vEC+3}", f"v_cmp_ne_u32 vcc, 0, v{vEC}"],
                    ep_loads, "L_epc")
            a(f"""v_mov_b32 v{vEC}, s{sTAG}
            s_mov_b64 exec, 1
            buffer_store_dword v{vEC}, off, {srd(sWS)}, 0 sc1
            s_mov_b64 exec, -1""")
        if_first(ep)
    emits(pack(2) + pack(3))
    a.wait(lg="all")
    a("s_barrier")
    R = 224
    for p in range(4):
        for k in range(2):
            a.ds(f"ds_read_b128 {v(R+8*p+4*k,4)}, v{vRR} offset:{4*WS2*k+64*(p&1)+512*(p>>1) if FL else 8192*k+256*p}", f"t{p}{k}")
    D = vWR
    for p in (0, 2, 1, 3):
        for k in range(2):
            a.wait(lg=f"t{p}{k}")
            d = D + 4 * (p >> 1)
            a(f"{MF16} {v(d,4)}, {v(vS0+4*(p&1),4)}, {v(R+8*p+4*k,4)}, {'0' if (p & 1) == 0 and k == 0 else v(d,4)}")
    for j in range(0, 8, 2): a(f"v_pk_fma_f32 {P2(D+j)}, {P2(D+j)}, {P2(vRS2)}, {P2(vU+j)} op_sel_hi:[1,0,1]")
    for j in range(4): a(f"v_cvt_pk_bf16_f32 v{D+8+j}, v{D+2*j}, v{D+2*j+1}")
    a(f"buffer_store_dwordx4 {v(D+8,4)}, v{vOO}, {srd(sOUT)}, s{sOB} offen {opt('osf', '')}")
    pt("end")
    a("s_branch L_fin")

def reads(T):
    tg = f"k{T}"; ks = T & 3
    if T < 32:
        off = ((T >> 2) & 3) * SZ; b = vWF + 8 * ks
        return [dsw(f"ds_read_b128 {v(vX+4*T,4)}, v{vXA+ks} offset:{off}", tg)] + [
                dsw(f"ds_read_b64_tr_b16 {v(b+2*i,2)}, v{vPM+ks} offset:{off+512*i}", tg) for i in range(4)]
    t = T - 32; s = RS[t >> 3]; ad = (vPL if s < 4 else vPM) + ks; off = (s & 3) * SZ + ((t >> 2) & 1) * 1024
    return [dsw(f"ds_read_b64_tr_b16 {v(vWF+4*ks+2*i,2)}, v{ad} offset:{off+512*i}", tg) for i in range(2)]
def bar(vmt=None, lg=None, name=None):
    def p():
        for x in ([vmt] if isinstance(vmt, str) else (vmt or [])): a.wait(vm=x)
        if lg: a.wait(lg=lg)
        if name: pt(name + "w")
        a("s_barrier")
        if name: pt(name)
    return fn(p, 1)
def put(S, T, L): S[T] = S.get(T, []) + list(L)
def spread(S, L, T0, T1):
    for i, G in enumerate(split(L, T1 - T0 + 1)): put(S, T0 + i, G)
def corr(quads, biases):
    L = [f"v_lshlrev_b32 v{b}, 16, v{b}" for b in biases if b] + [wt(lg="cw")]
    for q in quads: L += [f"v_add_f32 v{q}, v{q}, v{q+1}", f"v_add_f32 v{q+2}, v{q+2}, v{q+3}"]
    L += [f"v_add_f32 v{q}, v{q}, v{q+2}" for q in quads]
    return L + [f"v_cndmask_b32 v{q}, {v(b) if b else 0}, v{q}, {sLO}" for q, b in zip(quads, biases)]
SEQ = opt("seq", "x3/x4/x5/x6/x7/b0,b1/b2,b3").split("/")
DSP = opt("dsp", 1)
SPL = opt("spl", 3)
vQ2 = 44
def stream(ty, S, E):
    DQ = [L for n in opt("pre", "x2").split(",") if n for L in item(n)]
    for c in range(7): E[4 * c + 1] = [bar(f"x{c+1}", None, f"c{c}")] + E.get(4 * c + 1, [])
    S[29] = [dsw(f"ds_write_b32 v{vCAW}, v{vCS+4*i} offset:{1024*i}", "cw") for i in range(2)] + S.get(29, [])
    S[30] = [dsw(f"ds_read_b128 {v(vT+4*i,4)}, v{vCAR} offset:{1024*i}", "cw") for i in range(2)] + S.get(30, [])
    put(S, 31, corr((vT, vT + 4), (vBA, vBA + 1) if ty else (None, None)))
    S[32] = [f"{MF32} {v(K,16)}, v{q}, v{vBC}, {v(K,16)}" for K, q in ((K0, vT), (K1, vT + 4))] + S.get(32, [])
    S[61] = [dsw(f"ds_write_b32 v{vCAW}, v{vCS} offset:1024", "cw")] + S.get(61, [])
    S[62] = [dsw(f"ds_read_b128 {v(vQ2,4)}, v{vCAR} offset:1024", "cw")] + S.get(62, [])
    put(S, 63, corr((vQ2,), (None if ty else vBA,)) + [f"{MF32} {v(K2,16)}, v{vQ2}, v{vBC}, {v(K2,16)}"])
    emits(reads(0) + reads(1))
    for T in range(64):
        t = T & 31; ks = T & 3
        R = reads(T + 2) if T < 30 else (reads(32) + reads(33) if T == 30 else (reads(T + 3) if T + 3 < 64 else []))
        pt(f"T{T}")
        a.wait(lg=f"k{T}")
        F = S.get(T, [])
        if T < 32:
            b = vWF + 8 * ks
            G = split(F, 2)
            a(f"{MF} {v(K0,16)}, {v(b,4)}, {v(vX+4*t,4)}, {'0' if t == 0 else v(K0,16)}")
            emits(R[:SPL])
            if DQ and (DSP > 1 or T < 2): emits(DQ.pop(0))
            emits(G[0])
            a(f"{MF} {v(K1,16)}, {v(b+4,4)}, {v(vX+4*t,4)}, {'0' if t == 0 else v(K1,16)}")
            emits(R[SPL:])
            if DQ: emits(DQ.pop(0))
            if ks == 0:
                for i in range(2): a(f"{MF16} {v(vCS+4*i,4)}, {v(vSEL,4)}, {v(b+4*i,4)}, {'0' if t == 0 else v(vCS+4*i,4)}")
            emits(G[1])
        else:
            b = vWF + 4 * ks
            if ks == 0: a(f"{MF16} {v(vCS,4)}, {v(vSEL,4)}, {v(b,4)}, {'0' if t == 0 else v(vCS,4)}")
            a(f"{MF} {v(K2,16)}, {v(b,4)}, {v(vX+4*t,4)}, {'0' if t == 0 else v(K2,16)}")
            emits(R + F)
        if ks == 1: assert not DQ
        emits(E.get(T, []))
        if T < 28 and ks == 1:
            for n in SEQ[T >> 2].split(","):
                if n: DQ += item(n)
        if t == 31: pt(f"p{1 + (T >> 5)}")
    assert not DQ
PH = [vXA, vCS + 4]
def ph_reads(): return [dsw(f"ds_read_b64_tr_b16 {v(PH[i>>1]+2*(i&1),2)}, v{vPHA} offset:{256*i}", "ph") for i in range(4)]
def ph_signs(): return [wt(lg="ph")] + [f"v_xor_b32 v{PH[i>>2]+(i&3)}, v{vSGN}, v{PH[i>>2]+(i&3)}" for i in range(8)]
def start(ty, S, E):
    LATE = []
    if PRE2 & 8:
        C1 = consts1(ty); k = C1.index(f"s_movk_i32 s{sB1+2}, 2752")
        tch = [x for x in C1[:k] if callable(x)]
        C2 = consts2(ty) + bases(ty) + consts3(ty)
        def low(x): return isinstance(x, str) and x[:2] == "s_" and 36 <= int(x.split()[1].strip("s,")) < 48
        i = C2.index(f"s_lshl_b32 s{sFM}, 0x3333, s{sT2}")
        LATE = [tch + C1[k:], C2[i-2:i] + [x for x in C2 if low(x)]]
        L = B3[B3N:] + consts0(ty) + [x for x in C1[:k] if not callable(x)] + [f"s_lshl4_add_u32 s{sREC}, s{sREC}, {REC1}"] + [x for x in C2 if not low(x)]
        emits(merge(L, [grp(G) for n in PRO for G in item(n)], opt("x1a", 150), opt("x1b", 300)))
    else: emits(consts0(ty))
    pt("i1")
    a("s_waitcnt lgkmcnt(0)")
    if MW == 3: wtouch()
    if opt("mt", 15) == 2: emits(LATE[0][:1]); LATE[0] = LATE[0][1:]
    if PRE2 & 1: emits(consts1(ty) + [wphi_dma()])
    if PRE2 & 2: emits([f"s_lshl4_add_u32 s{sREC}, s{sREC}, {REC1}"] + consts2(ty) + bases(ty))
    if PRE2 & 4: emits(consts3(ty))
    LP = opt("lp", 5)
    OT = [vm(f"buffer_load_dword v{vFV}, off, {srd(sOUT)}, s{sOB}", "tch")] * opt("ot", 1)
    if LP < 0:
        k = opt("mt", 15) != 2
        emits(LATE[0][k:] + [wphi_dma()] + OT); LATE[0] = LATE[0][:k]
    pt("i2")
    a.wait(vm="x0")
    a("s_barrier")
    pt("p0")
    F0, F1, F2 = opt("f0", 6), opt("f1", 13), opt("f2", 26)
    RECP = opt("recp", 7)
    assert RECP >= max(F0, 5) and F1 % 4 == 1 and F2 <= 26
    spread(S, stats(), 0, F0)
    if MW >= 10: put(E, MW - 10, [fn(wtouch)])
    if opt("mt", 15) >= 10: put(E, opt("mt", 15) - 10, LATE[0][:1]); LATE[0] = LATE[0][1:]
    put(E, RECP, [rec_store()])
    if PRE2 & 8:
        if LP > 0: assert LP % 4 == 1 and LP <= F1; put(E, LP, LATE[0] + [wphi_dma()] + OT)
        elif LP < 0: put(S, F0 + 1, LATE[0])
        else: spread(S, LATE[0], F0 + 1, F1); put(E, F1, [wphi_dma()] + OT)
        spread(S, LATE[1], F1 + 1, F1 + 6)
    elif not PRE2 & 1:
        spread(S, consts1(ty), F0 + 1, F1)
        put(E, F1, [wphi_dma()])
    l0 = 0
    for x in TOUCH:
        T, n = map(int, x.split(":")); assert F0 + 3 <= T <= 28
        put(E, T, [touch(l0, n)]); l0 += n
    if not PRE2 & 10: spread(S, consts2(ty) + bases(ty), (F0 if PRE2 & 1 else F1) + 1, F2)
    if not PRE2 & 12: spread(S, consts3(ty), 27, 28)
    put(E, opt("rpos", 24), [rec1_load()])
    def rec():
        a.wait(vm="rec1")
        checked([f"v_cmp_ne_u32 vcc, s{sTAG}, v{vRSTD}"], rec1_load("x"), "L_rec1")
    put(S, 29, [fn(rec), f"v_cndmask_b32 v{vBC}, v{vSD}, v{vBC}, {sLO}", f"v_mov_b32 v{vRSTD}, v{vC1}", f"v_mul_f32 v{vC1}, {LOG2E}, v{vC1}"])
    put(E, 29, [bar("b1", "all", "e1")] + [poll(0)] * ty)
    put(S, 27, [f"v_mov_b32 v{vT}, -1"])
    put(S, 30, p2_addrs() + [f"v_mov_b32 v{vA2B}, -1"])
    put(E, 44, [poll_check(0)] * ty + [bar("b3", "all", "m2"), f"v_lshlrev_b32 v{vFL}, 3, v{vFL}"])
def rest():
    fs = [x for x in range(9) if x not in WS_.values()]
    return [w_item(j, fs.pop(0)) for j in range(16) if j not in WS_]
def place(M, spec, GR, nm="M"):
    ins = {}
    for x in [y for y in spec.split(",") if y]:
        n, r = x.split("@"); r = [int(y) for y in r.split("-")]; L = GR.pop(n)
        for i, y in enumerate(L): ins.setdefault(r[0] + (r[-1] - r[0]) * i // len(L), []).append(y)
    for i in range(300):
        pt(f"{nm}{i}")
        emits(ins.get(i, []))
        if i < len(M): emit(M[i])
def sched(S, spec, free):
    for x in spec.split(","):
        n, T = x.split("@"); T = int(T)
        if n[0] == "r":
            j = int(n[1:]); assert T >= 34 + 2 * j
            for i, g in enumerate(w_raw(j)): put(S, T + i, [g])
        elif n[0] == "c": assert T != 30; put(S, T, [clr2(*CLR[int(n[1:])], T)])
        else:
            j, sl = map(int, n.split(":")); assert T > free[sl], x
            put(S, T, [w_item(j, sl)])

def witems(spec):
    L = []
    for x in [y for y in spec.split(",") if y]:
        j, sl = map(int, x.split(":")); L.append(w_item(j, sl))
    return L
st1 = a.save()
a(f"""s_bitcmp1_b32 s2, 7
s_cbranch_scc1 L_B""")
TYPE[0] = 0
S, E = {}, {}
start(0, S, E)
put(S, 30, ph_reads())
put(S, 32, ph_signs())
V = []
for hf in range(2):
    V += [f"v_mul_f32 v{K1+8*hf+i}, v{K1+8*hf+i}, v{vRSTD}" for i in range(8)]
    V += [f"v_cvt_pk_bf16_f32 v{K1+8*hf+i}, v{K1+8*hf+2*i}, v{K1+8*hf+2*i+1}" for i in range(4)]
    V += [dsw(f"ds_write_b128 v{vVW}, {v(K1+8*hf,4)} offset:{32*hf}")]
L = [f"v_cvt_pk_bf16_f32 v{vT+j}, v{K0+2*j}, v{K0+2*j+1}" for j in range(8)]
L += [ptf("L1")] + V[:2] + [f"{MF} {v(K0,16)}, {v(PH[0],4)}, {v(vT,4)}, 0"] + V[2:] + [f"{MF} {v(K1,16)}, {v(PH[1],4)}, {v(vT+4,4)}, 0"]
PKA = opt("pka", 1)
for hd, P in enumerate((K0, K1)):
    L += [ptf(f"L{2+hd}")] + softmax(P, P, PKA, vT)
    L += [dsw(f"ds_write_b128 v{vPW0}, {v(P,4)} offset:{hd*8192}"), dsw(f"ds_write_b128 v{vPW1}, {v(P+4,4)} offset:{hd*8192}")]
SPOS = opt("spos", 36)
KI = witems(opt("ki", "8:7"))
if KI: L = merge(L, KI, opt("ki0", 60))
spread(S, L, opt("ka", 33), SPOS)
FS = 44 if SPOS < 44 else 61
CLR = [(sSB0, 0), (sSB0, 2048)]
put(S, opt("fpa", 48), flag_store(1, "clr"))
sched(S, opt("sa", "c0@28,c1@28,7:6@31,r0@38,r1@41,r2@44,r3@46,9:0@48,r4@50,r5@53,r6@56,12:4@59"),
      {6: 29, 7: 29, 0: 44, 4: 44, 1: 61, 5: 61, 2: FS, 3: FS, 8: FS})
def kv():
    KB = [K1, K1 + 8, vT]
    def kv_reads(t):
        b = KB[t % 3]
        a.ds(f"ds_read_b64_tr_b16 {v(b,2)}, v{vKA0} offset:{t*1024}", f"kv{t}")
        a.ds(f"ds_read_b64_tr_b16 {v(b+2,2)}, v{vKA1} offset:{t*1024+256}", f"kv{t}")
        a.ds(f"ds_read_b64_tr_b16 {v(b+4,2)}, v{vKB} offset:{t*2304}", f"kv{t}")
        a.ds(f"ds_read_b64_tr_b16 {v(b+6,2)}, v{vKB} offset:{t*2304+576}", f"kv{t}")
    if opt("kprio", 1): a("s_setprio 2")
    for t in range(3): kv_reads(t)
    for t in range(8):
        a.wait(lg=f"kv{t}")
        b = KB[t % 3]
        a(f"{MF} {v(K0,16)}, {v(b,4)}, {v(b+4,4)}, {'0' if t == 0 else v(K0,16)}")
        if t >= 1 and t + 2 < 8: kv_reads(t + 2)
    for i in range(8): a(f"v_cvt_pk_bf16_f32 v{K1+i}, v{K0+2*i}, v{K0+2*i+1}")
    for i in range(4): a(f"v_permlane16_swap_b32 v{K1+i}, v{K1+4+i}")
    a(f"""buffer_store_dwordx4 {v(K1,4)}, v{vL16}, {srd(sWS)}, s{sC0} offen sc1
    s_mov_b32 exec_lo, 0x00010001
    s_mov_b32 exec_hi, 0x00010001
    buffer_store_dwordx4 {v(K1+4,4)}, v{vL}, {srd(sWS)}, s{sC0} offen offset:1024 sc1
    s_mov_b64 exec, -1""")
    if opt("kprio", 1): a("s_setprio 0")
    pt("kv")
put(E, SPOS, [bar(None, "all", "S"), fn(lambda: skip_if(f"s_cmp_eq_u32 s{sH}, 0", kv, "L_kv"))])
spread(S, selectors(K1), max(SPOS + 2, 50), 61)
CPR = opt("cpr", 1)
put(E, 61, [bar(None, "all", "Y"), p6f([w_item(10, 1), w_item(11, 5)])] + ["s_setprio 3"] * CPR)
stream(0, S, E)
def groups():
    G = {"a": [a_load(j) for j in range(4)], "b": [a_load(j) for j in range(4, 8)], "c": c_loads(), "o": o_loads(),
         "w": bnc_addrs() + sum([w_conv(j) for j in range(7 - len(WP[TYPE[0]]))], []), "s": rest(), "r": [rs_load(), res_load()]}
    if opt("bsp", 0): G["q"] = G["b"][2:]; G["b"] = G["b"][:2]
    for k in (1,): G[f"p{k}"] = [poll(k)]; G[f"k{k}"] = [poll_check(k)]
    return G
GR = groups()
place(mish_store(K2, True, sSB0, vMT) + ["s_setprio 0"] * CPR + [ptf("ms")] + tail_addrs(), opt("ao", "s@0-20,p1@12,w@40-90,k1@30,a@30-44,b@78-90,r@96"), GR)
phase2(0, {1: [fn(lambda: if_first(ep_loads), 4)]}, GR, opt("ap", "c@4,o@9"))

a.label("L_B")
a.restore(st1)
TYPE[0] = 1
WS_.clear()
S, E = {}, {}
start(1, S, E)
J0 = opt("j0", 21)
assert J0 % 4 == 1
put(E, J0, [w_item(7, 8)])
CLR = [(sC0, 0), (sC0, 2048)]
sched(S, opt("sb", "c0@28,c1@28," * OSENT + "8:2@31,r0@37,r1@40,r2@43,r3@46,r4@49,r5@52,r6@55"),
      {2: 29, 3: 29, 6: 29, 7: 29, 0: 44, 4: 44})
PKB = opt("pkb", 1)
MB = mish_store(K0, PKB, sSB0, vT) + mish_store(K1, PKB, sC1, vT) + selectors(K0 + 8)
MI = witems(opt("mi", "9:3,12:6,13:7"))
if MI: MB = merge(MB, MI, opt("mi0", 20))
spread(S, MB, 33, opt("ma", 35))
FPB = opt("fpb", 58)
if FPB: put(S, FPB, flag_store(1, "st"))
put(S, 56, ph_reads()); put(S, 62, ph_signs())
put(E, 61, [bar(None, "all", "Y"), p6f([w_item(10, 1), w_item(11, 5)])] + ["s_setprio 3"] * CPR)
vTL = [K0 + 4 * i for i in range(8)]; vZL = 128 if opt("gpos", 0) else 64
Q0, Q1 = 216, 232
def t_load(i, tag=None):
    def p():
        a(f"s_movk_i32 s{sT1}, {(i>>1)*4*1152}")
        a.vmem(f"buffer_load_dwordx4 {v(vTL[i],4)}, v{vGA}, {srd(sWS)}, s{sT1} offen offset:{(i&1)*256} sc1", tag or "t")
    return fn(p, 4)
def z_load(tag=None): return vm(f"buffer_load_dwordx4 {v(vZL,4)}, v{vGZ}, {srd(sWS)}, 0 offen offset:1024 sc1", tag or "t")
GL = [z_load()] + [t_load(i) for i in range(8)]
GPOS = opt("gpos", 0)
if GPOS:
    assert GPOS > 44
    spread(S, [ptf("g0")] + GL, GPOS, opt("gend", 61))
PP = opt("pp", 0)
if PP: put(S, PP, [poll(1)])
stream(1, S, E)
for j in range(8): a(f"v_cvt_pk_bf16_f32 v{K2+j}, v{K2+2*j}, v{K2+2*j+1}")
a(f"{MF} {v(Q0,16)}, {v(PH[0],4)}, {v(K2,4)}, 0")
a(f"{MF} {v(Q1,16)}, {v(PH[1],4)}, {v(K2+4,4)}, 0")
M = softmax(Q0, Q0, True, 20) + softmax(Q1, Q0 + 8, True, 20)
print("B list", len(M))
GR = groups()
GR.update({"h": ["s_setprio 3"], "l": ["s_setprio 0"]})
if not GPOS: GR["g"] = GL
if PP: GR.pop("p1")
if not FPB: GR["f"] = flag_store(1, "st")
vD, vDZ = K2 + 8, K2 + 12
vKF = 64
def got():
    pt("sm")
    a.wait(vm="t")
    checked(maxchain(vTL + [vZL], vD), lambda: emits([z_load("x")] + [t_load(i, "x") for i in range(8)]), "L_t")
    pt("g")
D = [fn(got), f"{MF16} {v(vDZ,4)}, {v(vS0,4)}, {v(vZL,4)}, 0"]
D += [f"{MF16} {v(vD,4)}, {v(vS0+4*(i&1),4)}, {v(vTL[i],4)}, {'0' if i == 0 else v(vD,4)}" for i in range(8)]
for sh in (2, 4):
    D += [f"v_add_f32_dpp v{vDZ+j}, v{vDZ+j}, v{vDZ+j} row_ror:{sh} row_mask:0xf bank_mask:0xf" for j in range(4)]
D += [f"v_cvt_pk_bf16_f32 v{vDZ}, v{vDZ}, v{vDZ+1}", f"v_cvt_pk_bf16_f32 v{vDZ+1}, v{vDZ+2}, v{vDZ+3}",
      grp(["s_mov_b64 exec, 0x30003", dsw(f"ds_write_b64 v{vZW}, {v(vDZ,2)} offset:256"), "s_mov_b64 exec, -1"]),
      f"v_cvt_pk_bf16_f32 v{vD}, v{vD}, v{vD+1}", f"v_cvt_pk_bf16_f32 v{vD+1}, v{vD+2}, v{vD+3}", dsw(f"ds_write_b64 v{vKW}, {v(vD,2)}")]
GR["d"] = D
GR["e"] = [bar(None, "all", "K")] + [dsw(f"ds_read_b128 {v(vKF+8*hh+4*j,4)}, v{vKR} offset:{hh*1088+j*272}", f"kf{hh}") for hh in range(2) for j in range(2)]
place(M, opt("bo", "g@0-20,p1@21,s@30-60,d@100,k1@120,a@120,e@122"), GR)
X = split(tail_addrs(), 3)
emits(X[0])
OD = [K2, K1]
for hh in range(2):
    a.wait(lg=f"kf{hh}")
    a(f"{MF} {v(OD[hh],16)}, {v(vKF+8*hh,4)}, {v(Q0+8*hh,4)}, 0")
    a(f"{MF} {v(OD[hh],16)}, {v(vKF+8*hh+4,4)}, {v(Q0+8*hh+4,4)}, {v(OD[hh],16)}")
emits(X[1] + X[2])
for D in OD: a(f"v_add_f32 v{D+8}, 0x358637bd, v{D+8}")
for D in OD: a(f"v_rcp_f32 v{D+8}, v{D+8}")
for D in OD: a(f"v_mul_f32 v{D+8}, v{D+8}, v{vSD}")
for hh, D in enumerate(OD):
    for i in range(0, 8, 2): a(f"v_pk_mul_f32 {P2(D+i)}, {P2(D+i)}, {P2(D+8)} op_sel_hi:[1,0]")
    for i in range(4): a(f"v_cvt_pk_bf16_f32 v{D+12+i}, v{D+2*i}, v{D+2*i+1}")
    frag_store(D + 12, sC0, hh)()
if CPR: a("s_setprio 0")
pt("o")
W = GR.pop("w", [])
place(W, opt("bn", "r@10"), GR, "N")
phase2(1, {}, GR, opt("bp", "b@0,c@2,o@5"))

for blk in retries: blk()
a.label("L_fin")
if STAMP >= 0:
    n = nst[0]
    a(f"""s_cmp_eq_u32 s{sW}, {STAMP}
    s_cbranch_scc0 L_end
    s_waitcnt lgkmcnt(0)
    s_sub_u32 s{sT0}, {SPIN}, s{sCNT}
    s_mul_i32 s{sT0}, s{sT0}, 100
    s_add_u32 s{sST0+2}, s{sST0}, s{sT0}
    s_addc_u32 s{sST0+3}, s{sST0+1}, 0
    s_mul_i32 s{sT0}, s2, {n*8}
    s_add_u32 s{sT0}, s{sT0}, {STAMP_OFF}
    s_mov_b64 exec, 1""")
    for i in range(n):
        a(f"v_mov_b32 v{64+2*i}, s{sST0+2*i}")
        a(f"v_mov_b32 v{65+2*i}, s{sST0+2*i+1}")
        a(f"buffer_store_dwordx2 {v(64+2*i,2)}, off, {srd(sWS)}, s{sT0} offset:{i*8}")
a.label("L_end")
a.pad()
open(out_path, "w").write(header(256, 512, LDS_SIZE) + a.text() + footer(vgpr=256))
print("instructions:", sum(1 for x in a.L if x.states), "nops:", sum(1 for x in a.L if x.kind == "nop"), "stamps", nst[0])
```

```python
import sys
from asmdsl import Asm
from gen_common import header, footer

OPT = dict(a.split("=") for a in sys.argv[2:])
def opt(k, d): return type(d)(OPT.get(k, d))
STAMP = opt("stamp", -1)
CYC = opt("cyc", 0)
PTS = [p.split("|") for p in opt("pts", "p0,p1,Y,S|g,kv|o,f0,f2,end").split(",") if p]
ROTM = opt("rotm", 1)
ROT2 = opt("rot2", 7)
SPIN = opt("spin", 200000)
out_path = sys.argv[1]

SZ = 16384
KVL, WPHI, CW, BNC = 9 * SZ, 9 * SZ + 2048, 9 * SZ + 4096, 9 * SZ + 8192
PHI, VIMG = 2 * SZ, 8 * SZ
LDS_SIZE = 163840
REC1 = 0x1000
KVD = 0x20000
FLG = 0xc0000
ACT = 0x140000
DUM = 0x1000000
STAMP_OFF = 128 << 20

sW, sSIG, sH, sT0, sT1 = 3, 4, 5, 6, 7
sX, sWD, sWE, sW2, sWO, sOUT, sWS = 8, 12, 16, 20, 24, 28, 32
sPH, sB1, sPC = 36, 40, 44
sHALF, sISQ, sLOm, sFM, sMASK, sCM = 36, 38, 40, 42, 44, 46
sFMB, sTILE, sFL, sFB, sRA2, sRW2 = 48, 50, 51, 52, 53, 54
(sM0R, sTAG, sCNT, sT2, sT3, sRHO, sRB, sG, sSTART, sT4, sC0, sC1, sSB0, sOB, sRA, sRW, sAO, sR2,
 sRB2, sCB, sGAM, sREC, sSTR, sKB) = range(56, 80)
sST0 = 82
sLO = f"s[{sLOm}:{sLOm+1}]"
def srd(n): return f"s[{n}:{n+3}]"
def sp(n): return f"s[{n}:{n+1}]"

vL = 0
vXO, vWA, vWC, vL16, vBA = 1, 3, 5, 7, 8
vA2L, vA2M, vA2T = 1, 3, 5
vBC, vSD, vC1, vRSTD = 10, 11, 12, 13
vCAW, vCAR, vPL, vPM = 14, 15, 16, 20
vT = 24
vW2O, vWOO, vFL, vACT, vA2B, vFV = 32, 34, 36, 37, 38, 39
vXA, vSEL, vCS = 40, 44, 48
vPHA, vSGN = 56, 57
vPW0, vPW1, vKA0, vKA1, vKB, vVW = 58, 59, 60, 61, 62, 63
vGA, vGZ, vKW, vZW, vKR = 58, 59, 60, 61, 62
vWF = 64
K2, K0, K1 = 80, 96, 112
vX = 128
def v(n, k=1): return f"v{n}" if k == 1 else f"v[{n}:{n+k-1}]"
def P2(n): return v(n, 2)

a = Asm()
nst = [2]
def stamp(i):
    if STAMP >= 0:
        assert i < 10
        a(f"{'s_memtime' if CYC else 's_memrealtime'} s[{sST0+2*i}:{sST0+2*i+1}]")
        nst[0] = max(nst[0], i + 1)
def pt(name):
    for i, p in enumerate(PTS):
        if name in p: stamp(2 + i)

MF = "v_mfma_f32_32x32x16_bf16"
MF16 = "v_mfma_f32_16x16x32_bf16"
MF32 = "v_mfma_f32_32x32x2_f32"
LOG2E = "0x3fb8aa3b"

def lines(txt): return [l.strip() for l in txt.strip().split("\n") if l.strip()]
def cost(x):
    if callable(x): return getattr(x, "cost", 1)
    return 2 if ("v_exp" in x or "v_rcp" in x or "v_mfma" in x) else 1
def emit(x):
    if callable(x): x()
    else: a(x)
def emits(L):
    for x in L: emit(x)
def fn(f, c=1):
    f.cost = c; return f
def ptf(name): return fn(lambda: pt(name), 0)
def grp(L): return fn(lambda: emits(L), sum(cost(x) for x in L))
def merge(main, side, start=0, end=None):
    end = len(main) if end is None else min(end, len(main))
    tot = sum(cost(x) for x in main[start:end]); out = list(main[:start]); acc = 0; k = 0
    for x in main[start:end]:
        while k < len(side) and acc >= k * tot / len(side): out.append(side[k]); k += 1
        out.append(x); acc += cost(x)
    return out + side[k:] + list(main[end:])
def split(L, n):
    tot = sum(cost(x) for x in L); G = [[] for _ in range(n)]; acc = 0
    for x in L:
        G[min(n - 1, int(acc * n / max(tot, 1)))].append(x); acc += cost(x)
    return G
def vm(txt, tag):
    if opt("now2", 0) and tag[0] == "w": return fn(lambda: None, 3)
    return fn(lambda: a.vmem(txt, tag), 3)
def dsw(txt, tag="w"): return fn(lambda: a.ds(txt, tag), 2)
def wt(**kw): return fn(lambda: a.wait(**kw), 0)

retries = []
def checked(cmp_lines, reload, name):
    lab = a.newlabel(name)
    a.label(lab + "_c")
    for l in cmp_lines: a(l)
    a(f"s_cbranch_vccnz {lab}_r")
    a.label(lab + "_k")
    def blk():
        a.label(lab + "_r")
        a(f"""s_cmp_eq_u32 s{sCNT}, 0
        s_cbranch_scc1 {lab}_k
        s_sub_u32 s{sCNT}, s{sCNT}, 1""")
        reload()
        a(f"""s_waitcnt vmcnt(0)
        s_branch {lab}_c""")
    retries.append(blk)
def skip_if(cmp_line, body, name):
    lab = a.newlabel(name)
    a(cmp_line); a(f"s_cbranch_scc0 {lab}")
    st = a.save()
    body()
    a.label(lab)
    a.restore(st)

t0, t1, t2, t3, u0, u1, u2, u3 = range(vT, vT + 8)
LT = vX + 96
vXR, vRC, vCL = LT, LT + 16, LT + 20
vRW_, vSW_, vEP, vRA1 = LT + 24, LT + 25, LT + 26, 6
TYPE = [0]
RS = [0, 4, 1, 5]
def rot(c, d): return [f"s_add_u32 s{d}, s{sRHO}, {128*c}", f"s_and_b32 s{d}, s{d}, 0x380"]
def x_item(c):
    s = [f"s_add_u32 m0, s{sM0R}, {(c & 3) * SZ}"] + rot(c, sT0)
    return [s + [vm(f"buffer_load_dwordx4 v{vXO}, {srd(sX)}, s{sT0} offen lds", f"x{c}")],
            [vm(f"buffer_load_dwordx4 v{vXO+1}, {srd(sX)}, s{sT0} offen offset:1024 lds", f"x{c}")]]
def w_item1(c):
    b = (4 + (c & 3)) * SZ
    return [[f"s_add_u32 m0, s{sM0R}, {b}", f"s_mul_i32 s{sT0}, s{sT0}, s{sSTR}",
             vm(f"buffer_load_dwordx4 v{vWA}, {srd(sWD)}, s{sT0} offen lds", f"x{c}")],
            [f"s_add_u32 m0, s{sM0R}, {b+1024}", vm(f"buffer_load_dwordx4 v{vWA+1}, {srd(sWD)}, s{sT0} offen lds", f"x{c}")]]
def r_item(i):
    return [[f"s_add_u32 m0, s{sM0R}, {RS[i]*SZ + 1024*k}"] + rot(2 * i + k, sT0) +
            [f"s_mul_i32 s{sT0}, s{sT0}, {(1376, 1536)[TYPE[0]]}", vm(f"buffer_load_dwordx4 v{vWC}, {srd(sWE)}, s{sT0} offen lds", f"b{i}")]
            for k in range(2)]
def item(n):
    i = int(n[1:])
    return x_item(i) + w_item1(i) if n[0] == "x" else r_item(i)

PRIO = opt("prio", 1)
a(f"""s_cmp_ge_u32 s2, 256
s_cbranch_scc1 L_end""")
stamp(0)
a(f"""s_getpc_b64 {sp(sPC)}
L_pc:
s_load_dwordx2 {sp(sX)}, s[0:1], 0
s_lshr_b32 s{sT1}, s2, 2
s_and_b32 s{sT1}, s{sT1}, 32
s_add_u32 s{sT3}, s{sT1}, 8
s_load_dwordx2 {sp(sWD)}, s[0:1], s{sT3}
s_bfe_u32 s{sT0}, s2, 0x30003
v_lshrrev_b32 v{t0}, 6, v0
s_mov_b32 s{sPC+2}, L_end-L_pc
v_lshl_add_u32 v{t1}, v0, 3, s{sT0}
s_mov_b32 s{sPC+3}, 0x00020000
v_lshlrev_b32 v{t1}, 7, v{t1}
v_readfirstlane_b32 s{sW}, v{t0}
buffer_load_dword v{LT+27}, v{t1}, {srd(sPC)}, 0 offen""")
if PRIO: a("s_setprio 3")
if opt("sw2", 0): a(f"""s_load_dwordx2 {sp(sW2)}, s[0:1], 56
s_load_dwordx2 {sp(sWO)}, s[0:1], 24""")
a(f"""s_load_dwordx2 {sp(sWS)}, s[0:1], 80
v_lshrrev_b32 v{vRW_}, 3, v0
s_sub_u32 s{sT4}, 40, s{sT1}
s_and_b32 s{sT1}, s2, 1
v_and_b32 v{t1}, 56, v{vRW_}
s_lshl3_add_u32 s{sRB}, s{sT1}, s{sT0}       ; rb
v_add_u32 v{t0}, v{vRW_}, v{t1}
s_lshr_b32 s{sT1}, s2, 6
v_bfe_u32 v{t2}, v0, 4, 2
s_lshl1_add_u32 s{sRHO}, s{sT1}, s{sT0}
v_bitop3_b32 v{t2}, v0, v{t2}, 7 bitop3:0x28
s_lshl_b32 s{sT2}, s{sRB}, 17
v_lshl_add_u32 v{t2}, v{t2}, 4, s{sT2}
s_and_b32 s{sRHO}, s{sRHO}, {ROTM}
v_lshl_add_u32 v{vXO}, v{t0}, 10, v{t2}
s_lshl_b32 s{sRHO}, s{sRHO}, 7
v_xor_b32 v{vXO+1}, 64, v{vXO}
s_add_u32 s{sRHO}, s{sRHO}, {opt("rot0", 4) * 128}
s_lshl_b32 s{sM0R}, s{sW}, 11
v_add_u32 v{vXO+1}, {8192-1024}, v{vXO+1}
s_mov_b32 s{sX+2}, {2048*1024}
v_bfe_u32 v{t3}, v0, 4, 1
s_mov_b32 s{sX+3}, 0x00020000
v_lshlrev_b32 v{t3}, 2, v{t3}
s_mov_b32 m0, s{sM0R}
v_bitop3_b32 v{t3}, v0, v{t3}, 7 bitop3:0x28
s_bfe_u32 s{sT1}, s2, 0x10006
v_lshlrev_b32 v{vSW_}, 4, v{t3}
s_and_b32 s{sG}, s2, 6
s_or_b32 s{sG}, s{sG}, s{sT1}                ; g
s_mul_i32 s{sSTART}, s{sG}, 11
s_waitcnt lgkmcnt(0)""")
a.vmem(f"buffer_load_dwordx4 v{vXO}, {srd(sX)}, s{sRHO} offen lds", "x0")
a(f"""s_add_u32 s{sSTART}, s{sSTART}, 1
s_lshr_b32 s{sSTART}, s{sSTART}, 1
s_min_u32 s{sSTART}, s{sSTART}, 38
s_lshl1_add_u32 s{sT1}, s{sG}, 16""")
a.vmem(f"buffer_load_dwordx4 v{vXO+1}, {srd(sX)}, s{sRHO} offen offset:1024 lds", "x0")
a(f"""s_movk_i32 s{sSTR}, 1536
s_movk_i32 s{sT2}, 1024
s_bitcmp1_b32 s2, 7
s_cselect_b32 s{sSTR}, 1376, s{sSTR}
s_cselect_b32 s{sT1}, s{sSTART}, s{sT1}
s_cselect_b32 s{sT2}, 128, s{sT2}
v_mul_u32_u24 v{vWA}, s{sSTR}, v{vRW_}
s_lshl_b32 s{sT1}, s{sT1}, 6
s_lshl_b32 s{sWD+2}, s{sSTR}, 10
v_lshl_add_u32 v{vWA}, v{vWA}, 1, v{vSW_}
s_mov_b32 s{sWD+3}, 0x00020000
s_mov_b32 s{sT0}, s{sRHO}
v_add_u32 v{vWA}, s{sT1}, v{vWA}
s_load_dwordx2 {sp(sWE)}, s[0:1], s{sT4}
v_add_u32 v{vWA+1}, s{sT2}, v{vWA}""")
for L in w_item1(0): emits(L)
pt("i0")
a(f"""v_and_b32 v{vL}, 63, v0
s_lshr_b32 s{sT1}, s2, 7
s_lshl1_add_u32 s{sT1}, s{sRB}, s{sT1}
v_lshlrev_b32 v{vL16}, 4, v{vL}
s_lshl3_add_u32 s{sT1}, s{sT1}, s{sG}
s_lshl3_add_u32 s{sREC}, s{sT1}, s{sW}
s_lshl_b32 s{sT1}, s{sREC}, 10
s_mov_b32 s{sWS+2}, {256<<20}
s_mov_b32 s{sWS+3}, 0x00020000
s_lshr_b32 s{sH}, s{sW}, 2""")
TA = opt("ta", 0)
EX = opt("ex", 3)
def share(d, n, tmp):
    L = [f"s_mov_b32 s{sT3}, 0x40000000"]
    if EX & 1:
        L += lines(f"""s_add_u32 s{sT4}, s{sT2}, {(256 - 1) * n * 128}
        s_cmp_lt_u32 s2, 32
        s_cselect_b32 s{sT3}, s{sT4}, s{sT3}
        s_lshr_b32 s{sT4}, s2, 5
        s_cmp_eq_u32 s{sT4}, 1
        s_cselect_b32 s{sT2}, 0x40000000, s{sT2}""")
    if EX & 2:
        L += lines(f"""s_add_u32 s{sT4}, s{sT2}, {(16 - 1) * n * 128}
        s_and_b32 s{sT1}, s2, 0xc6
        s_cmp_eq_u32 s{sT1}, 0x40
        s_cselect_b32 s{sT3}, s{sT4}, s{sT3}
        s_cmp_eq_u32 s{sT1}, 0x42
        s_cselect_b32 s{sT2}, 0x40000000, s{sT2}""")
    return L + lines(f"""v_lshl_add_u32 v{d}, v{vL}, 7, s{sT2}
    v_lshl_add_u32 v{tmp}, v{vL}, 7, s{sT3}
    v_cmp_gt_u32 vcc, {n}, v{vL}
    v_cndmask_b32 v{d}, v{tmp}, v{d}, vcc""")
vWA_ = LT + 14
def waddr():
    L = lines(f"""s_and_b32 s{sT2}, s2, 127
    s_lshl3_add_u32 s{sT2}, s{sT2}, s{sW}
    s_mul_i32 s{sT2}, s{sT2}, {12*128}""")
    return L + share(vWA_, 12, u3)
def wtouch():
    if EX and not TYPE[0]:
        a("s_mov_b64 exec, 0xffffff")
        a.vmem(f"buffer_load_dword v{LT+27}, v{vWA_}, {srd(sWD)}, 0 offen", "tch")
        a("s_mov_b64 exec, -1")
        return
    if TA & 1 and TYPE[0]: return
    a(f"""s_and_b32 s{sT2}, s2, 127
    v_lshlrev_b32 v{t0}, 7, v{vL}
    s_lshl3_add_u32 s{sT2}, s{sT2}, s{sW}
    s_mul_i32 s{sT2}, s{sT2}, {12*128}
    s_mov_b64 exec, 0xfff
    v_add_u32 v{t0}, s{sT2}, v{t0}""")
    a.vmem(f"buffer_load_dword v{LT+27}, v{t0}, {srd(sWD)}, 0 offen", "tch")
    if TA & 1: a.vmem(f"buffer_load_dword v{LT+27}, v{t0}, {srd(sWE)}, 0 offen", "tch")
    a("s_mov_b64 exec, -1")
if opt("e3", 0):
    a(f"""s_lshl3_add_u32 s{sT2}, s2, s{sW}
    s_lshl_b32 s{sT2}, s{sT2}, 11
    s_add_u32 s{sT2}, s{sT2}, 384
    v_lshl_add_u32 v{t0}, v{vL}, 10, s{sT2}
    s_mov_b64 exec, 3""")
    a.vmem(f"buffer_load_dword v{LT+27}, v{t0}, {srd(sWD)}, 0 offen", "tch")
    a("s_mov_b64 exec, -1")
MW = opt("mw", 11)
SW = opt("sw", 0)
def stouch():
    a(f"""s_and_b32 s{sT2}, s2, 127
    s_lshl3_add_u32 s{sT2}, s{sT2}, s{sW}
    s_mul_i32 s{sT2}, s{sT2}, {12*128}""")
    for o in range(0, 12 * 128, SW): a(f"s_buffer_load_dword s80, {srd(sWD)}, s{sT2} offset:{o}")
    if opt("sw2", 0):
        a(f"""s_lshl3_add_u32 s{sT2}, s2, s{sW}
        s_mov_b32 s{sW2+2}, {1376*1024}
        s_mov_b32 s{sW2+3}, 0x00020000
        s_mov_b32 s{sWO+2}, {512*1024}
        s_mov_b32 s{sWO+3}, 0x00020000
        s_mul_i32 s{sT3}, s{sT2}, {6*128}
        s_lshl_b32 s{sT2}, s{sT2}, 8""")
        for o in range(0, 6 * 128, SW): a(f"s_buffer_load_dword s80, {srd(sW2)}, s{sT3} offset:{o}")
        for o in range(0, 2 * 128, SW): a(f"s_buffer_load_dword s80, {srd(sWO)}, s{sT2} offset:{o}")
if MW == 1: wtouch()
a.vmem(f"buffer_load_dwordx4 {v(vXR,4)}, v{vL16}, {srd(sX)}, s{sT1} offen", "xr")
a.vmem(f"buffer_load_dword v{vEP}, off, {srd(sWS)}, 0 sc1", "xr")
if MW == 2: wtouch()
if SW: stouch()
if PRIO: a("s_setprio 0")
B3 = lines(f"""s_load_dwordx2 {sp(sPH)}, s[0:1], 16
s_load_dwordx2 {sp(sB1)}, s[0:1], 48
s_load_dwordx2 {sp(sW2)}, s[0:1], 56
s_load_dwordx2 {sp(sWO)}, s[0:1], 24
s_load_dwordx2 {sp(sOUT)}, s[0:1], 64
s_and_b32 s{sSIG}, s{sW}, 3
v_and_b32 v{u0}, 31, v{vL}
s_xor_b32 s{sT3}, s{sSIG}, s{sH}
v_lshrrev_b32 v{u1}, 5, v{vL}
v_bfe_u32 v{u2}, v{vL}, 1, 3
s_lshl_b32 s{sT2}, s{sSIG}, 7
v_xor_b32 v{u2}, v{u1}, v{u2}
s_add_u32 s{sT2}, s{sT2}, s{sT3}
v_lshlrev_b32 v{u2}, 4, v{u2}
s_lshl_b32 s{sT2}, s{sT2}, 5
v_lshl_add_u32 v{u2}, v{u0}, 7, v{u2}
v_bfe_u32 v{t0}, v{vL}, 2, 2
v_xor_b32 v{vXA}, s{sT2}, v{u2}
v_bfe_u32 v{t1}, v{vL}, 4, 1
v_xor_b32 v{vXA+1}, 32, v{vXA}
v_and_b32 v{t2}, 3, v{vL}
v_xor_b32 v{vXA+2}, 64, v{vXA}
v_lshlrev_b32 v{t2}, 3, v{t2}
v_xor_b32 v{vXA+3}, 96, v{vXA}
v_lshl_add_u32 v{t2}, v{t1}, 5, v{t2}
v_lshrrev_b32 v{u2}, 1, v{t0}
s_lshl_b32 s{sT2}, s{sT3}, 6
v_lshl_add_u32 v{u2}, v{u2}, 6, v{t2}
s_add_u32 s{sT2}, s{sT2}, s{sH}
v_lshl_add_u32 v{t3}, v{t0}, 7, v{u2}
s_lshl_b32 s{sT2}, s{sT2}, 6
v_lshl_add_u32 v{u2}, v{u1}, 11, v{t3}
s_or_b32 s{sT2}, s{sT2}, 0x10000
v_xor_b32 v{u3}, v{t0}, v{t1}
v_xor_b32 v{vPM}, s{sT2}, v{u2}
v_and_b32 v{u3}, 1, v{u3}
v_xor_b32 v{vPM+1}, 4096, v{vPM}
v_cmp_eq_u32 vcc, 0, v{u3}
v_xor_b32 v{vPM+2}, 8192, v{vPM}
v_mov_b32 v{u3}, 0x3f803f80
v_xor_b32 v{vPM+3}, 12288, v{vPM}""")
if opt("sw2", 0): B3 = B3[:2] + B3[4:]
B3 += [f"v_cndmask_b32 v{vSEL+i}, 0, v{u3}, vcc" for i in range(4)]
PRO = opt("pro", "x1").split(",")
PRE2 = opt("pre2", 8)
B3N = opt("b3n", 0)
if PRE2 & 8: emits(B3[:B3N])
else: emits(merge(B3, [grp(L) for n in PRO for L in item(n)]))


def mish(acc, pk, tmp):
    L = []
    for g in (0, 8):
        r = [acc + g + i for i in range(8)]; u = [tmp + i for i in range(8)]
        if pk:
            L += [f"v_pk_fma_f32 {P2(u[i])}, {P2(r[i])}, {P2(vC1)}, {sp(sHALF)} op_sel_hi:[1,0,1]" for i in range(0, 8, 2)]
            L += [f"v_exp_f32 v{u[i]}, v{u[i]}" for i in range(8)]
            L += [f"v_pk_add_f32 {P2(u[i])}, {P2(u[i])}, {sp(sISQ)}" for i in range(0, 8, 2)]
            L += [f"v_pk_fma_f32 {P2(u[i])}, {P2(u[i])}, {P2(u[i])}, {sp(sHALF)} neg_lo:[1,0,0] neg_hi:[1,0,0]" for i in range(0, 8, 2)]
            L += [f"v_rcp_f32 v{u[i]}, v{u[i]}" for i in range(8)]
            L += [f"v_pk_fma_f32 {P2(r[i])}, {P2(r[i])}, {P2(u[i])}, {P2(r[i])}" for i in range(0, 8, 2)]
        else:
            L += [f"v_fma_f32 v{u[i]}, v{r[i]}, v{vC1}, -0.5" for i in range(8)]
            L += [f"v_exp_f32 v{u[i]}, v{u[i]}" for i in range(8)]
            L += [f"v_add_f32 v{u[i]}, s{sISQ}, v{u[i]}" for i in range(8)]
            L += [f"v_fma_f32 v{u[i]}, -v{u[i]}, v{u[i]}, -0.5" for i in range(8)]
            L += [f"v_rcp_f32 v{u[i]}, v{u[i]}" for i in range(8)]
            L += [f"v_fmac_f32 v{r[i]}, v{r[i]}, v{u[i]}" for i in range(8)]
        L += [f"v_cvt_pk_bf16_f32 v{acc+g//2+i}, v{r[2*i]}, v{r[2*i+1]}" for i in range(4)]
        L.append(("half", g // 8))
    return L
ND = opt("nd", 1)
def vST(): return vBA + 1 if ND and not TYPE[0] else vL16
def frag_store(reg, sb, half, tag="st"):
    return vm(f"buffer_store_dwordx4 {v(reg,4)}, v{vST()}, {srd(sWS)}, s{sb} offen offset:{half*2048} sc1", tag)
def mish_store(acc, pk, sb, tmp, tag="st"):
    return [frag_store(acc + 4 * x[1], sb, x[1], tag) if isinstance(x, tuple) else x for x in mish(acc, pk, tmp)]
def softmax(P, out, pk, m):
    L = [f"v_max3_f32 v{m}, v{P}, v{P+1}, v{P+2}", f"v_max3_f32 v{m+1}, v{P+3}, v{P+4}, v{P+5}"]
    for i in range(6, 14, 4):
        L += [f"v_max3_f32 v{m}, v{m}, v{P+i}, v{P+i+1}", f"v_max3_f32 v{m+1}, v{m+1}, v{P+i+2}, v{P+i+3}"]
    L += [f"v_max3_f32 v{m}, v{m}, v{P+14}, v{P+15}", f"v_max_f32 v{m}, v{m}, v{m+1}", f"v_mul_f32 v{m}, v{m}, v{vC1}"]
    if pk:
        L += [f"v_pk_fma_f32 {P2(P+i)}, {P2(P+i)}, {P2(vC1)}, {P2(m)} op_sel_hi:[1,0,0] neg_lo:[0,0,1] neg_hi:[0,0,1]" for i in range(0, 16, 2)]
        L += [f"v_exp_f32 v{P+i}, v{P+i}" for i in range(16)]
        L += [f"v_pk_add_f32 {P2(m)}, {P2(P)}, {P2(P+2)}", f"v_pk_add_f32 {P2(m+2)}, {P2(P+4)}, {P2(P+6)}"]
        L += [f"v_pk_add_f32 {P2(m+(i&2))}, {P2(m+(i&2))}, {P2(P+i)}" for i in range(8, 16, 2)]
        L += [f"v_pk_add_f32 {P2(m)}, {P2(m)}, {P2(m+2)}", f"v_add_f32 v{m}, v{m}, v{m+1}", f"v_rcp_f32 v{m}, v{m}"]
        L += [f"v_pk_mul_f32 {P2(P+i)}, {P2(P+i)}, {P2(m)} op_sel_hi:[1,0]" for i in range(0, 16, 2)]
    else:
        L += [f"v_fma_f32 v{P+i}, v{P+i}, v{vC1}, -v{m}" for i in range(16)]
        L += [f"v_exp_f32 v{P+i}, v{P+i}" for i in range(16)]
        L += [f"v_add_f32 v{m+i}, v{P+2*i}, v{P+2*i+1}" for i in range(4)]
        L += [f"v_add_f32 v{m+(i&3)}, v{m+(i&3)}, v{P+i}" for i in range(8, 16)]
        L += [f"v_add_f32 v{m}, v{m}, v{m+1}", f"v_add_f32 v{m+2}, v{m+2}, v{m+3}", f"v_add_f32 v{m}, v{m}, v{m+2}", f"v_rcp_f32 v{m}, v{m}"]
        L += [f"v_mul_f32 v{P+i}, v{P+i}, v{m}" for i in range(16)]
    L += [f"v_cvt_pk_bf16_f32 v{out+i}, v{P+2*i}, v{P+2*i+1}" for i in range(8)]
    return L

def one_lane(x): return grp(["s_mov_b64 exec, 1", x, "s_mov_b64 exec, -1"])
def rec_store(): return one_lane(vm(f"buffer_store_dwordx4 {v(vRC,4)}, off, {srd(sWS)}, s{sREC} sc1", "rec"))
def rec1_load(tag="rec1"): return vm(f"buffer_load_dwordx4 {v(vBC,4)}, v{vRA1}, {srd(sWS)}, 0 offen sc1", tag)
FOFF = [12, 0, 128, 4]
OSENT = 1
def pmask(k): return sp((sMASK, sFM)[k])
def poll(k, tag=None):
    return grp([f"s_mov_b64 exec, {pmask(k)}",
                vm(f"buffer_load_dword v{vFV}, v{vFL}, {srd(sWS)}, {f's{sFB}' if k else 0} offen offset:{FOFF[k]} sc1", tag or f"fl{k}"), "s_mov_b64 exec, -1"])
def poll_check(k):
    def p():
        a.wait(vm=f"fl{k}")
        checked([f"v_cmp_ne_u32 vcc, s{sTAG}, v{vFV}", f"s_and_b64 vcc, vcc, {pmask(k)}"], poll(k, "x"), "L_fl")
        pt(f"fl{k}")
    return fn(p, 3)
vTG = 63
def flag_store(k, tag):
    return [f"v_mov_b32 v{vTG}, s{sTAG}", wt(vm=tag), one_lane(vm(f"buffer_store_dword v{vTG}, off, {srd(sWS)}, s{sFL} offset:{FOFF[k]} sc1", "fs")), ptf(f"fs{k}")]
def clr2(sb, off, T):
    if opt("noclr", 0): return "s_nop 0"
    assert T > 27
    return vm(f"buffer_store_dwordx4 {v(vA2B if T > 30 else vT,4)}, v{vST()}, {srd(sWS)}, s{sb} offen offset:{off} sc1", "clr")

def stats():
    e = vXR + 4; r0, r1 = vXR + 12, vXR + 13
    def allsum(r):
        L = [f"v_add_f32_dpp v{r}, v{r}, v{r} row_ror:{s} row_mask:0xf bank_mask:0xf" for s in (8, 4, 2, 1)]
        L += [f"v_mov_b32 v{r1}, v{r}", f"v_permlane16_swap_b32 v{r}, v{r1}", f"v_add_f32 v{r}, v{r}, v{r1}",
              f"v_mov_b32 v{r1}, v{r}", f"v_permlane32_swap_b32 v{r}, v{r1}", f"v_add_f32 v{r}, v{r}, v{r1}"]
        return L
    S = [wt(vm="xr"), f"v_add_u32 v{vRC+3}, 1, v{vEP}"]
    for j in range(4):
        S += [f"v_lshlrev_b32 v{e+2*j}, 16, v{vXR+j}", f"v_and_b32 v{e+2*j+1}, 0xffff0000, v{vXR+j}"]
    S += [f"v_readfirstlane_b32 s{sTAG}, v{vRC+3}"]
    S += [f"v_add_f32 v{vXR+j}, v{e+2*j}, v{e+2*j+1}" for j in range(4)]
    S += [f"v_add_f32 v{vXR}, v{vXR}, v{vXR+1}", f"v_add_f32 v{vXR+2}, v{vXR+2}, v{vXR+3}", f"v_add_f32 v{r0}, v{vXR}, v{vXR+2}"]
    S += allsum(r0)
    S += [f"v_mul_f32 v{vRC}, 0xbb000000, v{r0}"]
    S += [f"v_add_f32 v{e+j}, v{e+j}, v{vRC}" for j in range(8)]
    S += [f"v_mul_f32 v{vXR+j}, v{e+j}, v{e+j}" for j in range(4)]
    S += [f"v_fmac_f32 v{vXR+j}, v{e+4+j}, v{e+4+j}" for j in range(4)]
    S += [f"v_add_f32 v{vXR}, v{vXR}, v{vXR+1}", f"v_add_f32 v{vXR+2}, v{vXR+2}, v{vXR+3}", f"v_add_f32 v{r0}, v{vXR}, v{vXR+2}"]
    S += allsum(r0)
    S += [f"v_mov_b32 v{r1}, 0x3727c5ac", f"v_fmac_f32 v{r1}, 0x3b000000, v{r0}", f"v_rsq_f32 v{vRC+2}, v{r1}",
          f"s_lshl4_add_u32 s{sREC}, s{sREC}, {REC1}" if not PRE2 & 10 else "s_nop 0", f"v_mul_f32 v{vRC+1}, v{r1}, v{vRC+2}"]
    return S

def consts0(ty):
    if ty: return []
    def clr(off): return vm(f"buffer_store_dwordx4 {v(vCL,4)}, v{vL16}, {srd(sWS)}, s{sC0} offen offset:{off} sc1", "clr")
    L = lines(f"""s_lshl2_add_u32 s{sT2}, s{sG}, s{sSIG}
    v_mov_b32 v{vCL}, -1
    s_lshl4_add_u32 s{sT2}, s{sT2}, s{sRB}
    s_mul_i32 s{sT2}, s{sT2}, 1152
    s_add_u32 s{sC0}, s{sT2}, {KVD}""")
    if not opt("noclr", 0): L += [clr(0), "s_mov_b64 exec, 15", clr(1024), "s_mov_b64 exec, -1"]
    return [fn(lambda: skip_if(f"s_cmp_eq_u32 s{sH}, 0", lambda: emits(L), "L_c0"))]
def bases(ty):
    L = lines(f"""s_lshr_b32 s{sT4}, s{sSIG}, 1
    s_lshl1_add_u32 s{sT4}, s{sRB}, s{sT4}
    s_mul_i32 s{sKB}, s{sT4}, 236
    s_and_b32 s{sT4}, s{sSIG}, 1
    s_add_u32 s{sKB}, s{sKB}, s{sT4}
    s_lshl2_add_u32 s{sT2}, s{sTILE}, s{sKB}
    s_lshl_b32 s{sT2}, s{sT2}, 10
    s_add_u32 s{sSB0}, s{sT2}, {ACT}
    s_mov_b32 s{sFB}, {FLG - 8 * REC1}
    s_lshl3_add_u32 s{sFL}, s{sREC}, s{sFB}""")
    if ty == 0:
        if ND:
            return L + lines(f"""s_lshr_b32 s{sT2}, 0xea, s{sG}
            s_and_b32 s{sT3}, s{sT2}, s{sH}
            s_lshl_b32 s{sT3}, s{sT3}, 28
            v_add_u32 v{vBA+1}, s{sT3}, v{vL16}
            s_and_b32 s{sT2}, s{sT2}, 1
            s_lshl_b32 s{sT2}, s{sT2}, 6
            v_and_b32 v{u3}, s{sT2}, v{vSW_}
            v_lshl_add_u32 v{vWC}, v{u3}, 22, v{vWC}""")
        return L + lines(f"""s_lshr_b32 s{sT2}, 0xea, s{sG}
        s_and_b32 s{sT2}, s{sT2}, s{sH}
        s_mul_i32 s{sT2}, s{sT2}, {DUM}
        s_add_u32 s{sSB0}, s{sSB0}, s{sT2}""")
    return L + lines(f"""s_add_u32 s{sC1}, s{sSB0}, 8192
    s_lshl1_add_u32 s{sT2}, s{sG}, s{sH}
    s_lshl2_add_u32 s{sT2}, s{sT2}, s{sKB}
    s_lshl_b32 s{sT2}, s{sT2}, 10
    s_add_u32 s{sC0}, s{sT2}, {ACT + 172*1024}""")
def consts1(ty):
    L = [f"s_add_u32 s{sSTART}, s{sSTART}, 4"] * (1 - ty) + lines(f"""s_add_u32 s{sTILE}, s{sSTART}, s{sH}
    s_and_b32 s{sT2}, s2, 7
    s_bfe_u32 s{sT3}, s2, 0x20003
    s_lshl2_add_u32 s{sRB2}, s{sT2}, s{sT3}
    s_lshr_b32 s{sCB}, s2, 5
    s_xor_b32 s{sCB}, s{sCB}, {opt("cbx", 2)}
    s_mov_b32 s{sW2+2}, {1376*1024}
    s_mov_b32 s{sW2+3}, 0x00020000
    s_mov_b32 s{sWO+2}, {512*1024}
    s_mov_b32 s{sWO+3}, 0x00020000""")
    if opt("mt", 15):
        n = 16 if TA & 2 else 8
        L += lines(f"""s_lshl3_add_u32 s{sT2}, s2, s{sW}
        s_lshl_b32 s{sT2}, s{sT2}, {11 if TA & 2 else 10}
        v_lshl_add_u32 v{vTCH}, v{vL}, 7, s{sT2}""")
        if EX and not ty:
            L = L[:-1] + share(vTCH, n, vTCH + 1) + waddr() + [f"s_bfe_u32 s{sT3}, s2, 0x20003"]
            n *= 2
        if opt("t3", 0):
            L += lines(f"""s_lshr_b32 s{sT2}, s2, 3
            s_lshl3_add_u32 s{sT2}, s{sT2}, s{sW}
            s_sub_u32 s{sT2}, s{sT2}, 1
            s_mul_i32 s{sT2}, s{sT2}, {n * 1024}
            s_add_u32 s{sT2}, s{sT2}, 384
            v_lshl_add_u32 v{vTCH+1}, v{vL}, 10, s{sT2}
            v_cmp_gt_u32 vcc, {n}, v{vL}
            v_cndmask_b32 v{vTCH}, v{vTCH+1}, v{vTCH}, vcc""")
            n *= 2
        L += [f"v_add_u32 v{vTCH+1}, {(1 << 32) - 1376 * 1024:#x}, v{vTCH}", fn(lambda: None) if TA & 2 and ty else touch(0, n)]
    if TOUCH:
        L += lines(f"""s_lshl3_add_u32 s{sT2}, s{sT3}, s{sW}
        s_lshl_b32 s{sT2}, s{sT2}, 9
        s_add_u32 s{sT2}, s{sT2}, s{sCB}
        s_lshl_b32 s{sT2}, s{sT2}, 7
        v_lshl_add_u32 v{vTCH}, v{vL}, 10, s{sT2}
        v_add_u32 v{vTCH+1}, {(1 << 32) - 24 * 65536:#x}, v{vTCH}""")
    L += [f"s_lshl_b32 s{sT3}, s{sT3}, 1"] * (ROT2 == 7) + lines(f"""s_xor_b32 s{sT3}, s{sT3}, s{sCB}
    s_and_b32 s{sT3}, s{sT3}, {ROT2}
    s_lshl_b32 s{sRA}, s{sT3}, 11
    s_lshl_b32 s{sRW}, s{sT3}, 14
    s_lshr_b32 s{sT3}, s{sT3}, {(ROT2 == 7) * 1}
    s_lshl_b32 s{sRA2}, s{sT3}, 11
    s_lshl_b32 s{sRW2}, s{sT3}, 14
    s_lshl1_add_u32 s{sGAM}, s{sSIG}, s{sH}
    s_mul_i32 s{sT4}, s{sGAM}, 11
    s_add_u32 s{sT4}, s{sT4}, 1
    s_lshr_b32 s{sT4}, s{sT4}, 1
    s_min_u32 s{sT4}, s{sT4}, 38
    v_and_b32 v{u3}, 7, v{vRW_}
    v_lshl_add_u32 v{u3}, v{u3}, 10, v{vSW_}
    s_lshl_b32 s{sT2}, s{sT4}, 8
    s_add_u32 s{sT2}, s{sT2}, s{sCB}
    s_lshl_b32 s{sT2}, s{sT2}, 7
    v_add_u32 v{vW2O}, s{sT2}, v{u3}
    v_add_u32 v{vW2O+1}, {8192-1024}, v{vW2O}
    s_lshl_b32 s{sT2}, s{sGAM}, 9
    s_add_u32 s{sT2}, s{sT2}, s{sCB}
    s_lshl_b32 s{sT2}, s{sT2}, 7
    v_add_u32 v{vWOO}, s{sT2}, v{u3}
    v_add_u32 v{vWOO+1}, {8192-1024}, v{vWOO}
    s_mul_i32 s{sT2}, s{sRB2}, 59
    s_add_u32 s{sT2}, s{sT2}, s{sT4}
    s_lshl_b32 s{sT2}, s{sT2}, 12
    s_add_u32 s{sT2}, s{sT2}, {ACT}
    v_add_u32 v{vACT}, s{sT2}, v{vL16}
    s_lshl1_add_u32 s{sT3}, s{sGAM}, 43
    s_sub_u32 s{sT3}, s{sT3}, s{sT4}
    s_lshl_b32 s{sAO}, s{sT3}, 12
    s_mov_b32 s{sWE+2}, {512*(2752, 3072)[ty]}
    s_mov_b32 s{sWE+3}, 0x00020000
    s_lshl_b32 s{sT2}, s{(sSTART, sG)[ty]}, {(6, 7)[ty]}
    v_mul_u32_u24 v{vWC}, {(2752, 3072)[ty]}, v{vRW_}
    v_add3_u32 v{vWC}, v{vWC}, v{vSW_}, s{sT2}
    v_lshlrev_b32 v{vBA}, 1, v{u0}
    s_movk_i32 s{sB1+2}, 2752
    s_mov_b32 s{sB1+3}, 0x00020000
    s_lshl_b32 s{sT4}, s{sTILE}, 6""")
    L += [vm(f"buffer_load_ushort v{vBA+i}, v{vBA}, {srd(sB1)}, s{sT4} offen offset:{128*i}", "misc") for i in reversed(range(1 + ty))]
    L += lines(f"""s_mov_b32 s{sPH+2}, 16384
    s_mov_b32 s{sPH+3}, 0x00020000
    s_and_b32 s{sT2}, s{sW}, 1
    s_lshl_b32 s{sT2}, s{sT2}, 10
    s_lshl_b32 s{sT3}, s{sG}, 11
    s_add_u32 s{sT3}, s{sT3}, s{sT2}""")
    return L
TOUCH = [x for x in opt("touch", "").split(",") if x]
vTCH = LT + 28
def touch(l0, n):
    m = ((1 << n) - 1) << l0
    return grp([f"s_mov_b32 exec_lo, {m & 0xffffffff:#x}", f"s_mov_b32 exec_hi, {m >> 32:#x}",
                vm(f"buffer_load_dword v{vFV}, v{vTCH}, {srd(sW2)}, 0 offen", "tch"),
                vm(f"buffer_load_dword v{vFV}, v{vTCH+1}, {srd(sWO)}, 0 offen", "tch"), "s_mov_b64 exec, -1"])
def wphi_dma():
    return grp([f"s_add_u32 m0, s{sT2}, {WPHI}", f"s_mov_b32 s{sCNT}, {SPIN}",
                vm(f"buffer_load_dwordx4 v{vL16}, {srd(sPH)}, s{sT3} offen lds", "misc")])

def consts2(ty):
    L = lines(f"""s_lshl2_add_u32 s{sT2}, s{sRB}, s{sSIG}
    s_lshl_b32 s{sT2}, s{sT2}, 9
    s_add_u32 s{sT2}, s{sT2}, {REC1}
    v_lshl_add_u32 v{vRA1}, v{u0}, 4, s{sT2}
    s_lshl_b32 s{sT2}, s{sH}, 9
    s_add_u32 s{sT2}, s{sT2}, {CW}
    v_lshl_add_u32 v{vCAR}, v{u0}, 4, s{sT2}
    s_lshl_b32 s{sT2}, s{sSIG}, 2
    v_add_u32 v{vCAW}, s{sT2}, v{vCAR}
    v_lshl_add_u32 v{t3}, v{u1}, 9, v{t3}
    v_add_u32 v{vA2B}, s{sM0R}, v{t3}
    s_mov_b32 s{sHALF}, -0.5
    s_mov_b32 s{sHALF+1}, -0.5
    s_mov_b32 s{sISQ}, 0x3f3504f3
    s_mov_b32 s{sISQ+1}, 0x3f3504f3
    s_mov_b32 s{sLOm}, -1
    s_mov_b32 s{sLOm+1}, 0
    s_mov_b32 s{sMASK}, 0xffff0000
    s_mov_b32 s{sMASK+1}, 0
    v_lshl_add_u32 v{u3}, v{u1}, 2, v{t0}
    v_lshlrev_b32 v{u3}, 5, v{u3}
    v_lshl_add_u32 v{u3}, v{t1}, 4, v{u3}
    v_bfe_u32 v{t3}, v{vL}, 1, 1
    v_lshl_add_u32 v{u3}, v{t3}, 3, v{u3}
    s_lshl_b32 s{sT2}, s{sH}, 10
    s_add_u32 s{sT2}, s{sT2}, {WPHI}
    v_add_u32 v{vPHA}, s{sT2}, v{u3}
    v_bfe_i32 v{vSGN}, v{vL}, 2, 1
    v_and_b32 v{vSGN}, 0x80008000, v{vSGN}""")
    L += [f"v_and_b32 v{vPL+i}, 0xffff, v{vPM+i}" for i in range(4)]
    L += lines(f"""s_lshr_b32 s{sT2}, s{sRB2}, 1
    s_lshl4_add_u32 s{sT2}, s{sT2}, s{sGAM}
    s_lshl_b32 s{sT2}, s{sT2}, 7
    s_add_u32 s{sT2}, s{sT2}, {REC1}
    v_and_b32 v{u3}, 8, v{vL}
    v_mul_u32_u24 v{u3}, 0x70, v{u3}
    v_and_b32 v{u2}, 15, v{vL}
    v_lshl_add_u32 v{u3}, v{u2}, 4, v{u3}
    v_add_u32 v{vFL}, s{sT2}, v{u3}""")
    if ty == 0:
        L += lines(f"""s_lshl_b32 s{sT4}, s{sSIG}, 5
        v_add_u32 v{u0}, s{sT4}, v{u0}
        v_bfe_u32 v{u2}, v{vL}, 1, 2
        v_lshlrev_b32 v{u3}, 1, v{u1}
        v_xor_b32 v{u2}, v{u2}, v{u3}
        s_lshl_b32 s{sT2}, s{sH}, 14
        s_add_u32 s{sT2}, s{sT2}, {PHI}
        v_lshl_add_u32 v{u2}, v{u2}, 4, s{sT2}
        v_lshl_add_u32 v{vPW0}, v{u0}, 6, v{u2}
        v_xor_b32 v{vPW1}, 16, v{vPW0}
        v_mul_u32_u24 v{u0}, 144, v{u0}
        v_add_u32 v{u0}, {VIMG}, v{u0}
        v_mov_b32 v{vTCH+2}, 0x3f803f80
        v_mov_b32 v{vTCH+3}, 0x3f803f80""") + [dsw(f"ds_write_b64 v{u0}, {v(vTCH+2,2)} offset:128")] + lines(f"""
        s_lshl_b32 s{sT2}, s{sH}, 6
        v_lshl_add_u32 v{vVW}, v{u1}, 4, s{sT2}
        v_add_u32 v{vVW}, v{vVW}, v{u0}
        v_lshl_add_u32 v{u1}, v{u1}, 3, v{t0}
        v_and_b32 v{u2}, 1, v{vL}
        v_lshl_add_u32 v{u2}, v{u2}, 1, v{t1}
        v_lshrrev_b32 v{u3}, 1, v{t0}
        v_xor_b32 v{u2}, v{u2}, v{u3}
        v_lshlrev_b32 v{u2}, 4, v{u2}
        v_lshl_add_u32 v{u2}, v{u1}, 6, v{u2}
        v_lshl_add_u32 v{u2}, v{t3}, 3, v{u2}
        s_lshl_b32 s{sT2}, s{sSIG}, 13
        s_add_u32 s{sT2}, s{sT2}, {PHI}
        v_add_u32 v{vKA0}, s{sT2}, v{u2}
        v_xor_b32 v{vKA1}, 32, v{vKA0}
        v_mul_u32_u24 v{u1}, 144, v{u1}
        v_add_u32 v{u2}, s{sT4}, v{t2}
        v_cmp_eq_u32 vcc, 1, v{t1}
        v_mov_b32 v{u3}, 128
        v_add_u32 v{u1}, {VIMG}, v{u1}
        v_cndmask_b32 v{u2}, v{u2}, v{u3}, vcc
        v_add_u32 v{vKB}, v{u1}, v{u2}""")
    else:
        L += lines(f"""s_lshl2_add_u32 s{sT2}, s{sG}, s{sSIG}
        s_mul_i32 s{sT2}, s{sT2}, {16*1152}
        s_add_u32 s{sT2}, s{sT2}, {KVD}
        v_lshrrev_b32 v{u3}, 4, v{vL}
        v_mul_u32_u24 v{u3}, 1152, v{u3}
        v_add_u32 v{u3}, s{sT2}, v{u3}
        s_lshl_b32 s{sT3}, s{sH}, 9
        v_lshlrev_b32 v{t2}, 4, v{u2}
        v_add3_u32 v{vGA}, v{u3}, v{t2}, s{sT3}
        v_bfe_u32 v{vGZ}, v{vL}, 1, 2
        v_mul_u32_u24 v{vGZ}, {4*1152}, v{vGZ}
        v_and_b32 v{t3}, 1, v{vL}
        v_lshl_add_u32 v{u3}, v{t3}, 4, v{u3}
        s_lshl_b32 s{sT3}, s{sH}, 5
        v_add3_u32 v{vGZ}, v{vGZ}, v{u3}, s{sT3}
        s_lshl3_add_u32 s{sT2}, s{sG}, s{sSIG}
        s_lshl4_add_u32 s{sT2}, s{sT2}, {REC1}
        v_lshl_add_u32 v{u3}, v{u2}, 11, s{sT2}
        v_cmp_eq_u32 vcc, 1, v{t1}
        s_mul_i32 s{sT2}, s{sGAM}, 544
        s_add_u32 s{sT2}, s{sT2}, {KVL}
        v_cndmask_b32 v{vFL}, v{vFL}, v{u3}, vcc
        v_lshl_add_u32 v{u3}, v{t1}, 3, s{sT2}
        v_mul_u32_u24 v{vKW}, 272, v{u1}
        v_add3_u32 v{vKW}, v{vKW}, v{u3}, v{t2}
        v_mul_u32_u24 v{vZW}, 272, v{t3}
        v_add_u32 v{vZW}, v{vZW}, v{u3}
        v_and_b32 v{u3}, 3, v{vL}
        v_bfe_u32 v{t3}, v{vL}, 2, 1
        v_lshl_add_u32 v{u3}, v{t3}, 3, v{u3}
        v_bfe_u32 v{t3}, v{vL}, 3, 1
        v_lshl_add_u32 v{u3}, v{t3}, 2, v{u3}
        v_cndmask_b32 v{u3}, v{u3}, 16, vcc
        v_lshlrev_b32 v{u3}, 4, v{u3}
        v_mul_u32_u24 v{u1}, 544, v{u1}
        s_mul_i32 s{sT3}, s{sH}, 2176
        s_add_u32 s{sT3}, s{sT3}, {KVL}
        v_add3_u32 v{vKR}, v{u3}, v{u1}, s{sT3}""")
    return L
def consts3(ty):
    return lines(f"""s_mov_b32 s{sOUT+2}, {2048*1024}
    s_mov_b32 s{sOUT+3}, 0x00020000
    s_and_b32 s{sT2}, s{sRB2}, 1
    s_lshl_b32 s{sT2}, s{sT2}, 1
    s_lshl_b32 s{sFM}, 0x3333, s{sT2}
    s_mov_b32 s{sFM+1}, 0
    """) + (lines(f"""s_lshl3_add_u32 s{sT2}, s{sRB2}, s{sW}
    s_lshl_b32 s{sR2}, s{sT2}, 7
    s_add_u32 s{sR2}, s{sR2}, {REC1}
    s_lshl_b32 s{sT2}, s{sT2}, 6
    s_add_u32 s{sT2}, s{sT2}, s{sCB}
    s_lshl_b32 s{sOB}, s{sT2}, 7""") if FL else lines(f"""
    s_lshl1_add_u32 s{sT2}, s{sRB2}, s{sH}
    s_lshl_b32 s{sR2}, s{sT2}, 9
    s_add_u32 s{sR2}, s{sR2}, {REC1}
    s_lshl_b32 s{sT2}, s{sT2}, 10
    s_lshl2_add_u32 s{sT3}, s{sCB}, s{sSIG}
    s_add_u32 s{sT2}, s{sT2}, s{sT3}
    s_lshl_b32 s{sOB}, s{sT2}, 5"""))

vACC, vWR = 64, 128
vOO, vRSA, vEC, vRS2, vRES, vRW, vRR, vC0, vS0 = 8, 9, 10, 14, 16, 20, 21, 22, 24
vMT = 16
def areg(j): return [192, 200, 208, 248][j % 12] if j % 12 < 4 else (184 + 8 * (j % 8) if j < 9 else 40 + 8 * (j - 9))
def wreg(j): return vWR + 8 * (j % 7)
WS_ = {}
def w_item(j, s):
    WS_[j] = s
    so = (f"s_mov_b32 s{sT0}, {j << 14}" if 8 <= j < 12 else f"s_xor_b32 s{sT0}, s{sRW if j < 8 else sRW2}, {(j % 12) << 14}")
    d, ad = (srd(sW2), vW2O) if j < 12 else (srd(sWO), vWOO)
    return grp([f"s_add_u32 m0, s{sM0R}, {s * SZ}", so,
                vm(f"buffer_load_dwordx4 v{ad}, {d}, s{sT0} offen lds", f"w{j}"),
                vm(f"buffer_load_dwordx4 v{ad+1}, {d}, s{sT0} offen offset:1024 lds", f"w{j}")])
def w_read(j):
    s = WS_[j]
    ad = [vA2L, vA2M, vA2T][s >> 2]; off = (s & 3) * SZ
    L = [wt(vm=f"w{j}")]
    for b in range(2):
        L.append(dsw(f"ds_read_b64_tr_b16 {v(wreg(j)+4*b,2)}, v{ad+b} offset:{off}", f"r{j}"))
        L.append(dsw(f"ds_read_b64_tr_b16 {v(wreg(j)+4*b+2,2)}, v{ad+b} offset:{off+1024}", f"r{j}"))
    return L
vBW, vBR = 38, 56
def w_raw(j):
    WS_[j] = -1
    return [grp([f"s_xor_b32 s{sT0}, s{sRW}, {j << 14}", vm(f"buffer_load_dwordx4 {v(wreg(j)+4,4)}, v{vW2O}, {srd(sW2)}, s{sT0} offen", f"w{j}")]),
            grp([f"s_xor_b32 s{sT0}, s{sRW}, {j << 14}", vm(f"buffer_load_dwordx4 {v(wreg(j)+8,4)}, v{vW2O+1}, {srd(sW2)}, s{sT0} offen offset:1024", f"w{j}")])]
def bnc_addrs():
    return lines(f"""s_lshr_b32 s{sT2}, s{sM0R}, 1
    s_sub_u32 s{sT3}, {BNC}, s{sT2}
    s_add_u32 s{sT2}, s{sT2}, {BNC}
    v_add_u32 v{vBW}, s{sT2}, v{vL16}
    v_add_u32 v{vBR}, s{sT3}, v{vA2L}
    v_add_u32 v{vBR+1}, s{sT3}, v{vA2L+1}""")
def w_conv(j):
    L = [wt(vm=f"w{j}")]
    for hf in range(2):
        L.append(dsw(f"ds_write_b128 v{vBW}, {v(wreg(j)+4+4*hf,4)}", f"r{j}"))
        L += [dsw(f"ds_read_b64_tr_b16 {v(wreg(j)+4*b+2*hf,2)}, v{vBR+b}", f"r{j}") for b in range(2)]
    return L
def w_refill(j, q):
    return [wt(lg=f"r{q}"), w_item(j, WS_[q])]
def p2_addrs():
    return lines(f"""v_mov_b32 v{vA2L}, v{vA2B}
    v_xor_b32 v{vA2L+1}, 64, v{vA2B}
    v_add_u32 v{vA2M}, {4*SZ}, v{vA2L}
    v_add_u32 v{vA2M+1}, {4*SZ}, v{vA2L+1}
    v_add_u32 v{vA2T}, {8*SZ}, v{vA2L}
    v_add_u32 v{vA2T+1}, {8*SZ}, v{vA2L+1}""")
def a_load(j, tag=None, st=(0, 1)):
    def p():
        if j < 8: a(f"s_xor_b32 s{sT1}, s{sRA}, {j << 11}")
        elif j < 12: a(f"s_movk_i32 s{sT1}, {j << 11}")
        else: a(f"s_xor_b32 s{sT1}, s{sRA2}, {(j - 12) << 11}\ns_add_u32 s{sT1}, s{sAO}, s{sT1}")
        for s in st:
            if not opt("noact", 0): a.vmem(f"buffer_load_dwordx4 {v(areg(j)+4*s,4)}, v{vACT}, {srd(sWS)}, s{sT1} offen offset:{1024*s} {'sc1' if j >= opt('asc', 0) else opt('asf', '')}", tag or f"a{j}")
    return fn(p, 3 * len(st) + 1)
def p6(body): skip_if(f"s_cmp_lt_u32 s{sW}, 3", body, "L_p6")
def p6f(L): return fn(lambda: p6(lambda: emits(L)), 6)
def selectors(tmp):
    L = lines(f"""v_and_b32 v{tmp}, 1, v{vL}
    v_mov_b32 v{tmp+1}, 0x3f80
    v_lshlrev_b32 v{tmp}, 4, v{tmp}
    v_lshlrev_b32 v{tmp+1}, v{tmp}, v{tmp+1}
    v_bfe_u32 v{tmp}, v{vL}, 1, 3""")
    for r in range(0, 8, 2):
        L += [grp([f"v_cmp_eq_u32 vcc, {r}, v{tmp}", f"v_cmp_eq_u32 {sp(sCM)}, {r+1}, v{tmp}",
                   f"v_cndmask_b32 v{vS0+r}, 0, v{tmp+1}, vcc", f"v_cndmask_b32 v{vS0+r+1}, 0, v{tmp+1}, {sp(sCM)}"])]
    return L
FL = opt("fl", 2)
WS2, TS2 = 2048, 2 * SZ + 128
def tail_addrs():
    x = vC0
    if FL: return lines(f"""v_bfe_u32 v{x}, v{vL}, 2, 2
    v_lshrrev_b32 v{x+1}, 5, v{vL}
    v_lshl_add_u32 v{x+1}, v{x+1}, 2, v{x}
    v_lshlrev_b32 v{vRSA}, 4, v{x+1}
    v_and_b32 v{vOO}, 16, v{vL}
    v_lshlrev_b32 v{vOO}, {2 * FL - 2}, v{vOO}
    v_lshl_add_u32 v{vOO}, v{x+1}, 10, v{vOO}
    v_and_b32 v{x+1}, 3, v{vL}
    v_lshl_add_u32 v{vOO}, v{x+1}, {6 - FL}, v{vOO}
    v_add_u32 v{vRW}, s{sM0R}, v{vL16}
    s_lshl_b32 s{sT2}, s{sH}, 16
    s_lshl_b32 s{sT3}, s{sSIG}, 7
    s_add_u32 s{sT2}, s{sT2}, s{sT3}
    v_lshl_add_u32 v{vRR}, v{x}, 4, s{sT2}
    v_and_b32 v{x}, 1, v{vL}
    v_mul_u32_u24 v{x}, {SZ + 64}, v{x}
    v_bfe_u32 v{x+1}, v{vL}, 1, 1
    v_mul_u32_u24 v{x+1}, {TS2}, v{x+1}
    v_add3_u32 v{vRR}, v{vRR}, v{x}, v{x+1}
    v_lshrrev_b32 v{x}, 4, v{vL}
    v_lshl_add_u32 v{vRR}, v{x}, 11, v{vRR}
    v_add_u32 v{x+1}, 0x10000, v{vRW}""")
    return lines(f"""v_and_b32 v{x}, 15, v{vL}
    v_lshrrev_b32 v{x+1}, 5, v{vL}
    v_lshl_add_u32 v{x+1}, v{x+1}, 4, v{x}
    v_lshlrev_b32 v{vRSA}, 4, v{x+1}
    v_and_b32 v{vOO}, 16, v{vL}
    v_lshl_add_u32 v{vOO}, v{x+1}, 10, v{vOO}
    v_add_u32 v{vRW}, s{sM0R}, v{vL16}
    s_lshr_b32 s{sT2}, s{sW}, 1
    s_and_b32 s{sT3}, s{sW}, 1
    s_lshl4_add_u32 s{sT2}, s{sT2}, s{sT3}
    s_lshl_b32 s{sT2}, s{sT2}, 10
    v_lshl_add_u32 v{x}, v{x}, 4, s{sT2}
    v_lshrrev_b32 v{x+1}, 4, v{vL}
    v_lshl_add_u32 v{vRR}, v{x+1}, 11, v{x}""")
def rs_load(tag="rs"): return vm(f"buffer_load_dwordx2 {P2(vRS2)}, v{vRSA}, {srd(sWS)}, s{sR2} offen offset:8 sc1", tag)
def res_load(): return vm(f"buffer_load_dwordx4 {v(vRES,4)}, v{vOO}, {srd(sX)}, s{sOB} offen", "res")
def ep_loads():
    a(f"v_lshlrev_b32 v{vBW}, 7, v{vL}")
    for i in range(4):
        a(f"s_mov_b32 s{sT2}, {REC1 + i*8192}")
        a(f"buffer_load_dword v{vEC+i}, v{vBW}, {srd(sWS)}, s{sT2} offen offset:12 sc1")
def if_first(body):
    a(f"s_or_b32 s{sT2}, s2, s{sW}")
    skip_if(f"s_cmp_eq_u32 s{sT2}, 0", body, "L_ep")
def maxchain(regs, d):
    L = []; regs = list(regs); first = True
    while regs:
        if first: x = regs[:3]; regs = regs[3:]; first = False
        else: x = [d] + regs[:2]; regs = regs[2:]
        L.append(f"v_max3_u32 v{d}, v{x[0]}, v{x[1]}, v{x[2]}" if len(x) == 3 else f"v_max_u32 v{d}, v{x[0]}, v{x[1]}")
    return L + [f"v_cmp_eq_u32 vcc, -1, v{d}"]
def sentinel(js, st):
    checked(maxchain([areg(j) + 4 * s for j in js for s in st], vC0), lambda: emits([a_load(j, "x", st) for j in js]), "L_s")
def step_mfma(j, st, first=False, gaps=()):
    gaps = list(gaps)
    for s in st:
        for b in range(2):
            acc = vACC + 32 * s + 16 * b
            a(f"{MF} {v(acc,16)}, {v(wreg(j)+4*b,4)}, {v(areg(j)+4*s,4)}, {'0' if first else v(acc,16)}")
            if gaps: emits(gaps.pop(0))
    for g in gaps: emits(g)

def c_loads(): return [p6f([a_load(10), a_load(11)]), a_load(8), a_load(9)]
def o_loads(): return [a_load(j, "o0", (0,)) for j in range(12, 16)] + [a_load(j, "o1", (1,)) for j in range(12, 16)]
WP = [[x for x in opt(k, "").split(",") if x] for k in ("awp", "bwp")]
def phase2(ty, side, GR, spec):
    def add(p, L): side[p] = side.get(p, []) + L
    assert sorted(WS_) == list(range(16))
    last = -1
    for x in WP[ty]:
        j, p = map(int, x.split("@")); assert p < j; last = p
        add(p, w_conv(j))
    for x in spec.split(","):
        n, p = x.split("@")
        assert n != "o" or int(p) >= 4
        assert n != "c" or int(p) >= last
        add(int(p), GR.pop(n))
    assert not set(GR) - set("hl"), GR
    add(5, [p6f(w_read(10) + w_read(11))])
    for j, k in ((7, 1), (8, 2), (9, 3), (12, 6), (13, 7), (14, 8), (15, 9)): add(k, w_read(j))
    for j in range(10):
        if j == 8:
            a.wait(vm="a9")
            sentinel((8, 9), (0, 1))
        a.wait(vm=f"a{j}", lg=f"r{j}")
        pt(f"s{j}")
        if j == 0: pt("f0")
        step_mfma(j, (0, 1), j == 0, split(side.get(j, []), 4))
    a.wait(lg="r12")
    def body():
        sentinel((10, 11), (0, 1))
        for j in (10, 11): step_mfma(j, (0, 1))
    p6(body)
    emits(side.get(10, []))
    pt("f1")
    a.wait(vm="o0", lg="all")
    if OSENT: sentinel(range(12, 16), (0,))
    pt("f2")
    checked([f"v_cmp_ne_u32 vcc, s{sTAG}, v{vRS2+1}"], rs_load("x"), "L_rs")
    vU = 216
    U = []
    for j in range(4): U += [f"v_lshlrev_b32 v{vU+2*j}, 16, v{vRES+j}", f"v_and_b32 v{vU+1+2*j}, s{sMASK}, v{vRES+j}"]
    G = split(U, 8)
    for j in range(12, 16): step_mfma(j, (0,), False, G[2*(j-12):2*(j-12)+2])
    a.wait(vm="o1")
    if OSENT: sentinel(range(12, 16), (1,))
    def pack(k):
        acc = vACC + 16 * k; L = []
        for hf in range(2):
            if FL == 2:
                d = vACC + 32 * (k >> 1) + 8 * (k & 1) + 4 * hf
                L += [f"v_cvt_pk_bf16_f32 v{d+i}, v{d+16*(i>>1)+2*(i&1)}, v{d+16*(i>>1)+2*(i&1)+1}" for i in range(4)]
                L += [dsw(f"ds_write_b128 v{vC0+1 if k > 1 else vRW}, {v(d,4)} offset:{(k&1)*TS2+(SZ+64)*hf}")]
                continue
            L += [f"v_cvt_pk_bf16_f32 v{acc+4*hf+i}, v{acc+8*hf+2*i}, v{acc+8*hf+2*i+1}" for i in range(4)]
            L += [dsw(f"ds_write_b128 v{vC0+1 if FL and k > 1 else vRW}, {v(acc+4*hf,4)} offset:{(k&1)*TS2+(SZ+64)*hf if FL else k*SZ+1024*hf}")]
        return L
    G = [[]] + split(pack(0) + pack(1), 7)
    for j in range(12, 16): step_mfma(j, (1,), False, G[2*(j-12):2*(j-12)+2])
    pt("f3")
    if ty == 0:
        def ep():
            checked([f"v_xor_b32 v{vEC+i}, s{sTAG}, v{vEC+i}" for i in range(4)] +
                    [f"v_or3_b32 v{vEC}, v{vEC}, v{vEC+1}, v{vEC+2}", f"v_or_b32 v{vEC}, v{vEC}, v{vEC+3}", f"v_cmp_ne_u32 vcc, 0, v{vEC}"],
                    ep_loads, "L_epc")
            a(f"""v_mov_b32 v{vEC}, s{sTAG}
            s_mov_b64 exec, 1
            buffer_store_dword v{vEC}, off, {srd(sWS)}, 0 sc1
            s_mov_b64 exec, -1""")
        if_first(ep)
    emits(pack(2) + pack(3))
    a.wait(lg="all")
    a("s_barrier")
    R = 224
    for p in range(4):
        for k in range(2):
            a.ds(f"ds_read_b128 {v(R+8*p+4*k,4)}, v{vRR} offset:{4*WS2*k+64*(p&1)+512*(p>>1) if FL else 8192*k+256*p}", f"t{p}{k}")
    D = vWR
    for p in (0, 2, 1, 3):
        for k in range(2):
            a.wait(lg=f"t{p}{k}")
            d = D + 4 * (p >> 1)
            a(f"{MF16} {v(d,4)}, {v(vS0+4*(p&1),4)}, {v(R+8*p+4*k,4)}, {'0' if (p & 1) == 0 and k == 0 else v(d,4)}")
    for j in range(0, 8, 2): a(f"v_pk_fma_f32 {P2(D+j)}, {P2(D+j)}, {P2(vRS2)}, {P2(vU+j)} op_sel_hi:[1,0,1]")
    for j in range(4): a(f"v_cvt_pk_bf16_f32 v{D+8+j}, v{D+2*j}, v{D+2*j+1}")
    a(f"buffer_store_dwordx4 {v(D+8,4)}, v{vOO}, {srd(sOUT)}, s{sOB} offen {opt('osf', 'sc1').replace('+', ' ')}")
    pt("end")
    a("s_branch L_fin")

def reads(T):
    tg = f"k{T}"; ks = T & 3
    if T < 32:
        off = ((T >> 2) & 3) * SZ; b = vWF + 8 * ks
        return [dsw(f"ds_read_b128 {v(vX+4*T,4)}, v{vXA+ks} offset:{off}", tg)] + [
                dsw(f"ds_read_b64_tr_b16 {v(b+2*i,2)}, v{vPM+ks} offset:{off+512*i}", tg) for i in range(4)]
    t = T - 32; s = RS[t >> 3]; ad = (vPL if s < 4 else vPM) + ks; off = (s & 3) * SZ + ((t >> 2) & 1) * 1024
    return [dsw(f"ds_read_b64_tr_b16 {v(vWF+4*ks+2*i,2)}, v{ad} offset:{off+512*i}", tg) for i in range(2)]
def bar(vmt=None, lg=None, name=None):
    def p():
        for x in ([vmt] if isinstance(vmt, str) else (vmt or [])): a.wait(vm=x)
        if lg: a.wait(lg=lg)
        if name: pt(name + "w")
        a("s_barrier")
        if name: pt(name)
    return fn(p, 1)
def put(S, T, L): S[T] = S.get(T, []) + list(L)
def spread(S, L, T0, T1):
    for i, G in enumerate(split(L, T1 - T0 + 1)): put(S, T0 + i, G)
def corr(quads, biases):
    L = [f"v_lshlrev_b32 v{b}, 16, v{b}" for b in biases if b] + [wt(lg="cw")]
    for q in quads: L += [f"v_add_f32 v{q}, v{q}, v{q+1}", f"v_add_f32 v{q+2}, v{q+2}, v{q+3}"]
    L += [f"v_add_f32 v{q}, v{q}, v{q+2}" for q in quads]
    return L + [f"v_cndmask_b32 v{q}, {v(b) if b else 0}, v{q}, {sLO}" for q, b in zip(quads, biases)]
SEQ = opt("seq", "x3/x4/x5/x6/x7/b0,b1/b2,b3").split("/")
DSP = opt("dsp", 1)
SPL = opt("spl", 3)
vQ2 = 44
def stream(ty, S, E):
    DQ = [L for n in opt("pre", "x2").split(",") if n for L in item(n)]
    for c in range(7): E[4 * c + 1] = [bar(f"x{c+1}", None, f"c{c}")] + E.get(4 * c + 1, [])
    S[29] = [dsw(f"ds_write_b32 v{vCAW}, v{vCS+4*i} offset:{1024*i}", "cw") for i in range(2)] + S.get(29, [])
    S[30] = [dsw(f"ds_read_b128 {v(vT+4*i,4)}, v{vCAR} offset:{1024*i}", "cw") for i in range(2)] + S.get(30, [])
    put(S, 31, corr((vT, vT + 4), (vBA, vBA + 1) if ty else (None, None)))
    S[32] = [f"{MF32} {v(K,16)}, v{q}, v{vBC}, {v(K,16)}" for K, q in ((K0, vT), (K1, vT + 4))] + S.get(32, [])
    S[61] = [dsw(f"ds_write_b32 v{vCAW}, v{vCS} offset:1024", "cw")] + S.get(61, [])
    S[62] = [dsw(f"ds_read_b128 {v(vQ2,4)}, v{vCAR} offset:1024", "cw")] + S.get(62, [])
    put(S, 63, corr((vQ2,), (None if ty else vBA,)) + [f"{MF32} {v(K2,16)}, v{vQ2}, v{vBC}, {v(K2,16)}"])
    emits(reads(0) + reads(1))
    for T in range(64):
        t = T & 31; ks = T & 3
        R = reads(T + 2) if T < 30 else (reads(32) + reads(33) if T == 30 else (reads(T + 3) if T + 3 < 64 else []))
        pt(f"T{T}")
        a.wait(lg=f"k{T}")
        F = S.get(T, [])
        if T < 32:
            b = vWF + 8 * ks
            G = split(F, 2)
            a(f"{MF} {v(K0,16)}, {v(b,4)}, {v(vX+4*t,4)}, {'0' if t == 0 else v(K0,16)}")
            emits(R[:SPL])
            if DQ and (DSP > 1 or T < 2): emits(DQ.pop(0))
            emits(G[0])
            a(f"{MF} {v(K1,16)}, {v(b+4,4)}, {v(vX+4*t,4)}, {'0' if t == 0 else v(K1,16)}")
            emits(R[SPL:])
            if DQ: emits(DQ.pop(0))
            if ks == 0:
                for i in range(2): a(f"{MF16} {v(vCS+4*i,4)}, {v(vSEL,4)}, {v(b+4*i,4)}, {'0' if t == 0 else v(vCS+4*i,4)}")
            emits(G[1])
        else:
            b = vWF + 4 * ks
            if ks == 0: a(f"{MF16} {v(vCS,4)}, {v(vSEL,4)}, {v(b,4)}, {'0' if t == 0 else v(vCS,4)}")
            a(f"{MF} {v(K2,16)}, {v(b,4)}, {v(vX+4*t,4)}, {'0' if t == 0 else v(K2,16)}")
            emits(R + F)
        if ks == 1: assert not DQ
        emits(E.get(T, []))
        if T < 28 and ks == 1:
            for n in SEQ[T >> 2].split(","):
                if n: DQ += item(n)
        if t == 31: pt(f"p{1 + (T >> 5)}")
    assert not DQ
PH = [vXA, vCS + 4]
def ph_reads(): return [dsw(f"ds_read_b64_tr_b16 {v(PH[i>>1]+2*(i&1),2)}, v{vPHA} offset:{256*i}", "ph") for i in range(4)]
def ph_signs(): return [wt(lg="ph")] + [f"v_xor_b32 v{PH[i>>2]+(i&3)}, v{vSGN}, v{PH[i>>2]+(i&3)}" for i in range(8)]
def start(ty, S, E):
    LATE = []
    if PRE2 & 8:
        C1 = consts1(ty); k = C1.index(f"s_movk_i32 s{sB1+2}, 2752")
        tch = [x for x in C1[:k] if callable(x)]
        C2 = consts2(ty) + bases(ty) + consts3(ty)
        def low(x): return isinstance(x, str) and x[:2] == "s_" and 36 <= int(x.split()[1].strip("s,")) < 48
        i = C2.index(f"s_lshl_b32 s{sFM}, 0x3333, s{sT2}")
        LATE = [tch + C1[k:], C2[i-2:i] + [x for x in C2 if low(x)]]
        L = B3[B3N:] + consts0(ty) + [x for x in C1[:k] if not callable(x)] + [f"s_lshl4_add_u32 s{sREC}, s{sREC}, {REC1}"] + [x for x in C2 if not low(x)]
        emits(merge(L, [grp(G) for n in PRO for G in item(n)], opt("x1a", 150), opt("x1b", 300)))
    else: emits(consts0(ty))
    pt("i1")
    a("s_waitcnt lgkmcnt(0)")
    if MW == 3: wtouch()
    if opt("mt", 15) == 2: emits(LATE[0][:1]); LATE[0] = LATE[0][1:]
    if PRE2 & 1: emits(consts1(ty) + [wphi_dma()])
    if PRE2 & 2: emits([f"s_lshl4_add_u32 s{sREC}, s{sREC}, {REC1}"] + consts2(ty) + bases(ty))
    if PRE2 & 4: emits(consts3(ty))
    LP = opt("lp", 5)
    OT = [vm(f"buffer_load_dword v{vFV}, off, {srd(sOUT)}, s{sOB}", "tch")] * opt("ot", 1)
    if LP < 0:
        k = opt("mt", 15) != 2
        emits(LATE[0][k:] + [wphi_dma()] + OT); LATE[0] = LATE[0][:k]
    pt("i2")
    a.wait(vm="x0")
    a("s_barrier")
    pt("p0")
    F0, F1, F2 = opt("f0", 6), opt("f1", 13), opt("f2", 26)
    RECP = opt("recp", 7)
    assert RECP >= max(F0, 5) and F1 % 4 == 1 and F2 <= 26
    spread(S, stats(), 0, F0)
    if MW >= 10: put(E, MW - 10, [fn(wtouch)])
    if opt("mt", 15) >= 10: put(E, opt("mt", 15) - 10, LATE[0][:1]); LATE[0] = LATE[0][1:]
    put(E, RECP, [rec_store()])
    if PRE2 & 8:
        if LP > 0: assert LP % 4 == 1 and LP <= F1; put(E, LP, LATE[0] + [wphi_dma()] + OT)
        elif LP < 0: put(S, F0 + 1, LATE[0])
        else: spread(S, LATE[0], F0 + 1, F1); put(E, F1, [wphi_dma()] + OT)
        spread(S, LATE[1], F1 + 1, F1 + 6)
    elif not PRE2 & 1:
        spread(S, consts1(ty), F0 + 1, F1)
        put(E, F1, [wphi_dma()])
    l0 = 0
    for x in TOUCH:
        T, n = map(int, x.split(":")); assert F0 + 3 <= T <= 28
        put(E, T, [touch(l0, n)]); l0 += n
    if not PRE2 & 10: spread(S, consts2(ty) + bases(ty), (F0 if PRE2 & 1 else F1) + 1, F2)
    if not PRE2 & 12: spread(S, consts3(ty), 27, 28)
    put(E, opt("rpos", 24), [rec1_load()])
    def rec():
        a.wait(vm="rec1")
        checked([f"v_cmp_ne_u32 vcc, s{sTAG}, v{vRSTD}"], rec1_load("x"), "L_rec1")
    put(S, 29, [fn(rec), f"v_cndmask_b32 v{vBC}, v{vSD}, v{vBC}, {sLO}", f"v_mov_b32 v{vRSTD}, v{vC1}", f"v_mul_f32 v{vC1}, {LOG2E}, v{vC1}"])
    put(E, 29, [bar("b1", "all", "e1")] + [poll(0)] * ty)
    put(S, 27, [f"v_mov_b32 v{vT}, -1"])
    put(S, 30, p2_addrs() + [f"v_mov_b32 v{vA2B}, -1"])
    put(E, 44, [poll_check(0)] * ty + [bar("b3", "all", "m2"), f"v_lshlrev_b32 v{vFL}, 3, v{vFL}"])
def rest():
    fs = [x for x in range(9) if x not in WS_.values()]
    return [w_item(j, fs.pop(0)) for j in range(16) if j not in WS_]
def place(M, spec, GR, nm="M"):
    ins = {}
    for x in [y for y in spec.split(",") if y]:
        n, r = x.split("@"); r = [int(y) for y in r.split("-")]; L = GR.pop(n)
        for i, y in enumerate(L): ins.setdefault(r[0] + (r[-1] - r[0]) * i // len(L), []).append(y)
    for i in range(300):
        pt(f"{nm}{i}")
        emits(ins.get(i, []))
        if i < len(M): emit(M[i])
def sched(S, spec, free):
    for x in spec.split(","):
        n, T = x.split("@"); T = int(T)
        if n[0] == "r":
            j = int(n[1:]); assert T >= 34 + 2 * j
            for i, g in enumerate(w_raw(j)): put(S, T + i, [g])
        elif n[0] == "c": assert T != 30; put(S, T, [clr2(*CLR[int(n[1:])], T)])
        else:
            j, sl = map(int, n.split(":")); assert T > free[sl], x
            put(S, T, [w_item(j, sl)])

def witems(spec):
    L = []
    for x in [y for y in spec.split(",") if y]:
        j, sl = map(int, x.split(":")); L.append(w_item(j, sl))
    return L
st1 = a.save()
a(f"""s_bitcmp1_b32 s2, 7
s_cbranch_scc1 L_B""")
TYPE[0] = 0
S, E = {}, {}
start(0, S, E)
put(S, 30, ph_reads())
put(S, 32, ph_signs())
V = []
for hf in range(2):
    V += [f"v_mul_f32 v{K1+8*hf+i}, v{K1+8*hf+i}, v{vRSTD}" for i in range(8)]
    V += [f"v_cvt_pk_bf16_f32 v{K1+8*hf+i}, v{K1+8*hf+2*i}, v{K1+8*hf+2*i+1}" for i in range(4)]
    V += [dsw(f"ds_write_b128 v{vVW}, {v(K1+8*hf,4)} offset:{32*hf}")]
L = [f"v_cvt_pk_bf16_f32 v{vT+j}, v{K0+2*j}, v{K0+2*j+1}" for j in range(8)]
L += [ptf("L1")] + V[:2] + [f"{MF} {v(K0,16)}, {v(PH[0],4)}, {v(vT,4)}, 0"] + V[2:] + [f"{MF} {v(K1,16)}, {v(PH[1],4)}, {v(vT+4,4)}, 0"]
PKA = opt("pka", 1)
for hd, P in enumerate((K0, K1)):
    L += [ptf(f"L{2+hd}")] + softmax(P, P, PKA, vT)
    L += [dsw(f"ds_write_b128 v{vPW0}, {v(P,4)} offset:{hd*8192}"), dsw(f"ds_write_b128 v{vPW1}, {v(P+4,4)} offset:{hd*8192}")]
SPOS = opt("spos", 36)
KI = witems(opt("ki", "8:7"))
if KI: L = merge(L, KI, opt("ki0", 60))
spread(S, L, opt("ka", 33), SPOS)
FS = 44 if SPOS < 44 else 61
CLR = [(sSB0, 0), (sSB0, 2048)]
put(S, opt("fpa", 48), flag_store(1, "clr"))
sched(S, opt("sa", "c0@28,c1@28,7:6@31,r0@38,r1@41,r2@44,r3@46,9:0@48,r4@50,r5@53,r6@56,12:4@59"),
      {6: 29, 7: 29, 0: 44, 4: 44, 1: 61, 5: 61, 2: FS, 3: FS, 8: FS})
def kv():
    KB = [K1, K1 + 8, vT]
    def kv_reads(t):
        b = KB[t % 3]
        a.ds(f"ds_read_b64_tr_b16 {v(b,2)}, v{vKA0} offset:{t*1024}", f"kv{t}")
        a.ds(f"ds_read_b64_tr_b16 {v(b+2,2)}, v{vKA1} offset:{t*1024+256}", f"kv{t}")
        a.ds(f"ds_read_b64_tr_b16 {v(b+4,2)}, v{vKB} offset:{t*2304}", f"kv{t}")
        a.ds(f"ds_read_b64_tr_b16 {v(b+6,2)}, v{vKB} offset:{t*2304+576}", f"kv{t}")
    if opt("kprio", 1): a("s_setprio 2")
    for t in range(3): kv_reads(t)
    for t in range(8):
        a.wait(lg=f"kv{t}")
        b = KB[t % 3]
        a(f"{MF} {v(K0,16)}, {v(b,4)}, {v(b+4,4)}, {'0' if t == 0 else v(K0,16)}")
        if t >= 1 and t + 2 < 8: kv_reads(t + 2)
    for i in range(8): a(f"v_cvt_pk_bf16_f32 v{K1+i}, v{K0+2*i}, v{K0+2*i+1}")
    for i in range(4): a(f"v_permlane16_swap_b32 v{K1+i}, v{K1+4+i}")
    a(f"""buffer_store_dwordx4 {v(K1,4)}, v{vL16}, {srd(sWS)}, s{sC0} offen sc1
    s_mov_b32 exec_lo, 0x00010001
    s_mov_b32 exec_hi, 0x00010001
    buffer_store_dwordx4 {v(K1+4,4)}, v{vL}, {srd(sWS)}, s{sC0} offen offset:1024 sc1
    s_mov_b64 exec, -1""")
    if opt("kprio", 1): a("s_setprio 0")
    pt("kv")
put(E, SPOS, [bar(None, "all", "S"), fn(lambda: skip_if(f"s_cmp_eq_u32 s{sH}, 0", kv, "L_kv"))])
spread(S, selectors(K1), max(SPOS + 2, 50), 61)
CPR = opt("cpr", 1)
put(E, 61, [bar(None, "all", "Y"), p6f([w_item(10, 1), w_item(11, 5)])] + ["s_setprio 3"] * CPR)
stream(0, S, E)
def groups():
    G = {"a": [a_load(j) for j in range(4)], "b": [a_load(j) for j in range(4, 8)], "c": c_loads(), "o": o_loads(),
         "w": bnc_addrs() + sum([w_conv(j) for j in range(7 - len(WP[TYPE[0]]))], []), "s": rest(), "r": [rs_load(), res_load()]}
    if opt("bsp", 0): G["q"] = G["b"][2:]; G["b"] = G["b"][:2]
    for k in (1,): G[f"p{k}"] = [poll(k)]; G[f"k{k}"] = [poll_check(k)]
    return G
GR = groups()
place(mish_store(K2, True, sSB0, vMT) + ["s_setprio 0"] * CPR + [ptf("ms")] + tail_addrs(), opt("ao", "s@0-20,p1@12,w@40-90,k1@30,a@30-44,b@78-90,r@106"), GR)
phase2(0, {1: [fn(lambda: if_first(ep_loads), 4)]}, GR, opt("ap", "c@4,o@9"))

a.label("L_B")
a.restore(st1)
TYPE[0] = 1
WS_.clear()
S, E = {}, {}
start(1, S, E)
J0 = opt("j0", 21)
assert J0 % 4 == 1
put(E, J0, [w_item(7, 8)])
CLR = [(sC0, 0), (sC0, 2048)]
sched(S, opt("sb", "c0@28,c1@28," * OSENT + "8:2@31,r0@37,r1@40,r2@43,r3@46,r4@49,r5@52,r6@55"),
      {2: 29, 3: 29, 6: 29, 7: 29, 0: 44, 4: 44})
PKB = opt("pkb", 1)
MB = mish_store(K0, PKB, sSB0, vT) + mish_store(K1, PKB, sC1, vT) + selectors(K0 + 8)
MI = witems(opt("mi", "9:3,12:6,13:7"))
if MI: MB = merge(MB, MI, opt("mi0", 20))
spread(S, MB, 33, opt("ma", 35))
FPB = opt("fpb", 58)
if FPB: put(S, FPB, flag_store(1, "st"))
put(S, 56, ph_reads()); put(S, 62, ph_signs())
put(E, 61, [bar(None, "all", "Y"), p6f([w_item(10, 1), w_item(11, 5)])] + ["s_setprio 3"] * CPR)
vTL = [K0 + 4 * i for i in range(8)]; vZL = 128 if opt("gpos", 0) else 64
Q0, Q1 = 216, 232
def t_load(i, tag=None):
    def p():
        a(f"s_movk_i32 s{sT1}, {(i>>1)*4*1152}")
        a.vmem(f"buffer_load_dwordx4 {v(vTL[i],4)}, v{vGA}, {srd(sWS)}, s{sT1} offen offset:{(i&1)*256} sc1", tag or "t")
    return fn(p, 4)
def z_load(tag=None): return vm(f"buffer_load_dwordx4 {v(vZL,4)}, v{vGZ}, {srd(sWS)}, 0 offen offset:1024 sc1", tag or "t")
GL = [z_load()] + [t_load(i) for i in range(8)]
GPOS = opt("gpos", 0)
if GPOS:
    assert GPOS > 44
    spread(S, [ptf("g0")] + GL, GPOS, opt("gend", 61))
PP = opt("pp", 0)
if PP: put(S, PP, [poll(1)])
stream(1, S, E)
for j in range(8): a(f"v_cvt_pk_bf16_f32 v{K2+j}, v{K2+2*j}, v{K2+2*j+1}")
a(f"{MF} {v(Q0,16)}, {v(PH[0],4)}, {v(K2,4)}, 0")
a(f"{MF} {v(Q1,16)}, {v(PH[1],4)}, {v(K2+4,4)}, 0")
M = softmax(Q0, Q0, True, 20) + softmax(Q1, Q0 + 8, True, 20)
print("B list", len(M))
GR = groups()
GR.update({"h": ["s_setprio 3"], "l": ["s_setprio 0"]})
if not GPOS: GR["g"] = GL
if PP: GR.pop("p1")
if not FPB: GR["f"] = flag_store(1, "st")
vD, vDZ = K2 + 8, K2 + 12
vKF = 64
def got():
    pt("sm")
    a.wait(vm="t")
    checked(maxchain(vTL + [vZL], vD), lambda: emits([z_load("x")] + [t_load(i, "x") for i in range(8)]), "L_t")
    pt("g")
D = [fn(got), f"{MF16} {v(vDZ,4)}, {v(vS0,4)}, {v(vZL,4)}, 0"]
D += [f"{MF16} {v(vD,4)}, {v(vS0+4*(i&1),4)}, {v(vTL[i],4)}, {'0' if i == 0 else v(vD,4)}" for i in range(8)]
for sh in (2, 4):
    D += [f"v_add_f32_dpp v{vDZ+j}, v{vDZ+j}, v{vDZ+j} row_ror:{sh} row_mask:0xf bank_mask:0xf" for j in range(4)]
D += [f"v_cvt_pk_bf16_f32 v{vDZ}, v{vDZ}, v{vDZ+1}", f"v_cvt_pk_bf16_f32 v{vDZ+1}, v{vDZ+2}, v{vDZ+3}",
      grp(["s_mov_b64 exec, 0x30003", dsw(f"ds_write_b64 v{vZW}, {v(vDZ,2)} offset:256"), "s_mov_b64 exec, -1"]),
      f"v_cvt_pk_bf16_f32 v{vD}, v{vD}, v{vD+1}", f"v_cvt_pk_bf16_f32 v{vD+1}, v{vD+2}, v{vD+3}", dsw(f"ds_write_b64 v{vKW}, {v(vD,2)}")]
GR["d"] = D
GR["e"] = [bar(None, "all", "K")] + [dsw(f"ds_read_b128 {v(vKF+8*hh+4*j,4)}, v{vKR} offset:{hh*1088+j*272}", f"kf{hh}") for hh in range(2) for j in range(2)]
place(M, opt("bo", "g@0-20,p1@21,s@30-60,d@100,k1@120,a@120,e@122"), GR)
X = split(tail_addrs(), 3)
emits(X[0])
OD = [K2, K1]
for hh in range(2):
    a.wait(lg=f"kf{hh}")
    a(f"{MF} {v(OD[hh],16)}, {v(vKF+8*hh,4)}, {v(Q0+8*hh,4)}, 0")
    a(f"{MF} {v(OD[hh],16)}, {v(vKF+8*hh+4,4)}, {v(Q0+8*hh+4,4)}, {v(OD[hh],16)}")
emits(X[1] + X[2])
for D in OD: a(f"v_add_f32 v{D+8}, 0x358637bd, v{D+8}")
for D in OD: a(f"v_rcp_f32 v{D+8}, v{D+8}")
for D in OD: a(f"v_mul_f32 v{D+8}, v{D+8}, v{vSD}")
for hh, D in enumerate(OD):
    for i in range(0, 8, 2): a(f"v_pk_mul_f32 {P2(D+i)}, {P2(D+i)}, {P2(D+8)} op_sel_hi:[1,0]")
    for i in range(4): a(f"v_cvt_pk_bf16_f32 v{D+12+i}, v{D+2*i}, v{D+2*i+1}")
    frag_store(D + 12, sC0, hh)()
if CPR: a("s_setprio 0")
pt("o")
W = GR.pop("w", [])
place(W, opt("bn", "r@10"), GR, "N")
phase2(1, {}, GR, opt("bp", "b@0,c@2,o@5"))

for blk in retries: blk()
a.label("L_fin")
if STAMP >= 0:
    n = nst[0]
    a(f"""s_cmp_eq_u32 s{sW}, {STAMP}
    s_cbranch_scc0 L_end
    s_waitcnt lgkmcnt(0)
    s_sub_u32 s{sT0}, {SPIN}, s{sCNT}
    s_mul_i32 s{sT0}, s{sT0}, 100
    s_add_u32 s{sST0+2}, s{sST0}, s{sT0}
    s_addc_u32 s{sST0+3}, s{sST0+1}, 0
    s_mul_i32 s{sT0}, s2, {n*8}
    s_add_u32 s{sT0}, s{sT0}, {STAMP_OFF}
    s_mov_b64 exec, 1""")
    for i in range(n):
        a(f"v_mov_b32 v{64+2*i}, s{sST0+2*i}")
        a(f"v_mov_b32 v{65+2*i}, s{sST0+2*i+1}")
        a(f"buffer_store_dwordx2 {v(64+2*i,2)}, off, {srd(sWS)}, s{sT0} offset:{i*8}")
a.label("L_end")
a.pad()
open(out_path, "w").write(header(256, 512, LDS_SIZE) + a.text() + footer(vgpr=256))
print("instructions:", sum(1 for x in a.L if x.states), "nops:", sum(1 for x in a.L if x.kind == "nop"), "stamps", nst[0])
```
